```python
import torch

def _softmax(x, axis=-1):
    return torch.softmax(x, dim=axis)
def _gelu(x):
    return torch.nn.functional.gelu(x, approximate="tanh")
def _silu(x):
    return torch.nn.functional.silu(x)
def _sigmoid(x):
    return torch.sigmoid(x)
def _layernorm(x, axis=-1, eps=1e-5):
    m = x.mean(dim=axis, keepdim=True)
    v = x.var(dim=axis, keepdim=True, unbiased=False)
    return (x - m) / torch.sqrt(v + eps)
def _scatter_add(tgt, idx, src, axis=0):
    return tgt.clone().index_add_(axis, idx, src)
def _segment_sum(src, seg, n):
    out = torch.zeros((n,) + src.shape[1:], dtype=src.dtype)
    return out.index_add_(0, seg, src)
def _pad(x, pw):
    flat = tuple(v for pair in reversed(pw) for v in pair)
    return torch.nn.functional.pad(x, flat)

kernel_name = 'gated_mix__sliding_block__dense_activation_relu__prompt'

def setup_inputs():

    _w = (lambda a: (lambda t: t.to(torch.bfloat16) if t.is_floating_point() else t)(torch.as_tensor(a)))
    def _A_setup():
        B, S, D = 1, 2048, 640
        return {
            "x": _w((lambda *s: torch.randn(*s, dtype=torch.bfloat16) * 0.05)(B, S, D)),
            "wqkv": _w((lambda *s: torch.randn(*s, dtype=torch.bfloat16) * 1.6)(D, 3 * D)),
            "wo": _w((lambda *s: torch.randn(*s, dtype=torch.bfloat16) * 0.05)(D, D)),
        }
    _A_in = _A_setup()

    def _B_setup():
        B, S, D, Dff = 1, 2048, 640, 1536
        return {
            "x": _w((lambda *s: torch.randn(*s, dtype=torch.bfloat16) * 0.05)(B, S, D)),
            "w1": _w((lambda *s: torch.randn(*s, dtype=torch.bfloat16) * 0.2)(D, Dff)),
            "w2": _w((lambda *s: torch.randn(*s, dtype=torch.bfloat16) * 0.2)(Dff, D)),
        }
    _B_in = _B_setup()

    return {
        "A_x": _A_in["x"],
        "A_wqkv": _A_in["wqkv"],
        "A_wo": _A_in["wo"],
        "B_x": _B_in["x"],
        "B_w1": _B_in["w1"],
        "B_w2": _B_in["w2"],
        "gate_w": _w((lambda *s: torch.randn(*s, dtype=torch.bfloat16) * 0.05)(640) * 16.0),
    }

def reference(A_x, A_wqkv, A_wo, B_x, B_w1, B_w2, gate_w):
    def _A_ref(x, wqkv, wo):
        B, S, D = x.shape
        H = 32; Dh = D // H; W = 256
        qkv = (lambda x, *d: x.permute(*d))((x @ wqkv).reshape(B, S, 3, H, Dh), 2, 0, 3, 1, 4)
        q, k, v = qkv[0], qkv[1], qkv[2]
        scores = torch.einsum("bhqd,bhkd->bhqk", q, k) * (Dh ** -0.5)
        idx = torch.arange(S)
        mask = (idx[:, None] - idx[None, :] >= 0) & (idx[:, None] - idx[None, :] < W)
        scores = torch.where(mask[None, None], scores, -1e9)
        p = _softmax(scores, axis=-1)
        o = torch.einsum("bhqk,bhkd->bhqd", p, v)
        return (lambda x, *d: x.permute(*d))(o, 0, 2, 1, 3).reshape(B, S, D) @ wo

    def _B_ref(x, w1, w2):
        h = torch.einsum("bsd,df->bsf", x, w1)
        zero = torch.zeros_like(h)
        h = torch.maximum(h, zero)
        return torch.einsum("bsf,fd->bsd", h, w2)

    x = A_x
    g = _sigmoid((x * gate_w).sum(-1, keepdims=True))
    a = _A_ref(x, A_wqkv, A_wo)
    b = _B_ref(x, B_w1, B_w2)
    return g * a + (1 - g) * b
```

```python
import re

def _expand(tok):
    tok = tok.strip()
    neg = tok.lstrip('-')
    m = re.fullmatch(r'abs\((.*)\)', neg)
    if m: neg = m.group(1)
    m = re.fullmatch(r'([vsa])(\d+)', neg)
    if m: return [(m.group(1), int(m.group(2)))]
    m = re.fullmatch(r'([vsa])\[(\d+):(\d+)\]', neg)
    if m: return [(m.group(1), i) for i in range(int(m.group(2)), int(m.group(3)) + 1)]
    if neg == 'vcc': return [('s', 106), ('s', 107)]
    if neg == 'exec': return [('s', 126), ('s', 127)]
    if neg == 'm0': return [('s', 124)]
    if neg in ('vcc_lo',): return [('s', 106)]
    if neg in ('vcc_hi',): return [('s', 107)]
    return []

TRANS = ('v_exp_f32', 'v_log_f32', 'v_rcp_f32', 'v_rsq_f32', 'v_sqrt_f32', 'v_sin_f32', 'v_cos_f32')

class Ins:
    __slots__ = ('text', 'op', 'rd', 'wr', 'kind', 'ops')
    def __init__(self, text):
        self.text = text
        t = text.split(';')[0].strip()
        self.rd = set(); self.wr = set(); self.kind = 'other'; self.op = ''; self.ops = []
        if not t or t.endswith(':') or t.startswith('.'):
            self.kind = 'label' if t.endswith(':') else 'none'
            self.op = t
            return
        parts = t.split(None, 1)
        op = parts[0]; self.op = op
        rest = parts[1] if len(parts) > 1 else ''
        ops = [o.strip() for o in rest.split(',')] if rest else []
        clean = []
        for o in ops:
            toks = o.split()
            clean.append(toks[0] if toks else '')
        self.ops = clean
        R = lambda toks: set(x for tk in toks for x in _expand(tk))
        if op.startswith('v_mfma'):
            self.kind = 'mfma'
            self.wr = R(clean[:1]); self.rd = R(clean[1:])
        elif op.startswith('v_cmp'):
            self.kind = 'valu'
            self.wr = R(clean[:1]); self.rd = R(clean[1:])
            if op.startswith('v_cmpx'): self.wr |= R(['exec'])
        elif op.startswith('v_permlane') and 'swap' in op:
            self.kind = 'permlane'
            self.wr = R(clean[:2]); self.rd = R(clean[:2])
        elif op.startswith('v_readfirstlane') or op.startswith('v_readlane'):
            self.kind = 'readlane'
            self.wr = R(clean[:1]); self.rd = R(clean[1:])
        elif op.startswith('v_'):
            self.kind = 'trans' if op.replace('_e32', '').replace('_e64', '') in TRANS else 'valu'
            if '_dpp' in op or 'row_' in t or 'quad_perm' in t: self.kind = 'dpp'
            nd = 1
            if op.startswith('v_add_co') or op.startswith('v_addc_co') or op.startswith('v_sub_co') or op.startswith('v_mad_u64'):
                nd = 2
            self.wr = R(clean[:nd]); self.rd = R(clean[nd:])
            if op.startswith('v_fmac') or op.startswith('v_dot2c') or op.startswith('v_writelane'):
                self.rd |= R(clean[:1])
            if op.startswith('v_cndmask') and len(clean) == 3: self.rd |= R(['vcc'])
        elif op.startswith('buffer_') or op.startswith('global_'):
            self.kind = 'vmem'
            lds = ' lds' in (' ' + t)
            if 'store' in op or ('atomic' in op):
                self.rd = R(clean)
                self.kind = 'vmem_store'
            elif op in ('buffer_inv', 'buffer_wbl2'):
                pass
            elif lds:
                self.rd = R(clean) | R(['m0'])
            else:
                self.wr = R(clean[:1]); self.rd = R(clean[1:])
        elif op.startswith('ds_'):
            self.kind = 'ds'
            if op.startswith('ds_write') or op.startswith('ds_add_u32'):
                self.rd = R(clean)
            else:
                self.wr = R(clean[:1]); self.rd = R(clean[1:])
        elif op.startswith('s_'):
            self.kind = 'salu'
            if op.startswith('s_nop'):
                self.kind = 'nop'
            elif op.startswith('s_cmp') or op.startswith('s_cbranch') or op.startswith('s_branch') or op in ('s_waitcnt', 's_barrier', 's_endpgm', 's_sleep', 's_setprio'):
                self.rd = R(clean)
                if op.startswith('s_cbranch') or op == 's_branch': self.kind = 'branch'
            else:
                self.wr = R(clean[:1]); self.rd = R(clean[1:])
                if 'saveexec' in op: self.wr |= R(['exec'])
    def states(self):
        if self.kind in ('label', 'none'): return 0
        if self.kind == 'nop': return int(self.ops[0]) + 1
        return 1

VALU_KINDS = ('valu', 'trans', 'dpp', 'permlane', 'readlane')

def mfma_passes(op):
    if '32x32x16' in op or '32x32x8' in op: return 8
    if '16x16x32' in op or '16x16x16' in op: return 4
    raise ValueError(op)

def required(p, c):
    need = 0
    isv = lambda S: set(x for x in S if x[0] in 'va')
    iss = lambda S: set(x for x in S if x[0] == 's')
    if p.kind in VALU_KINDS:
        pv = isv(p.wr); ps = iss(p.wr)
        if c.kind == 'mfma' and pv & c.rd: need = max(need, 2)
        if c.kind == 'permlane' and pv & c.rd: need = max(need, 2)
        if c.kind == 'dpp' and pv & c.rd: need = max(need, 2)
        if c.kind == 'readlane' and pv & c.rd: need = max(need, 1)
        if p.kind == 'trans' and c.kind in VALU_KINDS + ('mfma',) and c.kind != 'trans' and pv & c.rd: need = max(need, 1)
        if p.kind == 'trans' and c.kind in ('vmem', 'vmem_store', 'ds') and pv & c.rd: need = max(need, 1)
        if ps:
            if c.kind in ('vmem', 'vmem_store') and ps & c.rd: need = max(need, 5)
            if c.kind in VALU_KINDS and ps & c.rd: need = max(need, 2 if c.kind != 'readlane' else 4)
            if c.kind == 'mfma' and ('s', 126) in ps: need = max(need, 4)
            if ('s', 126) in ps and c.kind in ('dpp',): need = max(need, 5)
            if ('s', 126) in ps and c.kind in ('readlane', 'permlane'): need = max(need, 4)
            if c.kind in ('salu', 'branch') and ps & c.rd: need = max(need, 1)
    if p.kind == 'salu':
        if ('s', 124) in p.wr and c.kind == 'vmem' and ('s', 124) in c.rd: need = max(need, 1)
    if p.kind == 'mfma':
        n = mfma_passes(p.op)
        big = {4: 8, 8: 12}[n]; ovl = {4: 6, 8: 10}[n]; war = {4: 3, 8: 7}[n]
        D = p.wr
        if c.kind == 'mfma':
            cC = set(x for x in _expand(c.ops[3])); cAB = set(_expand(c.ops[1])) | set(_expand(c.ops[2]))
            if D & cAB: need = max(need, big)
            if D & cC:
                if not (c.ops[3] == p.ops[0] and mfma_passes(c.op) == n): need = max(need, ovl)
            if (D & c.wr) and not (D & cC): need = max(need, ovl)
        elif c.kind in VALU_KINDS:
            if D & (c.rd | c.wr): need = max(need, big)
            pC = set(_expand(p.ops[3]))
            if pC & c.wr: need = max(need, war)
        elif c.kind in ('vmem', 'vmem_store', 'ds'):
            if D & (c.rd | c.wr): need = max(need, big)
    if p.kind == 'vmem_store' and ('x4' in p.op or 'x3' in p.op):
        data = isv(set(_expand(p.ops[0]))) if p.op.startswith('buffer') else isv(set(_expand(p.ops[1])))
        if c.kind in VALU_KINDS and data & c.wr: need = max(need, 2)
        elif data & c.wr: need = max(need, 1)
    return need

WINDOW = 20

class Asm:
    def __init__(self):
        self.lines = []
    def __call__(self, s):
        for l in s.strip('\n').split('\n'):
            self.lines.append(l)
    def label(self, name): self.lines.append(name + ':')
    def fix(self):
        out = []
        for l in self.lines:
            c = Ins(l.strip())
            if c.kind not in ('label', 'none', 'nop'):
                dist = 0; need = 0
                for p in reversed(out):
                    if dist >= WINDOW: break
                    if p.kind not in ('label', 'none', 'nop'):
                        r = required(p, c)
                        if r > dist: need = max(need, r - dist)
                    dist += p.states()
                while need > 0:
                    k = min(need, 16)
                    out.append(Ins(f's_nop {k-1}'))
                    need -= k
            out.append(c)
        labels = {i.op[:-1]: n for n, i in enumerate(out) if i.kind == 'label'}
        problems = []
        for n, i in enumerate(out):
            if i.kind == 'branch':
                tgt = labels.get(i.ops[0])
                if tgt is None: continue
                pre = [x for x in out[max(0, n - 40):n + 1]]
                post = [x for x in out[tgt:tgt + 40]]
                seq = pre
                dist_after = 0
                for c in post:
                    if c.kind not in ('label', 'none', 'nop'):
                        dist = dist_after
                        for p in reversed(seq):
                            if dist >= WINDOW: break
                            if p.kind not in ('label', 'none', 'nop'):
                                r = required(p, c)
                                if r > dist:
                                    problems.append(f'branch hazard: "{p.text}" -> [{i.text}] -> "{c.text}" need {r} have {dist}')
                            dist += p.states()
                    dist_after += c.states()
                    if c.kind == 'branch' and c.op == 's_branch': break
                    if dist_after >= WINDOW: break
        if problems:
            raise RuntimeError('\n'.join(problems))
        return '\n'.join((i.text if i.kind == 'label' or i.text.startswith('.') or i.text.startswith(';') else '    ' + i.text) for i in out) + '\n'

def vr(a, n=1):
    return f'v{a}' if n == 1 else f'v[{a}:{a+n-1}]'
def sr(a, n=1):
    return f's{a}' if n == 1 else f's[{a}:{a+n-1}]'
```

```python
from asmlib import *

WS_QK   = 0x000000
WS_VT   = 0x600000
WS_H    = 0x880000
WS_OP   = 0xE80000
WS_G    = 0x1100000
WS_FLAG = 0x1102000
WS_END  = 0x1103000

WS_PROF = 0x1200000
def stamp(A, opts, idx, sreg=90):
    if not opts.get('prof'): return
    A(f'    s_memtime s[{70+2*idx}:{71+2*idx}]')
    if idx == 0 or idx == 7:
        A(f'    s_memrealtime s[{86+2*(idx != 0)}:{87+2*(idx != 0)}]')

def stamp_flush(A, opts, n, wave_slot_sreg, srd='s[92:95]'):
    if not opts.get('prof'): return
    A(f'''
    s_waitcnt lgkmcnt(0)
    s_lshl_b32 s96, s2, 3
    s_add_u32 s96, s96, {wave_slot_sreg}
    s_lshl_b32 s96, s96, 7
    s_add_u32 s96, s96, {WS_PROF}
    v_mov_b32 v200, s96
    s_mov_b64 exec, 1''')
    for i in range(20):
        A(f'    v_mov_b32 v201, s{70+i}\n    buffer_store_dword v201, v200, {srd}, 0 offen offset:{4*i}')
    A('    s_mov_b64 exec, -1')

def gen_k1(a, opts):
    A = a
    A('k1_kernel:')
    A(f'''
    s_cmp_ge_u32 s2, 256
    s_cbranch_scc1 K1_done''')
    stamp(A, opts, 0)
    A(f'''
    s_load_dwordx2 s[4:5], s[0:1], 0
    s_load_dwordx2 s[6:7], s[0:1], 8
    s_load_dwordx2 s[24:25], s[0:1], 32
    s_load_dwordx2 s[26:27], s[0:1], 48
    s_load_dwordx2 s[28:29], s[0:1], 72
    v_lshrrev_b32 v1, 6, v0
    v_and_b32 v0, 63, v0
    v_readfirstlane_b32 s30, v1
    s_and_b32 s31, s2, 7
    s_lshr_b32 s32, s2, 3
    s_and_b32 s33, s31, 1
    s_lshl_b32 s33, s33, 3
    s_and_b32 s34, s32, 7
    s_add_u32 s33, s33, s34
    s_lshr_b32 s34, s31, 1
    s_lshl_b32 s34, s34, 2
    s_lshr_b32 s35, s32, 3
    s_add_u32 s34, s34, s35
    s_lshl_b32 s40, s33, 7
    s_waitcnt lgkmcnt(0)''')
    stamp(A, opts, 1)
    A(f'''
    s_mov_b32 s8, s4
    s_mov_b32 s9, s5
    s_mov_b32 s10, 2621440
    s_mov_b32 s11, 0x00020000
    s_mov_b32 s16, s28
    s_mov_b32 s17, s29
    s_mov_b32 s18, {WS_END}
    s_mov_b32 s19, 0x00020000
    s_mov_b32 s15, 0x00020000
    s_mov_b32 s92, s28
    s_mov_b32 s93, s29
    s_mov_b32 s94, 0x1300000
    s_mov_b32 s95, 0x00020000
    s_cmp_lt_u32 s34, 6
    s_cbranch_scc1 K1_sec_qk
    s_cmp_lt_u32 s34, 9
    s_cbranch_scc1 K1_sec_v
    ; h section
    s_mov_b32 s36, 2
    s_sub_u32 s37, s34, 9
    s_mul_i32 s37, s37, 14
    s_min_u32 s37, s37, 82
    s_lshl_b32 s38, s37, 5
    s_mov_b32 s39, 3072
    s_mov_b32 s12, s24
    s_mov_b32 s13, s25
    s_mov_b32 s14, 1966080
    s_branch K1_sec_done
K1_sec_qk:
    s_mov_b32 s36, 0
    s_mul_i32 s37, s34, 14
    s_min_u32 s37, s37, 66
    s_lshl_b32 s38, s37, 5
    s_mov_b32 s39, 3840
    s_mov_b32 s12, s6
    s_mov_b32 s13, s7
    s_mov_b32 s14, 2457600
    s_branch K1_sec_done
K1_sec_v:
    s_mov_b32 s36, 1
    s_sub_u32 s37, s34, 6
    s_mul_i32 s37, s37, 14
    s_min_u32 s37, s37, 26
    s_lshl_b32 s38, s37, 5
    s_add_u32 s38, s38, 2560
    s_mov_b32 s39, 3840
    s_mov_b32 s12, s6
    s_mov_b32 s13, s7
    s_mov_b32 s14, 2457600
K1_sec_done:
    s_cmp_ge_u32 s30, 4
    s_cbranch_scc1 K1_loader
    ''')
    ACC = 16
    def acc(uu, mt): return ACC + (uu * 4 + mt) * 4
    XS = [128, 172]; WSs = [144, 188]
    VAX = [216, 217]; VW = 218
    A(f'''
    s_and_b32 s41, s30, 1
    s_lshr_b32 s42, s30, 1
    v_and_b32 v1, 15, v0
    v_lshrrev_b32 v2, 4, v0
    v_and_b32 v3, 7, v1
    v_xor_b32 v3, v2, v3
    v_lshlrev_b32 v3, 4, v3
    v_lshl_add_u32 v3, v1, 7, v3
    s_lshl_b32 s43, s41, 13
    v_add_u32 v{VAX[0]}, s43, v3
    v_xor_b32 v{VAX[1]}, 64, v{VAX[0]}
    ; W addr: 16384 + (8g + r)*512 + ((u ^ f) << 5) + 8c ; r=(l&15)>>2, c = l&3, f = r | ((g&1)<<2)
    v_lshrrev_b32 v4, 2, v1
    v_and_b32 v5, 3, v0
    v_and_b32 v6, 1, v2
    v_lshl_or_b32 v6, v6, 2, v4
    v_lshl_add_u32 v7, v2, 3, v4
    v_lshlrev_b32 v7, 9, v7
    v_lshl_add_u32 v7, v5, 3, v7
    v_add_u32 v7, 16384, v7
    s_mul_i32 s44, s42, 7
    ''')
    for uu in range(7):
        A(f'''
    s_add_u32 s45, s44, {uu}
    v_xor_b32 v8, s45, v6
    v_lshl_add_u32 v{VW+uu}, v8, 5, v7''')
    for r in range(ACC, ACC + 112):
        A(f'    v_mov_b32 v{r}, 0')
    def reads(st, ks):
        R = []
        for mt in range(4):
            R.append(f'    ds_read_b128 {vr(XS[st]+4*mt,4)}, v{VAX[ks]} offset:{mt*2048}')
        for uu in range(7):
            for t in range(2):
                R.append(f'    ds_read_b64_tr_b16 {vr(WSs[st]+4*uu+2*t,2)}, v{VW+uu} offset:{(32*ks+4*t)*512}')
        return R
    def phase(st, rd, swapped):
        k = 0
        for uu in range(7):
            for mt in range(4):
                w = vr(WSs[st] + 4 * uu, 4); x = vr(XS[st] + 4 * mt, 4); d = vr(acc(uu, mt), 4)
                if swapped: A(f'    v_mfma_f32_16x16x32_bf16 {d}, {w}, {x}, {d}')
                else:       A(f'    v_mfma_f32_16x16x32_bf16 {d}, {x}, {w}, {d}')
                if k < len(rd): A(rd[k])
                k += 1
    def mainloop(tag, swapped):
        A(f'''
    s_mov_b32 s46, 0
    s_mov_b32 s47, 0
    s_mov_b32 s64, 0xfffe8000
    s_mov_b32 s65, 49152
    s_barrier''')
        stamp(A, opts, 4)
        for l in reads(0, 0): A(l)
        A(f'K1_loop_{tag}:')
        A('    s_waitcnt lgkmcnt(0)')
        phase(0, reads(1, 1), swapped)
        A(f'''
    s_add_u32 s47, s47, 1
    s_cmp_eq_u32 s47, 3
    s_cselect_b32 s48, s64, s65
    s_cselect_b32 s47, 0, s47
    s_waitcnt lgkmcnt(0)
    s_barrier''')
        for r in VAX + [VW + i for i in range(7)]:
            A(f'    v_add_u32 v{r}, s48, v{r}')
        phase(1, reads(0, 0), swapped)
        A(f'''
    s_add_u32 s46, s46, 1
    s_cmp_lt_u32 s46, 10
    s_cbranch_scc1 K1_loop_{tag}
    s_waitcnt lgkmcnt(0)
    s_nop 7''')
        stamp(A, opts, 5)
    A('''
    s_cmp_eq_u32 s36, 1
    s_cbranch_scc1 K1_main_v''')
    mainloop('s', True)
    A('''
    s_cmp_eq_u32 s36, 2
    s_cbranch_scc1 K1_epi_h''')
    A(f'''
    s_lshl_b32 s43, s41, 6
    s_add_u32 s43, s43, s40
    v_add_u32 v3, s43, v1
    v_mul_u32_u24 v3, 48, v3
    s_add_u32 s45, s37, s44
    s_lshl_b32 s45, s45, 2
    v_add_u32 v4, s45, v2
    s_mov_b32 s49, 52429
    s_mov_b32 s50, 98304''')
    T = 128
    for uu in range(7):
        A(f'''
    v_mul_lo_u32 v5, v4, s49
    v_lshrrev_b32 v5, 18, v5
    v_mul_u32_u24 v6, 5, v5
    v_sub_u32 v6, v4, v6
    v_mul_lo_u32 v5, v5, s50
    v_lshl_add_u32 v5, v6, 3, v5
    v_add_u32 v5, v5, v3
    v_add_u32 v4, 4, v4''')
        for mt in range(4):
            d = acc(uu, mt); t = T + (uu * 4 + mt) * 2
            A(f'''
    v_cvt_pk_bf16_f32 v{t}, v{d}, v{d+1}
    v_cvt_pk_bf16_f32 v{t+1}, v{d+2}, v{d+3}
    buffer_store_dwordx2 {vr(t,2)}, v5, s[16:19], 0 offen offset:{WS_QK + mt*768}''')
    A('    s_branch K1_cdone')
    A(f'''K1_epi_h:
    s_lshl_b32 s43, s41, 6
    s_add_u32 s43, s43, s40
    v_add_u32 v3, s43, v1
    s_movk_i32 s49, 3072
    v_mul_lo_u32 v3, v3, s49
    s_add_u32 s45, s37, s44
    s_lshl_b32 s45, s45, 5
    s_add_u32 s45, s45, {WS_H}
    v_add_u32 v3, s45, v3
    v_and_b32 v4, 1, v2
    v_lshlrev_b32 v4, 5, v4
    v_lshrrev_b32 v5, 1, v2
    v_lshl_add_u32 v4, v5, 4, v4
    v_add_u32 v4, v4, v3
    v_lshl_add_u32 v5, v2, 3, v3''')
    for mt in range(4):
        A(f'    s_mov_b32 s49, {mt*49152}')
        for pp in range(3):
            t = T + (mt * 4 + pp) * 4
            d0 = acc(2 * pp, mt); d1 = acc(2 * pp + 1, mt)
            A(f'''
    v_cvt_pk_bf16_f32 v{t}, v{d0}, v{d0+1}
    v_cvt_pk_bf16_f32 v{t+1}, v{d0+2}, v{d0+3}
    v_cvt_pk_bf16_f32 v{t+2}, v{d1}, v{d1+1}
    v_cvt_pk_bf16_f32 v{t+3}, v{d1+2}, v{d1+3}
    v_pk_max_i16 v{t}, v{t}, 0
    v_pk_max_i16 v{t+1}, v{t+1}, 0
    v_pk_max_i16 v{t+2}, v{t+2}, 0
    v_pk_max_i16 v{t+3}, v{t+3}, 0
    v_permlane16_swap_b32 v{t}, v{t+2}
    v_permlane16_swap_b32 v{t+1}, v{t+3}
    buffer_store_dwordx4 {vr(t,4)}, v4, s[16:19], s49 offen offset:{64*pp}''')
        t = T + (mt * 4 + 3) * 4
        d0 = acc(6, mt)
        A(f'''
    v_cvt_pk_bf16_f32 v{t}, v{d0}, v{d0+1}
    v_cvt_pk_bf16_f32 v{t+1}, v{d0+2}, v{d0+3}
    v_pk_max_i16 v{t}, v{t}, 0
    v_pk_max_i16 v{t+1}, v{t+1}, 0
    buffer_store_dwordx2 {vr(t,2)}, v5, s[16:19], s49 offen offset:192''')
    A('    s_branch K1_cdone')
    A('K1_main_v:')
    mainloop('n', False)
    A(f'''
    s_add_u32 s45, s37, s44
    s_lshl_b32 s45, s45, 4
    v_add_u32 v3, s45, v1
    v_lshlrev_b32 v3, 12, v3
    s_lshl_b32 s43, s41, 6
    s_add_u32 s43, s43, s40
    s_lshl_b32 s43, s43, 1
    s_add_u32 s43, s43, {WS_VT}
    v_add_u32 v3, s43, v3
    v_lshl_add_u32 v3, v2, 4, v3''')
    for uu in range(7):
        A(f'    s_mov_b32 s49, {uu*65536}')
        for pa in range(2):
            t = T + (uu * 2 + pa) * 4
            d0 = acc(uu, 2 * pa); d1 = acc(uu, 2 * pa + 1)
            A(f'''
    v_cvt_pk_bf16_f32 v{t}, v{d0}, v{d0+1}
    v_cvt_pk_bf16_f32 v{t+1}, v{d0+2}, v{d0+3}
    v_cvt_pk_bf16_f32 v{t+2}, v{d1}, v{d1+1}
    v_cvt_pk_bf16_f32 v{t+3}, v{d1+2}, v{d1+3}
    buffer_store_dwordx4 {vr(t,4)}, v3, s[16:19], s49 offen offset:{64*pa}''')
    A('    s_branch K1_cdone')
    A(f'''K1_loader:
    s_sub_u32 s41, s30, 4
    ; A voffset v2
    v_lshrrev_b32 v1, 3, v0
    v_and_b32 v2, 7, v0
    v_xor_b32 v2, v2, v1
    v_lshlrev_b32 v2, 4, v2
    s_movk_i32 s43, 1280
    v_mul_lo_u32 v1, v1, s43
    v_add_u32 v2, v2, v1
    ; W voffset v3
    v_lshrrev_b32 v4, 5, v0
    s_and_b32 s44, s41, 1
    s_lshr_b32 s45, s41, 1
    s_lshl_b32 s46, s44, 1
    s_lshl_b32 s47, s45, 2
    s_or_b32 s46, s46, s47
    v_or_b32 v5, s46, v4
    v_bfe_u32 v6, v0, 1, 4
    v_xor_b32 v6, v6, v5
    v_mul_lo_u32 v7, v4, s39
    v_lshl_add_u32 v7, v6, 5, v7
    v_and_b32 v8, 1, v0
    v_lshl_add_u32 v3, v8, 4, v7
    v_mov_b32 v9, 0x80000000
    v_cmp_le_u32 vcc, 14, v6
    v_cndmask_b32 v3, v3, v9, vcc
    s_lshl_b32 s50, s41, 5
    s_add_u32 s50, s50, s40
    s_mul_i32 s50, s50, 1280
    s_add_u32 s52, s44, s47
    s_lshl_b32 s53, s52, 1
    s_mul_i32 s51, s53, s39
    s_add_u32 s51, s51, s38
    s_lshl_b32 s54, s39, 2           ; 4*stride
    s_mul_i32 s55, s39, 12           ; 12*stride
    s_lshl_b32 s56, s39, 6           ; 64*stride
    s_lshl_b32 s57, s41, 12
    s_lshl_b32 s58, s52, 10
    s_add_u32 s58, s58, 16384
    s_mov_b32 s59, 0
    ''')
    def issue():
        A('    s_add_u32 s60, s59, s57\n    s_add_u32 s61, s59, s58')
        for jj in range(4):
            A(f'''
    s_add_u32 m0, s60, {jj*1024}
    s_add_u32 s62, s50, {jj*10240}
    buffer_load_dwordx4 v2, s[8:11], s62 offen lds''')
        A('    s_mov_b32 s62, s51')
        i = 0
        for b in range(4):
            for aa in range(2):
                A(f'    s_add_u32 m0, s61, {(2*aa+8*b)*1024}')
                if i > 0:
                    A(f'    s_add_u32 s62, s62, {"s54" if aa == 1 else "s55"}')
                else:
                    A('    s_nop 0')
                A('    buffer_load_dwordx4 v3, s[12:15], s62 offen lds')
                i += 1
        A(f'''
    s_add_u32 s50, s50, 128
    s_add_u32 s51, s51, s56
    s_add_u32 s59, s59, 49152
    s_cmp_eq_u32 s59, 147456
    s_cselect_b32 s59, 0, s59''')
    stamp(A, opts, 2)
    A('    s_mov_b32 s63, 0')
    A('K1_ld_pro:')
    issue()
    A('''
    s_add_u32 s63, s63, 1
    s_cmp_lt_u32 s63, 3
    s_cbranch_scc1 K1_ld_pro
''')
    stamp(A, opts, 3)
    A('''
    s_waitcnt vmcnt(24)
    s_barrier''')
    stamp(A, opts, 4)
    A('''
    s_mov_b32 s63, 1
K1_ld_loop:
    s_waitcnt vmcnt(12)
    s_barrier''')
    issue()
    A(f'''
    s_add_u32 s63, s63, 1
    s_cmp_lt_u32 s63, 8
    s_cbranch_scc1 K1_ld_loop
    s_waitcnt vmcnt(12)
    s_barrier''')
    stamp(A, opts, 5)
    A(f'''
    s_lshl_b32 s44, s34, 3
    s_add_u32 s44, s44, s40
    s_lshl_b32 s45, s41, 1
    s_add_u32 s44, s44, s45
    s_mul_i32 s45, s44, 1280
    s_mov_b32 s20, s26
    s_mov_b32 s21, s27
    s_mov_b32 s22, 1280
    s_mov_b32 s23, 0x00020000
    v_lshlrev_b32 v10, 2, v0''')
    for j in range(5):
        A(f'    buffer_load_dword v{16+j}, v10, s[20:23], 0 offen offset:{256*j}')
    for rr in range(2):
        for j in range(5):
            A(f'    buffer_load_dword v{24+8*rr+j}, v10, s[8:11], s45 offen offset:{256*j + 1280*rr}')
    A(f'''
    s_waitcnt vmcnt(15)
    s_barrier
    s_barrier
    s_lshl_b32 s46, s2, 8
    s_lshl_b32 s47, s41, 6
    s_add_u32 s46, s46, s47
    v_add_u32 v11, s46, v0
    v_lshrrev_b32 v12, 11, v11
    v_and_b32 v11, 2047, v11
    v_mul_u32_u24 v11, 48, v11
    s_mov_b32 s46, 98304
    v_mul_lo_u32 v12, v12, s46
    v_add_u32 v11, v11, v12
    v_add_u32 v11, {WS_QK + 32*98304 + 40}, v11
    v_mov_b32 v12, 0
    v_mov_b32 v13, 0
    buffer_store_dwordx2 v[12:13], v11, s[16:19], 0 offen
    s_lshl_b32 s46, s2, 2
    s_add_u32 s46, s46, {WS_FLAG}
    v_mov_b32 v14, s46
    v_mov_b32 v15, 0x80000000
    v_cmp_eq_u32 vcc, 0, v0
    v_cndmask_b32 v14, v15, v14, vcc
    s_cmp_eq_u32 s41, 0
    s_cbranch_scc0 K1_noflag
    buffer_store_dword v12, v14, s[16:19], 0 offen
K1_noflag:''')
    A('    s_waitcnt vmcnt(0)')
    for rr in range(2):
        acc_ = 40 + rr
        A(f'    v_mov_b32 v{acc_}, 0')
        for j in range(5):
            A(f'    v_dot2c_f32_bf16 v{acc_}, v{16+j}, v{24+8*rr+j}')
    for rr in range(2):
        r = 40 + rr
        A(f'''
    v_add_f32_dpp v{r}, v{r}, v{r} quad_perm:[1,0,3,2] row_mask:0xf bank_mask:0xf
    v_add_f32_dpp v{r}, v{r}, v{r} quad_perm:[2,3,0,1] row_mask:0xf bank_mask:0xf
    v_add_f32_dpp v{r}, v{r}, v{r} row_half_mirror row_mask:0xf bank_mask:0xf
    v_add_f32_dpp v{r}, v{r}, v{r} row_mirror row_mask:0xf bank_mask:0xf
    v_mov_b32 v44, v{r}
    v_permlane16_swap_b32 v44, v{r}
    v_add_f32 v{r}, v{r}, v44
    v_mov_b32 v44, v{r}
    v_permlane32_swap_b32 v44, v{r}
    v_add_f32 v{r}, v{r}, v44''')
    A(f'''
    v_cmp_eq_u32 vcc, 1, v0
    v_cndmask_b32 v40, v40, v41, vcc
    v_mul_f32 v40, 0xbfb8aa3b, v40
    v_exp_f32 v40, v40
    v_add_f32 v40, 1.0, v40
    v_rcp_f32 v40, v40
    s_lshl_b32 s46, s44, 2
    s_add_u32 s46, s46, {WS_G}
    v_lshl_add_u32 v14, v0, 2, s46
    v_cmp_gt_u32 vcc, 2, v0
    v_cndmask_b32 v14, v15, v14, vcc
    buffer_store_dword v40, v14, s[16:19], 0 offen''')
    stamp(A, opts, 6)
    A('K1_cdone:')
    if opts.get('prof'):
        A('    s_cmp_ge_u32 s30, 4\n    s_cbranch_scc1 K1_p2')
        stamp(A, opts, 6)
        A('K1_p2:\n    s_waitcnt vmcnt(0)')
        stamp(A, opts, 7)
        stamp_flush(A, opts, 5, 's30')
    A('''K1_done:
    s_endpgm
''')

K1_DESC = '''
.amdhsa_kernel k1_kernel
  .amdhsa_next_free_vgpr 232
  .amdhsa_next_free_sgpr 100
  .amdhsa_accum_offset 232
  .amdhsa_group_segment_fixed_size 0
  .amdhsa_kernarg_size 80
  .amdhsa_user_sgpr_count 2
  .amdhsa_user_sgpr_kernarg_segment_ptr 1
  .amdhsa_system_sgpr_workgroup_id_x 1
.end_amdhsa_kernel
'''
```

```python
from asmlib import *
from k1 import WS_QK, WS_VT, WS_H, WS_OP, WS_G, WS_FLAG, WS_END, WS_PROF, stamp, stamp_flush

KL = 0
VL = 24576
VSTR = 1056
CNT = VL + 21 * VSTR
RING0 = 47104
SLOT = 5120
NSLOT = 5
RINGW = SLOT * NSLOT
LDS_BYTES = RING0 + 4 * RINGW

SCALE_LOG2E = 0.22360679774997896 * 1.4426950408889634

def f32hex(x):
    import struct
    return '0x%08x' % struct.unpack('<I', struct.pack('<f', x))[0]

def gen_k2(a, opts):
    A = a
    NAW = 4
    A('k2_kernel:')
    A('''
    s_cmp_ge_u32 s2, 256
    s_cbranch_scc1 K2_done''')
    stamp(A, opts, 0)
    A(f'''
    s_load_dwordx2 s[4:5], s[0:1], 16
    s_load_dwordx2 s[6:7], s[0:1], 40
    s_load_dwordx2 s[24:25], s[0:1], 56
    s_load_dwordx2 s[28:29], s[0:1], 72
    v_lshrrev_b32 v1, 6, v0
    v_and_b32 v0, 63, v0
    v_readfirstlane_b32 s30, v1
    s_and_b32 s31, s2, 7
    s_lshr_b32 s32, s2, 3
    v_and_b32 v1, 15, v0
    v_lshrrev_b32 v2, 4, v0
    s_waitcnt lgkmcnt(0)''')
    stamp(A, opts, 1)
    A(f'''
    s_mov_b32 s16, s28
    s_mov_b32 s17, s29
    s_mov_b32 s18, {WS_END}
    s_mov_b32 s19, 0x00020000
    s_mov_b32 s92, s28
    s_mov_b32 s93, s29
    s_mov_b32 s94, 0x1300000
    s_mov_b32 s95, 0x00020000
    s_cmp_ge_u32 s30, {NAW}
    s_cbranch_scc1 K2_gemm
    ''')
    if opts.get('role') == 'gemm':
        A('    s_barrier\n    s_branch K2_done')
    gen_attn(A, opts, NAW)
    A('K2_gemm:')
    if opts.get('role') == 'attn':
        A('    s_barrier\n    s_branch K2_done')
    gen_gemm(A, opts, NAW)
    A('K2_done:\n    s_endpgm')

def gen_attn(A, opts, NAW):
    S = 16; KB = 88; NKB = 6; VB = 112; NVB = 6; Q = 136; O = 152; G = 160
    VK = 164; VV0 = 165; VV1 = 166; VOUT = 167
    NQT = 16 // NAW
    A(f'''
    s_lshl_b32 s33, s31, 8
    s_mov_b32 s34, s32
    s_add_u32 s35, s34, 32
    s_mul_i32 s35, s35, 98304
    s_mul_i32 s36, s33, 48
    s_add_u32 s35, s35, s36
    s_sub_u32 s35, s35, {256*48 - WS_QK}
    v_lshlrev_b32 v3, 4, v0
    s_mul_i32 s37, s30, {6*1024}
    s_add_u32 s35, s35, s37
    s_cmp_eq_u32 s31, 0
    s_cselect_b32 s38, 1, 0
    s_cmp_lt_u32 s30, 2
    s_cselect_b32 s39, s38, 0
    s_cmp_eq_u32 s39, 1
    s_cbranch_scc1 K2_kfill''')
    for j in range(6):
        A(f'''
    s_add_u32 m0, s37, {KL + j*1024}
    s_add_u32 s40, s35, {j*1024}
    buffer_load_dwordx4 v3, s[16:19], s40 offen lds''')
    A(f'''
    s_branch K2_kdone
K2_kfill:
    ; waves 0,1 of q-block 0: fill rows for keys<0: chunk c: (c%3==2) -> [0,0,0x3F80,0]
    v_mov_b32 v4, 0
    v_mov_b32 v5, 0
    v_mov_b32 v7, 0
    s_mul_i32 s40, s30, 384
    v_add_u32 v8, s40, v0
    s_mov_b32 s41, 0x55555556''')
    for j in range(6):
        A(f'''
    v_mul_hi_u32 v9, v8, s41
    v_mul_u32_u24 v9, 3, v9
    v_sub_u32 v9, v8, v9
    v_cmp_eq_u32 vcc, 2, v9
    v_mov_b32 v6, 0x3f80
    v_cndmask_b32 v6, 0, v6, vcc
    v_lshlrev_b32 v9, 4, v8
    ds_write_b128 v9, v[4:7] offset:{KL}
    v_add_u32 v8, 64, v8''')
    A(f'''
K2_kdone:
    s_mul_i32 s35, s34, 20
    s_mul_i32 s36, s30, 5
    s_add_u32 s35, s35, s36
    s_lshl_b32 s35, s35, 12
    s_lshl_b32 s40, s33, 1
    s_add_u32 s35, s35, s40
    s_add_u32 s35, s35, {WS_VT - 512}
    s_mul_i32 s36, s36, {VSTR}''')
    for j in range(5):
        A(f'''
    s_add_u32 m0, s36, {VL + j*VSTR}
    s_add_u32 s40, s35, {j*4096}
    buffer_load_dwordx4 v3, s[16:19], s40 offen lds''')
    A(f'''
    s_mul_i32 s35, s34, 98304
    s_mul_i32 s36, s30, {NQT*16}
    s_add_u32 s36, s36, s33
    s_mul_i32 s40, s36, 48
    s_add_u32 s35, s35, s40
    v_mul_u32_u24 v4, 48, v1
    v_lshl_add_u32 v4, v2, 4, v4
    ''')
    for t in range(NQT):
        A(f'    buffer_load_dwordx4 {vr(Q+4*t,4)}, v4, s[16:19], s35 offen offset:{WS_QK + t*768}')
    A(f'''
    s_lshl_b32 s40, s36, 2
    s_add_u32 s40, s40, {WS_G}
    v_lshlrev_b32 v5, 2, v1''')
    for t in range(NQT):
        A(f'    buffer_load_dword v{G+t}, v5, s[16:19], s40 offen offset:{t*64}')
    A(f'''
    s_cmp_eq_u32 s30, 0
    s_cbranch_scc0 K2_noones
    v_mov_b32 v8, 0x3f803f80
    v_mov_b32 v9, 0x3f803f80
    v_mov_b32 v10, 0x3f803f80
    v_mov_b32 v11, 0x3f803f80
    ds_write_b128 v3, v[8:11] offset:{VL + 20*VSTR}
    v_mov_b32 v8, 0
    v_mov_b32 v9, {CNT}
    ds_write_b32 v9, v8
K2_noones:
    s_mul_i32 s40, s30, {NQT*768}
    v_cmp_eq_u32 vcc, 3, v2
    v_cndmask_b32 v6, v2, 0, vcc
    v_mul_u32_u24 v{VK}, 48, v1
    v_lshl_add_u32 v{VK}, v6, 4, v{VK}
    v_add_u32 v{VK}, s40, v{VK}
    s_mul_i32 s40, s30, {NQT*32}
    s_add_u32 s40, s40, {VL}
    v_mul_u32_u24 v{VV0}, {VSTR}, v1
    v_lshl_add_u32 v{VV0}, v2, 4, v{VV0}
    v_add_u32 v{VV0}, s40, v{VV0}
    v_add_u32 v7, 16, v1
    v_min_u32 v7, 20, v7
    v_mul_u32_u24 v{VV1}, {VSTR}, v7
    v_lshl_add_u32 v{VV1}, v2, 4, v{VV1}
    v_add_u32 v{VV1}, s40, v{VV1}
    s_movk_i32 s41, 1280
    v_mul_lo_u32 v{VOUT}, v1, s41
    v_lshl_add_u32 v{VOUT}, v2, 3, v{VOUT}
    s_mul_i32 s42, s36, 1280
    s_mul_i32 s43, s34, 40
    s_add_u32 s42, s42, s43
    s_add_u32 s42, s42, {WS_OP}
    v_mov_b32 v13, 0x80000000
    v_cmp_eq_u32 vcc, 0, v2
    v_cndmask_b32 v12, v13, v{VOUT}, vcc
    v_lshlrev_b32 v8, 2, v2
    v_sub_u32 v8, v1, v8
    ''')
    for r in range(4):
        A(f'''
    v_cmp_gt_i32 s[{44+2*r}:{45+2*r}], {r}, v8''')
    A(f'''
    s_mov_b32 s52, {f32hex(SCALE_LOG2E)}
    v_mov_b32 v14, 0xff800000
    s_waitcnt vmcnt(0) lgkmcnt(0)
    v_cmp_eq_u32 s[54:55], 2, v2
    v_cmp_eq_u32 s[56:57], 3, v2
    v_mov_b32 v9, 0xf149''')
    for t in range(NQT):
        q = Q + 4 * t
        A(f'''
    v_cndmask_b32 v{q}, v{q}, 0, s[56:57]
    v_cndmask_b32 v{q+1}, v{q+1}, 0, s[56:57]
    v_cndmask_b32 v{q+2}, v{q+2}, v9, s[54:55]
    v_cndmask_b32 v{q+3}, v{q+3}, 0, s[54:55]
    v_cndmask_b32 v{q+2}, v{q+2}, 0, s[56:57]
    v_cndmask_b32 v{q+3}, v{q+3}, 0, s[56:57]''')
    A('    s_barrier')
    stamp(A, opts, 2)

    def qtile(par, qreg, greg):
        slot0 = par
        def kread(T): return f'    ds_read_b128 {vr(KB+4*(T%NKB),4)}, v{VK} offset:{KL + T*768}'
        for T in range(min(NKB, 17)): A(kread(T))
        for T in range(17):
            outstanding_after = min(NKB, 17 - T) - 1
            A(f'    s_waitcnt lgkmcnt({outstanding_after})')
            s = S + 4 * (T + slot0)
            A(f'    v_mfma_f32_16x16x32_bf16 {vr(s,4)}, {vr(KB+4*(T%NKB),4)}, {vr(qreg,4)}, 0')
            if T + NKB < 17: A(kread(T + NKB))
        def vread(n):
            bb, dt = n // 2, n % 2
            return f'    ds_read_b128 {vr(VB+4*(n%NVB),4)}, v{VV0 if dt == 0 else VV1} offset:{bb*64}'
        for n in range(NVB): A(vread(n))
        s0 = S + 4 * slot0; s16 = S + 4 * (16 + slot0)
        for r in range(4):
            A(f'    v_cndmask_b32 v{s0+r}, v14, v{s0+r}, s[{44+2*r}:{45+2*r}]')
        for r in range(4):
            A(f'    v_cndmask_b32 v{s16+r}, v{s16+r}, v14, s[{44+2*r}:{45+2*r}]')
        vals = [S + 4 * (T + slot0) + r for T in range(1, 16) for r in range(4)] + [s0 + r for r in range(4)] + [s16 + r for r in range(4)]
        m = [3, 4]
        A(f'    v_max3_f32 v3, v{vals[0]}, v{vals[1]}, v{vals[2]}')
        A(f'    v_max3_f32 v4, v{vals[3]}, v{vals[4]}, v{vals[5]}')
        i = 6; k = 0
        while i + 1 < len(vals):
            A(f'    v_max3_f32 v{m[k]}, v{m[k]}, v{vals[i]}, v{vals[i+1]}')
            i += 2; k ^= 1
        assert i == len(vals)
        A('''
    v_max_f32 v3, v3, v4
    v_mov_b32 v4, v3
    v_permlane16_swap_b32 v4, v3
    v_max_f32 v3, v3, v4
    v_mov_b32 v4, v3
    v_permlane32_swap_b32 v4, v3
    v_max_f32 v3, v3, v4
    v_mul_f32 v3, s52, v3''')
        zero_slot = 17 if par == 0 else 0
        nv = NVB
        for bb in range(9):
            for half in range(2):
                sl = 2 * bb + half
                if sl == zero_slot: continue
                for r in range(4):
                    v = S + 4 * sl + r
                    A(f'    v_fma_f32 v{v}, v{v}, s52, -v3')
                for r in range(4):
                    v = S + 4 * sl + r
                    A(f'    v_exp_f32 v{v}, v{v}')
            p = S + 8 * bb
            for half in range(2):
                sl = 2 * bb + half
                if sl == zero_slot:
                    A(f'    v_mov_b32 v{p+2*half}, 0\n    v_mov_b32 v{p+2*half+1}, 0')
                else:
                    v = S + 4 * sl
                    A(f'    v_cvt_pk_bf16_f32 v{p+2*half}, v{v}, v{v+1}')
                    A(f'    v_cvt_pk_bf16_f32 v{p+2*half+1}, v{v+2}, v{v+3}')
            for dt in range(2):
                n = 2 * bb + dt
                outstanding = nv - (n + 1)
                A(f'    s_waitcnt lgkmcnt({outstanding})')
                o = O + 4 * dt
                c = '0' if bb == 0 else vr(o, 4)
                A(f'    v_mfma_f32_16x16x32_bf16 {vr(o,4)}, {vr(VB+4*(n%NVB),4)}, {vr(p,4)}, {c}')
                if nv < 18:
                    A(vread(nv)); nv += 1
        A(f'''
    v_mov_b32 v3, v{O+4}
    v_mov_b32 v4, v{O+4}
    v_permlane16_swap_b32 v4, v3
    v_mov_b32 v4, v3
    v_permlane32_swap_b32 v4, v3
    v_rcp_f32 v4, v4
    v_mul_f32 v4, v4, v{greg}
    v_mul_f32 v{O}, v{O}, v4
    v_mul_f32 v{O+1}, v{O+1}, v4
    v_mul_f32 v{O+2}, v{O+2}, v4
    v_mul_f32 v{O+3}, v{O+3}, v4
    v_mul_f32 v{O+4}, v{O+4}, v4
    v_mul_f32 v{O+5}, v{O+5}, v4
    v_mul_f32 v{O+6}, v{O+6}, v4
    v_mul_f32 v{O+7}, v{O+7}, v4
    v_cvt_pk_bf16_f32 v6, v{O}, v{O+1}
    v_cvt_pk_bf16_f32 v7, v{O+2}, v{O+3}
    v_cvt_pk_bf16_f32 v8, v{O+4}, v{O+5}
    v_cvt_pk_bf16_f32 v9, v{O+6}, v{O+7}
    buffer_store_dwordx2 v[6:7], v{VOUT}, s[16:19], s42 offen sc1
    buffer_store_dwordx2 v[8:9], v12, s[16:19], s42 offen offset:32 sc1
    s_add_u32 s42, s42, {16*1280}
    v_add_u32 v{VK}, 768, v{VK}''')
        if par == 1:
            A(f'    v_add_u32 v{VV0}, 64, v{VV0}\n    v_add_u32 v{VV1}, 64, v{VV1}')
    A('    s_mov_b32 s53, 0')
    A('K2_aloop:')
    qtile(0, Q, G)
    qtile(1, Q + 4, G + 1)
    if NQT == 4:
        for r in range(8): A(f'    v_mov_b32 v{Q+r}, v{Q+8+r}')
        A(f'    v_mov_b32 v{G}, v{G+2}\n    v_mov_b32 v{G+1}, v{G+3}')
        A('''
    s_add_u32 s53, s53, 1
    s_cmp_lt_u32 s53, 2
    s_cbranch_scc1 K2_aloop''')
    stamp(A, opts, 3)
    A(f'''
    s_waitcnt vmcnt(0)
    v_mov_b32 v3, {CNT}
    v_mov_b32 v4, 1
    s_mov_b64 exec, 1
    ds_add_rtn_u32 v5, v3, v4
    s_waitcnt lgkmcnt(0)
    v_readfirstlane_b32 s53, v5
    s_cmp_eq_u32 s53, {NAW-1}
    s_cbranch_scc0 K2_adone
    s_lshl_b32 s53, s31, 5
    s_add_u32 s53, s53, s34
    s_lshl_b32 s53, s53, 2
    s_add_u32 s53, s53, {WS_FLAG}
    v_mov_b32 v3, s53
    buffer_store_dword v4, v3, s[16:19], 0 offen sc1
K2_adone:
    s_mov_b64 exec, -1''')
    if opts.get('prof'):
        A('    s_waitcnt vmcnt(0)')
        stamp(A, opts, 7)
        stamp_flush(A, opts, 8, 's30')
    A('    s_branch K2_done')

def gen_gemm(A, opts, NAW):
    ACC = 16
    def acc(u, mt): return ACC + (u * 4 + mt) * 4
    WF = 96
    AS = 116
    VAH = 196; VAO = 200; VWD = 204; VTR = 209; GM = 210
    A(f'''
    s_sub_u32 s33, s30, {NAW}          ; gw
    s_and_b32 s34, s32, 3
    s_lshl_b32 s35, s31, 2
    s_add_u32 s34, s34, s35            ; rb
    s_lshr_b32 s35, s32, 2             ; j
    s_lshl_b32 s36, s34, 6             ; row0
    s_mov_b32 s8, s6
    s_mov_b32 s9, s7
    s_mov_b32 s10, 1966080
    s_mov_b32 s11, 0x00020000
    s_mov_b32 s20, s24
    s_mov_b32 s21, s25
    s_mov_b32 s22, 2621440
    s_mov_b32 s23, 0x00020000
    s_movk_i32 s37, 3072
    v_mul_lo_u32 v3, v1, s37
    v_lshl_add_u32 v{VAH}, v2, 4, v3
    v_add_u32 v{VAH+1}, 49152, v{VAH}
    v_add_u32 v{VAH+2}, 98304, v{VAH}
    v_add_u32 v{VAH+3}, 147456, v{VAH}
    s_movk_i32 s37, 1280
    v_mul_lo_u32 v3, v1, s37
    v_lshl_add_u32 v{VAO}, v2, 4, v3
    v_add_u32 v{VAO+1}, 20480, v{VAO}
    v_add_u32 v{VAO+2}, 40960, v{VAO}
    v_add_u32 v{VAO+3}, 61440, v{VAO}
    ; W DMA voffsets: q = lane + 64jj ; p = q/10, c = q%10 ; krow = swapbits23(p) ; off = krow*1280 + 16c
    s_mov_b32 s38, 0x1999999a''')
    for jj in range(5):
        A(f'''
    v_add_u32 v3, {64*jj}, v0
    v_mul_hi_u32 v4, v3, s38
    v_mul_u32_u24 v5, 10, v4
    v_sub_u32 v5, v3, v5
    v_and_b32 v6, 19, v4
    v_bfe_u32 v7, v4, 2, 1
    v_lshl_or_b32 v6, v7, 3, v6
    v_bfe_u32 v7, v4, 3, 1
    v_lshl_or_b32 v6, v7, 2, v6
    v_mul_lo_u32 v6, v6, s37
    v_lshl_add_u32 v{VWD+jj}, v5, 4, v6''')
    A(f'''
    v_lshrrev_b32 v3, 1, v2
    v_lshlrev_b32 v3, 4, v3
    v_and_b32 v4, 1, v2
    v_lshl_add_u32 v3, v4, 2, v3
    v_lshrrev_b32 v4, 2, v1
    v_add_u32 v3, v3, v4
    v_mul_u32_u24 v3, 160, v3
    v_and_b32 v4, 3, v0
    v_lshl_add_u32 v3, v4, 3, v3
    s_mul_i32 s39, s33, {RINGW}
    s_add_u32 s39, s39, {RING0}
    v_add_u32 v{VTR}, s39, v3
    s_lshl_b32 s40, s36, 2
    s_add_u32 s40, s40, {WS_G}
    v_lshlrev_b32 v3, 2, v1''')
    for mt in range(4):
        A(f'    buffer_load_dword v{GM+mt}, v3, s[16:19], s40 offen offset:{64*mt}')
    A(f'''
    s_mul_i32 s41, s36, 3072
    s_mul_i32 s42, s33, 768
    s_add_u32 s41, s41, s42
    s_add_u32 s41, s41, {WS_H}
    s_mul_i32 s42, s33, {384*1280}
    s_mul_i32 s43, s35, 160
    s_add_u32 s42, s42, s43''')
    for r in range(ACC, ACC + 80): A(f'    v_mov_b32 v{r}, 0')
    def issue(slot, va):
        for mt in range(4):
            A(f'    buffer_load_dwordx4 {vr(AS+16*slot+4*mt,4)}, v{va+mt}, s[16:19], s41 offen')
        for jj in range(5):
            A(f'    s_add_u32 m0, s39, {slot*SLOT + jj*1024}')
            if jj == 0: A('    s_nop 0')
            A(f'    buffer_load_dwordx4 v{VWD+jj}, s[8:11], s42 offen lds')
        A(f'    s_add_u32 s41, s41, 64\n    s_add_u32 s42, s42, {32*1280}')
    def compute(slot):
        for u in range(5):
            for t in range(2):
                A(f'    ds_read_b64_tr_b16 {vr(WF+4*u+2*t,2)}, v{VTR} offset:{slot*SLOT + t*1280 + u*32}')
        for u in range(5):
            A(f'    s_waitcnt lgkmcnt({8-2*u})')
            for mt in range(4):
                d = vr(acc(u, mt), 4)
                A(f'    v_mfma_f32_16x16x32_bf16 {d}, {vr(WF+4*u,4)}, {vr(AS+16*slot+4*mt,4)}, {d}')
    for sl in range(4): issue(sl, VAH)
    A('    s_barrier')
    stamp(A, opts, 2)
    A('    s_mov_b32 s44, 0')
    A('K2_gloop:')
    A(f'''
    s_cmp_eq_u32 s44, 2
    s_cbranch_scc0 K2_gnosw
    s_mov_b32 s8, s4
    s_mov_b32 s9, s5
    s_mov_b32 s10, 819200
    s_mul_i32 s42, s33, {160*1280}
    s_add_u32 s42, s42, s43
    s_mov_b32 s41, 0x7f000000
K2_gnosw:''')
    for sl in range(4):
        A('    s_waitcnt vmcnt(27)')
        compute(sl)
        issue(sl, VAH)
    A('''
    s_add_u32 s44, s44, 1
    s_cmp_lt_u32 s44, 3
    s_cbranch_scc1 K2_gloop''')
    stamp(A, opts, 3)
    for jj in range(5):
        A(f'    s_add_u32 m0, s39, {4*SLOT + jj*1024}')
        if jj == 0: A('    s_nop 0')
        A(f'    buffer_load_dwordx4 v{VWD+jj}, s[8:11], s42 offen lds')
    for mt in range(4):
        A(f'    v_sub_f32 v{GM+mt}, 1.0, v{GM+mt}')
    for u in range(5):
        for mt in range(4):
            for r in range(4):
                A(f'    v_mul_f32 v{acc(u,mt)+r}, v{acc(u,mt)+r}, v{GM+mt}')
    A(f'''
    s_lshl_b32 s45, s31, 5
    s_lshl_b32 s46, s33, 3
    s_add_u32 s45, s45, s46
    s_lshl_b32 s45, s45, 2
    s_add_u32 s45, s45, {WS_FLAG}
    v_and_b32 v3, 7, v0
    v_lshlrev_b32 v3, 2, v3
K2_poll:
    buffer_load_dword v4, v3, s[16:19], s45 offen sc1
    s_waitcnt vmcnt(0)
    v_cmp_ne_u32 vcc, 1, v4
    s_cbranch_vccz K2_pollok
    s_sleep 2
    s_branch K2_poll
K2_pollok:''')
    stamp(A, opts, 4)
    A(f'''
    s_mul_i32 s41, s36, 1280
    s_mul_i32 s42, s33, 320
    s_add_u32 s41, s41, s42
    s_add_u32 s41, s41, {WS_OP}''')
    for st in range(5):
        for mt in range(4):
            A(f'    buffer_load_dwordx4 {vr(AS+16*st+4*mt,4)}, v{VAO+mt}, s[16:19], s41 offen offset:{64*st} sc1')
    for st in range(5):
        A(f'    s_waitcnt vmcnt({16-4*st})')
        compute(st)
    stamp(A, opts, 5)
    A('    v_lshlrev_b32 v3, 4, v0\n    v_add_u32 v4, s39, v3\n    s_nop 7')
    for u in range(5):
        for mt in range(4):
            A(f'    ds_write_b128 v4, {vr(acc(u,mt),4)} offset:{(mt*5+u)*1024}')
    A('    s_waitcnt lgkmcnt(0)\n    s_barrier')
    A(f'''
    s_mul_i32 s45, s33, 5120
    s_add_u32 s45, s45, {RING0}
    v_add_u32 v4, s45, v3
    v_add_u32 v8, {2*RINGW}, v4''')
    T = 96
    for w in range(4):
        for u in range(5):
            A(f'    ds_read_b128 {vr(T+(w*5+u)*4,4)}, v{4 if w < 2 else 8} offset:{(w%2)*RINGW + u*1024}')
    A(f'''
    s_lshl_b32 s45, s33, 4
    s_add_u32 s45, s45, s36
    s_mul_i32 s45, s45, 1280
    s_add_u32 s45, s45, s43
    v_mul_lo_u32 v5, v1, s37
    v_and_b32 v6, 1, v2
    v_lshlrev_b32 v6, 5, v6
    v_lshrrev_b32 v7, 1, v2
    v_lshl_add_u32 v6, v7, 4, v6
    v_add_u32 v6, v6, v5
    v_lshl_add_u32 v7, v2, 3, v5
    s_waitcnt lgkmcnt(0)''')
    for u in range(5):
        for r in range(4):
            t0 = T + u * 4 + r
            A(f'''
    v_add_f32 v{t0}, v{t0}, v{t0+20}
    v_add_f32 v{t0+40}, v{t0+40}, v{t0+60}
    v_add_f32 v{t0}, v{t0}, v{t0+40}''')
    P = 16
    for pp in range(2):
        t = P + 4 * pp; d0 = T + 8 * pp; d1 = T + 8 * pp + 4
        A(f'''
    v_cvt_pk_bf16_f32 v{t}, v{d0}, v{d0+1}
    v_cvt_pk_bf16_f32 v{t+1}, v{d0+2}, v{d0+3}
    v_cvt_pk_bf16_f32 v{t+2}, v{d1}, v{d1+1}
    v_cvt_pk_bf16_f32 v{t+3}, v{d1+2}, v{d1+3}
    v_permlane16_swap_b32 v{t}, v{t+2}
    v_permlane16_swap_b32 v{t+1}, v{t+3}
    buffer_store_dwordx4 {vr(t,4)}, v6, s[20:23], s45 offen offset:{64*pp}''')
    d0 = T + 16
    A(f'''
    v_cvt_pk_bf16_f32 v24, v{d0}, v{d0+1}
    v_cvt_pk_bf16_f32 v25, v{d0+2}, v{d0+3}
    buffer_store_dwordx2 v[24:25], v7, s[20:23], s45 offen offset:128''')
    if opts.get('prof'):
        stamp(A, opts, 6)
        A('    s_waitcnt vmcnt(0)')
        stamp(A, opts, 7)
        stamp_flush(A, opts, 8, 's30')

K2_DESC = '''
.amdhsa_kernel k2_kernel
  .amdhsa_next_free_vgpr 216
  .amdhsa_next_free_sgpr 100
  .amdhsa_accum_offset 216
  .amdhsa_group_segment_fixed_size 0
  .amdhsa_kernarg_size 80
  .amdhsa_user_sgpr_count 2
  .amdhsa_user_sgpr_kernarg_segment_ptr 1
  .amdhsa_system_sgpr_workgroup_id_x 1
.end_amdhsa_kernel
'''
```

```python
import sys
from asmlib import *
import k1
try:
    import k2
except ImportError:
    k2 = None

HEADER = open('gated_mix__sliding_block__dense_activation_relu__prompt.s.ref').read().split('; Override launch')[0]

def build(opts):
    launches = opts.get('launches', ['k1', 'k2'])
    head = HEADER
    for l in launches:
        if l == 'k1': head += f'; @launch kernel=k1_kernel grid=(256,1,1) block=(512,1,1) lds={k1.K1_LDS}\n'
        if l == 'k2': head += f'; @launch kernel=k2_kernel grid=(256,1,1) block=({64*k2.NWAVES},1,1) lds={k2.LDS_BYTES}\n'
        if l.startswith('nop'): head += '; @launch kernel=nop_kernel grid=(256,1,1) block=(64,1,1) lds=0\n'
    head += '.amdgcn_target "amdgcn-amd-amdhsa--gfx950"\n.text\n'
    body = ''
    desc = '.section .rodata,"a"\n'
    names = list(dict.fromkeys(launches))
    for n in names:
        a = Asm()
        if n == 'k1':
            k1.gen_k1(a, opts); d = k1.K1_DESC
        elif n == 'k2':
            k2.gen_k2(a, opts); d = k2.K2_DESC
        else:
            a('nop_kernel:\n    s_endpgm')
            d = '''
.amdhsa_kernel nop_kernel
  .amdhsa_next_free_vgpr 8
  .amdhsa_next_free_sgpr 16
  .amdhsa_accum_offset 8
  .amdhsa_group_segment_fixed_size 0
  .amdhsa_kernarg_size 80
  .amdhsa_user_sgpr_count 2
  .amdhsa_user_sgpr_kernarg_segment_ptr 1
  .amdhsa_system_sgpr_workgroup_id_x 1
.end_amdhsa_kernel
'''
            n = 'nop'
        kn = n + '_kernel'
        body += f'.globl {kn}\n.p2align 8\n.type {kn},@function\n' + a.fix() + '\n'
        desc += '.p2align 6' + d
    return head + body + desc

if __name__ == '__main__':
    out = sys.argv[1]
    opts = {}
    for kv in sys.argv[2:]:
        k, v = kv.split('=')
        if k == 'launches': opts[k] = v.split(',')
        else:
            try: opts[k] = int(v)
            except ValueError: opts[k] = v
    open(out, 'w').write(build(opts))
```

```python
from asmlib import *

WS_QK   = 0x000000
WS_VT   = 0x600000
WS_H    = 0x900000
WS_OP   = 0xF00000
WS_W2F  = 0x1180000
WS_WOF  = 0x1360000
WS_G    = 0x1430000
WS_FLAG = 0x1432000
WS_END  = 0x1433000
WS_PROF = 0x1500000
WS_PROF_END = 0x1600000
K1_LDS = 163840

def stamp(A, opts, idx):
    if not opts.get('prof'): return
    A(f'    s_memtime s[{70+2*idx}:{71+2*idx}]')
    if idx == 0 or idx == 7:
        A(f'    s_memrealtime s[{86+2*(idx != 0)}:{87+2*(idx != 0)}]')

def stamp_flush(A, opts, wave_slot_sreg, srd='s[92:95]'):
    if not opts.get('prof'): return
    A(f'''
    s_waitcnt lgkmcnt(0)
    s_lshl_b32 s96, s2, 4
    s_add_u32 s96, s96, {wave_slot_sreg}
    s_lshl_b32 s96, s96, 7
    s_add_u32 s96, s96, {WS_PROF}
    v_mov_b32 v100, s96
    s_mov_b64 exec, 1''')
    for i in range(20):
        A(f'    v_mov_b32 v101, s{70+i}\n    buffer_store_dword v101, v100, {srd}, 0 offen offset:{4*i}')
    A('    s_mov_b64 exec, -1')

def gen_k1(a, opts):
    A = a
    A('k1_kernel:')
    A('''
    s_cmp_ge_u32 s2, 256
    s_cbranch_scc1 K1_done''')
    stamp(A, opts, 0)
    A(f'''
    s_load_dwordx2 s[4:5], s[0:1], 0
    s_load_dwordx4 s[64:67], s[0:1], 8
    s_load_dwordx4 s[24:27], s[0:1], 32
    s_load_dwordx2 s[68:69], s[0:1], 48
    s_load_dwordx2 s[28:29], s[0:1], 72
    v_lshrrev_b32 v1, 6, v0
    v_and_b32 v0, 63, v0
    v_readfirstlane_b32 s30, v1
    s_and_b32 s31, s2, 7
    s_lshr_b32 s32, s2, 3
    s_and_b32 s33, s31, 1
    s_lshl_b32 s33, s33, 3
    s_and_b32 s34, s32, 7
    s_add_u32 s33, s33, s34
    s_lshr_b32 s34, s31, 1
    s_lshl_b32 s34, s34, 2
    s_lshr_b32 s35, s32, 3
    s_add_u32 s34, s34, s35
    s_lshl_b32 s40, s33, 7
    s_waitcnt lgkmcnt(0)''')
    stamp(A, opts, 1)
    A(f'''
    s_mov_b32 s8, s4
    s_mov_b32 s9, s5
    s_mov_b32 s10, 2621440
    s_mov_b32 s11, 0x00020000
    s_mov_b32 s16, s28
    s_mov_b32 s17, s29
    s_mov_b32 s18, {WS_END}
    s_mov_b32 s19, 0x00020000
    s_mov_b32 s15, 0x00020000
    s_mov_b32 s92, s28
    s_mov_b32 s93, s29
    s_mov_b32 s94, {WS_PROF_END}
    s_mov_b32 s95, 0x00020000
    s_cmp_lt_u32 s34, 6
    s_cbranch_scc1 K1_sec_qk
    s_cmp_lt_u32 s34, 9
    s_cbranch_scc1 K1_sec_v
    s_mov_b32 s36, 2
    s_sub_u32 s37, s34, 9
    s_mul_i32 s37, s37, 14
    s_min_u32 s37, s37, 82
    s_lshl_b32 s38, s37, 5
    s_mov_b32 s39, 3072
    s_mov_b32 s12, s24
    s_mov_b32 s13, s25
    s_mov_b32 s14, 1966080
    s_branch K1_sec_done
K1_sec_qk:
    s_mov_b32 s36, 0
    s_mul_i32 s37, s34, 14
    s_min_u32 s37, s37, 66
    s_lshl_b32 s38, s37, 5
    s_mov_b32 s39, 3840
    s_mov_b32 s12, s64
    s_mov_b32 s13, s65
    s_mov_b32 s14, 2457600
    s_branch K1_sec_done
K1_sec_v:
    s_mov_b32 s36, 1
    s_sub_u32 s37, s34, 6
    s_mul_i32 s37, s37, 14
    s_min_u32 s37, s37, 26
    s_lshl_b32 s38, s37, 5
    s_add_u32 s38, s38, 2560
    s_mov_b32 s39, 3840
    s_mov_b32 s12, s64
    s_mov_b32 s13, s65
    s_mov_b32 s14, 2457600
K1_sec_done:
    s_cmp_ge_u32 s30, 4
    s_cbranch_scc1 K1_loader
    ''')
    ACC = 16
    def acc(uu, mt): return ACC + (uu * 4 + mt) * 4
    XS = [128, 172]; WSs = [144, 188]
    VAX = [216, 217]; VW = 218
    A(f'''
    s_and_b32 s41, s30, 1
    s_lshr_b32 s42, s30, 1
    v_and_b32 v1, 15, v0
    v_lshrrev_b32 v2, 4, v0
    v_and_b32 v3, 7, v1
    v_xor_b32 v3, v2, v3
    v_lshlrev_b32 v3, 4, v3
    v_lshl_add_u32 v3, v1, 7, v3
    s_lshl_b32 s43, s41, 13
    v_add_u32 v{VAX[0]}, s43, v3
    v_xor_b32 v{VAX[1]}, 64, v{VAX[0]}
    v_lshrrev_b32 v4, 2, v1
    v_and_b32 v5, 3, v0
    v_and_b32 v6, 1, v2
    v_lshl_or_b32 v6, v6, 2, v4
    v_lshl_add_u32 v7, v2, 3, v4
    v_lshlrev_b32 v7, 9, v7
    v_lshl_add_u32 v7, v5, 3, v7
    v_add_u32 v7, 16384, v7
    s_lshl_b32 s44, s42, 3
    s_add_u32 s45, s42, 6
    ''')
    for uu in range(7):
        if uu < 6: A(f'    s_add_u32 s46, s44, {uu}\n    v_xor_b32 v8, s46, v6')
        else:      A(f'    v_xor_b32 v8, s45, v6')
        A(f'    v_lshl_add_u32 v{VW+uu}, v8, 5, v7')
    for r in range(ACC, ACC + 112):
        A(f'    v_mov_b32 v{r}, 0')
    def reads(st, ks):
        R = []
        for mt in range(4):
            R.append(f'    ds_read_b128 {vr(XS[st]+4*mt,4)}, v{VAX[ks]} offset:{mt*2048}')
        for uu in range(7):
            for t in range(2):
                R.append(f'    ds_read_b64_tr_b16 {vr(WSs[st]+4*uu+2*t,2)}, v{VW+uu} offset:{(32*ks+4*t)*512}')
        return R
    def phase(st, rd, swapped):
        k = 0
        if opts.get('nocomp'): return
        if opts.get('noread'): rd = []
        for uu in range(7):
            for mt in range(4):
                w = vr(WSs[st] + 4 * uu, 4); x = vr(XS[st] + 4 * mt, 4); d = vr(acc(uu, mt), 4)
                if swapped: A(f'    v_mfma_f32_16x16x32_bf16 {d}, {w}, {x}, {d}')
                else:       A(f'    v_mfma_f32_16x16x32_bf16 {d}, {x}, {w}, {d}')
                if k < len(rd): A(rd[k])
                k += 1
    def mainloop(tag, swapped):
        A(f'''
    s_mov_b32 s46, 0
    s_mov_b32 s47, 0
    s_mov_b32 s50, 0xfffe8000
    s_mov_b32 s51, 49152
    s_barrier''')
        stamp(A, opts, 4)
        for l in reads(0, 0): A(l)
        A(f'K1_loop_{tag}:')
        A('    s_waitcnt lgkmcnt(0)')
        phase(0, reads(1, 1), swapped)
        A(f'''
    s_add_u32 s47, s47, 1
    s_cmp_eq_u32 s47, 3
    s_cselect_b32 s48, s50, s51
    s_cselect_b32 s47, 0, s47
    s_waitcnt lgkmcnt(0)
    s_barrier''')
        for r in VAX + [VW + i for i in range(7)]:
            A(f'    v_add_u32 v{r}, s48, v{r}')
        phase(1, reads(0, 0), swapped)
        A(f'''
    s_add_u32 s46, s46, 1
    s_cmp_lt_u32 s46, 10
    s_cbranch_scc1 K1_loop_{tag}
    s_waitcnt lgkmcnt(0)
    s_nop 7''')
        stamp(A, opts, 5)
    A('''
    s_cmp_eq_u32 s36, 1
    s_cbranch_scc1 K1_main_v
    s_cmp_eq_u32 s36, 2
    s_cbranch_scc1 K1_pre_h''')
    A(f'''
    s_lshl_b32 s43, s41, 2
    s_lshr_b32 s46, s40, 4
    s_add_u32 s43, s43, s46
    s_mul_i32 s43, s43, 768
    v_lshlrev_b32 v3, 3, v1
    v_add_u32 v3, s43, v3
    s_mov_b32 s49, 52429
    s_mov_b32 s52, 98304
    s_mov_b32 s53, 0x3ea52b5c''')
    for uu in range(7):
        if uu < 6: A(f'    s_add_u32 s46, s44, {uu}')
        else:      A(f'    s_mov_b32 s46, s45')
        A(f'''
    s_add_u32 s46, s46, s37
    s_lshl_b32 s46, s46, 2
    v_add_u32 v4, s46, v2
    v_mul_lo_u32 v5, v4, s49
    v_lshrrev_b32 v5, 18, v5
    v_mul_u32_u24 v6, 5, v5
    v_sub_u32 v6, v4, v6
    v_mul_lo_u32 v5, v5, s52
    v_lshl_add_u32 v5, v6, 7, v5
    v_add_u32 v{8+uu}, v5, v3''')
    A('    s_branch K1_pre_done')
    A('K1_pre_h:')
    A(f'''
    s_lshl_b32 s43, s33, 1
    s_add_u32 s43, s43, s41
    s_mul_i32 s43, s43, {48*4096}
    s_add_u32 s43, s43, {WS_H}
    s_add_u32 s56, s37, s44
    s_lshl_b32 s56, s56, 11
    s_add_u32 s56, s56, s43
    v_and_b32 v4, 1, v2
    v_lshlrev_b32 v4, 1, v4
    v_lshrrev_b32 v5, 1, v2
    v_add_u32 v4, v4, v5
    v_lshl_add_u32 v4, v4, 4, v1
    v_lshlrev_b32 v4, 4, v4
    s_add_u32 s57, s37, 6
    s_lshl_b32 s57, s57, 11
    s_add_u32 s57, s57, s43
    s_lshl_b32 s48, s42, 1
    v_add_u32 v5, s48, v5
    v_lshl_add_u32 v5, v5, 4, v1
    v_lshlrev_b32 v5, 4, v5
    v_and_b32 v6, 1, v2
    v_lshl_add_u32 v5, v6, 10, v5''')
    A('K1_pre_done:')
    mainloop('s', True)
    A('''
    s_cmp_eq_u32 s36, 2
    s_cbranch_scc1 K1_epi_h''')
    T = 128
    for uu in range(7):
        if uu < 6: A(f'    s_add_u32 s46, s44, {uu}')
        else:      A(f'    s_mov_b32 s46, s45')
        A(f'''
    s_add_u32 s46, s46, s37
    s_cmp_lt_u32 s46, 40
    s_cselect_b32 s54, s53, 1.0
    s_mov_b32 s55, s54''')
        for mt in range(4):
            d = acc(uu, mt); t = T + (uu * 4 + mt) * 2
            A(f'''
    v_pk_mul_f32 {vr(d,2)}, {vr(d,2)}, s[54:55]
    v_pk_mul_f32 {vr(d+2,2)}, {vr(d+2,2)}, s[54:55]
    v_cvt_pk_bf16_f32 v{t}, v{d}, v{d+1}
    v_cvt_pk_bf16_f32 v{t+1}, v{d+2}, v{d+3}
    buffer_store_dwordx2 {vr(t,2)}, v{8+uu}, s[16:19], 0 offen offset:{WS_QK + mt*768}''')
    A('    s_branch K1_cdone')
    A('K1_epi_h:')
    n = 0
    for pp in range(3):
        A(f'    s_add_u32 s49, s56, {pp*4096}')
        for mt in range(4):
            t = T + n * 4; n += 1
            d0 = acc(2 * pp, mt); d1 = acc(2 * pp + 1, mt)
            A(f'''
    v_cvt_pk_bf16_f32 v{t}, v{d0}, v{d0+1}
    v_cvt_pk_bf16_f32 v{t+1}, v{d0+2}, v{d0+3}
    v_cvt_pk_bf16_f32 v{t+2}, v{d1}, v{d1+1}
    v_cvt_pk_bf16_f32 v{t+3}, v{d1+2}, v{d1+3}
    v_pk_max_i16 v{t}, v{t}, 0
    v_pk_max_i16 v{t+1}, v{t+1}, 0
    v_pk_max_i16 v{t+2}, v{t+2}, 0
    v_pk_max_i16 v{t+3}, v{t+3}, 0
    v_permlane16_swap_b32 v{t}, v{t+2}
    v_permlane16_swap_b32 v{t+1}, v{t+3}
    buffer_store_dwordx4 {vr(t,4)}, v4, s[16:19], s49 offen offset:{1024*mt}''')
    for pm in range(2):
        t = T + n * 4; n += 1
        d0 = acc(6, 2 * pm); d1 = acc(6, 2 * pm + 1)
        A(f'''
    v_cvt_pk_bf16_f32 v{t}, v{d0}, v{d0+1}
    v_cvt_pk_bf16_f32 v{t+1}, v{d0+2}, v{d0+3}
    v_cvt_pk_bf16_f32 v{t+2}, v{d1}, v{d1+1}
    v_cvt_pk_bf16_f32 v{t+3}, v{d1+2}, v{d1+3}
    v_pk_max_i16 v{t}, v{t}, 0
    v_pk_max_i16 v{t+1}, v{t+1}, 0
    v_pk_max_i16 v{t+2}, v{t+2}, 0
    v_pk_max_i16 v{t+3}, v{t+3}, 0
    v_permlane16_swap_b32 v{t}, v{t+2}
    v_permlane16_swap_b32 v{t+1}, v{t+3}
    buffer_store_dwordx4 {vr(t,4)}, v5, s[16:19], s57 offen offset:{2048*pm}''')
    A('    s_branch K1_cdone')
    A('K1_main_v:')
    A(f'''
    s_lshl_b32 s43, s41, 1
    s_lshr_b32 s46, s40, 5
    s_add_u32 s43, s43, s46
    s_mul_i32 s43, s43, 1344
    s_add_u32 s43, s43, {WS_VT}
    v_mul_u32_u24 v3, 336, v2
    v_add_u32 v3, s43, v3
    s_mov_b32 s49, 3277
    s_mov_b32 s52, 86016''')
    for uu in range(7):
        if uu < 6: A(f'    s_add_u32 s46, s44, {uu}')
        else:      A(f'    s_mov_b32 s46, s45')
        A(f'''
    s_add_u32 s46, s46, s37
    s_lshl_b32 s46, s46, 4
    v_add_u32 v4, s46, v1
    v_mul_lo_u32 v5, v4, s49
    v_lshrrev_b32 v5, 16, v5
    v_mul_u32_u24 v6, 20, v5
    v_sub_u32 v6, v4, v6
    v_mul_lo_u32 v5, v5, s52
    v_lshl_add_u32 v5, v6, 4, v5
    v_add_u32 v{8+uu}, v5, v3''')
    mainloop('n', False)
    for uu in range(7):
        for pa in range(2):
            t = T + (uu * 2 + pa) * 4
            d0 = acc(uu, 2 * pa); d1 = acc(uu, 2 * pa + 1)
            A(f'''
    v_cvt_pk_bf16_f32 v{t}, v{d0}, v{d0+1}
    v_cvt_pk_bf16_f32 v{t+1}, v{d0+2}, v{d0+3}
    v_cvt_pk_bf16_f32 v{t+2}, v{d1}, v{d1+1}
    v_cvt_pk_bf16_f32 v{t+3}, v{d1+2}, v{d1+3}
    buffer_store_dwordx4 {vr(t,4)}, v{8+uu}, s[16:19], 0 offen offset:{1344*pa}''')
    A('    s_branch K1_cdone')
    PK = 147456
    A(f'''K1_loader:
    s_sub_u32 s41, s30, 4
    v_lshrrev_b32 v1, 3, v0
    v_and_b32 v2, 7, v0
    v_lshlrev_b32 v21, 4, v2
    v_xor_b32 v2, v2, v1
    v_lshlrev_b32 v2, 4, v2
    s_movk_i32 s43, 1280
    v_mul_lo_u32 v1, v1, s43
    v_add_u32 v2, v2, v1
    v_add_u32 v21, v21, v1
    v_lshrrev_b32 v4, 5, v0
    s_and_b32 s44, s41, 1
    s_lshr_b32 s45, s41, 1
    s_lshl_b32 s46, s44, 1
    s_lshl_b32 s47, s45, 2
    s_or_b32 s46, s46, s47
    v_or_b32 v5, s46, v4
    v_bfe_u32 v6, v0, 1, 4
    v_xor_b32 v6, v6, v5
    v_mul_lo_u32 v7, v4, s39
    v_lshl_add_u32 v7, v6, 5, v7
    v_and_b32 v8, 1, v0
    v_lshl_add_u32 v3, v8, 4, v7
    v_mov_b32 v9, 0x80000000
    v_cmp_le_u32 vcc, 14, v6
    v_cndmask_b32 v3, v3, v9, vcc
    s_lshl_b32 s50, s41, 5
    s_add_u32 s50, s50, s40
    s_mul_i32 s50, s50, 1280
    s_add_u32 s52, s44, s47
    s_lshl_b32 s53, s52, 1
    s_mul_i32 s51, s53, s39
    s_add_u32 s51, s51, s38
    s_lshl_b32 s54, s39, 2
    s_mul_i32 s55, s39, 12
    s_lshl_b32 s56, s39, 6
    s_lshl_b32 s57, s41, 12
    s_lshl_b32 s58, s52, 10
    s_add_u32 s58, s58, 16384
    s_mov_b32 s59, 0
    s_and_b32 s46, s32, 7
    s_lshr_b32 s47, s32, 3
    s_mul_i32 s47, s47, 3
    s_add_u32 s90, s46, s47
    s_cmp_ge_u32 s90, 10
    s_cselect_b32 s46, 10, 0
    s_sub_u32 s90, s90, s46
    {'' if opts.get('rot', 0) else 's_mov_b32 s90, 0'}
    s_lshl_b32 s46, s90, 7
    s_add_u32 s50, s50, s46
    s_mul_i32 s46, s90, s56
    s_add_u32 s51, s51, s46
    s_mul_i32 s91, s56, 10
    v_mov_b32 v9, 0x80000000
    s_lshr_b32 s46, s32, 3
    s_lshl_b32 s46, s46, 5
    s_lshl_b32 s47, s41, 3
    s_add_u32 s46, s46, s47
    s_add_u32 s46, s46, s40
    v_add_u32 v22, s46, v0
    v_mul_lo_u32 v22, v22, s43
    v_cmp_gt_u32 vcc, 8, v0
    v_cndmask_b32 v22, v9, v22, vcc
    s_and_b32 s46, s32, 7
    s_lshl_b32 s46, s46, 3
    s_lshl_b32 s47, s41, 1
    s_add_u32 s46, s46, s47
    v_lshrrev_b32 v23, 2, v0
    v_add_u32 v23, s46, v23
    v_mul_lo_u32 v23, v23, s39
    v_and_b32 v10, 3, v0
    v_lshl_add_u32 v23, v10, 7, v23
    s_and_b32 s46, s38, 0xffffff80
    v_add_u32 v23, s46, v23
    v_cndmask_b32 v23, v9, v23, vcc
    s_mov_b32 s97, 256
    s_lshl_b32 s98, s56, 1
    s_lshl_b32 s46, s32, 2
    s_add_u32 s46, s46, s41
    s_mul_i32 s46, s46, 192
    v_add_u32 v19, s46, v0
    v_lshlrev_b32 v19, 7, v19
    v_add_u32 v19, {WS_W2F}, v19
    s_mov_b32 s99, 0x7f000000
    ''')
    def touch2():
        if not opts.get('tpf', 0): return
        A('''
    buffer_load_dword v17, v22, s[8:11], s97 offen
    buffer_load_dword v18, v23, s[12:15], s98 offen
    s_add_u32 s97, s97, 128
    s_add_u32 s98, s98, s56''')
    def touch3():
        if not opts.get('tpf', 0): return
        touch2()
        A('    buffer_load_dword v16, v19, s[16:19], s99 offen')
    def issue():
        A('    s_add_u32 s60, s59, s57\n    s_add_u32 s61, s59, s58')
        for jj in range(4):
            A(f'''
    s_add_u32 m0, s60, {jj*1024}
    s_add_u32 s62, s50, {jj*10240}
    {'s_nop 0' if opts.get('nodma') else 'buffer_load_dwordx4 v2, s[8:11], s62 offen lds'}''')
        A('    s_mov_b32 s62, s51')
        i = 0
        for b in range(4):
            for aa in range(2):
                A(f'    s_add_u32 m0, s61, {(2*aa+8*b)*1024}')
                if i > 0:
                    A(f'    s_add_u32 s62, s62, {"s54" if aa == 1 else "s55"}')
                else:
                    A('    s_nop 0')
                A('    s_nop 0' if opts.get('nodma') else '    buffer_load_dwordx4 v3, s[12:15], s62 offen lds')
                i += 1
        A(f'''
    s_add_u32 s50, s50, 128
    s_add_u32 s51, s51, s56
    s_add_u32 s90, s90, 1
    s_cmp_eq_u32 s90, 10
    s_cselect_b32 s46, 1280, 0
    s_cselect_b32 s47, s91, 0
    s_cselect_b32 s90, 0, s90
    s_sub_u32 s50, s50, s46
    s_sub_u32 s51, s51, s47
    s_add_u32 s59, s59, 49152
    s_cmp_eq_u32 s59, 147456
    s_cselect_b32 s59, 0, s59''')
    stamp(A, opts, 2)
    issue()
    A(f'''
    s_lshl_b32 s63, s2, 2
    s_add_u32 s63, s63, s41
    s_mov_b32 s33, 0
    s_cmp_ge_u32 s63, 680
    s_cbranch_scc1 K1_nopack1
    s_mov_b32 s33, 1
    s_mul_hi_u32 s46, s63, 0x1999999a    ; ks
    s_mul_i32 s47, s46, 10
    s_sub_u32 s47, s63, s47              ; cg
    s_cmp_lt_u32 s46, 48
    s_cbranch_scc0 K1_pk_wo
    s_mov_b32 s20, s26
    s_mov_b32 s21, s27
    s_mov_b32 s22, 1966080
    s_mul_i32 s34, s46, 40960
    s_add_u32 s35, s34, {WS_W2F}
    s_branch K1_pk_go
K1_pk_wo:
    s_mov_b32 s20, s66
    s_mov_b32 s21, s67
    s_mov_b32 s22, 819200
    s_sub_u32 s46, s46, 48
    s_mul_i32 s34, s46, 40960
    s_add_u32 s35, s34, {WS_WOF}
K1_pk_go:
    s_mov_b32 s23, 0x00020000
    s_lshl_b32 s46, s47, 7
    s_add_u32 s34, s34, s46
    s_lshl_b32 s46, s47, 12
    s_add_u32 s35, s35, s46
    s_add_u32 s46, s57, {PK}''')
    for jj in range(4):
        A(f'''
    s_add_u32 m0, s46, {jj*1024}
    s_add_u32 s47, s34, {jj*10240}
    buffer_load_dwordx4 v21, s[20:23], s47 offen lds''')
    A('K1_nopack1:')
    issue()
    touch2(); touch2(); touch2()
    stamp(A, opts, 3)
    A(f'''
    s_waitcnt vmcnt({18 if opts.get('tpf',0) else 12})
    s_barrier''')
    stamp(A, opts, 4)
    issue()
    touch3()
    A(f'''
    s_cmp_eq_u32 s33, 0
    s_cbranch_scc1 K1_nopack2
    v_lshrrev_b32 v10, 4, v0
    v_bfe_u32 v11, v0, 2, 2
    v_lshl_add_u32 v10, v10, 3, v11
    v_lshlrev_b32 v10, 7, v10
    v_and_b32 v11, 3, v0
    v_lshl_add_u32 v10, v11, 3, v10
    s_add_u32 s46, s57, {PK}
    v_add_u32 v10, s46, v10
    v_lshlrev_b32 v11, 4, v0''')
    for u in range(4):
        for t in range(2):
            A(f'    ds_read_b64_tr_b16 {vr(24+4*u+2*t,2)}, v10 offset:{t*512 + u*32}')
    A('    s_waitcnt lgkmcnt(0)')
    for u in range(4):
        A(f'    buffer_store_dwordx4 {vr(24+4*u,4)}, v11, s[16:19], s35 offen offset:{u*1024} sc1')
    A(f'''
    s_waitcnt vmcnt({25 if opts.get('tpf',0) else 16})
    s_barrier''')
    issue()
    touch3()
    A(f'''
    s_waitcnt vmcnt({22 if opts.get('tpf',0) else 16})
    s_barrier
    s_branch K1_ld_cont
K1_nopack2:
    s_waitcnt vmcnt({21 if opts.get('tpf',0) else 12})
    s_barrier''')
    issue()
    touch3()
    A(f'''
    s_waitcnt vmcnt({18 if opts.get('tpf',0) else 12})
    s_barrier
K1_ld_cont:
    s_mov_b32 s63, 2''')
    A('K1_ld_loop:')
    issue()
    PF0 = opts.get('pf0', 4)
    A(f'''
    s_sub_u32 s46, s63, {PF0}
    s_lshl_b32 s47, s46, 13
    s_cmp_lt_u32 s46, {3 if opts.get('w2pf', 1) else 0}
    s_cselect_b32 s99, s47, 0x7f000000''')
    touch3()
    A(f'''
    s_waitcnt vmcnt({18 if opts.get('tpf',0) else 12})
    s_barrier
    s_add_u32 s63, s63, 1
    s_cmp_lt_u32 s63, 8
    s_cbranch_scc1 K1_ld_loop''')
    stamp(A, opts, 5)
    A(f'''
    s_lshr_b32 s34, s31, 1
    s_lshl_b32 s34, s34, 2
    s_lshr_b32 s35, s32, 3
    s_add_u32 s34, s34, s35
    s_lshl_b32 s44, s34, 3
    s_add_u32 s44, s44, s40
    s_lshl_b32 s45, s41, 1
    s_add_u32 s44, s44, s45
    s_mul_i32 s45, s44, 1280
    s_mov_b32 s20, s68
    s_mov_b32 s21, s69
    s_mov_b32 s22, 1280
    s_mov_b32 s23, 0x00020000
    v_lshlrev_b32 v10, 2, v0''')
    for j in range(5):
        A(f'    buffer_load_dword v{16+j}, v10, s[20:23], 0 offen offset:{256*j}')
    for rr in range(2):
        for j in range(5):
            A(f'    buffer_load_dword v{24+8*rr+j}, v10, s[8:11], s45 offen offset:{256*j + 1280*rr}')
    A(f'''
    s_waitcnt vmcnt({18 if opts.get('tpf',0) else 15})
    s_barrier
    s_barrier
    s_lshl_b32 s46, s2, 2
    s_add_u32 s46, s46, s41
    s_lshl_b32 s46, s46, 2
    v_lshrrev_b32 v11, 4, v0
    v_add_u32 v11, s46, v11
    v_mul_u32_u24 v11, 768, v11
    v_and_b32 v12, 15, v0
    v_lshl_add_u32 v11, v12, 3, v11
    v_add_u32 v11, {WS_QK + 32*98304 + 640}, v11
    v_mov_b32 v12, 0
    v_mov_b32 v13, 0
    buffer_store_dwordx2 v[12:13], v11, s[16:19], 0 offen
    s_lshl_b32 s46, s46, 1
    v_add_u32 v11, s46, v0
    v_mul_u32_u24 v11, 336, v11
    v_add_u32 v11, {WS_VT + 320}, v11
    v_mov_b32 v15, 0x80000000
    v_cmp_gt_u32 vcc, 8, v0
    v_cndmask_b32 v11, v15, v11, vcc
    v_mov_b32 v44, 0x3f803f80
    v_mov_b32 v45, 0x3f803f80
    v_mov_b32 v46, 0x3f803f80
    v_mov_b32 v47, 0x3f803f80
    buffer_store_dwordx4 v[44:47], v11, s[16:19], 0 offen
    s_lshl_b32 s46, s2, 2
    s_add_u32 s46, s46, {WS_FLAG}
    v_mov_b32 v14, s46
    v_cmp_eq_u32 vcc, 0, v0
    v_cndmask_b32 v14, v15, v14, vcc
    s_cmp_eq_u32 s41, 0
    s_cbranch_scc0 K1_noflag
    buffer_store_dword v12, v14, s[16:19], 0 offen
K1_noflag:
    s_waitcnt vmcnt(0)''')
    for rr in range(2):
        acc_ = 40 + rr
        A(f'    v_mov_b32 v{acc_}, 0')
        for j in range(5):
            A(f'    v_dot2c_f32_bf16 v{acc_}, v{16+j}, v{24+8*rr+j}')
    for rr in range(2):
        r = 40 + rr
        A(f'''
    v_add_f32_dpp v{r}, v{r}, v{r} quad_perm:[1,0,3,2] row_mask:0xf bank_mask:0xf
    v_add_f32_dpp v{r}, v{r}, v{r} quad_perm:[2,3,0,1] row_mask:0xf bank_mask:0xf
    v_add_f32_dpp v{r}, v{r}, v{r} row_half_mirror row_mask:0xf bank_mask:0xf
    v_add_f32_dpp v{r}, v{r}, v{r} row_mirror row_mask:0xf bank_mask:0xf
    v_mov_b32 v43, v{r}
    v_permlane16_swap_b32 v43, v{r}
    v_add_f32 v{r}, v{r}, v43
    v_mov_b32 v43, v{r}
    v_permlane32_swap_b32 v43, v{r}
    v_add_f32 v{r}, v{r}, v43''')
    A(f'''
    v_cmp_eq_u32 vcc, 1, v0
    v_cndmask_b32 v40, v40, v41, vcc
    v_mul_f32 v40, 0xbfb8aa3b, v40
    v_exp_f32 v40, v40
    v_add_f32 v40, 1.0, v40
    v_rcp_f32 v40, v40
    s_lshl_b32 s46, s44, 2
    s_add_u32 s46, s46, {WS_G}
    v_lshl_add_u32 v14, v0, 2, s46
    v_cmp_gt_u32 vcc, 2, v0
    v_cndmask_b32 v14, v15, v14, vcc
    buffer_store_dword v40, v14, s[16:19], 0 offen''')
    A('K1_cdone:')
    if opts.get('prof'):
        stamp(A, opts, 6)
        A('    s_waitcnt vmcnt(0)')
        stamp(A, opts, 7)
        stamp_flush(A, opts, 's30')
    A('''K1_done:
    s_endpgm
''')

K1_DESC = '''
.amdhsa_kernel k1_kernel
  .amdhsa_next_free_vgpr 232
  .amdhsa_next_free_sgpr 100
  .amdhsa_accum_offset 232
  .amdhsa_group_segment_fixed_size 0
  .amdhsa_kernarg_size 80
  .amdhsa_user_sgpr_count 2
  .amdhsa_user_sgpr_kernarg_segment_ptr 1
  .amdhsa_system_sgpr_workgroup_id_x 1
.end_amdhsa_kernel
'''
```

```python
from asmlib import *
from k1 import *

KL = 0
VL = 24832
CNT = VL + 21504
RING0 = 46592
SLOT = 5120
RINGW = 20480
LDS_BYTES = RING0 + 4 * RINGW
NAW = 8
NWAVES = NAW + 4

SCALE_LOG2E = 0.22360679774997896 * 1.4426950408889634

def f32hex(x):
    import struct
    return '0x%08x' % struct.unpack('<I', struct.pack('<f', x))[0]

def gen_k2(a, opts):
    A = a
    A('k2_kernel:')
    A('''
    s_cmp_ge_u32 s2, 256
    s_cbranch_scc1 K2_done''')
    stamp(A, opts, 0)
    A(f'''
    s_load_dwordx2 s[24:25], s[0:1], 56
    s_load_dwordx2 s[28:29], s[0:1], 72
    v_lshrrev_b32 v1, 6, v0
    v_and_b32 v0, 63, v0
    v_readfirstlane_b32 s30, v1
    s_and_b32 s31, s2, 7
    s_lshr_b32 s32, s2, 3
    v_and_b32 v1, 15, v0
    v_lshrrev_b32 v2, 4, v0
    s_cmp_eq_u32 s30, 0
    s_cbranch_scc0 K2_noinit
    v_mov_b32 v8, 0
    v_mov_b32 v9, {CNT}
    ds_write_b32 v9, v8
    ds_write_b32 v9, v8 offset:4
    ds_write_b32 v9, v8 offset:8
    v_lshlrev_b32 v9, 2, v0
    ds_write_b32 v9, v8 offset:24576
K2_noinit:
    s_waitcnt lgkmcnt(0)''')
    stamp(A, opts, 1)
    A(f'''
    s_mov_b32 s16, s28
    s_mov_b32 s17, s29
    s_mov_b32 s18, {WS_END}
    s_mov_b32 s19, 0x00020000
    s_mov_b32 s92, s28
    s_mov_b32 s93, s29
    s_mov_b32 s94, {WS_PROF_END}
    s_mov_b32 s95, 0x00020000
    s_cmp_ge_u32 s30, {NAW}
    s_cbranch_scc1 K2_gemm
    ''')
    gen_attn(A, opts)
    A('K2_gemm:')
    gen_gemm(A, opts)
    A('K2_done:\n    s_endpgm')

def gen_attn(A, opts):
    SA = 16
    KB = 48
    VB = 64
    Q = 80
    O = 88
    G = 104
    VK = 106; VK2 = 107; VV0 = 108; VV1 = 109; VO1 = 110; VO2 = 111
    FS = 16
    NQT = 2
    KPW = 24 // NAW
    A(f'''
    {'s_setprio 2' if opts.get('prio', 1) else ''}
    s_lshr_b32 s59, s32, 2              ; qb
    s_lshl_b32 s33, s59, 8              ; Q0
    s_and_b32 s34, s32, 3
    s_lshl_b32 s35, s31, 2
    s_add_u32 s34, s34, s35
    s_add_u32 s35, s34, 32
    s_mul_i32 s35, s35, 98304
    s_mul_i32 s36, s33, 48
    s_add_u32 s35, s35, s36
    s_sub_u32 s35, s35, {256*48 - WS_QK}
    v_lshlrev_b32 v3, 4, v0
    s_mul_i32 s37, s30, {KPW*1024}
    s_add_u32 s35, s35, s37
    s_cmp_eq_u32 s59, 0
    s_cselect_b32 s38, 1, 0
    s_cmp_lt_u32 s30, {NAW//2}
    s_cselect_b32 s39, s38, 0
    s_cmp_eq_u32 s39, 1
    s_cbranch_scc1 K2_kfill''')
    for j in range(KPW):
        A(f'''
    s_add_u32 m0, s37, {KL + j*1024}
    s_add_u32 s40, s35, {j*1024}
    buffer_load_dwordx4 v3, s[16:19], s40 offen lds''')
    A(f'''
    s_branch K2_kdone
K2_kfill:
    v_mov_b32 v5, 0
    v_mov_b32 v7, 0
    s_mul_i32 s40, s30, {KPW*64}
    v_add_u32 v8, s40, v0
    s_mov_b32 s41, 0x5555556''')
    for j in range(KPW):
        A(f'''
    v_mul_hi_u32 v9, v8, s41
    v_mul_u32_u24 v9, 48, v9
    v_sub_u32 v9, v8, v9
    v_cmp_le_u32 vcc, 40, v9
    v_mov_b32 v6, 0x3f80
    v_cndmask_b32 v6, 0, v6, vcc
    v_mov_b32 v4, v6
    v_lshlrev_b32 v9, 4, v8
    ds_write_b128 v9, v[4:7] offset:{KL}
    v_add_u32 v8, 64, v8''')
    A(f'''
K2_kdone:
    s_mul_i32 s35, s34, 98304
    s_mul_i32 s36, s30, {NQT*16}
    s_add_u32 s36, s36, s33
    s_mul_i32 s40, s36, 48
    s_add_u32 s35, s35, s40
    v_lshlrev_b32 v4, 3, v0
    v_lshlrev_b32 v5, 3, v1
    ''')
    for t in range(NQT):
        A(f'    buffer_load_dwordx2 {vr(Q+4*t,2)}, v4, s[16:19], s35 offen offset:{WS_QK + t*768}')
        A(f'    buffer_load_dwordx2 {vr(Q+4*t+2,2)}, v5, s[16:19], s35 offen offset:{WS_QK + t*768 + 512}')
    A(f'''
    s_mul_i32 s35, s34, 86016
    s_mul_i32 s40, s33, 42
    s_add_u32 s35, s35, s40
    s_add_u32 s35, s35, {WS_VT - 8*1344}
    s_lshl_b32 s37, s30, 10
    s_add_u32 s35, s35, s37''')
    nv_per = (21 + NAW - 1) // NAW
    for j in range(nv_per):
        if (j + 1) * NAW > 21:
            A(f'    s_cmp_lt_u32 s30, {21 - j*NAW}\n    s_cbranch_scc0 K2_vdone')
        A(f'''
    s_add_u32 m0, s37, {VL + j*NAW*1024}
    s_add_u32 s40, s35, {j*NAW*1024}
    buffer_load_dwordx4 v3, s[16:19], s40 offen lds''')
    A(f'''K2_vdone:
    s_lshl_b32 s40, s36, 2
    s_add_u32 s40, s40, {WS_G}
    v_lshlrev_b32 v5, 2, v1''')
    for t in range(NQT):
        A(f'    buffer_load_dword v{G+t}, v5, s[16:19], s40 offen offset:{t*64}')
    A(f'''
    s_barrier
    s_mul_i32 s40, s30, {NQT*768}
    v_lshlrev_b32 v{VK}, 3, v0
    v_add_u32 v{VK}, s40, v{VK}
    v_add_u32 v{VK2}, 768, v{VK}
    s_mul_i32 s40, s30, {NQT*672}
    s_add_u32 s40, s40, {VL}
    v_mul_u32_u24 v6, 336, v2
    v_add_u32 v6, s40, v6
    v_lshl_add_u32 v{VV0}, v1, 4, v6
    v_add_u32 v7, 16, v1
    v_min_u32 v7, 20, v7
    v_lshl_add_u32 v{VV1}, v7, 4, v6
    s_mul_i32 s41, s34, 20
    v_lshl_add_u32 v6, v2, 2, s41
    v_lshrrev_b32 v7, 5, v6
    v_lshlrev_b32 v7, 12, v7
    v_bfe_u32 v8, v6, 3, 2
    v_lshl_add_u32 v7, v8, 8, v7
    v_bfe_u32 v8, v6, 2, 1
    v_lshl_add_u32 v7, v8, 3, v7
    v_lshl_add_u32 v{VO1}, v1, 4, v7
    s_add_u32 s41, s41, 16
    s_lshr_b32 s42, s41, 5
    s_lshl_b32 s42, s42, 12
    s_bfe_u32 s43, s41, 0x20003
    s_lshl_b32 s43, s43, 8
    s_add_u32 s42, s42, s43
    s_bfe_u32 s43, s41, 0x10002
    s_lshl_b32 s43, s43, 3
    s_add_u32 s42, s42, s43
    v_lshl_add_u32 v{VO2}, v1, 4, s42
    v_mov_b32 v13, 0x80000000
    v_cmp_eq_u32 vcc, 0, v2
    v_cndmask_b32 v{VO2}, v13, v{VO2}, vcc
    s_lshr_b32 s42, s36, 6
    s_mul_i32 s42, s42, 81920
    s_bfe_u32 s43, s36, 0x20004
    s_lshl_b32 s43, s43, 10
    s_add_u32 s42, s42, s43
    s_add_u32 s42, s42, {WS_OP}
    v_lshlrev_b32 v8, 2, v2
    v_sub_u32 v8, v1, v8
    ''')
    for r in range(4):
        A(f'    v_cmp_gt_i32 s[{44+2*r}:{45+2*r}], {r}, v8')
    A(f'''
    v_mov_b32 v14, 0xff800000
    v_cmp_eq_u32 s[54:55], 1, v2
    v_cmp_lt_u32 s[56:57], 0, v2
    v_mov_b32 v9, 0xf149
    v_mov_b32 v3, {CNT+4}
    v_mov_b32 v4, 1
    s_waitcnt vmcnt(0) lgkmcnt(0)
    s_mov_b64 exec, 1
    ds_add_u32 v3, v4
    s_mov_b64 exec, -1''')
    for t in range(NQT):
        q = Q + 4 * t
        A(f'''
    v_cndmask_b32 v{q+2}, v{q+2}, 0, s[56:57]
    v_cndmask_b32 v{q+3}, v{q+3}, 0, s[56:57]
    v_cndmask_b32 v{q+2}, v{q+2}, v9, s[54:55]''')
    for r in range(16): A(f'    v_mov_b32 v{O+r}, 0')
    A(f'''
K2_kwait:
    ds_read_b32 v4, v3
    s_waitcnt lgkmcnt(0)
    v_readfirstlane_b32 s58, v4
    s_cmp_lt_u32 s58, {NAW}
    s_cbranch_scc1 K2_kwait''')
    stamp(A, opts, 2)
    def sa(st, q, t): return SA + 16 * st + 8 * q + 4 * t
    def kb(st, t): return KB + 8 * st + 4 * t
    def vb(st, d): return VB + 8 * st + 4 * d
    def loads(st):
        return [f'    ds_read2st64_b64 {vr(kb(st,0),4)}, v{VK} offset0:0 offset1:1',
                f'    ds_read2st64_b64 {vr(kb(st,1),4)}, v{VK2} offset0:0 offset1:1',
                f'    ds_read_b128 {vr(vb(st,0),4)}, v{VV0}',
                f'    ds_read_b128 {vr(vb(st,1),4)}, v{VV1}']
    def adv():
        return [f'    v_add_u32 v{VK}, 1536, v{VK}', f'    v_add_u32 v{VK2}, 1536, v{VK2}',
                f'    v_add_u32 v{VV0}, 1344, v{VV0}', f'    v_add_u32 v{VV1}, 1344, v{VV1}']
    def smfma(st, bb):
        L = []
        for q in range(2):
            for t in range(2):
                T = 2 * bb + t
                if (q == 0 and T == 17) or (q == 1 and T == 0): continue
                L.append(f'    v_mfma_f32_16x16x32_bf16 {vr(sa(st,q,t),4)}, {vr(kb(st,t),4)}, {vr(Q+4*q,4)}, 0')
        return L
    def softmax_pv(st, bb):
        L = []
        for q in range(2):
            for t in range(2):
                T = 2 * bb + t
                v = sa(st, q, t)
                if (q == 0 and T == 17) or (q == 1 and T == 0): continue
                if (q == 0 and T == 0) or (q == 1 and T == 1):
                    for r in range(4): L.append(f'    v_cndmask_b32 v{v+r}, v14, v{v+r}, s[{44+2*r}:{45+2*r}]')
                if (q == 0 and T == 16) or (q == 1 and T == 17):
                    for r in range(4): L.append(f'    v_cndmask_b32 v{v+r}, v{v+r}, v14, s[{44+2*r}:{45+2*r}]')
                for r in range(4): L.append(f'    v_exp_f32 v{v+r}, v{v+r}')
            p = sa(st, q, 0)
            for t in range(2):
                T = 2 * bb + t
                v = sa(st, q, t)
                if (q == 0 and T == 17) or (q == 1 and T == 0):
                    L.append(f'    v_mov_b32 v{p+2*t}, 0'); L.append(f'    v_mov_b32 v{p+2*t+1}, 0')
                else:
                    L.append(f'    v_cvt_pk_bf16_f32 v{p+2*t}, v{v}, v{v+1}')
                    L.append(f'    v_cvt_pk_bf16_f32 v{p+2*t+1}, v{v+2}, v{v+3}')
            for d in range(2):
                o = O + 8 * q + 4 * d
                L.append(f'    v_mfma_f32_16x16x32_bf16 {vr(o,4)}, {vr(vb(st,d),4)}, {vr(p,4)}, {vr(o,4)}')
        return L
    def body(st, bb, has_next):
        nx = st ^ 1
        if has_next:
            for l in adv(): A(l)
            for l in loads(nx): A(l)
        sp = softmax_pv(st, bb)
        half = len(sp) // 2
        idx = max(i for i, l in enumerate(sp) if f'v[{O}:{O+3}]' in l or f'v[{O+4}:{O+7}]' in l) + 1
        for l in sp[:idx]: A(l)
        if has_next:
            A('    s_waitcnt lgkmcnt(0)')
            for l in smfma(nx, bb + 1): A(l)
        for l in sp[idx:]: A(l)
    for l in loads(0): A(l)
    A('    s_waitcnt lgkmcnt(0)')
    for l in smfma(0, 0): A(l)
    body(0, 0, True)
    A('    s_mov_b32 s58, 0')
    A('K2_floop:')
    body(1, 1, True)
    body(0, 2, True)
    A('''
    s_add_u32 s58, s58, 1
    s_cmp_lt_u32 s58, 3
    s_cbranch_scc1 K2_floop''')
    body(1, 7, True)
    body(0, 8, False)
    stamp(A, opts, 4)
    A(f'''
    v_mov_b32 v3, v{O+4}
    v_mov_b32 v4, v{O+4}
    v_permlane16_swap_b32 v4, v3
    v_mov_b32 v4, v3
    v_permlane32_swap_b32 v4, v3
    v_mov_b32 v5, v{O+12}
    v_mov_b32 v6, v{O+12}
    v_permlane16_swap_b32 v6, v5
    v_mov_b32 v6, v5
    v_permlane32_swap_b32 v6, v5
    v_min_f32 v7, v4, v6
    v_max_f32 v8, v4, v6
    s_mov_b32 s60, 0x0d800000          ; 2^-100
    s_mov_b32 s61, 0x71800000          ; 2^100
    v_cmp_nle_f32 vcc, s60, v7
    s_mov_b64 s[62:63], vcc
    v_cmp_nge_f32 vcc, s61, v8
    s_or_b64 s[62:63], s[62:63], vcc
    s_cmp_lg_u64 s[62:63], 0
    s_cbranch_scc1 K2_fallback
K2_fin:
    v_rcp_f32 v4, v4
    v_rcp_f32 v6, v6
    v_mul_f32 v4, v4, v{G}
    v_mul_f32 v6, v6, v{G+1}''')
    for q in range(2):
        o = O + 8 * q; sc = 4 if q == 0 else 6
        for r in range(8): A(f'    v_mul_f32 v{o+r}, v{o+r}, v{sc}')
        t = 16 + 4 * q
        A(f'''
    v_cvt_pk_bf16_f32 v{t}, v{o}, v{o+1}
    v_cvt_pk_bf16_f32 v{t+1}, v{o+2}, v{o+3}
    v_cvt_pk_bf16_f32 v{t+2}, v{o+4}, v{o+5}
    v_cvt_pk_bf16_f32 v{t+3}, v{o+6}, v{o+7}
    buffer_store_dwordx2 {vr(t,2)}, v{VO1}, s[16:19], s42 offen offset:{1024*q} sc1
    buffer_store_dwordx2 {vr(t+2,2)}, v{VO2}, s[16:19], s42 offen offset:{1024*q} sc1''')
    stamp(A, opts, 3)
    A(f'''
    s_waitcnt vmcnt(0)
    v_mov_b32 v3, {CNT}
    v_mov_b32 v4, 1
    s_mov_b64 exec, 1
    ds_add_rtn_u32 v5, v3, v4
    s_waitcnt lgkmcnt(0)
    v_readfirstlane_b32 s58, v5
    s_cmp_eq_u32 s58, {NAW-1}
    s_cbranch_scc0 K2_adone
    s_lshl_b32 s58, s59, 5
    s_add_u32 s58, s58, s34
    s_lshl_b32 s58, s58, 2
    s_add_u32 s58, s58, {WS_FLAG}
    v_mov_b32 v3, s58
    buffer_store_dword v4, v3, s[16:19], 0 offen sc1
K2_adone:
    s_mov_b64 exec, -1''')
    if opts.get('prof'):
        A('    s_waitcnt vmcnt(0)')
        stamp(A, opts, 7)
        stamp_flush(A, opts, 's30')
    A('    s_branch K2_done')
    A(f'''K2_fallback:
    v_subrev_u32 v{VK}, {8*1536}, v{VK}
    v_subrev_u32 v{VK2}, {8*1536}, v{VK2}
    v_subrev_u32 v{VV0}, {8*1344}, v{VV0}
    v_subrev_u32 v{VV1}, {8*1344}, v{VV1}
    v_mov_b32 v10, 0xff7fffff
    v_mov_b32 v11, 0xff7fffff''')
    for r in range(16): A(f'    v_mov_b32 v{O+r}, 0')
    for bb in range(9):
        for l in loads(0): A(l)
        for l in adv(): A(l)
        A('    s_waitcnt lgkmcnt(0)')
        for l in smfma(0, bb): A(l)
        A('    s_nop 7')
        for q in range(2):
            vals = []
            for t in range(2):
                T = 2 * bb + t
                v = sa(0, q, t)
                if (q == 0 and T == 17) or (q == 1 and T == 0): continue
                if (q == 0 and T == 0) or (q == 1 and T == 1):
                    for r in range(4): A(f'    v_cndmask_b32 v{v+r}, v14, v{v+r}, s[{44+2*r}:{45+2*r}]')
                if (q == 0 and T == 16) or (q == 1 and T == 17):
                    for r in range(4): A(f'    v_cndmask_b32 v{v+r}, v{v+r}, v14, s[{44+2*r}:{45+2*r}]')
                vals += [v + r for r in range(4)]
            m = 10 + q
            A(f'    v_mov_b32 v5, v{m}')
            for v in vals: A(f'    v_max_f32 v5, v5, v{v}')
            A(f'''
    v_mov_b32 v6, v5
    v_permlane16_swap_b32 v6, v5
    v_max_f32 v5, v5, v6
    v_mov_b32 v6, v5
    v_permlane32_swap_b32 v6, v5
    v_max_f32 v5, v5, v6
    v_sub_f32 v6, v{m}, v5
    v_exp_f32 v6, v6
    v_mov_b32 v{m}, v5''')
            o = O + 8 * q
            for r in range(8): A(f'    v_mul_f32 v{o+r}, v{o+r}, v6')
            for v in vals:
                A(f'    v_sub_f32 v{v}, v{v}, v5')
                A(f'    v_exp_f32 v{v}, v{v}')
            p = sa(0, q, 0)
            for t in range(2):
                T = 2 * bb + t
                v = sa(0, q, t)
                if (q == 0 and T == 17) or (q == 1 and T == 0):
                    A(f'    v_mov_b32 v{p+2*t}, 0'); A(f'    v_mov_b32 v{p+2*t+1}, 0')
                else:
                    A(f'    v_cvt_pk_bf16_f32 v{p+2*t}, v{v}, v{v+1}')
                    A(f'    v_cvt_pk_bf16_f32 v{p+2*t+1}, v{v+2}, v{v+3}')
            for d in range(2):
                oo = o + 4 * d
                A(f'    v_mfma_f32_16x16x32_bf16 {vr(oo,4)}, {vr(vb(0,d),4)}, {vr(p,4)}, {vr(oo,4)}')
            A('    s_nop 7')
    A(f'''
    s_nop 7
    v_mov_b32 v3, v{O+4}
    v_mov_b32 v4, v{O+4}
    v_permlane16_swap_b32 v4, v3
    v_mov_b32 v4, v3
    v_permlane32_swap_b32 v4, v3
    v_mov_b32 v5, v{O+12}
    v_mov_b32 v6, v{O+12}
    v_permlane16_swap_b32 v6, v5
    v_mov_b32 v6, v5
    v_permlane32_swap_b32 v6, v5
    s_branch K2_fin''')

def gen_gemm(A, opts):
    ACC = 16
    def acc(u, mt): return ACC + (u * 4 + mt) * 4
    AS = 96
    WF = 144
    VL16 = 164; GM = 4
    def aslot(s, mt): return AS + 16 * s + 4 * mt
    A(f'''
    s_sub_u32 s33, s30, {NAW}          ; gw
    s_and_b32 s34, s32, 3
    s_lshl_b32 s35, s31, 2
    s_add_u32 s34, s34, s35            ; rb
    s_lshr_b32 s35, s32, 2             ; j
    s_lshl_b32 s36, s34, 6             ; row0
    s_mov_b32 s20, s24
    s_mov_b32 s21, s25
    s_mov_b32 s22, 2621440
    s_mov_b32 s23, 0x00020000
    v_lshlrev_b32 v{VL16}, 4, v0
    s_mul_i32 s39, s33, {RINGW}
    s_add_u32 s39, s39, {RING0}
    v_add_u32 v{VL16+1}, s39, v{VL16}
    s_lshl_b32 s40, s36, 2
    s_add_u32 s40, s40, {WS_G}
    v_lshlrev_b32 v3, 2, v1''')
    for mt in range(4):
        A(f'    buffer_load_dword v{GM+mt}, v3, s[16:19], s40 offen offset:{64*mt}')
    A(f'''
    s_mul_i32 s41, s34, 48
    s_mul_i32 s42, s33, 12
    s_add_u32 s41, s41, s42
    s_lshl_b32 s41, s41, 12
    s_add_u32 s41, s41, {WS_H}
    s_mul_i32 s42, s42, 40
    s_mul_i32 s43, s35, 5
    s_add_u32 s42, s42, s43
    s_lshl_b32 s42, s42, 10
    s_add_u32 s42, s42, {WS_W2F}
    s_and_b32 s46, s34, 3
    s_mul_i32 s46, s46, 3
    s_mul_hi_u32 s47, s35, 0x55555556
    s_mul_i32 s47, s47, 3
    s_sub_u32 s47, s35, s47
    s_add_u32 s48, s46, s47            ; rho2 (0..11)
    {'' if opts.get('rot2', 0) else 's_mov_b32 s48, 0'}
    s_lshl_b32 s46, s48, 12
    s_add_u32 s41, s41, s46
    s_mul_i32 s46, s48, 40960
    s_add_u32 s42, s42, s46''')
    def issueA(slot, sc=''):
        for mt in range(4):
            A(f'    buffer_load_dwordx4 {vr(aslot(slot,mt),4)}, v{VL16}, s[16:19], s41 offen offset:{mt*1024}{sc}')
        A('    s_add_u32 s41, s41, 4096')
    def wrap():
        A(f'''
    s_add_u32 s48, s48, 1
    s_cmp_eq_u32 s48, 12
    s_cselect_b32 s46, {12*4096}, 0
    s_cselect_b32 s47, {12*40960}, 0
    s_cselect_b32 s48, 0, s48
    s_sub_u32 s41, s41, s46
    s_sub_u32 s42, s42, s47''')
    def issueW(slot):
        A(f'    s_add_u32 m0, s39, {slot*SLOT}\n    s_add_u32 s46, s42, 4096')
        for u in range(4):
            A(f'    buffer_load_dwordx4 v{VL16}, s[16:19], s42 offen offset:{u*1024} lds')
        A(f'    s_add_u32 m0, s39, {slot*SLOT + 4096}')
        A(f'    s_add_u32 s42, s42, 40960')
        A(f'    buffer_load_dwordx4 v{VL16}, s[16:19], s46 offen lds')
    def compute(slot):
        for u in range(5):
            A(f'    ds_read_b128 {vr(WF+4*u,4)}, v{VL16+1} offset:{slot*SLOT + u*1024}')
        for u in range(5):
            A(f'    s_waitcnt lgkmcnt({4-u})')
            for mt in range(4):
                d = vr(acc(u, mt), 4)
                A(f'    v_mfma_f32_16x16x32_bf16 {d}, {vr(WF+4*u,4)}, {vr(aslot(slot,mt),4)}, {d}')
    if not opts.get('gdelay', 0):
        for sl in range(3):
            issueA(sl); issueW(sl); wrap()
    A('    s_barrier')
    if opts.get('role') == 'attn': A('    s_endpgm')
    for r in range(ACC, ACC + 80): A(f'    v_mov_b32 v{r}, 0')
    if opts.get('gdelay', 0):
        A(f'''
    v_mov_b32 v8, {CNT+4}
K2_gwait:
    ds_read_b32 v9, v8
    s_waitcnt lgkmcnt(0)
    v_readfirstlane_b32 s58, v9
    s_cmp_lt_u32 s58, {NAW}
    s_cbranch_scc0 K2_gwait_done
    s_sleep 2
    s_branch K2_gwait
K2_gwait_done:''')
        for sl in range(3):
            issueA(sl); issueW(sl); wrap()
    stamp(A, opts, 2)
    A('    s_mov_b32 s44, 0')
    A('K2_gloop:')
    A(f'''
    s_cmp_eq_u32 s44, 3
    s_cbranch_scc0 K2_gnosw
    s_mul_i32 s42, s33, 200
    s_add_u32 s42, s42, s43
    s_lshl_b32 s42, s42, 10
    s_add_u32 s42, s42, {WS_WOF}
    s_mov_b32 s41, 0x7f000000
    s_mov_b32 s48, 100
K2_gnosw:''')
    for sl in range(3):
        A('    s_waitcnt vmcnt(18)')
        compute(sl); issueA(sl); issueW(sl); wrap()
    A('''
    s_add_u32 s44, s44, 1
    s_cmp_lt_u32 s44, 4
    s_cbranch_scc1 K2_gloop''')
    stamp(A, opts, 3)
    for mt in range(4):
        A(f'    v_sub_f32 v{GM+mt}, 1.0, v{GM+mt}')
    A('    s_nop 4')
    for u in range(5):
        for mt in range(4):
            for r in range(4):
                a0 = acc(u, mt) + r
                A(f'    v_mul_f32 v{a0}, v{a0}, v{GM+mt}')
    A(f'''
    s_lshr_b32 s45, s34, 2
    s_lshl_b32 s45, s45, 7
    s_add_u32 s45, s45, {WS_FLAG}
    v_and_b32 v3, 31, v0
    v_lshlrev_b32 v3, 2, v3
K2_poll:
    buffer_load_dword v8, v3, s[16:19], s45 offen sc1
    s_waitcnt vmcnt(0)
    v_cmp_ne_u32 vcc, 1, v8
    s_cbranch_vccz K2_pollok
    s_sleep 1
    s_branch K2_poll
K2_pollok:''')
    stamp(A, opts, 4)
    A(f'''
    s_mul_i32 s41, s34, 20
    s_mul_i32 s44, s33, 5
    s_add_u32 s41, s41, s44
    s_lshl_b32 s41, s41, 12
    s_add_u32 s41, s41, {WS_OP}''')
    for sl in range(3): issueA(sl, ' sc1')
    A('    s_waitcnt vmcnt(8)')
    compute(0); issueA(0, ' sc1'); issueW(0)
    A('    s_waitcnt vmcnt(13)')
    compute(1); issueA(1, ' sc1'); issueW(1)
    A('    s_waitcnt vmcnt(18)')
    compute(2)
    A('    s_waitcnt vmcnt(9)')
    compute(0)
    A('    s_waitcnt vmcnt(0)')
    compute(1)
    stamp(A, opts, 5)
    A(f'''
    s_nop 7''')
    for u in range(5):
        for mt in range(4):
            A(f'    ds_write_b128 v{VL16+1}, {vr(acc(u,mt),4)} offset:{(mt*5+u)*1024}')
    A('    s_waitcnt lgkmcnt(0)\n    s_barrier')
    A(f'''
    s_mul_i32 s45, s33, 5120
    s_add_u32 s45, s45, {RING0}
    v_add_u32 v4, s45, v{VL16}
    v_add_u32 v8, {2*RINGW}, v4''')
    T = 16
    for w in range(4):
        for u in range(5):
            A(f'    ds_read_b128 {vr(T+(w*5+u)*4,4)}, v{4 if w < 2 else 8} offset:{(w%2)*RINGW + u*1024}')
    A(f'''
    s_lshl_b32 s45, s33, 4
    s_add_u32 s45, s45, s36
    s_mul_i32 s45, s45, 1280
    s_mul_i32 s46, s35, 160
    s_add_u32 s45, s45, s46
    s_movk_i32 s37, 1280
    v_mul_lo_u32 v5, v1, s37
    v_and_b32 v6, 1, v2
    v_lshlrev_b32 v6, 5, v6
    v_lshrrev_b32 v7, 1, v2
    v_lshl_add_u32 v6, v7, 4, v6
    v_add_u32 v6, v6, v5
    v_lshl_add_u32 v7, v2, 3, v5
    s_waitcnt lgkmcnt(0)''')
    for u in range(5):
        for r in range(4):
            t0 = T + u * 4 + r
            A(f'''
    v_add_f32 v{t0}, v{t0}, v{t0+20}
    v_add_f32 v{t0+40}, v{t0+40}, v{t0+60}
    v_add_f32 v{t0}, v{t0}, v{t0+40}''')
    P = 100
    for pp in range(2):
        t = P + 4 * pp; d0 = T + 8 * pp; d1 = T + 8 * pp + 4
        A(f'''
    v_cvt_pk_bf16_f32 v{t}, v{d0}, v{d0+1}
    v_cvt_pk_bf16_f32 v{t+1}, v{d0+2}, v{d0+3}
    v_cvt_pk_bf16_f32 v{t+2}, v{d1}, v{d1+1}
    v_cvt_pk_bf16_f32 v{t+3}, v{d1+2}, v{d1+3}
    v_permlane16_swap_b32 v{t}, v{t+2}
    v_permlane16_swap_b32 v{t+1}, v{t+3}
    buffer_store_dwordx4 {vr(t,4)}, v6, s[20:23], s45 offen offset:{64*pp}''')
    d0 = T + 16
    A(f'''
    v_cvt_pk_bf16_f32 v108, v{d0}, v{d0+1}
    v_cvt_pk_bf16_f32 v109, v{d0+2}, v{d0+3}
    buffer_store_dwordx2 v[108:109], v7, s[20:23], s45 offen offset:128''')
    if opts.get('prof'):
        stamp(A, opts, 6)
        A('    s_waitcnt vmcnt(0)')
        stamp(A, opts, 7)
        stamp_flush(A, opts, 's30')

K2_DESC = '''
.amdhsa_kernel k2_kernel
  .amdhsa_next_free_vgpr 168
  .amdhsa_next_free_sgpr 100
  .amdhsa_accum_offset 168
  .amdhsa_group_segment_fixed_size 0
  .amdhsa_kernarg_size 80
  .amdhsa_user_sgpr_count 2
  .amdhsa_user_sgpr_kernarg_segment_ptr 1
  .amdhsa_system_sgpr_workgroup_id_x 1
.end_amdhsa_kernel
'''
```

```python
from asmlib import *

WS_QK   = 0x000000
WS_VT   = 0x600000
WS_H    = 0x900000
WS_OP   = 0xF00000
WS_W2F  = 0x1200000
WS_WOF  = 0x13E0000
WS_G    = 0x14D0000
WS_FLAG1 = 0x14D2000
WS_FLAG2 = 0x14D2400
WS_GEN  = 0x14D2800
WS_ONES = 0x14D2880
WS_END  = 0x14D3000
WS_PROF = 0x1500000
WS_PROF_END = 0x1600000
LDS_BYTES = 163840
PK = 147456
C1 = 46336; CK = C1 + 4; CA = C1 + 8
KL = 0; VL = 24832; RED0 = 46592; K2_LDS = RED0 + 4*20480
KNAME = 'gated_mix__sliding_block__dense_activation_relu__prompt_kernel'

def stamp(A, opts, idx):
    if not opts.get('prof'): return
    A(f'    s_memtime s[{70+2*idx}:{71+2*idx}]')
    if idx == 0 or idx == 7:
        A(f'    s_memrealtime s[{86+2*(idx != 0)}:{87+2*(idx != 0)}]')

def stamp_flush(A, opts):
    if not opts.get('prof'): return
    A(f'''
    s_waitcnt lgkmcnt(0)
    s_lshl_b32 s96, s2, 4
    s_add_u32 s96, s96, s30
    s_lshl_b32 s96, s96, 7
    s_add_u32 s96, s96, {WS_PROF}
    v_mov_b32 v100, s96
    s_mov_b64 exec, 1''')
    for i in range(20):
        A(f'    v_mov_b32 v101, s{70+i}\n    buffer_store_dword v101, v100, s[92:95], 0 offen offset:{4*i}')
    A('    s_mov_b64 exec, -1')

def gen_k1(a, opts):
    A = a
    SF = {0: '', 1: ' sc1'}[opts.get('sf', 1)]
    A('k1_kernel:')
    A('''
    s_cmp_ge_u32 s2, 256
    s_cbranch_scc1 K1_done''')
    stamp(A, opts, 0)
    A(f'''
    s_load_dwordx2 s[4:5], s[0:1], 0
    s_load_dwordx4 s[64:67], s[0:1], 8
    s_load_dwordx4 s[24:27], s[0:1], 32
    s_load_dwordx2 s[68:69], s[0:1], 48
    s_load_dwordx2 s[28:29], s[0:1], 72
    v_lshrrev_b32 v1, 6, v0
    v_and_b32 v0, 63, v0
    v_readfirstlane_b32 s30, v1
    s_and_b32 s31, s2, 7
    s_lshr_b32 s32, s2, 3
    s_and_b32 s33, s31, 1
    s_lshl_b32 s33, s33, 3
    s_and_b32 s34, s32, 7
    s_add_u32 s33, s33, s34
    s_lshr_b32 s34, s31, 1
    s_lshl_b32 s34, s34, 2
    s_lshr_b32 s35, s32, 3
    s_add_u32 s34, s34, s35
    s_lshl_b32 s40, s33, 7
    s_waitcnt lgkmcnt(0)
    s_mov_b32 s8, s4
    s_mov_b32 s9, s5
    s_mov_b32 s10, 2621440
    s_mov_b32 s11, 0x00020000
    s_mov_b32 s16, s28
    s_mov_b32 s17, s29
    s_mov_b32 s18, {WS_END}
    s_mov_b32 s19, 0x00020000
    s_mov_b32 s15, 0x00020000
    s_mov_b32 s92, s28
    s_mov_b32 s93, s29
    s_mov_b32 s94, {WS_PROF_END}
    s_mov_b32 s95, 0x00020000
    s_cmp_lt_u32 s34, 6
    s_cbranch_scc1 K1_sec_qk
    s_cmp_lt_u32 s34, 9
    s_cbranch_scc1 K1_sec_v
    s_mov_b32 s36, 2
    s_sub_u32 s37, s34, 9
    s_mul_i32 s37, s37, 14
    s_min_u32 s37, s37, 82
    s_lshl_b32 s38, s37, 5
    s_mov_b32 s39, 3072
    s_mov_b32 s12, s24
    s_mov_b32 s13, s25
    s_mov_b32 s14, 1966080
    s_branch K1_sec_done
K1_sec_qk:
    s_mov_b32 s36, 0
    s_mul_i32 s37, s34, 14
    s_min_u32 s37, s37, 66
    s_lshl_b32 s38, s37, 5
    s_mov_b32 s39, 3840
    s_mov_b32 s12, s64
    s_mov_b32 s13, s65
    s_mov_b32 s14, 2457600
    s_branch K1_sec_done
K1_sec_v:
    s_mov_b32 s36, 1
    s_sub_u32 s37, s34, 6
    s_mul_i32 s37, s37, 14
    s_min_u32 s37, s37, 26
    s_lshl_b32 s38, s37, 5
    s_add_u32 s38, s38, 2560
    s_mov_b32 s39, 3840
    s_mov_b32 s12, s64
    s_mov_b32 s13, s65
    s_mov_b32 s14, 2457600
K1_sec_done:
    s_cmp_ge_u32 s30, 4
    s_cbranch_scc1 K1_loader
    ''')
    gen_p1_compute(A, opts, SF)
    gen_p1_loader(A, opts, SF)
    A('KF_p1done:')
    if opts.get('prof') == 1:
        stamp(A, opts, 6)
        A('    s_waitcnt vmcnt(0)')
        stamp(A, opts, 7); stamp_flush(A, opts)
    A('K1_done:\n    s_endpgm')

def gen_k2(a, opts):
    A = a
    A('k2_kernel:')
    A('''
    s_cmp_ge_u32 s2, 256
    s_cbranch_scc1 KF_done''')
    stamp(A, opts, 0)
    A(f'''
    s_load_dwordx2 s[90:91], s[0:1], 56
    s_load_dwordx2 s[28:29], s[0:1], 72
    v_lshrrev_b32 v1, 6, v0
    v_and_b32 v0, 63, v0
    v_readfirstlane_b32 s30, v1
    s_and_b32 s31, s2, 7
    s_lshr_b32 s32, s2, 3
    v_and_b32 v1, 15, v0
    v_lshrrev_b32 v2, 4, v0
    s_mov_b32 s97, 1
    s_cmp_eq_u32 s30, 0
    s_cbranch_scc0 K2_noinit
    v_mov_b32 v8, 0
    v_mov_b32 v9, {C1}
    ds_write_b32 v9, v8
    ds_write_b32 v9, v8 offset:4
    ds_write_b32 v9, v8 offset:8
K2_noinit:
    s_waitcnt lgkmcnt(0)
    s_mov_b32 s16, s28
    s_mov_b32 s17, s29
    s_mov_b32 s18, {WS_END}
    s_mov_b32 s19, 0x00020000
    s_mov_b32 s92, s28
    s_mov_b32 s93, s29
    s_mov_b32 s94, {WS_PROF_END}
    s_mov_b32 s95, 0x00020000
    s_cmp_ge_u32 s30, 4
    s_cbranch_scc1 K2_gemm''')
    gen_attn(A, opts)
    A('K2_gemm:')
    gen_gemm(A, opts)
    A('KF_done:\n    s_endpgm')

def wait_lds(A, label, addr, val, sleep=2):
    A(f'''
    v_mov_b32 v8, {addr}
{label}:
    ds_read_b32 v9, v8
    s_waitcnt lgkmcnt(0)
    v_readfirstlane_b32 s58, v9
    s_cmp_lt_u32 s58, {val}
    s_cbranch_scc0 {label}_ok
    s_sleep {sleep}
    s_branch {label}
{label}_ok:''')

def poll_all(A, label, base, n_lanes_x4, sleep=1):
    A(f'''
    v_lshlrev_b32 v3, 4, v0
    v_mov_b32 v8, 0x80000000
    v_cmp_gt_u32 vcc, {n_lanes_x4}, v0
    v_cndmask_b32 v3, v8, v3, vcc
    s_mov_b64 s[56:57], vcc
{label}:
    buffer_load_dwordx4 v[4:7], v3, s[16:19], {base} offen sc1
    s_waitcnt vmcnt(0)
    v_xor_b32 v4, s97, v4
    v_xor_b32 v5, s97, v5
    v_xor_b32 v6, s97, v6
    v_xor_b32 v7, s97, v7
    v_or3_b32 v4, v4, v5, v6
    v_or_b32 v4, v4, v7
    v_cmp_ne_u32 vcc, 0, v4
    s_and_b64 vcc, vcc, s[56:57]
    s_cbranch_vccz {label}_ok
    s_sleep {sleep}
    s_branch {label}
{label}_ok:''')

def gen_p1_compute(A, opts, SF):
    ACC = 16
    def acc(uu, mt): return ACC + (uu * 4 + mt) * 4
    XS = [128, 172]; WSs = [144, 188]
    VAX = [216, 217]; VW = 218
    T = 128
    A(f'''
    s_and_b32 s41, s30, 1
    s_lshr_b32 s42, s30, 1
    v_and_b32 v1, 15, v0
    v_lshrrev_b32 v2, 4, v0
    v_and_b32 v3, 7, v1
    v_xor_b32 v3, v2, v3
    v_lshlrev_b32 v3, 4, v3
    v_lshl_add_u32 v3, v1, 7, v3
    s_lshl_b32 s43, s41, 13
    v_add_u32 v{VAX[0]}, s43, v3
    v_xor_b32 v{VAX[1]}, 64, v{VAX[0]}
    v_lshrrev_b32 v4, 2, v1
    v_and_b32 v5, 3, v0
    v_and_b32 v6, 1, v2
    v_lshl_or_b32 v6, v6, 2, v4
    v_lshl_add_u32 v7, v2, 3, v4
    v_lshlrev_b32 v7, 9, v7
    v_lshl_add_u32 v7, v5, 3, v7
    v_add_u32 v7, 16384, v7
    s_lshl_b32 s44, s42, 3
    s_add_u32 s45, s42, 6
    ''')
    for uu in range(7):
        if uu < 6: A(f'    s_add_u32 s46, s44, {uu}\n    v_xor_b32 v8, s46, v6')
        else:      A(f'    v_xor_b32 v8, s45, v6')
        A(f'    v_lshl_add_u32 v{VW+uu}, v8, 5, v7')
    for r in range(ACC, ACC + 112):
        A(f'    v_mov_b32 v{r}, 0')
    def reads(st, ks):
        R = []
        for mt in range(4):
            R.append(f'    ds_read_b128 {vr(XS[st]+4*mt,4)}, v{VAX[ks]} offset:{mt*2048}')
        for uu in range(7):
            for t in range(2):
                R.append(f'    ds_read_b64_tr_b16 {vr(WSs[st]+4*uu+2*t,2)}, v{VW+uu} offset:{(32*ks+4*t)*512}')
        return R
    def phase(st, rd, swapped, extra=()):
        k = 0
        extra = list(extra)
        for uu in range(7):
            for mt in range(4):
                w = vr(WSs[st] + 4 * uu, 4); x = vr(XS[st] + 4 * mt, 4); d = vr(acc(uu, mt), 4)
                if swapped: A(f'    v_mfma_f32_16x16x32_bf16 {d}, {w}, {x}, {d}')
                else:       A(f'    v_mfma_f32_16x16x32_bf16 {d}, {x}, {w}, {d}')
                if k < len(rd): A(rd[k])
                elif extra: A(extra.pop(0))
                k += 1
        for e in extra: A(e)
    def mainloop(tag, swapped):
        A(f'''
    s_mov_b32 s46, 0
    s_mov_b32 s47, 0
    s_mov_b32 s50, 0xfffe8000
    s_mov_b32 s51, 49152
    s_barrier''')
        for l in reads(0, 0): A(l)
        A(f'K1_loop_{tag}:')
        A('''
    s_add_u32 s47, s47, 1
    s_cmp_eq_u32 s47, 3
    s_cselect_b32 s48, s50, s51
    s_cselect_b32 s47, 0, s47
    s_waitcnt lgkmcnt(0)''')
        upd = [f'    v_add_u32 v{r}, s48, v{r}' for r in VAX + [VW + i for i in range(7)]]
        phase(0, reads(1, 1), swapped, upd)
        A('''
    s_waitcnt lgkmcnt(0)
    s_barrier''')
        phase(1, reads(0, 0), swapped, ['    s_add_u32 s46, s46, 1', '    s_cmp_lt_u32 s46, 10'])
        A(f'''
    s_cbranch_scc1 K1_loop_{tag}
    s_waitcnt lgkmcnt(0)
    s_nop 7''')
        stamp(A, opts, 1)
    for r in range(9, 15): A(f'    v_mov_b32 v{r}, 0x80000000')
    A('''
    s_cmp_eq_u32 s36, 1
    s_cbranch_scc1 K1_main_v
    s_cmp_eq_u32 s36, 2
    s_cbranch_scc1 K1_pre_h''')
    A(f'''
    s_lshl_b32 s43, s41, 2
    s_lshr_b32 s46, s40, 4
    s_add_u32 s43, s43, s46
    s_mul_i32 s43, s43, 768
    v_lshlrev_b32 v3, 3, v1
    v_add_u32 v3, s43, v3
    s_mov_b32 s49, 52429
    s_mov_b32 s52, 98304
    s_mov_b32 s53, 0x3ea52b5c''')
    for uu in range(7):
        if uu < 6: A(f'    s_add_u32 s46, s44, {uu}')
        else:      A(f'    s_mov_b32 s46, s45')
        A(f'''
    s_add_u32 s46, s46, s37
    s_lshl_b32 s46, s46, 2
    v_add_u32 v4, s46, v2
    v_mul_lo_u32 v5, v4, s49
    v_lshrrev_b32 v5, 18, v5
    v_mul_u32_u24 v6, 5, v5
    v_sub_u32 v6, v4, v6
    v_mul_lo_u32 v5, v5, s52
    v_lshl_add_u32 v5, v6, 7, v5
    v_add_u32 v{8+uu}, v5, v3''')
    A('    s_branch K1_pre_done')
    A(f'''K1_pre_h:
    s_lshl_b32 s43, s33, 1
    s_add_u32 s43, s43, s41
    s_mul_i32 s43, s43, {48*4096}
    s_add_u32 s43, s43, {WS_H}
    s_add_u32 s56, s37, s44
    s_lshl_b32 s56, s56, 11
    s_add_u32 s56, s56, s43
    v_and_b32 v4, 1, v2
    v_lshlrev_b32 v4, 1, v4
    v_lshrrev_b32 v5, 1, v2
    v_add_u32 v4, v4, v5
    v_lshl_add_u32 v4, v4, 4, v1
    v_lshlrev_b32 v4, 4, v4
    s_add_u32 s57, s37, 6
    s_lshl_b32 s57, s57, 11
    s_add_u32 s57, s57, s43
    s_lshl_b32 s48, s42, 1
    v_add_u32 v5, s48, v5
    v_lshl_add_u32 v5, v5, 4, v1
    v_lshlrev_b32 v5, 4, v5
    v_and_b32 v6, 1, v2
    v_lshl_add_u32 v5, v6, 10, v5
K1_pre_done:''')
    mainloop('s', True)
    A('''
    s_cmp_eq_u32 s36, 2
    s_cbranch_scc1 K1_epi_h''')
    for uu in range(7):
        if uu < 6: A(f'    s_add_u32 s46, s44, {uu}')
        else:      A(f'    s_mov_b32 s46, s45')
        A(f'''
    s_add_u32 s46, s46, s37
    s_cmp_lt_u32 s46, 40
    s_cselect_b32 s54, s53, 1.0
    s_mov_b32 s55, s54''')
        for mt in range(4):
            d = acc(uu, mt); t = T + (uu * 4 + mt) * 2
            A(f'''
    v_pk_mul_f32 {vr(d,2)}, {vr(d,2)}, s[54:55]
    v_pk_mul_f32 {vr(d+2,2)}, {vr(d+2,2)}, s[54:55]
    v_cvt_pk_bf16_f32 v{t}, v{d}, v{d+1}
    v_cvt_pk_bf16_f32 v{t+1}, v{d+2}, v{d+3}
    buffer_store_dwordx2 {vr(t,2)}, v{8+uu}, s[16:19], 0 offen offset:{WS_QK + mt*768}{SF}''')
    A('    s_branch KF_p1done')
    A('K1_epi_h:')
    n = 0
    for pp in range(3):
        A(f'    s_add_u32 s49, s56, {pp*4096}')
        for mt in range(4):
            t = T + n * 4; n += 1
            d0 = acc(2 * pp, mt); d1 = acc(2 * pp + 1, mt)
            A(f'''
    v_cvt_pk_bf16_f32 v{t}, v{d0}, v{d0+1}
    v_cvt_pk_bf16_f32 v{t+1}, v{d0+2}, v{d0+3}
    v_cvt_pk_bf16_f32 v{t+2}, v{d1}, v{d1+1}
    v_cvt_pk_bf16_f32 v{t+3}, v{d1+2}, v{d1+3}
    v_pk_max_i16 v{t}, v{t}, 0
    v_pk_max_i16 v{t+1}, v{t+1}, 0
    v_pk_max_i16 v{t+2}, v{t+2}, 0
    v_pk_max_i16 v{t+3}, v{t+3}, 0
    v_permlane16_swap_b32 v{t}, v{t+2}
    v_permlane16_swap_b32 v{t+1}, v{t+3}
    buffer_store_dwordx4 {vr(t,4)}, v4, s[16:19], s49 offen offset:{1024*mt}{SF}''')
    for pm in range(2):
        t = T + n * 4; n += 1
        d0 = acc(6, 2 * pm); d1 = acc(6, 2 * pm + 1)
        A(f'''
    v_cvt_pk_bf16_f32 v{t}, v{d0}, v{d0+1}
    v_cvt_pk_bf16_f32 v{t+1}, v{d0+2}, v{d0+3}
    v_cvt_pk_bf16_f32 v{t+2}, v{d1}, v{d1+1}
    v_cvt_pk_bf16_f32 v{t+3}, v{d1+2}, v{d1+3}
    v_pk_max_i16 v{t}, v{t}, 0
    v_pk_max_i16 v{t+1}, v{t+1}, 0
    v_pk_max_i16 v{t+2}, v{t+2}, 0
    v_pk_max_i16 v{t+3}, v{t+3}, 0
    v_permlane16_swap_b32 v{t}, v{t+2}
    v_permlane16_swap_b32 v{t+1}, v{t+3}
    buffer_store_dwordx4 {vr(t,4)}, v5, s[16:19], s57 offen offset:{2048*pm}{SF}''')
    A('    s_branch KF_p1done')
    A('K1_main_v:')
    A(f'''
    s_lshl_b32 s43, s41, 1
    s_lshr_b32 s46, s40, 5
    s_add_u32 s43, s43, s46
    s_lshl_b32 s43, s43, 10
    s_add_u32 s43, s43, {WS_VT}
    v_lshlrev_b32 v3, 4, v0
    v_add_u32 v3, s43, v3''')
    for uu in range(7):
        if uu < 6: A(f'    s_add_u32 s46, s44, {uu}')
        else:      A(f'    s_mov_b32 s46, s45')
        A(f'''
    s_add_u32 s46, s46, s37
    s_lshl_b32 s46, s46, 16
    v_add_u32 v{8+uu}, s46, v3''')
    mainloop('n', False)
    for uu in range(7):
        for pa in range(2):
            t = T + (uu * 2 + pa) * 4
            d0 = acc(uu, 2 * pa); d1 = acc(uu, 2 * pa + 1)
            A(f'''
    v_cvt_pk_bf16_f32 v{t}, v{d0}, v{d0+1}
    v_cvt_pk_bf16_f32 v{t+1}, v{d0+2}, v{d0+3}
    v_cvt_pk_bf16_f32 v{t+2}, v{d1}, v{d1+1}
    v_cvt_pk_bf16_f32 v{t+3}, v{d1+2}, v{d1+3}
    buffer_store_dwordx4 {vr(t,4)}, v{8+uu}, s[16:19], 0 offen offset:{1024*pa}{SF}''')
    A('    s_branch KF_p1done')

def gen_p1_loader(A, opts, SF):
    A(f'''K1_loader:
    s_sub_u32 s41, s30, 4
    v_lshrrev_b32 v1, 3, v0
    v_and_b32 v2, 7, v0
    v_lshlrev_b32 v21, 4, v2
    v_xor_b32 v2, v2, v1
    v_lshlrev_b32 v2, 4, v2
    s_movk_i32 s43, 1280
    v_mul_lo_u32 v1, v1, s43
    v_add_u32 v2, v2, v1
    v_add_u32 v21, v21, v1
    v_lshrrev_b32 v4, 5, v0
    s_and_b32 s44, s41, 1
    s_lshr_b32 s45, s41, 1
    s_lshl_b32 s46, s44, 1
    s_lshl_b32 s47, s45, 2
    s_or_b32 s46, s46, s47
    v_or_b32 v5, s46, v4
    v_bfe_u32 v6, v0, 1, 4
    v_xor_b32 v6, v6, v5
    v_mul_lo_u32 v7, v4, s39
    v_lshl_add_u32 v7, v6, 5, v7
    v_and_b32 v8, 1, v0
    v_lshl_add_u32 v3, v8, 4, v7
    v_mov_b32 v9, 0x80000000
    v_cmp_le_u32 vcc, 14, v6
    v_cndmask_b32 v3, v3, v9, vcc
    s_lshl_b32 s50, s41, 5
    s_add_u32 s50, s50, s40
    s_mul_i32 s50, s50, 1280
    s_add_u32 s52, s44, s47
    s_lshl_b32 s53, s52, 1
    s_mul_i32 s51, s53, s39
    s_add_u32 s51, s51, s38
    s_lshl_b32 s54, s39, 2
    s_mul_i32 s55, s39, 12
    s_lshl_b32 s56, s39, 6
    s_lshl_b32 s57, s41, 12
    s_lshl_b32 s58, s52, 10
    s_add_u32 s58, s58, 16384
    s_mov_b32 s59, 0
    ''')
    def issue():
        A('    s_add_u32 s60, s59, s57\n    s_add_u32 s61, s59, s58')
        for jj in range(4):
            A(f'''
    s_add_u32 m0, s60, {jj*1024}
    s_add_u32 s62, s50, {jj*10240}
    buffer_load_dwordx4 v2, s[8:11], s62 offen lds''')
        A('    s_mov_b32 s62, s51')
        i = 0
        for b in range(4):
            for aa in range(2):
                A(f'    s_add_u32 m0, s61, {(2*aa+8*b)*1024}')
                if i > 0: A(f'    s_add_u32 s62, s62, {"s54" if aa == 1 else "s55"}')
                else: A('    s_nop 0')
                A('    buffer_load_dwordx4 v3, s[12:15], s62 offen lds')
                i += 1
        A(f'''
    s_add_u32 s50, s50, 128
    s_add_u32 s51, s51, s56
    s_add_u32 s59, s59, 49152
    s_cmp_eq_u32 s59, 147456
    s_cselect_b32 s59, 0, s59''')
    issue(); issue()
    A('    s_waitcnt vmcnt(12)\n    s_barrier')
    issue()
    A(f'''
    s_lshl_b32 s63, s2, 2
    s_add_u32 s63, s63, s41
    s_mul_hi_u32 s46, s63, 0x1999999a
    s_mul_i32 s47, s46, 10
    s_sub_u32 s47, s63, s47
    s_cmp_lt_u32 s46, 48
    s_cbranch_scc0 K1_pk_wo
    s_mov_b32 s20, s26
    s_mov_b32 s21, s27
    s_mov_b32 s22, 1966080
    s_mul_i32 s34, s46, 40960
    s_add_u32 s35, s34, {WS_W2F}
    s_lshl_b32 s46, s47, 7
    s_add_u32 s34, s34, s46
    v_mov_b32 v50, v21
    v_add_u32 v51, 10240, v21
    v_add_u32 v52, 20480, v21
    v_add_u32 v53, 30720, v21
    s_branch K1_pk_go
K1_pk_wo:
    s_mov_b32 s20, s66
    s_mov_b32 s21, s67
    s_mov_b32 s22, 819200
    s_sub_u32 s46, s46, 48
    s_mul_i32 s35, s46, 40960
    s_add_u32 s35, s35, {WS_WOF}
    s_lshl_b32 s34, s47, 7
    s_lshl_b32 s46, s46, 5
    v_lshrrev_b32 v54, 3, v0
    v_add_u32 v54, s46, v54
    s_mov_b32 s46, 0xaaaaaab
    v_and_b32 v55, 7, v0
    v_lshlrev_b32 v55, 4, v55
    v_mov_b32 v58, 0x80000000''')
    for jj in range(4):
        A(f'''
    v_mul_hi_u32 v56, v54, s46
    v_mul_u32_u24 v57, 24, v56
    v_sub_u32 v57, v54, v57
    v_mul_u32_u24 v56, 20, v56
    v_add_u32 v56, v56, v57
    v_mul_u32_u24 v56, 1280, v56
    v_add_u32 v56, v56, v55
    v_cmp_gt_u32 vcc, 20, v57
    v_cndmask_b32 v{50+jj}, v58, v56, vcc
    v_add_u32 v54, 8, v54''')
    A(f'''
K1_pk_go:
    s_mov_b32 s23, 0x00020000
    s_lshl_b32 s46, s47, 12
    s_add_u32 s35, s35, s46
    s_cmp_ge_u32 s63, 720
    s_cselect_b32 s35, 0x7f000000, s35
    s_cselect_b32 s34, 0x7f000000, s34
    s_add_u32 s46, s57, {PK}''')
    for jj in range(4):
        A(f'''
    s_add_u32 m0, s46, {jj*1024}
    s_nop 0
    buffer_load_dwordx4 v{50+jj}, s[20:23], s34 offen lds''')
    A('    s_waitcnt vmcnt(16)\n    s_barrier')
    issue()
    A('    s_waitcnt vmcnt(16)\n    s_barrier')
    issue()
    A('    s_waitcnt vmcnt(12)\n    s_barrier')
    A(f'''
    v_lshrrev_b32 v10, 4, v0
    v_bfe_u32 v11, v0, 2, 2
    v_lshl_add_u32 v10, v10, 3, v11
    v_lshlrev_b32 v10, 7, v10
    v_and_b32 v11, 3, v0
    v_lshl_add_u32 v10, v11, 3, v10
    s_add_u32 s46, s57, {PK}
    v_add_u32 v10, s46, v10
    v_lshlrev_b32 v11, 4, v0''')
    for u in range(4):
        for t in range(2):
            A(f'    ds_read_b64_tr_b16 {vr(24+4*u+2*t,2)}, v10 offset:{t*512 + u*32}')
    issue()
    A('    s_waitcnt lgkmcnt(0)')
    for u in range(4):
        A(f'    buffer_store_dwordx4 {vr(24+4*u,4)}, v11, s[16:19], s35 offen offset:{u*1024} sc1')
    A('    s_waitcnt vmcnt(16)\n    s_barrier')
    issue()
    A('    s_waitcnt vmcnt(16)\n    s_barrier')
    issue()
    A('    s_waitcnt vmcnt(12)\n    s_barrier')
    issue()
    A('    s_waitcnt vmcnt(12)\n    s_barrier')
    issue()
    A(f'''
    s_lshr_b32 s34, s31, 1
    s_lshl_b32 s34, s34, 2
    s_lshr_b32 s35, s32, 3
    s_add_u32 s34, s34, s35
    s_lshl_b32 s44, s34, 3
    s_add_u32 s44, s44, s40
    s_lshl_b32 s45, s41, 1
    s_add_u32 s44, s44, s45
    s_mul_i32 s45, s44, 1280
    s_mov_b32 s20, s68
    s_mov_b32 s21, s69
    s_mov_b32 s22, 1280
    s_mov_b32 s23, 0x00020000
    v_lshlrev_b32 v10, 2, v0''')
    for j in range(5):
        A(f'    buffer_load_dword v{16+j}, v10, s[20:23], 0 offen offset:{256*j}')
    for rr in range(2):
        for j in range(5):
            A(f'    buffer_load_dword v{24+8*rr+j}, v10, s[8:11], s45 offen offset:{256*j + 1280*rr}')
    A(f'''
    v_mov_b32 v15, 0x80000000
    s_lshl_b32 s46, s2, 2
    s_add_u32 s46, s46, s41
    s_lshl_b32 s46, s46, 2
    v_lshrrev_b32 v11, 4, v0
    v_add_u32 v11, s46, v11
    v_mul_u32_u24 v11, 768, v11
    v_and_b32 v12, 15, v0
    v_lshl_add_u32 v11, v12, 3, v11
    v_add_u32 v11, {WS_QK + 32*98304 + 640}, v11
    v_mov_b32 v12, 0
    v_mov_b32 v13, 0
    buffer_store_dwordx2 v[12:13], v11, s[16:19], 0 offen{SF}
    s_add_u32 s46, s2, s41
    s_cmp_eq_u32 s46, 0
    s_cselect_b32 s46, 8, 0
    v_lshlrev_b32 v11, 4, v0
    v_add_u32 v11, {WS_ONES}, v11
    v_cmp_gt_u32 vcc, s46, v0
    v_cndmask_b32 v11, v15, v11, vcc
    v_mov_b32 v44, 0x3f803f80
    v_mov_b32 v45, 0x3f803f80
    v_mov_b32 v46, 0x3f803f80
    v_mov_b32 v47, 0x3f803f80
    buffer_store_dwordx4 v[44:47], v11, s[16:19], 0 offen{SF}
    s_cmp_eq_u32 s41, 0
    s_cselect_b32 s46, 1, 0
    s_lshl_b32 s47, s2, 2
    s_add_u32 s47, s47, {WS_FLAG2}
    v_mov_b32 v11, s47
    v_cmp_gt_u32 vcc, s46, v0
    v_cndmask_b32 v11, v15, v11, vcc
    buffer_store_dword v12, v11, s[16:19], 0 offen{SF}
    s_waitcnt vmcnt(30)
    s_barrier
    s_waitcnt vmcnt(18)
    s_barrier
    s_barrier
    s_waitcnt vmcnt(3)''')
    for rr in range(2):
        acc_ = 40 + rr
        A(f'    v_mov_b32 v{acc_}, 0')
        for j in range(5):
            A(f'    v_dot2c_f32_bf16 v{acc_}, v{16+j}, v{24+8*rr+j}')
    for rr in range(2):
        r = 40 + rr
        A(f'''
    v_add_f32_dpp v{r}, v{r}, v{r} quad_perm:[1,0,3,2] row_mask:0xf bank_mask:0xf
    v_add_f32_dpp v{r}, v{r}, v{r} quad_perm:[2,3,0,1] row_mask:0xf bank_mask:0xf
    v_add_f32_dpp v{r}, v{r}, v{r} row_half_mirror row_mask:0xf bank_mask:0xf
    v_add_f32_dpp v{r}, v{r}, v{r} row_mirror row_mask:0xf bank_mask:0xf
    v_mov_b32 v43, v{r}
    v_permlane16_swap_b32 v43, v{r}
    v_add_f32 v{r}, v{r}, v43
    v_mov_b32 v43, v{r}
    v_permlane32_swap_b32 v43, v{r}
    v_add_f32 v{r}, v{r}, v43''')
    A(f'''
    v_cmp_eq_u32 vcc, 1, v0
    v_cndmask_b32 v40, v40, v41, vcc
    v_mul_f32 v40, 0xbfb8aa3b, v40
    v_exp_f32 v40, v40
    v_add_f32 v40, 1.0, v40
    v_rcp_f32 v40, v40
    s_lshl_b32 s46, s44, 2
    s_add_u32 s46, s46, {WS_G}
    v_lshl_add_u32 v14, v0, 2, s46
    v_cmp_gt_u32 vcc, 2, v0
    v_cndmask_b32 v14, v15, v14, vcc
    buffer_store_dword v40, v14, s[16:19], 0 offen{SF}''')
    npf = opts.get('w2pf', 0)
    if npf:
        A(f'''
    s_lshl_b32 s46, s32, 2
    s_add_u32 s46, s46, s41
    s_mul_i32 s46, s46, 192
    v_add_u32 v59, s46, v0
    v_lshlrev_b32 v60, 7, v59
    v_add_u32 v60, {WS_W2F}, v60''')
        for n in range(npf):
            A(f'''
    v_add_u32 v61, {64*n}, v59
    v_cmp_gt_u32 vcc, 23040, v61
    v_cndmask_b32 v{62+n}, v15, v60, vcc
    buffer_load_dword v{66+n}, v{62+n}, s[16:19], 0 offen
    v_add_u32 v60, 8192, v60''')
    stamp(A, opts, 1)

def gen_attn(A, opts):
    NAW = 4
    SA = 16; KB = 48; VB = 64; Q = 80; O = 96; G = 112
    VK = 116; VK2 = 117; VV0 = 118; VV1 = 119; VO1 = 120; VO2 = 121
    NQT = 4; KPW = 6
    A(f'''
    {'s_setprio 2' if opts.get('prio', 1) else ''}
    s_barrier
    s_lshr_b32 s59, s32, 2              ; qb
    s_lshl_b32 s33, s59, 8              ; Q0
    s_and_b32 s34, s32, 3
    s_lshl_b32 s35, s31, 2
    s_add_u32 s34, s34, s35             ; head
    s_add_u32 s35, s34, 32
    s_mul_i32 s35, s35, 98304
    s_mul_i32 s40, s33, 48
    s_add_u32 s35, s35, s40
    s_sub_u32 s35, s35, {256*48 - WS_QK}
    v_lshlrev_b32 v3, 4, v0
    s_mul_i32 s37, s30, {KPW*1024}
    s_add_u32 s35, s35, s37
    s_cmp_eq_u32 s59, 0
    s_cselect_b32 s38, 1, 0
    s_cmp_lt_u32 s30, {NAW//2}
    s_cselect_b32 s39, s38, 0
    s_cmp_eq_u32 s39, 1
    s_cbranch_scc1 K2_kfill''')
    for j in range(KPW):
        A(f'''
    s_add_u32 m0, s37, {KL + j*1024}
    s_add_u32 s40, s35, {j*1024}
    buffer_load_dwordx4 v3, s[16:19], s40 offen lds''')
    A(f'''
    s_branch K2_kdone
K2_kfill:
    v_mov_b32 v5, 0
    v_mov_b32 v7, 0
    s_mul_i32 s40, s30, {KPW*64}
    v_add_u32 v8, s40, v0
    s_mov_b32 s41, 0x5555556''')
    for j in range(KPW):
        A(f'''
    v_mul_hi_u32 v9, v8, s41
    v_mul_u32_u24 v9, 48, v9
    v_sub_u32 v9, v8, v9
    v_cmp_le_u32 vcc, 40, v9
    v_mov_b32 v6, 0x3f80
    v_cndmask_b32 v6, 0, v6, vcc
    v_mov_b32 v4, v6
    v_lshlrev_b32 v9, 4, v8
    ds_write_b128 v9, v[4:7] offset:{KL}
    v_add_u32 v8, 64, v8''')
    A(f'''
K2_kdone:
    s_mul_i32 s36, s30, {NQT*16}
    s_add_u32 s36, s36, s33
    s_mul_i32 s35, s34, 98304
    s_mul_i32 s40, s36, 48
    s_add_u32 s35, s35, s40
    v_lshlrev_b32 v4, 3, v0
    v_lshlrev_b32 v5, 3, v1''')
    for t in range(NQT):
        A(f'    buffer_load_dwordx2 {vr(Q+4*t,2)}, v4, s[16:19], s35 offen offset:{WS_QK + t*768}')
        A(f'    buffer_load_dwordx2 {vr(Q+4*t+2,2)}, v5, s[16:19], s35 offen offset:{WS_QK + t*768 + 512}')
    A(f'''
    s_lshl_b32 s40, s36, 2
    s_add_u32 s40, s40, {WS_G}
    v_lshlrev_b32 v5, 2, v1''')
    for t in range(NQT):
        A(f'    buffer_load_dword v{G+t}, v5, s[16:19], s40 offen offset:{t*64}')
    A(f'''
    ; V gather: q = 64*(w+4j) + lane ; bg = q/21, d = q%21 ; blk = Q0/32 - 8 + bg/4 ; g = bg&3 ; n = 20*head + d
    s_lshl_b32 s40, s30, 6
    v_add_u32 v3, s40, v0
    s_mov_b32 s41, 0xc30c30d
    s_mul_i32 s43, s34, 20
    s_lshr_b32 s35, s33, 5
    s_sub_u32 s35, s35, 8
    v_mov_b32 v9, {WS_ONES}
    s_lshl_b32 s37, s30, 10''')
    for j in range(6):
        if j == 5: A('    s_cmp_eq_u32 s30, 0\n    s_cbranch_scc0 K2_vdone')
        A(f'''
    v_mul_hi_u32 v4, v3, s41
    v_mul_u32_u24 v5, 21, v4
    v_sub_u32 v5, v3, v5
    v_lshrrev_b32 v6, 2, v4
    v_add_u32 v6, s35, v6
    v_and_b32 v4, 3, v4
    v_add_u32 v7, s43, v5
    v_lshrrev_b32 v8, 4, v7
    v_lshl_add_u32 v6, v8, 6, v6
    v_lshl_add_u32 v6, v6, 2, v4
    v_and_b32 v7, 15, v7
    v_lshlrev_b32 v7, 4, v7
    v_lshl_add_u32 v6, v6, 8, v7
    v_add_u32 v6, {WS_VT}, v6
    v_cmp_eq_u32 vcc, 20, v5
    v_cndmask_b32 v6, v6, v9, vcc
    s_add_u32 m0, s37, {VL + j*4096}
    v_add_u32 v3, 256, v3
    buffer_load_dwordx4 v6, s[16:19], 0 offen lds''')
    A(f'''K2_vdone:
    v_mov_b32 v3, {C1}
    v_mov_b32 v4, 1
    s_mov_b64 exec, 1
    ds_add_u32 v3, v4
    s_mov_b64 exec, -1
    s_mul_i32 s40, s30, {NQT*768}
    v_lshlrev_b32 v{VK}, 3, v0
    v_add_u32 v{VK}, s40, v{VK}
    v_add_u32 v{VK2}, 768, v{VK}
    s_mul_i32 s40, s30, {NQT*672}
    s_add_u32 s40, s40, {VL}
    v_mul_u32_u24 v6, 336, v2
    v_add_u32 v6, s40, v6
    v_lshl_add_u32 v{VV0}, v1, 4, v6
    v_add_u32 v7, 16, v1
    v_min_u32 v7, 20, v7
    v_lshl_add_u32 v{VV1}, v7, 4, v6
    s_mul_i32 s41, s34, 3
    v_lshrrev_b32 v6, 1, v2
    v_add_u32 v6, s41, v6
    v_lshrrev_b32 v7, 2, v6
    v_lshlrev_b32 v7, 12, v7
    v_and_b32 v8, 3, v6
    v_lshl_add_u32 v7, v8, 8, v7
    v_and_b32 v8, 1, v2
    v_lshl_add_u32 v7, v8, 10, v7
    v_lshl_add_u32 v{VO1}, v1, 4, v7
    s_add_u32 s41, s41, 2
    s_lshr_b32 s42, s41, 2
    s_lshl_b32 s42, s42, 12
    s_and_b32 s43, s41, 3
    s_lshl_b32 s43, s43, 8
    s_add_u32 s42, s42, s43
    v_lshl_add_u32 v7, v2, 10, s42
    v_lshl_add_u32 v{VO2}, v1, 4, v7
    v_mov_b32 v13, 0x80000000
    v_cmp_gt_u32 vcc, 2, v2
    v_cndmask_b32 v{VO2}, v13, v{VO2}, vcc
    s_lshr_b32 s42, s36, 6
    s_mul_i32 s42, s42, {24*4096}
    s_add_u32 s42, s42, {WS_OP}
    v_lshlrev_b32 v8, 2, v2
    v_sub_u32 v8, v1, v8''')
    for r in range(4):
        A(f'    v_cmp_gt_i32 s[{44+2*r}:{45+2*r}], {r}, v8')
    A(f'''
    v_mov_b32 v14, 0xff800000
    v_cmp_eq_u32 s[54:55], 1, v2
    v_cmp_lt_u32 s[52:53], 0, v2
    s_cmp_eq_u32 s30, 0
    s_cbranch_scc0 K2_nopad
    v_mov_b32 v8, 0
    v_lshlrev_b32 v9, 2, v0
    ds_write_b32 v9, v8 offset:24576
K2_nopad:''')
    stamp(A, opts, 3)
    A(f'''
    v_mov_b32 v9, 0xf149
    v_mov_b32 v3, {CK}
    v_mov_b32 v4, 1
    s_waitcnt vmcnt(0) lgkmcnt(0)
    s_mov_b64 exec, 1
    ds_add_u32 v3, v4
    s_mov_b64 exec, -1''')
    for t in range(NQT):
        q = Q + 4 * t
        A(f'''
    v_cndmask_b32 v{q+2}, v{q+2}, 0, s[52:53]
    v_cndmask_b32 v{q+3}, v{q+3}, 0, s[52:53]
    v_cndmask_b32 v{q+2}, v{q+2}, v9, s[54:55]''')
    A(f'''
K2_kwait:
    ds_read_b32 v4, v3
    s_waitcnt lgkmcnt(0)
    v_readfirstlane_b32 s58, v4
    s_cmp_lt_u32 s58, {NAW}
    s_cbranch_scc1 K2_kwait''')
    stamp(A, opts, 4)
    def sa(st, q, t): return SA + 16 * st + 8 * q + 4 * t
    def kb(st, t): return KB + 8 * st + 4 * t
    def vb(st, d): return VB + 8 * st + 4 * d
    def loads(st):
        return [f'    ds_read2st64_b64 {vr(kb(st,0),4)}, v{VK} offset0:0 offset1:1',
                f'    ds_read2st64_b64 {vr(kb(st,1),4)}, v{VK2} offset0:0 offset1:1',
                f'    ds_read_b128 {vr(vb(st,0),4)}, v{VV0}',
                f'    ds_read_b128 {vr(vb(st,1),4)}, v{VV1}']
    def adv(n=1):
        return [f'    v_add_u32 v{VK}, {1536*n & 0xffffffff}, v{VK}', f'    v_add_u32 v{VK2}, {1536*n & 0xffffffff}, v{VK2}',
                f'    v_add_u32 v{VV0}, {1344*n & 0xffffffff}, v{VV0}', f'    v_add_u32 v{VV1}, {1344*n & 0xffffffff}, v{VV1}']
    def skip(q, T): return (q == 0 and T == 17) or (q == 1 and T == 0)
    def smfma(st, bb):
        return [f'    v_mfma_f32_16x16x32_bf16 {vr(sa(st,q,t),4)}, {vr(kb(st,t),4)}, {vr(Q+4*q,4)}, 0'
                for q in range(2) for t in range(2) if not skip(q, 2 * bb + t)]
    def masks(q, T, v):
        L = []
        if (q == 0 and T == 0) or (q == 1 and T == 1):
            L += [f'    v_cndmask_b32 v{v+r}, v14, v{v+r}, s[{44+2*r}:{45+2*r}]' for r in range(4)]
        if (q == 0 and T == 16) or (q == 1 and T == 17):
            L += [f'    v_cndmask_b32 v{v+r}, v{v+r}, v14, s[{44+2*r}:{45+2*r}]' for r in range(4)]
        return L
    def packpv(st, bb, q):
        L = []
        p = sa(st, q, 0)
        for t in range(2):
            v = sa(st, q, t)
            if skip(q, 2 * bb + t):
                L += [f'    v_mov_b32 v{p+2*t}, 0', f'    v_mov_b32 v{p+2*t+1}, 0']
            else:
                L += [f'    v_cvt_pk_bf16_f32 v{p+2*t}, v{v}, v{v+1}', f'    v_cvt_pk_bf16_f32 v{p+2*t+1}, v{v+2}, v{v+3}']
        M = []
        for d in range(2):
            o = O + 8 * q + 4 * d
            M.append(f'    v_mfma_f32_16x16x32_bf16 {vr(o,4)}, {vr(vb(st,d),4)}, {vr(p,4)}, {vr(o,4)}')
        return L, M
    def body(st, bb, has_next):
        nx = st ^ 1
        if has_next:
            for l in adv(): A(l)
            for l in loads(nx): A(l)
        def valu(q):
            L = []
            for t in range(2):
                T = 2 * bb + t; v = sa(st, q, t)
                if skip(q, T): continue
                L += masks(q, T, v)
                L += [f'    v_exp_f32 v{v+r}, v{v+r}' for r in range(4)]
            return L
        for l in valu(0): A(l)
        P0, M0 = packpv(st, bb, 0)
        for l in P0: A(l)
        v1 = valu(1)
        ms = list(M0)
        if has_next:
            ms = ms + ['    s_waitcnt lgkmcnt(0)'] + smfma(nx, bb + 1)
        i = 0
        for l in v1:
            A(l)
            if i < len(ms):
                A(ms[i]); i += 1
                if i < len(ms) and ms[i - 1].strip().startswith('s_waitcnt'):
                    A(ms[i]); i += 1
        while i < len(ms):
            A(ms[i]); i += 1
        P1, M1 = packpv(st, bb, 1)
        for l in P1: A(l)
        for l in M1: A(l)
    A('    s_mov_b32 s60, 0')
    A('K2_pair:')
    for r in range(16): A(f'    v_mov_b32 v{O+r}, 0')
    for l in loads(0): A(l)
    A('    s_waitcnt lgkmcnt(0)')
    for l in smfma(0, 0): A(l)
    body(0, 0, True)
    A('    s_mov_b32 s58, 0')
    A('K2_floop:')
    body(1, 1, True)
    body(0, 2, True)
    A('''
    s_add_u32 s58, s58, 1
    s_cmp_lt_u32 s58, 3
    s_cbranch_scc1 K2_floop''')
    body(1, 7, True)
    body(0, 8, False)
    def lbcast():
        A(f'''
    v_mov_b32 v3, v{O+4}
    v_mov_b32 v4, v{O+4}
    v_permlane16_swap_b32 v4, v3
    v_mov_b32 v4, v3
    v_permlane32_swap_b32 v4, v3
    v_mov_b32 v5, v{O+12}
    v_mov_b32 v6, v{O+12}
    v_permlane16_swap_b32 v6, v5
    v_mov_b32 v6, v5
    v_permlane32_swap_b32 v6, v5''')
    lbcast()
    A(f'''
    v_min_f32 v7, v4, v6
    v_max_f32 v8, v4, v6
    s_mov_b32 s61, 0x0d800000
    s_mov_b32 s62, 0x71800000
    v_cmp_nle_f32 vcc, s61, v7
    s_mov_b64 s[56:57], vcc
    v_cmp_nge_f32 vcc, s62, v8
    s_or_b64 s[56:57], s[56:57], vcc
    s_cmp_lg_u64 s[56:57], 0
    s_cbranch_scc1 K2_fallback
K2_fin:
    v_rcp_f32 v4, v4
    v_rcp_f32 v6, v6
    v_mul_f32 v4, v4, v{G}
    v_mul_f32 v6, v6, v{G+1}''')
    for q in range(2):
        o = O + 8 * q; sc = 4 if q == 0 else 6
        for r in range(8): A(f'    v_mul_f32 v{o+r}, v{o+r}, v{sc}')
    oa = O; ob = O + 8
    A(f'''
    v_cvt_pk_bf16_f32 v16, v{oa}, v{oa+1}
    v_cvt_pk_bf16_f32 v17, v{oa+2}, v{oa+3}
    v_cvt_pk_bf16_f32 v18, v{ob}, v{ob+1}
    v_cvt_pk_bf16_f32 v19, v{ob+2}, v{ob+3}
    v_cvt_pk_bf16_f32 v20, v{oa+4}, v{oa+5}
    v_cvt_pk_bf16_f32 v21, v{oa+6}, v{oa+7}
    v_cvt_pk_bf16_f32 v24, v{ob+4}, v{ob+5}
    v_cvt_pk_bf16_f32 v25, v{ob+6}, v{ob+7}
    v_mov_b32 v22, 0
    v_mov_b32 v23, 0
    v_permlane16_swap_b32 v16, v18
    v_permlane16_swap_b32 v17, v19
    v_permlane16_swap_b32 v20, v24
    v_permlane16_swap_b32 v21, v25
    buffer_store_dwordx4 v[16:19], v{VO1}, s[16:19], s42 offen sc1
    buffer_store_dwordx4 v[20:23], v{VO2}, s[16:19], s42 offen sc1
    s_add_u32 s42, s42, 2048
    s_add_u32 s60, s60, 1
    s_cmp_ge_u32 s60, 2
    s_cbranch_scc1 K2_attn_end''')
    for l in adv(-7): A(l)
    for r in range(8): A(f'    v_mov_b32 v{Q+r}, v{Q+8+r}')
    A(f'''
    v_mov_b32 v{G}, v{G+2}
    v_mov_b32 v{G+1}, v{G+3}
    s_branch K2_pair
K2_attn_end:''')
    stamp(A, opts, 5)
    A(f'''
    s_waitcnt vmcnt(0)
    v_mov_b32 v3, {CA}
    v_mov_b32 v4, 1
    s_mov_b64 exec, 1
    ds_add_rtn_u32 v5, v3, v4
    s_waitcnt lgkmcnt(0)
    v_readfirstlane_b32 s58, v5
    s_cmp_eq_u32 s58, {NAW-1}
    s_cbranch_scc0 K2_adone
    s_lshl_b32 s58, s59, 5
    s_add_u32 s58, s58, s34
    s_lshl_b32 s58, s58, 2
    s_add_u32 s58, s58, {WS_FLAG2}
    v_mov_b32 v3, s58
    v_mov_b32 v4, s97
    buffer_store_dword v4, v3, s[16:19], 0 offen sc1
K2_adone:
    s_mov_b64 exec, -1''')
    if opts.get('prof'):
        A('    s_waitcnt vmcnt(0)')
        stamp(A, opts, 7)
        stamp_flush(A, opts)
    A('    s_branch KF_done')
    A('K2_fallback:')
    for l in adv(-8): A(l)
    A('    v_mov_b32 v10, 0xff7fffff\n    v_mov_b32 v11, 0xff7fffff')
    for r in range(16): A(f'    v_mov_b32 v{O+r}, 0')
    for bb in range(9):
        for l in loads(0): A(l)
        if bb < 8:
            for l in adv(): A(l)
        A('    s_waitcnt lgkmcnt(0)')
        for l in smfma(0, bb): A(l)
        A('    s_nop 7')
        for q in range(2):
            vals = []
            for t in range(2):
                T = 2 * bb + t; v = sa(0, q, t)
                if skip(q, T): continue
                for l in masks(q, T, v): A(l)
                vals += [v + r for r in range(4)]
            m = 10 + q
            A(f'    v_mov_b32 v5, v{m}')
            for v in vals: A(f'    v_max_f32 v5, v5, v{v}')
            A(f'''
    v_mov_b32 v6, v5
    v_permlane16_swap_b32 v6, v5
    v_max_f32 v5, v5, v6
    v_mov_b32 v6, v5
    v_permlane32_swap_b32 v6, v5
    v_max_f32 v5, v5, v6
    v_sub_f32 v6, v{m}, v5
    v_exp_f32 v6, v6
    v_mov_b32 v{m}, v5''')
            o = O + 8 * q
            for r in range(8): A(f'    v_mul_f32 v{o+r}, v{o+r}, v6')
            for v in vals:
                A(f'    v_sub_f32 v{v}, v{v}, v5')
                A(f'    v_exp_f32 v{v}, v{v}')
            P, M = packpv(0, bb, q)
            for l in P + M: A(l)
            A('    s_nop 7')
    A('    s_nop 7')
    lbcast()
    A('    s_branch K2_fin')

def gen_gemm(A, opts):
    ACC = 16
    def acc(u, mt): return ACC + (u * 4 + mt) * 4
    RB = 96
    def aslot(s, mt): return RB + 36 * s + 4 * mt
    def wslot(s, u): return RB + 36 * s + 16 + 4 * u
    VL16 = 240; VL16B = 241; GM = 4+8
    A(f'''
    s_barrier
    s_sub_u32 s33, s30, 4              ; gw
    s_and_b32 s34, s32, 3
    s_lshl_b32 s35, s31, 2
    s_add_u32 s34, s34, s35            ; rb
    s_lshr_b32 s35, s32, 2             ; j
    s_lshl_b32 s36, s34, 6             ; row0
    s_mov_b32 s20, s90
    s_mov_b32 s21, s91
    s_mov_b32 s22, 2621440
    s_mov_b32 s23, 0x00020000
    v_lshlrev_b32 v{VL16}, 4, v0
    v_add_u32 v{VL16B}, 4096, v{VL16}
    s_mul_i32 s41, s34, 48
    s_mul_i32 s42, s33, 12
    s_add_u32 s41, s41, s42
    s_lshl_b32 s41, s41, 12
    s_add_u32 s41, s41, {WS_H}
    s_mul_i32 s42, s42, 40
    s_mul_i32 s43, s35, 5
    s_add_u32 s42, s42, s43
    s_lshl_b32 s42, s42, 10
    s_add_u32 s42, s42, {WS_W2F}''')
    stamp(A, opts, 3)
    def loadsA(slot, sc=''):
        L = [f'    buffer_load_dwordx4 {vr(aslot(slot,mt),4)}, v{VL16}, s[16:19], s41 offen offset:{mt*1024}{sc}' for mt in range(4)]
        L[-1] += '\n    s_add_u32 s41, s41, 4096'
        return L
    def loadsW(slot):
        L = [f'    buffer_load_dwordx4 {vr(wslot(slot,u),4)}, v{VL16}, s[16:19], s42 offen offset:{u*1024}' for u in range(4)]
        L.append(f'    buffer_load_dwordx4 {vr(wslot(slot,4),4)}, v{VL16B}, s[16:19], s42 offen\n    s_add_u32 s42, s42, 40960')
        return L
    def step(slot, loads, wait):
        A(f'    s_waitcnt vmcnt({wait})')
        li = 0; k = 0
        for u in range(5):
            for mt in range(4):
                d = vr(acc(u, mt), 4)
                A(f'    v_mfma_f32_16x16x32_bf16 {d}, {vr(wslot(slot,u),4)}, {vr(aslot(slot,mt),4)}, {d}')
                k += 1
                if k % 2 == 0 and li < len(loads):
                    A(loads[li]); li += 1
        while li < len(loads):
            A(loads[li]); li += 1
    A(f'''
    s_lshl_b32 s40, s36, 2
    s_add_u32 s40, s40, {WS_G}
    v_lshlrev_b32 v3, 2, v1''')
    for mt in range(4):
        A(f'    buffer_load_dword v{GM+mt}, v3, s[16:19], s40 offen offset:{64*mt}')
    if opts.get('gdelay', 2):
        A(f'''
    v_mov_b32 v8, {CK if opts.get('gdelay', 2) == 1 else C1}
K2_gwait:
    ds_read_b32 v9, v8
    s_waitcnt lgkmcnt(0)
    v_readfirstlane_b32 s58, v9
    s_cmp_lt_u32 s58, 4
    s_cbranch_scc0 K2_gwait_done
    s_sleep 2
    s_branch K2_gwait
K2_gwait_done:''')
    for sl in range(3):
        for l in loadsW(sl) + loadsA(sl): A(l)
    for r in range(ACC, ACC + 80): A(f'    v_mov_b32 v{r}, 0')
    stamp(A, opts, 4)
    A('    s_mov_b32 s44, 0')
    A('K2_gloop:')
    for sl in range(4):
        step(sl, loadsA((sl + 3) % 4) + loadsW((sl + 3) % 4), 18)
    A('''
    s_add_u32 s44, s44, 1
    s_cmp_lt_u32 s44, 2
    s_cbranch_scc1 K2_gloop''')
    step(0, loadsA(3) + loadsW(3), 18)
    A(f'''
    s_mul_i32 s42, s33, 240
    s_add_u32 s42, s42, s43
    s_lshl_b32 s42, s42, 10
    s_add_u32 s42, s42, {WS_WOF}''')
    step(1, loadsW(0), 18)
    step(2, loadsW(1), 9 + 5)
    step(3, loadsW(2), 5 + 5)
    stamp(A, opts, 5)
    for l in loadsW(3): A(l)
    for mt in range(4):
        A(f'    v_sub_f32 v{GM+mt}, 1.0, v{GM+mt}')
    A('    s_nop 4')
    for u in range(5):
        for mt in range(4):
            for r in range(4):
                a0 = acc(u, mt) + r
                A(f'    v_mul_f32 v{a0}, v{a0}, v{GM+mt}')
    A(f'''
    s_lshr_b32 s45, s34, 2
    s_lshl_b32 s45, s45, 7
    s_add_u32 s45, s45, {WS_FLAG2}''')
    poll_all(A, 'K2_s2', 's45', 8, opts.get('psleep2', 4))
    stamp(A, opts, 6)
    A(f'''
    s_mul_i32 s41, s34, 24
    s_mul_i32 s44, s33, 6
    s_add_u32 s41, s41, s44
    s_lshl_b32 s41, s41, 12
    s_add_u32 s41, s41, {WS_OP}''')
    for sl in range(4):
        for l in loadsA(sl, ' sc1'): A(l)
    step(0, [], 12)
    step(1, loadsA(0, ' sc1') + loadsW(0), 8)
    step(2, loadsA(1, ' sc1') + loadsW(1), 4 + 9)
    step(3, [], 18)
    step(0, [], 9)
    step(1, [], 0)
    A(f'''
    v_lshlrev_b32 v3, 4, v0
    s_mul_i32 s39, s33, 20480
    s_add_u32 s39, s39, {RED0}
    v_add_u32 v4, s39, v3
    s_nop 7''')
    for u in range(5):
        for mt in range(4):
            A(f'    ds_write_b128 v4, {vr(acc(u,mt),4)} offset:{(mt*5+u)*1024}')
    A('    s_waitcnt lgkmcnt(0)\n    s_barrier')
    A(f'''
    s_mul_i32 s45, s33, 5120
    s_add_u32 s45, s45, {RED0}
    v_add_u32 v4, s45, v3
    v_add_u32 v8, {2*20480}, v4''')
    T = 96
    for w in range(4):
        for u in range(5):
            A(f'    ds_read_b128 {vr(T+(w*5+u)*4,4)}, v{4 if w < 2 else 8} offset:{(w%2)*20480 + u*1024}')
    A(f'''
    s_lshl_b32 s45, s33, 4
    s_add_u32 s45, s45, s36
    s_mul_i32 s45, s45, 1280
    s_mul_i32 s46, s35, 160
    s_add_u32 s45, s45, s46
    s_movk_i32 s37, 1280
    v_mul_lo_u32 v5, v1, s37
    v_and_b32 v6, 1, v2
    v_lshlrev_b32 v6, 5, v6
    v_lshrrev_b32 v7, 1, v2
    v_lshl_add_u32 v6, v7, 4, v6
    v_add_u32 v6, v6, v5
    v_lshl_add_u32 v7, v2, 3, v5
    s_waitcnt lgkmcnt(0)''')
    for u in range(5):
        for r in range(4):
            t0 = T + u * 4 + r
            A(f'''
    v_add_f32 v{t0}, v{t0}, v{t0+20}
    v_add_f32 v{t0+40}, v{t0+40}, v{t0+60}
    v_add_f32 v{t0}, v{t0}, v{t0+40}''')
    P = 16
    for pp in range(2):
        t = P + 4 * pp; d0 = T + 8 * pp; d1 = T + 8 * pp + 4
        A(f'''
    v_cvt_pk_bf16_f32 v{t}, v{d0}, v{d0+1}
    v_cvt_pk_bf16_f32 v{t+1}, v{d0+2}, v{d0+3}
    v_cvt_pk_bf16_f32 v{t+2}, v{d1}, v{d1+1}
    v_cvt_pk_bf16_f32 v{t+3}, v{d1+2}, v{d1+3}
    v_permlane16_swap_b32 v{t}, v{t+2}
    v_permlane16_swap_b32 v{t+1}, v{t+3}
    buffer_store_dwordx4 {vr(t,4)}, v6, s[20:23], s45 offen offset:{64*pp}''')
    d0 = T + 16
    A(f'''
    v_cvt_pk_bf16_f32 v24, v{d0}, v{d0+1}
    v_cvt_pk_bf16_f32 v25, v{d0+2}, v{d0+3}
    buffer_store_dwordx2 v[24:25], v7, s[20:23], s45 offen offset:128
''')
    if opts.get('prof'):
        A('    s_waitcnt vmcnt(0)')
        stamp(A, opts, 7)
        stamp_flush(A, opts)

def desc(name, vg):
    return f'''
.amdhsa_kernel {name}
  .amdhsa_next_free_vgpr {vg}
  .amdhsa_next_free_sgpr 102
  .amdhsa_accum_offset {vg}
  .amdhsa_group_segment_fixed_size 0
  .amdhsa_kernarg_size 80
  .amdhsa_user_sgpr_count 2
  .amdhsa_user_sgpr_kernarg_segment_ptr 1
  .amdhsa_system_sgpr_workgroup_id_x 1
.end_amdhsa_kernel
'''

if __name__ == '__main__':
    import sys
    out = sys.argv[1]
    opts = {}
    for kv in sys.argv[2:]:
        k, v = kv.split('=')
        opts[k] = int(v)
    HEADER = open('gated_mix__sliding_block__dense_activation_relu__prompt.s.ref').read().split('; Override launch')[0]
    o1 = dict(opts); o2 = dict(opts)
    if opts.get('prof') == 2: o1.pop('prof')
    a1 = Asm(); gen_k1(a1, o1)
    a2 = Asm(); gen_k2(a2, o2)
    txt = HEADER + f'; @launch kernel=k1_kernel grid=(256,1,1) block=(512,1,1) lds={LDS_BYTES}\n'
    if not opts.get('k1only'): txt += f'; @launch kernel=k2_kernel grid=(256,1,1) block=(512,1,1) lds={K2_LDS}\n'
    txt += '.amdgcn_target "amdgcn-amd-amdhsa--gfx950"\n.text\n'
    txt += '.globl k1_kernel\n.p2align 8\n.type k1_kernel,@function\n' + a1.fix() + '\n'
    txt += '.globl k2_kernel\n.p2align 8\n.type k2_kernel,@function\n' + a2.fix() + '\n'
    txt += '.section .rodata,"a"\n.p2align 6' + desc('k1_kernel', 232) + '.p2align 6' + desc('k2_kernel', 248)
    open(out, 'w').write(txt)
```

```python
from asmlib import *

WS_QK   = 0x000000
WS_VT   = 0x600000
WS_H    = 0x900000
WS_OP   = 0xF00000
WS_W2F  = 0x1200000
WS_WOF  = 0x13E0000
WS_G    = 0x14D0000
WS_FLAG2 = 0x14D2000
WS_ONES = 0x14D3000
WS_END  = 0x14D3100
WS_PROF = 0x1500000
WS_PROF_END = 0x1600000
LDS_BYTES = 163840
PK = 147456
C1 = 46336; CK = C1 + 4; CA = C1 + 8
KL = 0; VL = 24832; RED0 = 46592; K2_LDS = RED0 + 4*20480
KNAME = 'gated_mix__sliding_block__dense_activation_relu__prompt_kernel'

def stamp(A, opts, idx):
    if not opts.get('prof'): return
    A(f'    s_memtime s[{70+2*idx}:{71+2*idx}]')
    if idx == 0 or idx == 7:
        A(f'    s_memrealtime s[{86+2*(idx != 0)}:{87+2*(idx != 0)}]')

def stamp_flush(A, opts):
    if not opts.get('prof'): return
    A(f'''
    s_waitcnt lgkmcnt(0)
    s_lshl_b32 s96, s2, 4
    s_add_u32 s96, s96, s30
    s_lshl_b32 s96, s96, 7
    s_add_u32 s96, s96, {WS_PROF}
    v_mov_b32 v100, s96
    s_mov_b64 exec, 1''')
    for i in range(20):
        A(f'    v_mov_b32 v101, s{70+i}\n    buffer_store_dword v101, v100, s[92:95], 0 offen offset:{4*i}')
    A('    s_mov_b64 exec, -1')

def gen_k1(a, opts):
    A = a
    SF = {0: '', 1: ' sc1'}[opts.get('sf', 1)]
    A('k1_kernel:')
    A('''
    s_cmp_ge_u32 s2, 256
    s_cbranch_scc1 K1_done''')
    stamp(A, opts, 0)
    A(f'''
    s_load_dwordx2 s[4:5], s[0:1], 0
    s_load_dwordx4 s[64:67], s[0:1], 8
    s_load_dwordx4 s[24:27], s[0:1], 32
    s_load_dwordx2 s[68:69], s[0:1], 48
    s_load_dwordx2 s[28:29], s[0:1], 72
    v_lshrrev_b32 v1, 6, v0
    v_and_b32 v0, 63, v0
    v_readfirstlane_b32 s30, v1
    s_and_b32 s31, s2, 7
    s_lshr_b32 s32, s2, 3
    s_and_b32 s33, s31, 1
    s_lshl_b32 s33, s33, 3
    s_and_b32 s34, s32, 7
    s_add_u32 s33, s33, s34
    s_lshr_b32 s34, s31, 1
    s_lshl_b32 s34, s34, 2
    s_lshr_b32 s35, s32, 3
    s_add_u32 s34, s34, s35
    s_lshl_b32 s40, s33, 7
    s_cmp_lt_u32 s34, 6
    s_cbranch_scc1 K1_sec_qk
    s_cmp_lt_u32 s34, 9
    s_cbranch_scc1 K1_sec_v
    s_mov_b32 s36, 2
    s_sub_u32 s37, s34, 9
    s_mul_i32 s37, s37, 14
    s_min_u32 s37, s37, 82
    s_lshl_b32 s38, s37, 5
    s_mov_b32 s39, 3072
    s_branch K1_sec_done
K1_sec_qk:
    s_mov_b32 s36, 0
    s_mul_i32 s37, s34, 14
    s_min_u32 s37, s37, 66
    s_lshl_b32 s38, s37, 5
    s_mov_b32 s39, 3840
    s_branch K1_sec_done
K1_sec_v:
    s_mov_b32 s36, 1
    s_sub_u32 s37, s34, 6
    s_mul_i32 s37, s37, 14
    s_min_u32 s37, s37, 26
    s_lshl_b32 s38, s37, 5
    s_add_u32 s38, s38, 2560
    s_mov_b32 s39, 3840
K1_sec_done:
    s_cmp_ge_u32 s30, 4
    s_cbranch_scc1 K1_loader
    ''')
    gen_p1_compute(A, opts, SF)
    gen_p1_loader(A, opts, SF)
    A('KF_p1done:')
    if opts.get('prof') == 1:
        stamp(A, opts, 6)
        A('    s_waitcnt vmcnt(0)')
        stamp(A, opts, 7); stamp_flush(A, opts)
    A('K1_done:\n    s_endpgm')

def gen_k2(a, opts):
    A = a
    A('k2_kernel:')
    A('''
    s_cmp_ge_u32 s2, 256
    s_cbranch_scc1 KF_done''')
    stamp(A, opts, 0)
    A(f'''
    s_load_dwordx2 s[90:91], s[0:1], 56
    s_load_dwordx2 s[28:29], s[0:1], 72
    v_lshrrev_b32 v1, 6, v0
    v_and_b32 v0, 63, v0
    v_readfirstlane_b32 s30, v1
    s_and_b32 s31, s2, 7
    s_lshr_b32 s32, s2, 3
    v_and_b32 v1, 15, v0
    v_lshrrev_b32 v2, 4, v0
    s_mov_b32 s97, 1
    s_cmp_eq_u32 s30, 0
    s_cbranch_scc0 K2_noinit
    v_mov_b32 v8, 0
    v_mov_b32 v9, {C1}
    ds_write_b32 v9, v8 offset:0
    ds_write_b32 v9, v8 offset:4
    ds_write_b32 v9, v8 offset:8
    ds_write_b32 v9, v8 offset:12
    ds_write_b32 v9, v8 offset:16
    ds_write_b32 v9, v8 offset:20
    ds_write_b32 v9, v8 offset:24
K2_noinit:
    s_cmp_ge_u32 s30, 4
    s_cbranch_scc1 K2_gemm''')
    gen_attn(A, opts)
    A('K2_gemm:')
    if opts.get('wo_attn', 0): gen_gemm(A, opts)
    else: gen_gemm_full(A, opts)
    A('KF_done:\n    s_endpgm')

def wait_lds(A, label, addr, val, sleep=2):
    A(f'''
    v_mov_b32 v8, {addr}
{label}:
    ds_read_b32 v9, v8
    s_waitcnt lgkmcnt(0)
    v_readfirstlane_b32 s58, v9
    s_cmp_lt_u32 s58, {val}
    s_cbranch_scc0 {label}_ok
    s_sleep {sleep}
    s_branch {label}
{label}_ok:''')

def poll_all(A, label, base, n_lanes_x4, sleep=1):
    A(f'''
    v_lshlrev_b32 v3, 4, v0
    v_mov_b32 v8, 0x80000000
    v_cmp_gt_u32 vcc, {n_lanes_x4}, v0
    v_cndmask_b32 v3, v8, v3, vcc
    s_mov_b64 s[56:57], vcc
{label}:
    buffer_load_dwordx4 v[4:7], v3, s[16:19], {base} offen sc1
    s_waitcnt vmcnt(0)
    v_xor_b32 v4, s97, v4
    v_xor_b32 v5, s97, v5
    v_xor_b32 v6, s97, v6
    v_xor_b32 v7, s97, v7
    v_or3_b32 v4, v4, v5, v6
    v_or_b32 v4, v4, v7
    v_cmp_ne_u32 vcc, 0, v4
    s_and_b64 vcc, vcc, s[56:57]
    s_cbranch_vccz {label}_ok
    s_sleep {sleep}
    s_branch {label}
{label}_ok:''')

def k1_srds(A, tag):
    A(f'''
    s_waitcnt lgkmcnt(0)
    s_mov_b32 s8, s4
    s_mov_b32 s9, s5
    s_mov_b32 s10, 2621440
    s_mov_b32 s11, 0x00020000
    s_mov_b32 s15, 0x00020000
    s_cmp_eq_u32 s36, 2
    s_cbranch_scc1 K1_srd_h{tag}
    s_mov_b32 s12, s64
    s_mov_b32 s13, s65
    s_mov_b32 s14, 2457600
    s_branch K1_srd_d{tag}
K1_srd_h{tag}:
    s_mov_b32 s12, s24
    s_mov_b32 s13, s25
    s_mov_b32 s14, 1966080
K1_srd_d{tag}:
    s_mov_b32 s16, s28
    s_mov_b32 s17, s29
    s_mov_b32 s18, {WS_END}
    s_mov_b32 s19, 0x00020000
    s_mov_b32 s92, s28
    s_mov_b32 s93, s29
    s_mov_b32 s94, {WS_PROF_END}
    s_mov_b32 s95, 0x00020000''')

def gen_p1_compute(A, opts, SF):
    ACC = 16
    def acc(uu, mt): return ACC + (uu * 4 + mt) * 4
    XS = [128, 172]; WSs = [144, 188]
    VAX = [216, 217]; VW = 218
    T = 128
    A(f'''
    s_and_b32 s41, s30, 1
    s_lshr_b32 s42, s30, 1
    v_and_b32 v1, 15, v0
    v_lshrrev_b32 v2, 4, v0
    v_and_b32 v3, 7, v1
    v_xor_b32 v3, v2, v3
    v_lshlrev_b32 v3, 4, v3
    v_lshl_add_u32 v3, v1, 7, v3
    s_lshl_b32 s43, s41, 13
    v_add_u32 v{VAX[0]}, s43, v3
    v_xor_b32 v{VAX[1]}, 64, v{VAX[0]}
    v_lshrrev_b32 v4, 2, v1
    v_and_b32 v5, 3, v0
    v_and_b32 v6, 1, v2
    v_lshl_or_b32 v6, v6, 2, v4
    v_lshl_add_u32 v7, v2, 3, v4
    v_lshlrev_b32 v7, 9, v7
    v_lshl_add_u32 v7, v5, 3, v7
    v_add_u32 v7, 16384, v7
    s_lshl_b32 s44, s42, 3
    s_add_u32 s45, s42, 6
    ''')
    for uu in range(7):
        if uu < 6: A(f'    s_add_u32 s46, s44, {uu}\n    v_xor_b32 v8, s46, v6')
        else:      A(f'    v_xor_b32 v8, s45, v6')
        A(f'    v_lshl_add_u32 v{VW+uu}, v8, 5, v7')
    for r in range(ACC, ACC + 112):
        A(f'    v_mov_b32 v{r}, 0')
    def reads(st, ks):
        R = []
        for mt in range(4):
            R.append(f'    ds_read_b128 {vr(XS[st]+4*mt,4)}, v{VAX[ks]} offset:{mt*2048}')
        for uu in range(7):
            for t in range(2):
                R.append(f'    ds_read_b64_tr_b16 {vr(WSs[st]+4*uu+2*t,2)}, v{VW+uu} offset:{(32*ks+4*t)*512}')
        return R
    def phase(st, rd, swapped, extra=()):
        k = 0
        extra = list(extra)
        for uu in range(7):
            for mt in range(4):
                w = vr(WSs[st] + 4 * uu, 4); x = vr(XS[st] + 4 * mt, 4); d = vr(acc(uu, mt), 4)
                if swapped: A(f'    v_mfma_f32_16x16x32_bf16 {d}, {w}, {x}, {d}')
                else:       A(f'    v_mfma_f32_16x16x32_bf16 {d}, {x}, {w}, {d}')
                if k < len(rd): A(rd[k])
                elif extra: A(extra.pop(0))
                k += 1
        for e in extra: A(e)
    def mainloop(tag, swapped):
        A(f'''
    s_mov_b32 s46, 0
    s_mov_b32 s47, 0
    s_mov_b32 s50, 0xfffe8000
    s_mov_b32 s51, 49152
    s_barrier''')
        for l in reads(0, 0): A(l)
        A(f'K1_loop_{tag}:')
        A('''
    s_add_u32 s47, s47, 1
    s_cmp_eq_u32 s47, 3
    s_cselect_b32 s48, s50, s51
    s_cselect_b32 s47, 0, s47
    s_waitcnt lgkmcnt(0)''')
        upd = [f'    v_add_u32 v{r}, s48, v{r}' for r in VAX + [VW + i for i in range(7)]]
        phase(0, reads(1, 1), swapped, upd)
        A('''
    s_waitcnt lgkmcnt(0)
    s_barrier''')
        phase(1, reads(0, 0), swapped, ['    s_add_u32 s46, s46, 1', '    s_cmp_lt_u32 s46, 10'])
        A(f'''
    s_cbranch_scc1 K1_loop_{tag}
    s_waitcnt lgkmcnt(0)
    s_nop 7''')
        stamp(A, opts, 1)
    k1_srds(A, 'c')
    for r in range(9, 15): A(f'    v_mov_b32 v{r}, 0x80000000')
    A('''
    s_cmp_eq_u32 s36, 1
    s_cbranch_scc1 K1_main_v
    s_cmp_eq_u32 s36, 2
    s_cbranch_scc1 K1_pre_h''')
    A(f'''
    s_lshl_b32 s43, s41, 2
    s_lshr_b32 s46, s40, 4
    s_add_u32 s43, s43, s46
    s_mul_i32 s43, s43, 768
    v_lshlrev_b32 v3, 3, v1
    v_add_u32 v3, s43, v3
    s_mov_b32 s49, 52429
    s_mov_b32 s52, 98304
    s_mov_b32 s53, 0x3ea52b5c''')
    for uu in range(7):
        if uu < 6: A(f'    s_add_u32 s46, s44, {uu}')
        else:      A(f'    s_mov_b32 s46, s45')
        A(f'''
    s_add_u32 s46, s46, s37
    s_lshl_b32 s46, s46, 2
    v_add_u32 v4, s46, v2
    v_mul_lo_u32 v5, v4, s49
    v_lshrrev_b32 v5, 18, v5
    v_mul_u32_u24 v6, 5, v5
    v_sub_u32 v6, v4, v6
    v_mul_lo_u32 v5, v5, s52
    v_lshl_add_u32 v5, v6, 7, v5
    v_add_u32 v{8+uu}, v5, v3''')
    A('    s_branch K1_pre_done')
    A(f'''K1_pre_h:
    s_lshl_b32 s43, s33, 1
    s_add_u32 s43, s43, s41
    s_mul_i32 s43, s43, {48*4096}
    s_add_u32 s43, s43, {WS_H}
    s_add_u32 s56, s37, s44
    s_lshl_b32 s56, s56, 11
    s_add_u32 s56, s56, s43
    v_and_b32 v4, 1, v2
    v_lshlrev_b32 v4, 1, v4
    v_lshrrev_b32 v5, 1, v2
    v_add_u32 v4, v4, v5
    v_lshl_add_u32 v4, v4, 4, v1
    v_lshlrev_b32 v4, 4, v4
    s_add_u32 s57, s37, 6
    s_lshl_b32 s57, s57, 11
    s_add_u32 s57, s57, s43
    s_lshl_b32 s48, s42, 1
    v_add_u32 v5, s48, v5
    v_lshl_add_u32 v5, v5, 4, v1
    v_lshlrev_b32 v5, 4, v5
    v_and_b32 v6, 1, v2
    v_lshl_add_u32 v5, v6, 10, v5
K1_pre_done:''')
    mainloop('s', True)
    A('''
    s_cmp_eq_u32 s36, 2
    s_cbranch_scc1 K1_epi_h''')
    for uu in range(7):
        if uu < 6: A(f'    s_add_u32 s46, s44, {uu}')
        else:      A(f'    s_mov_b32 s46, s45')
        A(f'''
    s_add_u32 s46, s46, s37
    s_cmp_lt_u32 s46, 40
    s_cselect_b32 s54, s53, 1.0
    s_mov_b32 s55, s54''')
        for mt in range(4):
            d = acc(uu, mt); t = T + (uu * 4 + mt) * 2
            A(f'''
    v_pk_mul_f32 {vr(d,2)}, {vr(d,2)}, s[54:55]
    v_pk_mul_f32 {vr(d+2,2)}, {vr(d+2,2)}, s[54:55]
    v_cvt_pk_bf16_f32 v{t}, v{d}, v{d+1}
    v_cvt_pk_bf16_f32 v{t+1}, v{d+2}, v{d+3}
    buffer_store_dwordx2 {vr(t,2)}, v{8+uu}, s[16:19], 0 offen offset:{WS_QK + mt*768}{SF}''')
    A('    s_branch KF_p1done')
    A('K1_epi_h:')
    n = 0
    for pp in range(3):
        A(f'    s_add_u32 s49, s56, {pp*4096}')
        for mt in range(4):
            t = T + n * 4; n += 1
            d0 = acc(2 * pp, mt); d1 = acc(2 * pp + 1, mt)
            A(f'''
    v_cvt_pk_bf16_f32 v{t}, v{d0}, v{d0+1}
    v_cvt_pk_bf16_f32 v{t+1}, v{d0+2}, v{d0+3}
    v_cvt_pk_bf16_f32 v{t+2}, v{d1}, v{d1+1}
    v_cvt_pk_bf16_f32 v{t+3}, v{d1+2}, v{d1+3}
    v_pk_max_i16 v{t}, v{t}, 0
    v_pk_max_i16 v{t+1}, v{t+1}, 0
    v_pk_max_i16 v{t+2}, v{t+2}, 0
    v_pk_max_i16 v{t+3}, v{t+3}, 0
    v_permlane16_swap_b32 v{t}, v{t+2}
    v_permlane16_swap_b32 v{t+1}, v{t+3}
    buffer_store_dwordx4 {vr(t,4)}, v4, s[16:19], s49 offen offset:{1024*mt}{SF}''')
    for pm in range(2):
        t = T + n * 4; n += 1
        d0 = acc(6, 2 * pm); d1 = acc(6, 2 * pm + 1)
        A(f'''
    v_cvt_pk_bf16_f32 v{t}, v{d0}, v{d0+1}
    v_cvt_pk_bf16_f32 v{t+1}, v{d0+2}, v{d0+3}
    v_cvt_pk_bf16_f32 v{t+2}, v{d1}, v{d1+1}
    v_cvt_pk_bf16_f32 v{t+3}, v{d1+2}, v{d1+3}
    v_pk_max_i16 v{t}, v{t}, 0
    v_pk_max_i16 v{t+1}, v{t+1}, 0
    v_pk_max_i16 v{t+2}, v{t+2}, 0
    v_pk_max_i16 v{t+3}, v{t+3}, 0
    v_permlane16_swap_b32 v{t}, v{t+2}
    v_permlane16_swap_b32 v{t+1}, v{t+3}
    buffer_store_dwordx4 {vr(t,4)}, v5, s[16:19], s57 offen offset:{2048*pm}{SF}''')
    A('    s_branch KF_p1done')
    A('K1_main_v:')
    A(f'''
    s_lshl_b32 s43, s41, 1
    s_lshr_b32 s46, s40, 5
    s_add_u32 s43, s43, s46
    s_lshl_b32 s43, s43, 10
    s_add_u32 s43, s43, {WS_VT}
    v_lshlrev_b32 v3, 4, v0
    v_add_u32 v3, s43, v3''')
    for uu in range(7):
        if uu < 6: A(f'    s_add_u32 s46, s44, {uu}')
        else:      A(f'    s_mov_b32 s46, s45')
        A(f'''
    s_add_u32 s46, s46, s37
    s_lshl_b32 s46, s46, 16
    v_add_u32 v{8+uu}, s46, v3''')
    mainloop('n', False)
    for uu in range(7):
        for pa in range(2):
            t = T + (uu * 2 + pa) * 4
            d0 = acc(uu, 2 * pa); d1 = acc(uu, 2 * pa + 1)
            A(f'''
    v_cvt_pk_bf16_f32 v{t}, v{d0}, v{d0+1}
    v_cvt_pk_bf16_f32 v{t+1}, v{d0+2}, v{d0+3}
    v_cvt_pk_bf16_f32 v{t+2}, v{d1}, v{d1+1}
    v_cvt_pk_bf16_f32 v{t+3}, v{d1+2}, v{d1+3}
    buffer_store_dwordx4 {vr(t,4)}, v{8+uu}, s[16:19], 0 offen offset:{1024*pa}{SF}''')
    A('    s_branch KF_p1done')

def gen_p1_loader(A, opts, SF):
    A(f'''K1_loader:
    s_sub_u32 s41, s30, 4
    v_lshrrev_b32 v1, 3, v0
    v_and_b32 v2, 7, v0
    v_lshlrev_b32 v21, 4, v2
    v_xor_b32 v2, v2, v1
    v_lshlrev_b32 v2, 4, v2
    s_movk_i32 s43, 1280
    v_mul_lo_u32 v1, v1, s43
    v_add_u32 v2, v2, v1
    v_add_u32 v21, v21, v1
    v_lshrrev_b32 v4, 5, v0
    s_and_b32 s44, s41, 1
    s_lshr_b32 s45, s41, 1
    s_lshl_b32 s46, s44, 1
    s_lshl_b32 s47, s45, 2
    s_or_b32 s46, s46, s47
    v_or_b32 v5, s46, v4
    v_bfe_u32 v6, v0, 1, 4
    v_xor_b32 v6, v6, v5
    v_mul_lo_u32 v7, v4, s39
    v_lshl_add_u32 v7, v6, 5, v7
    v_and_b32 v8, 1, v0
    v_lshl_add_u32 v3, v8, 4, v7
    v_mov_b32 v9, 0x80000000
    v_cmp_le_u32 vcc, 14, v6
    v_cndmask_b32 v3, v3, v9, vcc
    s_lshl_b32 s50, s41, 5
    s_add_u32 s50, s50, s40
    s_mul_i32 s50, s50, 1280
    s_add_u32 s52, s44, s47
    s_lshl_b32 s53, s52, 1
    s_mul_i32 s51, s53, s39
    s_add_u32 s51, s51, s38
    s_lshl_b32 s54, s39, 2
    s_mul_i32 s55, s39, 12
    s_lshl_b32 s56, s39, 6
    s_lshl_b32 s57, s41, 12
    s_lshl_b32 s58, s52, 10
    s_add_u32 s58, s58, 16384
    s_mov_b32 s59, 0
    s_and_b32 s46, s32, 7
    s_lshr_b32 s47, s32, 3
    s_add_u32 s46, s46, s47
    s_and_b32 s46, s46, {opts.get('rotng', 1) - 1}
    s_mul_i32 s90, s46, {opts.get('rotr', 0)}
    s_lshl_b32 s46, s90, 7
    s_add_u32 s50, s50, s46
    s_mul_i32 s46, s90, s56
    s_add_u32 s51, s51, s46
    s_mul_i32 s91, s56, 10
    ''')
    def issue():
        A('    s_add_u32 s60, s59, s57\n    s_add_u32 s61, s59, s58')
        for jj in range(4):
            A(f'''
    s_add_u32 m0, s60, {jj*1024}
    s_add_u32 s62, s50, {jj*10240}
    buffer_load_dwordx4 v2, s[8:11], s62 offen lds''')
        A('    s_mov_b32 s62, s51')
        i = 0
        for b in range(4):
            for aa in range(2):
                A(f'    s_add_u32 m0, s61, {(2*aa+8*b)*1024}')
                if i > 0: A(f'    s_add_u32 s62, s62, {"s54" if aa == 1 else "s55"}')
                else: A('    s_nop 0')
                A('    buffer_load_dwordx4 v3, s[12:15], s62 offen lds')
                i += 1
        A(f'''
    s_add_u32 s50, s50, 128
    s_add_u32 s51, s51, s56
    s_add_u32 s90, s90, 1
    s_cmp_eq_u32 s90, 10
    s_cselect_b32 s46, 1280, 0
    s_cselect_b32 s47, s91, 0
    s_cselect_b32 s90, 0, s90
    s_sub_u32 s50, s50, s46
    s_sub_u32 s51, s51, s47
    s_add_u32 s59, s59, 49152
    s_cmp_eq_u32 s59, 147456
    s_cselect_b32 s59, 0, s59''')
    k1_srds(A, 'l')
    issue(); issue()
    A('    s_waitcnt vmcnt(12)\n    s_barrier')
    issue()
    A(f'''
    s_lshl_b32 s63, s2, 2
    s_add_u32 s63, s63, s41
    s_mul_hi_u32 s46, s63, 0x1999999a
    s_mul_i32 s47, s46, 10
    s_sub_u32 s47, s63, s47
    s_cmp_lt_u32 s46, 48
    s_cbranch_scc0 K1_pk_wo
    s_mov_b32 s20, s26
    s_mov_b32 s21, s27
    s_mov_b32 s22, 1966080
    s_mul_i32 s34, s46, 40960
    s_add_u32 s35, s34, {WS_W2F}
    s_lshl_b32 s46, s47, 7
    s_add_u32 s34, s34, s46
    v_mov_b32 v50, v21
    v_add_u32 v51, 10240, v21
    v_add_u32 v52, 20480, v21
    v_add_u32 v53, 30720, v21
    s_branch K1_pk_go
K1_pk_wo:
    s_mov_b32 s20, s66
    s_mov_b32 s21, s67
    s_mov_b32 s22, 819200
    s_sub_u32 s46, s46, 48
    s_mul_i32 s35, s46, 40960
    s_add_u32 s35, s35, {WS_WOF}
    s_lshl_b32 s34, s47, 7
    s_lshl_b32 s46, s46, 5
    v_lshrrev_b32 v54, 3, v0
    v_add_u32 v54, s46, v54
    s_mov_b32 s46, 0xaaaaaab
    v_and_b32 v55, 7, v0
    v_lshlrev_b32 v55, 4, v55
    v_mov_b32 v58, 0x80000000''')
    for jj in range(4):
        A(f'''
    v_mul_hi_u32 v56, v54, s46
    v_mul_u32_u24 v57, 24, v56
    v_sub_u32 v57, v54, v57
    v_mul_u32_u24 v56, 20, v56
    v_add_u32 v56, v56, v57
    v_mul_u32_u24 v56, 1280, v56
    v_add_u32 v56, v56, v55
    v_cmp_gt_u32 vcc, 20, v57
    v_cndmask_b32 v{50+jj}, v58, v56, vcc
    v_add_u32 v54, 8, v54''')
    A(f'''
K1_pk_go:
    s_mov_b32 s23, 0x00020000
    s_lshl_b32 s46, s47, 12
    s_add_u32 s35, s35, s46
    s_cmp_ge_u32 s63, 720
    s_cselect_b32 s35, 0x7f000000, s35
    s_cselect_b32 s34, 0x7f000000, s34
    s_add_u32 s46, s57, {PK}''')
    for jj in range(4):
        A(f'''
    s_add_u32 m0, s46, {jj*1024}
    s_nop 0
    buffer_load_dwordx4 v{50+jj}, s[20:23], s34 offen lds''')
    A('    s_waitcnt vmcnt(16)\n    s_barrier')
    issue()
    A('    s_waitcnt vmcnt(16)\n    s_barrier')
    issue()
    A('    s_waitcnt vmcnt(12)\n    s_barrier')
    A(f'''
    v_lshrrev_b32 v10, 4, v0
    v_bfe_u32 v11, v0, 2, 2
    v_lshl_add_u32 v10, v10, 3, v11
    v_lshlrev_b32 v10, 7, v10
    v_and_b32 v11, 3, v0
    v_lshl_add_u32 v10, v11, 3, v10
    s_add_u32 s46, s57, {PK}
    v_add_u32 v10, s46, v10
    v_lshlrev_b32 v11, 4, v0''')
    for u in range(4):
        for t in range(2):
            A(f'    ds_read_b64_tr_b16 {vr(24+4*u+2*t,2)}, v10 offset:{t*512 + u*32}')
    issue()
    A('    s_waitcnt lgkmcnt(0)')
    for u in range(4):
        A(f'    buffer_store_dwordx4 {vr(24+4*u,4)}, v11, s[16:19], s35 offen offset:{u*1024} sc1')
    A('    s_waitcnt vmcnt(16)\n    s_barrier')
    issue()
    A('    s_waitcnt vmcnt(16)\n    s_barrier')
    mp = opts.get('midpf', 0)
    if mp:
        A(f'''
    s_lshl_b32 s46, s32, 2
    s_add_u32 s46, s46, s41
    s_mul_i32 s46, s46, 192
    v_add_u32 v59, s46, v0
    v_lshlrev_b32 v60, 7, v59
    v_add_u32 v60, {WS_W2F}, v60
    v_mov_b32 v58, 0x80000000''')
        for n in range(3):
            A(f'''
    v_add_u32 v61, {64*n}, v59
    v_cmp_gt_u32 vcc, 23040, v61
    v_cndmask_b32 v{62+n}, v58, v60, vcc
    v_add_u32 v60, 8192, v60''')
    def tch(n):
        if mp: A(f'    buffer_load_dword v{66+n}, v{62+n}, s[16:19], 0 offen')
    if opts.get('midpf_early'): tch(0)
    issue()
    if not opts.get('midpf_early'): tch(0)
    A(f'    s_waitcnt vmcnt({12 + mp})\n    s_barrier')
    issue()
    tch(1)
    A(f'    s_waitcnt vmcnt({12 + 2*mp})\n    s_barrier')
    issue()
    tch(2)
    A(f'''
    s_lshr_b32 s34, s31, 1
    s_lshl_b32 s34, s34, 2
    s_lshr_b32 s35, s32, 3
    s_add_u32 s34, s34, s35
    s_lshl_b32 s44, s34, 3
    s_add_u32 s44, s44, s40
    s_lshl_b32 s45, s41, 1
    s_add_u32 s44, s44, s45
    s_mul_i32 s45, s44, 1280
    s_mov_b32 s20, s68
    s_mov_b32 s21, s69
    s_mov_b32 s22, 1280
    s_mov_b32 s23, 0x00020000
    v_lshlrev_b32 v10, 2, v0''')
    for j in range(5):
        A(f'    buffer_load_dword v{16+j}, v10, s[20:23], 0 offen offset:{256*j}')
    for rr in range(2):
        for j in range(5):
            A(f'    buffer_load_dword v{24+8*rr+j}, v10, s[8:11], s45 offen offset:{256*j + 1280*rr}')
    A(f'''
    v_mov_b32 v15, 0x80000000
    s_lshl_b32 s46, s2, 2
    s_add_u32 s46, s46, s41
    s_lshl_b32 s46, s46, 2
    v_lshrrev_b32 v11, 4, v0
    v_add_u32 v11, s46, v11
    v_mul_u32_u24 v11, 768, v11
    v_and_b32 v12, 15, v0
    v_lshl_add_u32 v11, v12, 3, v11
    v_add_u32 v11, {WS_QK + 32*98304 + 640}, v11
    v_mov_b32 v12, 0
    v_mov_b32 v13, 0
    buffer_store_dwordx2 v[12:13], v11, s[16:19], 0 offen{SF}
    s_add_u32 s46, s2, s41
    s_cmp_eq_u32 s46, 0
    s_cselect_b32 s46, 8, 0
    v_lshlrev_b32 v11, 4, v0
    v_add_u32 v11, {WS_ONES}, v11
    v_cmp_gt_u32 vcc, s46, v0
    v_cndmask_b32 v11, v15, v11, vcc
    v_mov_b32 v44, 0x3f803f80
    v_mov_b32 v45, 0x3f803f80
    v_mov_b32 v46, 0x3f803f80
    v_mov_b32 v47, 0x3f803f80
    buffer_store_dwordx4 v[44:47], v11, s[16:19], 0 offen{SF}
    s_cmp_eq_u32 s41, 0
    s_cselect_b32 s46, 4, 0
    s_lshl_b32 s47, s2, 4
    s_add_u32 s47, s47, {WS_FLAG2}
    v_lshl_add_u32 v11, v0, 2, s47
    v_cmp_gt_u32 vcc, s46, v0
    v_cndmask_b32 v11, v15, v11, vcc
    buffer_store_dword v12, v11, s[16:19], 0 offen{SF}
    s_waitcnt vmcnt({30 + 2*opts.get('midpf', 0)})
    s_barrier
    s_waitcnt vmcnt({18 + opts.get('midpf', 0)})
    s_barrier
    s_barrier
    s_waitcnt vmcnt(3)''')
    for rr in range(2):
        acc_ = 40 + rr
        A(f'    v_mov_b32 v{acc_}, 0')
        for j in range(5):
            A(f'    v_dot2c_f32_bf16 v{acc_}, v{16+j}, v{24+8*rr+j}')
    for rr in range(2):
        r = 40 + rr
        A(f'''
    v_add_f32_dpp v{r}, v{r}, v{r} quad_perm:[1,0,3,2] row_mask:0xf bank_mask:0xf
    v_add_f32_dpp v{r}, v{r}, v{r} quad_perm:[2,3,0,1] row_mask:0xf bank_mask:0xf
    v_add_f32_dpp v{r}, v{r}, v{r} row_half_mirror row_mask:0xf bank_mask:0xf
    v_add_f32_dpp v{r}, v{r}, v{r} row_mirror row_mask:0xf bank_mask:0xf
    v_mov_b32 v43, v{r}
    v_permlane16_swap_b32 v43, v{r}
    v_add_f32 v{r}, v{r}, v43
    v_mov_b32 v43, v{r}
    v_permlane32_swap_b32 v43, v{r}
    v_add_f32 v{r}, v{r}, v43''')
    A(f'''
    v_cmp_eq_u32 vcc, 1, v0
    v_cndmask_b32 v40, v40, v41, vcc
    v_mul_f32 v40, 0xbfb8aa3b, v40
    v_exp_f32 v40, v40
    v_add_f32 v40, 1.0, v40
    v_rcp_f32 v40, v40
    s_lshl_b32 s46, s44, 2
    s_add_u32 s46, s46, {WS_G}
    v_lshl_add_u32 v14, v0, 2, s46
    v_cmp_gt_u32 vcc, 2, v0
    v_cndmask_b32 v14, v15, v14, vcc
    buffer_store_dword v40, v14, s[16:19], 0 offen{SF}''')
    npf = opts.get('w2pf', 0)
    if npf:
        A(f'''
    s_lshl_b32 s46, s32, 2
    s_add_u32 s46, s46, s41
    s_mul_i32 s46, s46, 192
    v_add_u32 v59, s46, v0
    v_lshlrev_b32 v60, 7, v59
    v_add_u32 v60, {WS_W2F}, v60''')
        for n in range(npf):
            A(f'''
    v_add_u32 v61, {64*n}, v59
    v_cmp_gt_u32 vcc, 23040, v61
    v_cndmask_b32 v{62+n}, v15, v60, vcc
    buffer_load_dword v{66+n}, v{62+n}, s[16:19], 0 offen
    v_add_u32 v60, 8192, v60''')
    stamp(A, opts, 1)

def gen_attn(A, opts):
    NAW = 4
    SA = 16; KB = 48; VB = 64; Q = 80; O = 96; G = 112
    VK = 116; VK2 = 117; VV0 = 118; VV1 = 119; VO1 = 120; VO2 = 121
    NQT = 4; KPW = 6
    A(f'''
    {'s_setprio 2' if opts.get('prio', 1) else ''}
    s_lshr_b32 s59, s32, 2              ; qb
    s_lshl_b32 s33, s59, 8              ; Q0
    s_and_b32 s34, s32, 3
    s_lshl_b32 s35, s31, 2
    s_add_u32 s34, s34, s35             ; head
    s_add_u32 s35, s34, 32
    s_mul_i32 s35, s35, 98304
    s_mul_i32 s40, s33, 48
    s_add_u32 s35, s35, s40
    s_sub_u32 s35, s35, {256*48 - WS_QK}
    v_lshlrev_b32 v3, 4, v0
    s_mul_i32 s37, s30, {KPW*1024}
    s_add_u32 s35, s35, s37
    s_cmp_eq_u32 s59, 0
    s_cselect_b32 s38, 1, 0
    s_cmp_lt_u32 s30, {NAW//2}
    s_cselect_b32 s39, s38, 0
    s_waitcnt lgkmcnt(0)
    s_mov_b32 s16, s28
    s_mov_b32 s17, s29
    s_mov_b32 s18, {WS_END}
    s_mov_b32 s19, 0x00020000
    s_mov_b32 s92, s28
    s_mov_b32 s93, s29
    s_mov_b32 s94, {WS_PROF_END}
    s_mov_b32 s95, 0x00020000
    s_cmp_eq_u32 s39, 1
    s_cbranch_scc1 K2_kfill''')
    for j in range(KPW):
        A(f'''
    s_add_u32 m0, s37, {KL + j*1024}
    s_add_u32 s40, s35, {j*1024}
    buffer_load_dwordx4 v3, s[16:19], s40 offen lds''')
    A(f'''
    s_branch K2_kdone
K2_kfill:
    v_mov_b32 v5, 0
    v_mov_b32 v7, 0
    s_mul_i32 s40, s30, {KPW*64}
    v_add_u32 v8, s40, v0
    s_mov_b32 s41, 0x5555556''')
    for j in range(KPW):
        A(f'''
    v_mul_hi_u32 v9, v8, s41
    v_mul_u32_u24 v9, 48, v9
    v_sub_u32 v9, v8, v9
    v_cmp_le_u32 vcc, 40, v9
    v_mov_b32 v6, 0x3f80
    v_cndmask_b32 v6, 0, v6, vcc
    v_mov_b32 v4, v6
    v_lshlrev_b32 v9, 4, v8
    ds_write_b128 v9, v[4:7] offset:{KL}
    v_add_u32 v8, 64, v8''')
    A(f'''
K2_kdone:
    s_mul_i32 s36, s30, {NQT*16}
    s_add_u32 s36, s36, s33
    s_mul_i32 s35, s34, 98304
    s_mul_i32 s40, s36, 48
    s_add_u32 s35, s35, s40
    v_lshlrev_b32 v4, 3, v0
    v_lshlrev_b32 v5, 3, v1''')
    for t in range(NQT):
        A(f'    buffer_load_dwordx2 {vr(Q+4*t,2)}, v4, s[16:19], s35 offen offset:{WS_QK + t*768}')
        A(f'    buffer_load_dwordx2 {vr(Q+4*t+2,2)}, v5, s[16:19], s35 offen offset:{WS_QK + t*768 + 512}')
    A(f'''
    s_lshl_b32 s40, s36, 2
    s_add_u32 s40, s40, {WS_G}
    v_lshlrev_b32 v5, 2, v1''')
    for t in range(NQT):
        A(f'    buffer_load_dword v{G+t}, v5, s[16:19], s40 offen offset:{t*64}')
    A(f'''
    ; V gather: q = 64*(w+4j) + lane ; bg = q/21, d = q%21 ; blk = Q0/32 - 8 + bg/4 ; g = bg&3 ; n = 20*head + d
    s_lshl_b32 s40, s30, 6
    v_add_u32 v3, s40, v0
    s_mov_b32 s41, 0xc30c30d
    s_mul_i32 s43, s34, 20
    s_lshr_b32 s35, s33, 5
    s_sub_u32 s35, s35, 8
    v_mov_b32 v9, {WS_ONES}
    s_lshl_b32 s37, s30, 10''')
    for j in range(6):
        if j == 5: A('    s_cmp_eq_u32 s30, 0\n    s_cbranch_scc0 K2_vdone')
        A(f'''
    v_mul_hi_u32 v4, v3, s41
    v_mul_u32_u24 v5, 21, v4
    v_sub_u32 v5, v3, v5
    v_lshrrev_b32 v6, 2, v4
    v_add_u32 v6, s35, v6
    v_and_b32 v4, 3, v4
    v_add_u32 v7, s43, v5
    v_lshrrev_b32 v8, 4, v7
    v_lshl_add_u32 v6, v8, 6, v6
    v_lshl_add_u32 v6, v6, 2, v4
    v_and_b32 v7, 15, v7
    v_lshlrev_b32 v7, 4, v7
    v_lshl_add_u32 v6, v6, 8, v7
    v_add_u32 v6, {WS_VT}, v6
    v_cmp_eq_u32 vcc, 20, v5
    v_cndmask_b32 v6, v6, v9, vcc
    s_add_u32 m0, s37, {VL + j*4096}
    v_add_u32 v3, 256, v3
    buffer_load_dwordx4 v6, s[16:19], 0 offen lds''')
    A(f'''K2_vdone:
    s_barrier
    v_mov_b32 v3, {C1}
    v_mov_b32 v4, 1
    s_mov_b64 exec, 1
    ds_add_u32 v3, v4
    s_mov_b64 exec, -1
    s_mul_i32 s40, s30, {NQT*768}
    v_lshlrev_b32 v{VK}, 3, v0
    v_add_u32 v{VK}, s40, v{VK}
    v_add_u32 v{VK2}, 768, v{VK}
    s_mul_i32 s40, s30, {NQT*672}
    s_add_u32 s40, s40, {VL}
    v_mul_u32_u24 v6, 336, v2
    v_add_u32 v6, s40, v6
    v_lshl_add_u32 v{VV0}, v1, 4, v6
    v_add_u32 v7, 16, v1
    v_min_u32 v7, 20, v7
    v_lshl_add_u32 v{VV1}, v7, 4, v6
    s_mul_i32 s41, s34, 3
    v_lshrrev_b32 v6, 1, v2
    v_add_u32 v6, s41, v6
    v_lshrrev_b32 v7, 2, v6
    v_lshlrev_b32 v7, 12, v7
    v_and_b32 v8, 3, v6
    v_lshl_add_u32 v7, v8, 8, v7
    v_and_b32 v8, 1, v2
    v_lshl_add_u32 v7, v8, 10, v7
    v_lshl_add_u32 v{VO1}, v1, 4, v7
    s_add_u32 s41, s41, 2
    s_lshr_b32 s42, s41, 2
    s_lshl_b32 s42, s42, 12
    s_and_b32 s43, s41, 3
    s_lshl_b32 s43, s43, 8
    s_add_u32 s42, s42, s43
    v_lshl_add_u32 v7, v2, 10, s42
    v_lshl_add_u32 v{VO2}, v1, 4, v7
    v_mov_b32 v13, 0x80000000
    v_cmp_gt_u32 vcc, 2, v2
    v_cndmask_b32 v{VO2}, v13, v{VO2}, vcc
    s_lshr_b32 s42, s36, 6
    s_mul_i32 s42, s42, {24*4096}
    s_add_u32 s42, s42, {WS_OP}
    v_lshlrev_b32 v8, 2, v2
    v_sub_u32 v8, v1, v8''')
    for r in range(4):
        A(f'    v_cmp_gt_i32 s[{44+2*r}:{45+2*r}], {r}, v8')
    A(f'''
    v_mov_b32 v14, 0xff800000
    v_cmp_eq_u32 s[54:55], 1, v2
    v_cmp_lt_u32 s[52:53], 0, v2
    s_cmp_eq_u32 s30, 0
    s_cbranch_scc0 K2_nopad
    v_mov_b32 v8, 0
    v_lshlrev_b32 v9, 2, v0
    ds_write_b32 v9, v8 offset:24576
K2_nopad:''')
    stamp(A, opts, 3)
    A(f'''
    v_mov_b32 v9, 0xf149
    v_mov_b32 v3, {CK}
    v_mov_b32 v4, 1
    s_waitcnt vmcnt(0) lgkmcnt(0)
    s_mov_b64 exec, 1
    ds_add_u32 v3, v4
    s_mov_b64 exec, -1''')
    for t in range(NQT):
        q = Q + 4 * t
        A(f'''
    v_cndmask_b32 v{q+2}, v{q+2}, 0, s[52:53]
    v_cndmask_b32 v{q+3}, v{q+3}, 0, s[52:53]
    v_cndmask_b32 v{q+2}, v{q+2}, v9, s[54:55]''')
    A(f'''
K2_kwait:
    ds_read_b32 v4, v3
    s_waitcnt lgkmcnt(0)
    v_readfirstlane_b32 s58, v4
    s_cmp_lt_u32 s58, {NAW}
    s_cbranch_scc1 K2_kwait''')
    stamp(A, opts, 4)
    def sa(st, q, t): return SA + 16 * st + 8 * q + 4 * t
    def kb(st, t): return KB + 8 * st + 4 * t
    def vb(st, d): return VB + 8 * st + 4 * d
    def loads(st):
        return [f'    ds_read2st64_b64 {vr(kb(st,0),4)}, v{VK} offset0:0 offset1:1',
                f'    ds_read2st64_b64 {vr(kb(st,1),4)}, v{VK2} offset0:0 offset1:1',
                f'    ds_read_b128 {vr(vb(st,0),4)}, v{VV0}',
                f'    ds_read_b128 {vr(vb(st,1),4)}, v{VV1}']
    def adv(n=1):
        return [f'    v_add_u32 v{VK}, {1536*n & 0xffffffff}, v{VK}', f'    v_add_u32 v{VK2}, {1536*n & 0xffffffff}, v{VK2}',
                f'    v_add_u32 v{VV0}, {1344*n & 0xffffffff}, v{VV0}', f'    v_add_u32 v{VV1}, {1344*n & 0xffffffff}, v{VV1}']
    def skip(q, T): return (q == 0 and T == 17) or (q == 1 and T == 0)
    def smfma(st, bb):
        return [f'    v_mfma_f32_16x16x32_bf16 {vr(sa(st,q,t),4)}, {vr(kb(st,t),4)}, {vr(Q+4*q,4)}, 0'
                for q in range(2) for t in range(2) if not skip(q, 2 * bb + t)]
    def masks(q, T, v):
        L = []
        if (q == 0 and T == 0) or (q == 1 and T == 1):
            L += [f'    v_cndmask_b32 v{v+r}, v14, v{v+r}, s[{44+2*r}:{45+2*r}]' for r in range(4)]
        if (q == 0 and T == 16) or (q == 1 and T == 17):
            L += [f'    v_cndmask_b32 v{v+r}, v{v+r}, v14, s[{44+2*r}:{45+2*r}]' for r in range(4)]
        return L
    def packpv(st, bb, q):
        L = []
        p = sa(st, q, 0)
        for t in range(2):
            v = sa(st, q, t)
            if skip(q, 2 * bb + t):
                L += [f'    v_mov_b32 v{p+2*t}, 0', f'    v_mov_b32 v{p+2*t+1}, 0']
            else:
                L += [f'    v_cvt_pk_bf16_f32 v{p+2*t}, v{v}, v{v+1}', f'    v_cvt_pk_bf16_f32 v{p+2*t+1}, v{v+2}, v{v+3}']
        M = []
        for d in range(2):
            o = O + 8 * q + 4 * d
            M.append(f'    v_mfma_f32_16x16x32_bf16 {vr(o,4)}, {vr(vb(st,d),4)}, {vr(p,4)}, {vr(o,4)}')
        return L, M
    def body(st, bb, has_next):
        nx = st ^ 1
        if has_next:
            for l in adv(): A(l)
            for l in loads(nx): A(l)
        def valu(q):
            L = []
            for t in range(2):
                T = 2 * bb + t; v = sa(st, q, t)
                if skip(q, T): continue
                L += masks(q, T, v)
                L += [f'    v_exp_f32 v{v+r}, v{v+r}' for r in range(4)]
            return L
        for l in valu(0): A(l)
        P0, M0 = packpv(st, bb, 0)
        for l in P0: A(l)
        v1 = valu(1)
        ms = list(M0)
        if has_next:
            ms = ms + ['    s_waitcnt lgkmcnt(0)'] + smfma(nx, bb + 1)
        i = 0
        for l in v1:
            A(l)
            if i < len(ms):
                A(ms[i]); i += 1
                if i < len(ms) and ms[i - 1].strip().startswith('s_waitcnt'):
                    A(ms[i]); i += 1
        while i < len(ms):
            A(ms[i]); i += 1
        P1, M1 = packpv(st, bb, 1)
        for l in P1: A(l)
        for l in M1: A(l)
    A('    s_mov_b32 s60, 0')
    A('K2_pair:')
    for r in range(16): A(f'    v_mov_b32 v{O+r}, 0')
    for l in loads(0): A(l)
    A('    s_waitcnt lgkmcnt(0)')
    for l in smfma(0, 0): A(l)
    body(0, 0, True)
    A('    s_mov_b32 s58, 0')
    A('K2_floop:')
    body(1, 1, True)
    body(0, 2, True)
    A('''
    s_add_u32 s58, s58, 1
    s_cmp_lt_u32 s58, 3
    s_cbranch_scc1 K2_floop''')
    body(1, 7, True)
    body(0, 8, False)
    def lbcast():
        A(f'''
    v_mov_b32 v3, v{O+4}
    v_mov_b32 v4, v{O+4}
    v_permlane16_swap_b32 v4, v3
    v_mov_b32 v4, v3
    v_permlane32_swap_b32 v4, v3
    v_mov_b32 v5, v{O+12}
    v_mov_b32 v6, v{O+12}
    v_permlane16_swap_b32 v6, v5
    v_mov_b32 v6, v5
    v_permlane32_swap_b32 v6, v5''')
    lbcast()
    A(f'''
    v_min_f32 v7, v4, v6
    v_max_f32 v8, v4, v6
    s_mov_b32 s61, 0x17800000          ; 2^-80
    s_mov_b32 s62, 0x5d800000          ; 2^60
    v_cmp_nle_f32 vcc, s61, v7
    s_mov_b64 s[56:57], vcc
    v_cmp_nge_f32 vcc, s62, v8
    s_or_b64 s[56:57], s[56:57], vcc
    s_cmp_lg_u64 s[56:57], 0
    s_cbranch_scc1 K2_fallback
K2_fin:
    v_rcp_f32 v4, v4
    v_rcp_f32 v6, v6
    v_mul_f32 v4, v4, v{G}
    v_mul_f32 v6, v6, v{G+1}''')
    for q in range(2):
        o = O + 8 * q; sc = 4 if q == 0 else 6
        for r in range(8): A(f'    v_mul_f32 v{o+r}, v{o+r}, v{sc}')
    oa = O; ob = O + 8
    A(f'''
    v_cvt_pk_bf16_f32 v16, v{oa}, v{oa+1}
    v_cvt_pk_bf16_f32 v17, v{oa+2}, v{oa+3}
    v_cvt_pk_bf16_f32 v18, v{ob}, v{ob+1}
    v_cvt_pk_bf16_f32 v19, v{ob+2}, v{ob+3}
    v_cvt_pk_bf16_f32 v20, v{oa+4}, v{oa+5}
    v_cvt_pk_bf16_f32 v21, v{oa+6}, v{oa+7}
    v_cvt_pk_bf16_f32 v24, v{ob+4}, v{ob+5}
    v_cvt_pk_bf16_f32 v25, v{ob+6}, v{ob+7}
    v_mov_b32 v22, 0
    v_mov_b32 v23, 0
    v_permlane16_swap_b32 v16, v18
    v_permlane16_swap_b32 v17, v19
    v_permlane16_swap_b32 v20, v24
    v_permlane16_swap_b32 v21, v25
    buffer_store_dwordx4 v[16:19], v{VO1}, s[16:19], s42 offen sc1
    buffer_store_dwordx4 v[20:23], v{VO2}, s[16:19], s42 offen sc1
    s_add_u32 s42, s42, 2048
    s_add_u32 s60, s60, 1
    s_cmp_ge_u32 s60, 2
    s_cbranch_scc1 K2_attn_end''')
    for l in adv(-7): A(l)
    for r in range(8): A(f'    v_mov_b32 v{Q+r}, v{Q+8+r}')
    A(f'''
    v_mov_b32 v{G}, v{G+2}
    v_mov_b32 v{G+1}, v{G+3}
    s_branch K2_pair
K2_attn_end:''')
    stamp(A, opts, 5)
    A(f'''
    s_lshr_b32 s58, s36, 6
    s_lshl_b32 s58, s58, 5
    s_add_u32 s58, s58, s34
    s_lshl_b32 s58, s58, 2
    s_add_u32 s58, s58, {WS_FLAG2}
    v_mov_b32 v3, s58
    v_mov_b32 v4, 1
    s_waitcnt vmcnt(0)
    s_mov_b64 exec, 1
    buffer_store_dword v4, v3, s[16:19], 0 offen sc1
    s_mov_b64 exec, -1''')
    if opts.get('wo_attn', 0): gen_wo(A, opts)
    else:
        if opts.get('prof'):
            A('    s_waitcnt vmcnt(0)')
            stamp(A, opts, 7)
            stamp_flush(A, opts)
        A('    s_branch KF_done')
    A('K2_fallback:')
    for l in adv(-8): A(l)
    A('    v_mov_b32 v10, 0xff7fffff\n    v_mov_b32 v11, 0xff7fffff')
    for r in range(16): A(f'    v_mov_b32 v{O+r}, 0')
    for bb in range(9):
        for l in loads(0): A(l)
        if bb < 8:
            for l in adv(): A(l)
        A('    s_waitcnt lgkmcnt(0)')
        for l in smfma(0, bb): A(l)
        A('    s_nop 7')
        for q in range(2):
            vals = []
            for t in range(2):
                T = 2 * bb + t; v = sa(0, q, t)
                if skip(q, T): continue
                for l in masks(q, T, v): A(l)
                vals += [v + r for r in range(4)]
            m = 10 + q
            A(f'    v_mov_b32 v5, v{m}')
            for v in vals: A(f'    v_max_f32 v5, v5, v{v}')
            A(f'''
    v_mov_b32 v6, v5
    v_permlane16_swap_b32 v6, v5
    v_max_f32 v5, v5, v6
    v_mov_b32 v6, v5
    v_permlane32_swap_b32 v6, v5
    v_max_f32 v5, v5, v6
    v_sub_f32 v6, v{m}, v5
    v_exp_f32 v6, v6
    v_mov_b32 v{m}, v5''')
            o = O + 8 * q
            for r in range(8): A(f'    v_mul_f32 v{o+r}, v{o+r}, v6')
            for v in vals:
                A(f'    v_sub_f32 v{v}, v{v}, v5')
                A(f'    v_exp_f32 v{v}, v{v}')
            P, M = packpv(0, bb, q)
            for l in P + M: A(l)
            A('    s_nop 7')
    A('    s_nop 7')
    lbcast()
    A('    s_branch K2_fin')

ACC = 16
RB = 96
VL16 = 240; VL16B = 241; GM = 12
CG = C1 + 12; CF = C1 + 16
def acc(u, mt): return ACC + (u * 4 + mt) * 4
def aslot(s, mt): return RB + 36 * s + 4 * mt
def wslot(s, u): return RB + 36 * s + 16 + 4 * u
def loadsA(slot, sc=''):
    L = [f'    buffer_load_dwordx4 {vr(aslot(slot,mt),4)}, v{VL16}, s[16:19], s41 offen offset:{mt*1024}{sc}' for mt in range(4)]
    L[-1] += '\n    s_add_u32 s41, s41, 4096'
    return L
def loadsW(slot):
    L = [f'    buffer_load_dwordx4 {vr(wslot(slot,u),4)}, v{VL16}, s[16:19], s42 offen offset:{u*1024}' for u in range(4)]
    L.append(f'    buffer_load_dwordx4 {vr(wslot(slot,4),4)}, v{VL16B}, s[16:19], s42 offen\n    s_add_u32 s42, s42, 40960')
    return L
def gstep(A, slot, loads, wait, first=False):
    A(f'    s_waitcnt vmcnt({wait})')
    li = 0; k = 0
    for u in range(5):
        for mt in range(4):
            d = vr(acc(u, mt), 4)
            c = '0' if first else d
            A(f'    v_mfma_f32_16x16x32_bf16 {d}, {vr(wslot(slot,u),4)}, {vr(aslot(slot,mt),4)}, {c}')
            k += 1
            if k % 2 == 0 and li < len(loads):
                A(loads[li]); li += 1
    while li < len(loads):
        A(loads[li]); li += 1
def gemm_ids(A, wsub, opts={}):
    if opts.get('gmap', 1) == 0:
        gm = '''s_and_b32 s34, s32, 3
    s_lshl_b32 s35, s31, 2
    s_add_u32 s34, s34, s35
    s_lshr_b32 s35, s32, 2'''
    else:
        gm = '''s_lshr_b32 s34, s31, 1
    s_lshl_b32 s34, s34, 3
    s_and_b32 s35, s32, 7
    s_add_u32 s34, s34, s35
    s_and_b32 s35, s31, 1
    s_lshl_b32 s35, s35, 2
    s_lshr_b32 s46, s32, 3
    s_add_u32 s35, s35, s46'''
    A(f'''
    s_sub_u32 s33, s30, {wsub}
    {gm}
    s_lshl_b32 s36, s34, 6             ; row0
    s_mul_i32 s43, s35, 5
    v_lshlrev_b32 v{VL16}, 4, v0
    v_add_u32 v{VL16B}, 4096, v{VL16}''')

def gen_gemm(A, opts):
    A('    s_barrier')
    gemm_ids(A, 4, opts)
    A(f'''
    s_mul_i32 s41, s34, 48
    s_mul_i32 s42, s33, 12
    s_add_u32 s41, s41, s42
    s_lshl_b32 s41, s41, 12
    s_add_u32 s41, s41, {WS_H}
    s_mul_i32 s42, s42, 40
    s_add_u32 s42, s42, s43
    s_lshl_b32 s42, s42, 10
    s_add_u32 s42, s42, {WS_W2F}
    s_lshl_b32 s40, s36, 2
    s_add_u32 s40, s40, {WS_G}
    v_lshlrev_b32 v3, 2, v1''')
    stamp(A, opts, 3)
    for mt in range(4):
        A(f'    buffer_load_dword v{GM+mt}, v3, s[16:19], s40 offen offset:{64*mt}')
    gd = opts.get('gdelay', 2)
    if gd:
        wait_lds(A, 'K2_gwait', CK if gd == 1 else C1, 4)
    for sl in range(3):
        for l in loadsW(sl) + loadsA(sl): A(l)
    stamp(A, opts, 4)
    gstep(A, 0, loadsA(3) + loadsW(3), 18, first=True)
    for sl in range(1, 4):
        gstep(A, sl, loadsA((sl + 3) % 4) + loadsW((sl + 3) % 4), 18)
    for sl in range(4):
        gstep(A, sl, loadsA((sl + 3) % 4) + loadsW((sl + 3) % 4), 18)
    gstep(A, 0, loadsA(3) + loadsW(3), 18)
    gstep(A, 1, [], 18)
    gstep(A, 2, [], 9)
    gstep(A, 3, [], 0)
    stamp(A, opts, 5)
    for mt in range(4):
        A(f'    v_sub_f32 v{GM+mt}, 1.0, v{GM+mt}')
    A(f'''
    s_mul_i32 s39, s33, 20480
    s_add_u32 s39, s39, {RED0}
    v_add_u32 v4, s39, v{VL16}
    s_nop 4''')
    for u in range(5):
        for mt in range(4):
            for r in range(4):
                a0 = acc(u, mt) + r
                A(f'    v_mul_f32 v{a0}, v{a0}, v{GM+mt}')
            A(f'    ds_write_b128 v4, {vr(acc(u,mt),4)} offset:{(mt*5+u)*1024}')
    A(f'''
    v_mov_b32 v3, {CG}
    v_mov_b32 v4, 1
    s_waitcnt lgkmcnt(0)
    s_mov_b64 exec, 1
    ds_add_u32 v3, v4
    s_mov_b64 exec, -1''')
    wait_lds(A, 'K2_cg', CG, 4, 1)
    A(f'''
    s_mul_i32 s45, s33, 5120
    s_add_u32 s45, s45, {RED0}
    v_add_u32 v4, s45, v{VL16}
    v_add_u32 v8, {2*20480}, v4''')
    T = RB
    for w in range(4):
        for u in range(5):
            A(f'    ds_read_b128 {vr(T+(w*5+u)*4,4)}, v{4 if w < 2 else 8} offset:{(w%2)*20480 + u*1024}')
    A('    s_waitcnt lgkmcnt(0)')
    for u in range(5):
        for r in range(4):
            t0 = T + u * 4 + r
            A(f'''
    v_add_f32 v{t0}, v{t0}, v{t0+20}
    v_add_f32 v{t0+40}, v{t0+40}, v{t0+60}
    v_add_f32 v{t0}, v{t0}, v{t0+40}''')
    A(f'''
    s_mul_i32 s45, s33, 5120
    s_add_u32 s45, s45, s39
    v_add_u32 v4, s45, v{VL16}''')
    for u in range(5):
        A(f'    ds_write_b128 v4, {vr(T+u*4,4)} offset:{u*1024}')
    A(f'''
    v_mov_b32 v3, {CF}
    v_mov_b32 v4, 1
    s_waitcnt lgkmcnt(0)
    s_mov_b64 exec, 1
    ds_add_u32 v3, v4
    s_waitcnt lgkmcnt(0)
    s_mov_b64 exec, -1''')
    if opts.get('prof'):
        stamp(A, opts, 7)
        stamp_flush(A, opts)

def final_reduce(A, opts):
    T = RB
    OSF = {0: '', 1: ' sc1', 2: ' nt'}[opts.get('osf', 0)]
    A(f'''
    s_mul_i32 s39, s33, 20480
    s_add_u32 s39, s39, {RED0}
    v_add_u32 v4, s39, v{VL16}
    s_nop 7''')
    for mt in range(4):
        A(f'    s_cmp_eq_u32 s33, {mt}\n    s_cbranch_scc1 K2_skipw{mt}')
        for u in range(5):
            A(f'    ds_write_b128 v4, {vr(acc(u,mt),4)} offset:{(mt*5+u)*1024}')
        A(f'    s_branch K2_donew{mt}')
        A(f'K2_skipw{mt}:')
        for u in range(5):
            for r in range(4):
                A(f'    v_mov_b32 v{T+60+u*4+r}, v{acc(u,mt)+r}')
        A(f'K2_donew{mt}:')
    A(f'''
    s_lshl_b32 s45, s33, 4
    s_add_u32 s45, s45, s36
    s_mul_i32 s45, s45, 1280
    s_mul_i32 s46, s35, 160
    s_add_u32 s45, s45, s46
    s_movk_i32 s37, 1280
    v_mul_lo_u32 v5, v1, s37
    v_and_b32 v6, 1, v2
    v_lshlrev_b32 v6, 5, v6
    v_lshrrev_b32 v7, 1, v2
    v_lshl_add_u32 v6, v7, 4, v6
    v_add_u32 v6, v6, v5
    v_lshl_add_u32 v7, v2, 3, v5
    s_mul_i32 s46, s33, 5120
    s_add_u32 s46, s46, {RED0}''')
    for k in range(1, 4):
        A(f'''
    s_add_u32 s47, s33, {k}
    s_and_b32 s47, s47, 3
    s_mul_i32 s47, s47, 20480
    s_add_u32 s47, s47, s46
    v_add_u32 v{8+k}, s47, v{VL16}''')
    A('    s_waitcnt lgkmcnt(0)\n    s_barrier')
    for k in range(1, 4):
        for u in range(5):
            A(f'    ds_read_b128 {vr(T+((k-1)*5+u)*4,4)}, v{8+k} offset:{u*1024}')
    for u in range(5):
        A(f'    s_waitcnt lgkmcnt({14 - (10 + u)})' if False else '')
    A('    s_waitcnt lgkmcnt(0)')
    for u in range(5):
        for r in range(4):
            t0 = T + u * 4 + r
            A(f'''
    v_add_f32 v{t0}, v{t0}, v{t0+20}
    v_add_f32 v{t0+40}, v{t0+40}, v{t0+60}
    v_add_f32 v{t0}, v{t0}, v{t0+40}''')
    P = 16
    for pp in range(2):
        t = P + 4 * pp; d0 = T + 8 * pp; d1 = T + 8 * pp + 4
        A(f'''
    v_cvt_pk_bf16_f32 v{t}, v{d0}, v{d0+1}
    v_cvt_pk_bf16_f32 v{t+1}, v{d0+2}, v{d0+3}
    v_cvt_pk_bf16_f32 v{t+2}, v{d1}, v{d1+1}
    v_cvt_pk_bf16_f32 v{t+3}, v{d1+2}, v{d1+3}
    v_permlane16_swap_b32 v{t}, v{t+2}
    v_permlane16_swap_b32 v{t+1}, v{t+3}
    buffer_store_dwordx4 {vr(t,4)}, v6, s[20:23], s45 offen offset:{64*pp}{OSF}''')
    d0 = T + 16
    A(f'''
    v_cvt_pk_bf16_f32 v24, v{d0}, v{d0+1}
    v_cvt_pk_bf16_f32 v25, v{d0+2}, v{d0+3}
    buffer_store_dwordx2 v[24:25], v7, s[20:23], s45 offen offset:128{OSF}''')
    if opts.get('prof'):
        A('    s_waitcnt vmcnt(0)')
        stamp(A, opts, 7)
        stamp_flush(A, opts)

def gen_gemm_full(A, opts):
    gemm_ids(A, 4, opts)
    A(f'''
    s_waitcnt lgkmcnt(0)
    s_mov_b32 s16, s28
    s_mov_b32 s17, s29
    s_mov_b32 s18, {WS_END}
    s_mov_b32 s19, 0x00020000
    s_mov_b32 s92, s28
    s_mov_b32 s93, s29
    s_mov_b32 s94, {WS_PROF_END}
    s_mov_b32 s95, 0x00020000
    s_barrier
    s_mov_b32 s20, s90
    s_mov_b32 s21, s91
    s_mov_b32 s22, 2621440
    s_mov_b32 s23, 0x00020000
    s_mul_i32 s41, s34, 48
    s_mul_i32 s42, s33, 12
    s_add_u32 s41, s41, s42
    s_lshl_b32 s41, s41, 12
    s_add_u32 s41, s41, {WS_H}
    s_mul_i32 s42, s42, 40
    s_add_u32 s42, s42, s43
    s_lshl_b32 s42, s42, 10
    s_add_u32 s42, s42, {WS_W2F}
    s_lshl_b32 s40, s36, 2
    s_add_u32 s40, s40, {WS_G}
    v_lshlrev_b32 v3, 2, v1''')
    rot = opts.get('rot2', 0)
    if rot:
        A(f'''
    s_and_b32 s46, s34, 3
    s_mul_i32 s46, s46, 3
    s_mul_hi_u32 s47, s35, 0x55555556
    s_mul_i32 s47, s47, 3
    s_sub_u32 s47, s35, s47
    s_add_u32 s48, s46, s47
    s_lshl_b32 s46, s48, 12
    s_add_u32 s41, s41, s46
    s_mul_i32 s46, s48, 40960
    s_add_u32 s42, s42, s46''')
    WRAP = f'''
    s_add_u32 s48, s48, 1
    s_cmp_eq_u32 s48, 12
    s_cselect_b32 s46, {12*4096}, 0
    s_cselect_b32 s47, {12*40960}, 0
    s_cselect_b32 s48, 0, s48
    s_sub_u32 s41, s41, s46
    s_sub_u32 s42, s42, s47''' if rot else ''
    def stage_loads(sl, wfirst=False):
        L = (loadsW(sl) + loadsA(sl)) if wfirst else (loadsA(sl) + loadsW(sl))
        L[-1] += WRAP
        return L
    stamp(A, opts, 3)
    for mt in range(4):
        A(f'    buffer_load_dword v{GM+mt}, v3, s[16:19], s40 offen offset:{64*mt}')
    gd = opts.get('gdelay', 2)
    if gd:
        wait_lds(A, 'K2_gwait', CK if gd == 1 else C1, 4)
    for sl in range(3):
        for l in stage_loads(sl, True): A(l)
    stamp(A, opts, 4)
    gstep(A, 0, stage_loads(3), 18, first=True)
    for sl in range(1, 4):
        gstep(A, sl, stage_loads((sl + 3) % 4), 18)
    for sl in range(4):
        gstep(A, sl, stage_loads((sl + 3) % 4), 18)
    gstep(A, 0, stage_loads(3), 18)
    A(f'''
    s_mul_i32 s42, s33, 240
    s_add_u32 s42, s42, s43
    s_lshl_b32 s42, s42, 10
    s_add_u32 s42, s42, {WS_WOF}''')
    gstep(A, 1, loadsW(0), 18)
    gstep(A, 2, loadsW(1), 9 + 5)
    gstep(A, 3, loadsW(2), 5 + 5)
    stamp(A, opts, 5)
    for l in loadsW(3): A(l)
    for mt in range(4):
        A(f'    v_sub_f32 v{GM+mt}, 1.0, v{GM+mt}')
    A(f'''
    s_lshl_b32 s45, s34, 5
    s_lshl_b32 s46, s33, 3
    s_add_u32 s45, s45, s46
    s_lshl_b32 s45, s45, 2
    s_add_u32 s45, s45, {WS_FLAG2}
    s_mul_i32 s41, s34, 24
    s_mul_i32 s44, s33, 6
    s_add_u32 s41, s41, s44
    s_lshl_b32 s41, s41, 12
    s_add_u32 s41, s41, {WS_OP}
    s_nop 2''')
    for u in range(5):
        for mt in range(4):
            for r in range(4):
                a0 = acc(u, mt) + r
                A(f'    v_mul_f32 v{a0}, v{a0}, v{GM+mt}')
    poll_all(A, 'K2_s2', 's45', 2, opts.get('psleep2', 1))
    stamp(A, opts, 6)
    for sl in range(4):
        for l in loadsA(sl, ' sc1'): A(l)
    gstep(A, 0, [], 12)
    gstep(A, 1, loadsA(0, ' sc1') + loadsW(0), 8)
    gstep(A, 2, loadsA(1, ' sc1') + loadsW(1), 4 + 9)
    gstep(A, 3, [], 18)
    gstep(A, 0, [], 9)
    gstep(A, 1, [], 0)
    final_reduce(A, opts)

def gen_wo(A, opts):
    gemm_ids(A, 0, opts)
    A(f'''
    s_mov_b32 s20, s90
    s_mov_b32 s21, s91
    s_mov_b32 s22, 2621440
    s_mov_b32 s23, 0x00020000
    s_mul_i32 s42, s33, 240
    s_add_u32 s42, s42, s43
    s_lshl_b32 s42, s42, 10
    s_add_u32 s42, s42, {WS_WOF}''')
    for sl in range(4):
        for l in loadsW(sl): A(l)
    A(f'''
    s_lshl_b32 s45, s34, 5
    s_lshl_b32 s46, s33, 3
    s_add_u32 s45, s45, s46
    s_lshl_b32 s45, s45, 2
    s_add_u32 s45, s45, {WS_FLAG2}
    s_mul_i32 s41, s34, 24
    s_mul_i32 s44, s33, 6
    s_add_u32 s41, s41, s44
    s_lshl_b32 s41, s41, 12
    s_add_u32 s41, s41, {WS_OP}''')
    poll_all(A, 'K2_s2', 's45', 2, opts.get('psleep2', 1))
    stamp(A, opts, 6)
    for sl in range(4):
        for l in loadsA(sl, ' sc1'): A(l)
    gstep(A, 0, [], 12, first=True)
    stamp(A, opts, 3)
    gstep(A, 1, loadsA(0, ' sc1') + loadsW(0), 8)
    gstep(A, 2, loadsA(1, ' sc1') + loadsW(1), 4 + 9)
    gstep(A, 3, [], 18)
    gstep(A, 0, [], 9)
    gstep(A, 1, [], 0)
    stamp(A, opts, 1)
    wait_lds(A, 'K2_cf', CF, 4, 1)
    A(f'''
    s_mul_i32 s39, s33, 20480
    s_add_u32 s39, s39, {RED0}
    v_add_u32 v4, s39, v{VL16}
    s_mul_i32 s45, s33, 5120
    s_add_u32 s45, s45, s39
    v_add_u32 v5, s45, v{VL16}''')
    T = RB
    for mt in range(4):
        A(f'    s_cmp_eq_u32 s33, {mt}\n    s_cbranch_scc1 K2_skipw{mt}')
        for u in range(5):
            A(f'    ds_write_b128 v4, {vr(acc(u,mt),4)} offset:{(mt*5+u)*1024}')
        A(f'    s_branch K2_donew{mt}')
        A(f'K2_skipw{mt}:')
        for u in range(5):
            for r in range(4):
                A(f'    v_mov_b32 v{T+100+u*4+r}, v{acc(u,mt)+r}')
        A(f'K2_donew{mt}:')
    A('    s_waitcnt lgkmcnt(0)\n    s_barrier')
    stamp(A, opts, 2)
    A(f'''
    s_mul_i32 s45, s33, 5120
    s_add_u32 s45, s45, {RED0}
    v_add_u32 v4, s45, v{VL16}
    v_add_u32 v8, {2*20480}, v4''')
    for w in range(4):
        for u in range(5):
            A(f'    ds_read_b128 {vr(T+(w*5+u)*4,4)}, v{4 if w < 2 else 8} offset:{(w%2)*20480 + u*1024}')
    A(f'''
    s_lshl_b32 s45, s33, 4
    s_add_u32 s45, s45, s36
    s_mul_i32 s45, s45, 1280
    s_mul_i32 s46, s35, 160
    s_add_u32 s45, s45, s46
    s_movk_i32 s37, 1280
    v_mul_lo_u32 v5, v1, s37
    v_and_b32 v6, 1, v2
    v_lshlrev_b32 v6, 5, v6
    v_lshrrev_b32 v7, 1, v2
    v_lshl_add_u32 v6, v7, 4, v6
    v_add_u32 v6, v6, v5
    v_lshl_add_u32 v7, v2, 3, v5
    s_waitcnt lgkmcnt(0)''')
    for u in range(5):
        for r in range(4):
            t0 = T + u * 4 + r
            A(f'''
    v_add_f32 v{t0}, v{t0}, v{t0+20}
    v_add_f32 v{t0+40}, v{t0+40}, v{t0+60}
    v_add_f32 v{t0}, v{t0}, v{t0+100}
    v_add_f32 v{t0}, v{t0}, v{t0+40}''')
    P = 16
    for pp in range(2):
        t = P + 4 * pp; d0 = T + 8 * pp; d1 = T + 8 * pp + 4
        A(f'''
    v_cvt_pk_bf16_f32 v{t}, v{d0}, v{d0+1}
    v_cvt_pk_bf16_f32 v{t+1}, v{d0+2}, v{d0+3}
    v_cvt_pk_bf16_f32 v{t+2}, v{d1}, v{d1+1}
    v_cvt_pk_bf16_f32 v{t+3}, v{d1+2}, v{d1+3}
    v_permlane16_swap_b32 v{t}, v{t+2}
    v_permlane16_swap_b32 v{t+1}, v{t+3}
    buffer_store_dwordx4 {vr(t,4)}, v6, s[20:23], s45 offen offset:{64*pp}''')
    d0 = T + 16
    A(f'''
    v_cvt_pk_bf16_f32 v24, v{d0}, v{d0+1}
    v_cvt_pk_bf16_f32 v25, v{d0+2}, v{d0+3}
    buffer_store_dwordx2 v[24:25], v7, s[20:23], s45 offen offset:128''')
    if opts.get('prof'):
        A('    s_waitcnt vmcnt(0)')
        stamp(A, opts, 7)
        stamp_flush(A, opts)
    A('    s_branch KF_done')

def desc(name, vg):
    return f'''
.amdhsa_kernel {name}
  .amdhsa_next_free_vgpr {vg}
  .amdhsa_next_free_sgpr 102
  .amdhsa_accum_offset {vg}
  .amdhsa_group_segment_fixed_size 0
  .amdhsa_kernarg_size 80
  .amdhsa_user_sgpr_count 2
  .amdhsa_user_sgpr_kernarg_segment_ptr 1
  .amdhsa_system_sgpr_workgroup_id_x 1
.end_amdhsa_kernel
'''

if __name__ == '__main__':
    import sys
    out = sys.argv[1]
    opts = {}
    for kv in sys.argv[2:]:
        k, v = kv.split('=')
        opts[k] = int(v)
    HEADER = open('gated_mix__sliding_block__dense_activation_relu__prompt.s.ref').read().split('; Override launch')[0]
    o1 = dict(opts); o2 = dict(opts)
    if opts.get('prof') == 2: o1.pop('prof')
    a1 = Asm(); gen_k1(a1, o1)
    a2 = Asm(); gen_k2(a2, o2)
    txt = HEADER + f'; @launch kernel=k1_kernel grid=(256,1,1) block=(512,1,1) lds={LDS_BYTES}\n'
    if not opts.get('k1only'): txt += f'; @launch kernel=k2_kernel grid=(256,1,1) block=(512,1,1) lds={K2_LDS}\n'
    txt += '.amdgcn_target "amdgcn-amd-amdhsa--gfx950"\n.text\n'
    txt += '.globl k1_kernel\n.p2align 8\n.type k1_kernel,@function\n' + a1.fix() + '\n'
    txt += '.globl k2_kernel\n.p2align 8\n.type k2_kernel,@function\n' + a2.fix() + '\n'
    txt += '.section .rodata,"a"\n.p2align 6' + desc('k1_kernel', 232) + '.p2align 6' + desc('k2_kernel', 248)
    open(out, 'w').write(txt)
```

```python
from asmlib import *

WS_QK   = 0x000000
WS_VT   = 0x600000
WS_H    = 0x900000
WS_OP   = 0xF00000
WS_W2F  = 0x1200000
WS_WOF  = 0x13E0000
WS_G    = 0x14D0000
WS_FLAG2 = 0x14D2000
WS_ONES = 0x14D3000
WS_END  = 0x14D3100
WS_PROF = 0x1500000
WS_PROF_END = 0x1600000
LDS_BYTES = 163840
PK = 147456
C1 = 46336; CK = C1 + 4; CA = C1 + 8
KL = 0; VL = 24832; RED0 = 46592; K2_LDS = RED0 + 4*20480
KNAME = 'gated_mix__sliding_block__dense_activation_relu__prompt_kernel'

def stamp(A, opts, idx):
    if not opts.get('prof'): return
    A(f'    s_memtime s[{70+2*idx}:{71+2*idx}]')
    if idx == 0 or idx == 7:
        A(f'    s_memrealtime s[{86+2*(idx != 0)}:{87+2*(idx != 0)}]')

def stamp_flush(A, opts):
    if not opts.get('prof'): return
    A(f'''
    s_waitcnt lgkmcnt(0)
    s_lshl_b32 s96, s2, 4
    s_add_u32 s96, s96, s30
    s_lshl_b32 s96, s96, 7
    s_add_u32 s96, s96, {WS_PROF}
    v_mov_b32 v100, s96
    s_mov_b64 exec, 1''')
    for i in range(20):
        A(f'    v_mov_b32 v101, s{70+i}\n    buffer_store_dword v101, v100, s[92:95], 0 offen offset:{4*i}')
    A('    s_mov_b64 exec, -1')

def gen_k1(a, opts):
    A = a
    SF = {0: '', 1: ' sc1'}[opts.get('sf', 1)]
    A('k1_kernel:')
    A('''
    s_cmp_ge_u32 s2, 256
    s_cbranch_scc1 K1_done
    s_getpc_b64 s[60:61]''')
    stamp(A, opts, 0)
    A(f'''
    s_load_dwordx2 s[4:5], s[0:1], 0
    s_load_dwordx4 s[64:67], s[0:1], 8
    s_load_dwordx4 s[24:27], s[0:1], 32
    s_load_dwordx2 s[68:69], s[0:1], 48
    s_load_dwordx2 s[28:29], s[0:1], 72
    v_lshrrev_b32 v1, 6, v0
    v_and_b32 v0, 63, v0
    v_readfirstlane_b32 s30, v1
    s_and_b32 s31, s2, 7
    s_lshr_b32 s32, s2, 3
    s_and_b32 s33, s31, 1
    s_lshl_b32 s33, s33, 3
    s_and_b32 s34, s32, 7
    s_add_u32 s33, s33, s34
    s_lshr_b32 s34, s31, 1
    s_lshl_b32 s34, s34, 2
    s_lshr_b32 s35, s32, 3
    s_add_u32 s34, s34, s35
    s_lshl_b32 s40, s33, 7
    s_cmp_lt_u32 s34, 6
    s_cbranch_scc1 K1_sec_qk
    s_cmp_lt_u32 s34, 9
    s_cbranch_scc1 K1_sec_v
    s_mov_b32 s36, 2
    s_sub_u32 s37, s34, 9
    s_mul_i32 s37, s37, 14
    s_min_u32 s37, s37, 82
    s_lshl_b32 s38, s37, 5
    s_mov_b32 s39, 3072
    s_branch K1_sec_done
K1_sec_qk:
    s_mov_b32 s36, 0
    s_mul_i32 s37, s34, 14
    s_min_u32 s37, s37, 66
    s_lshl_b32 s38, s37, 5
    s_mov_b32 s39, 3840
    s_branch K1_sec_done
K1_sec_v:
    s_mov_b32 s36, 1
    s_sub_u32 s37, s34, 6
    s_mul_i32 s37, s37, 14
    s_min_u32 s37, s37, 26
    s_lshl_b32 s38, s37, 5
    s_add_u32 s38, s38, 2560
    s_mov_b32 s39, 3840
K1_sec_done:
    s_cmp_ge_u32 s30, 4
    s_cbranch_scc1 K1_loader
    ''')
    gen_p1_compute(A, opts, SF)
    gen_p1_loader(A, opts, SF)
    A('KF_p1done:')
    if opts.get('prof') == 1:
        stamp(A, opts, 6)
        A('    s_waitcnt vmcnt(0)')
        stamp(A, opts, 7); stamp_flush(A, opts)
    A('K1_done:\n    s_endpgm')

def gen_k2(a, opts):
    A = a
    A('k2_kernel:')
    A('''
    s_cmp_ge_u32 s2, 256
    s_cbranch_scc1 KF_done''')
    stamp(A, opts, 0)
    A(f'''
    s_load_dwordx2 s[90:91], s[0:1], 56
    s_load_dwordx2 s[28:29], s[0:1], 72
    v_lshrrev_b32 v1, 6, v0
    v_and_b32 v0, 63, v0
    v_readfirstlane_b32 s30, v1
    s_and_b32 s31, s2, 7
    s_lshr_b32 s32, s2, 3
    v_and_b32 v1, 15, v0
    v_lshrrev_b32 v2, 4, v0
    s_mov_b32 s97, 1
    s_cmp_eq_u32 s30, 0
    s_cbranch_scc0 K2_noinit
    v_mov_b32 v8, 0
    v_mov_b32 v9, {C1}
    ds_write_b32 v9, v8 offset:0
    ds_write_b32 v9, v8 offset:4
    ds_write_b32 v9, v8 offset:8
    ds_write_b32 v9, v8 offset:12
    ds_write_b32 v9, v8 offset:16
    ds_write_b32 v9, v8 offset:20
    ds_write_b32 v9, v8 offset:24
K2_noinit:
    s_cmp_ge_u32 s30, 4
    s_cbranch_scc1 K2_gemm''')
    fbk = gen_attn(A, opts)
    A('K2_gemm:')
    if opts.get('wo_attn', 0): gen_gemm(A, opts)
    else: gen_gemm_full(A, opts)
    A('KF_done:\n    s_endpgm')
    fbk()

def wait_lds(A, label, addr, val, sleep=2):
    A(f'''
    v_mov_b32 v8, {addr}
{label}:
    ds_read_b32 v9, v8
    s_waitcnt lgkmcnt(0)
    v_readfirstlane_b32 s58, v9
    s_cmp_lt_u32 s58, {val}
    s_cbranch_scc0 {label}_ok
    s_sleep {sleep}
    s_branch {label}
{label}_ok:''')

def poll_all(A, label, base, n_lanes_x4, sleep=1):
    A(f'''
    v_lshlrev_b32 v3, 4, v0
    v_mov_b32 v8, 0x80000000
    v_cmp_gt_u32 vcc, {n_lanes_x4}, v0
    v_cndmask_b32 v3, v8, v3, vcc
    s_mov_b64 s[56:57], vcc
{label}:
    buffer_load_dwordx4 v[4:7], v3, s[16:19], {base} offen sc1
    s_waitcnt vmcnt(0)
    v_xor_b32 v4, s97, v4
    v_xor_b32 v5, s97, v5
    v_xor_b32 v6, s97, v6
    v_xor_b32 v7, s97, v7
    v_or3_b32 v4, v4, v5, v6
    v_or_b32 v4, v4, v7
    v_cmp_ne_u32 vcc, 0, v4
    s_and_b64 vcc, vcc, s[56:57]
    s_cbranch_vccz {label}_ok
    s_sleep {sleep}
    s_branch {label}
{label}_ok:''')

def k1_srds(A, tag):
    A(f'''
    s_waitcnt lgkmcnt(0)
    s_mov_b32 s8, s4
    s_mov_b32 s9, s5
    s_mov_b32 s10, 2621440
    s_mov_b32 s11, 0x00020000
    s_mov_b32 s15, 0x00020000
    s_cmp_eq_u32 s36, 2
    s_cbranch_scc1 K1_srd_h{tag}
    s_mov_b32 s12, s64
    s_mov_b32 s13, s65
    s_mov_b32 s14, 2457600
    s_branch K1_srd_d{tag}
K1_srd_h{tag}:
    s_mov_b32 s12, s24
    s_mov_b32 s13, s25
    s_mov_b32 s14, 1966080
K1_srd_d{tag}:
    s_mov_b32 s16, s28
    s_mov_b32 s17, s29
    s_mov_b32 s18, {WS_END}
    s_mov_b32 s19, 0x00020000
    s_mov_b32 s92, s28
    s_mov_b32 s93, s29
    s_mov_b32 s94, {WS_PROF_END}
    s_mov_b32 s95, 0x00020000''')

def gen_p1_compute(A, opts, SF):
    ACC = 16
    def acc(uu, mt): return ACC + (uu * 4 + mt) * 4
    XS = [128, 172]; WSs = [144, 188]
    VAX = [216, 217]; VW = 218
    T = 128
    A(f'''
    s_and_b32 s41, s30, 1
    s_lshr_b32 s42, s30, 1
    v_and_b32 v1, 15, v0
    v_lshrrev_b32 v2, 4, v0
    v_and_b32 v3, 7, v1
    v_xor_b32 v3, v2, v3
    v_lshlrev_b32 v3, 4, v3
    v_lshl_add_u32 v3, v1, 7, v3
    s_lshl_b32 s43, s41, 13
    v_add_u32 v{VAX[0]}, s43, v3
    v_xor_b32 v{VAX[1]}, 64, v{VAX[0]}
    v_lshrrev_b32 v4, 2, v1
    v_and_b32 v5, 3, v0
    v_and_b32 v6, 1, v2
    v_lshl_or_b32 v6, v6, 2, v4
    v_lshl_add_u32 v7, v2, 3, v4
    v_lshlrev_b32 v7, 9, v7
    v_lshl_add_u32 v7, v5, 3, v7
    v_add_u32 v7, 16384, v7
    s_lshl_b32 s44, s42, 3
    s_add_u32 s45, s42, 6
    ''')
    for uu in range(7):
        if uu < 6: A(f'    s_add_u32 s46, s44, {uu}\n    v_xor_b32 v8, s46, v6')
        else:      A(f'    v_xor_b32 v8, s45, v6')
        A(f'    v_lshl_add_u32 v{VW+uu}, v8, 5, v7')
    if opts.get('cpf', 0):
        A(f'''
    s_cmp_lt_u32 s32, {opts.get('cpf')}
    s_cbranch_scc0 K1_nocpf
    s_cmp_lt_u32 s30, 3
    s_cbranch_scc0 K1_nocpf
    s_lshl_b32 s46, s30, 13
    v_lshlrev_b32 v10, 7, v0
    v_add_u32 v10, s46, v10
    global_load_dword v226, v10, s[60:61]
K1_nocpf:''')
    for r in range(ACC, ACC + 112):
        A(f'    v_mov_b32 v{r}, 0')
    def reads(st, ks):
        R = []
        for mt in range(4):
            R.append(f'    ds_read_b128 {vr(XS[st]+4*mt,4)}, v{VAX[ks]} offset:{mt*2048}')
        for uu in range(7):
            for t in range(2):
                R.append(f'    ds_read_b64_tr_b16 {vr(WSs[st]+4*uu+2*t,2)}, v{VW+uu} offset:{(32*ks+4*t)*512}')
        return R
    def phase(st, rd, swapped, extra=()):
        k = 0
        extra = list(extra)
        for uu in range(7):
            for mt in range(4):
                w = vr(WSs[st] + 4 * uu, 4); x = vr(XS[st] + 4 * mt, 4); d = vr(acc(uu, mt), 4)
                if swapped: A(f'    v_mfma_f32_16x16x32_bf16 {d}, {w}, {x}, {d}')
                else:       A(f'    v_mfma_f32_16x16x32_bf16 {d}, {x}, {w}, {d}')
                if k < len(rd): A(rd[k])
                elif extra: A(extra.pop(0))
                k += 1
        for e in extra: A(e)
    def mainloop(tag, swapped):
        A(f'''
    s_mov_b32 s46, 0
    s_mov_b32 s47, 0
    s_mov_b32 s50, 0xfffe8000
    s_mov_b32 s51, 49152
    s_barrier''')
        for l in reads(0, 0): A(l)
        A(f'K1_loop_{tag}:')
        A('''
    s_add_u32 s47, s47, 1
    s_cmp_eq_u32 s47, 3
    s_cselect_b32 s48, s50, s51
    s_cselect_b32 s47, 0, s47
    s_waitcnt lgkmcnt(0)''')
        upd = [f'    v_add_u32 v{r}, s48, v{r}' for r in VAX + [VW + i for i in range(7)]]
        phase(0, reads(1, 1), swapped, upd)
        A('''
    s_waitcnt lgkmcnt(0)
    s_barrier''')
        phase(1, reads(0, 0), swapped, ['    s_add_u32 s46, s46, 1', '    s_cmp_lt_u32 s46, 10'])
        A(f'''
    s_cbranch_scc1 K1_loop_{tag}
    s_waitcnt lgkmcnt(0)
    s_nop 7''')
        stamp(A, opts, 1)
    k1_srds(A, 'c')
    for r in range(9, 15): A(f'    v_mov_b32 v{r}, 0x80000000')
    A('''
    s_cmp_eq_u32 s36, 1
    s_cbranch_scc1 K1_main_v
    s_cmp_eq_u32 s36, 2
    s_cbranch_scc1 K1_pre_h''')
    A(f'''
    s_lshl_b32 s43, s41, 2
    s_lshr_b32 s46, s40, 4
    s_add_u32 s43, s43, s46
    s_mul_i32 s43, s43, 768
    v_lshlrev_b32 v3, 3, v1
    v_add_u32 v3, s43, v3
    s_mov_b32 s49, 52429
    s_mov_b32 s52, 98304
    s_mov_b32 s53, 0x3ea52b5c''')
    for uu in range(7):
        if uu < 6: A(f'    s_add_u32 s46, s44, {uu}')
        else:      A(f'    s_mov_b32 s46, s45')
        A(f'''
    s_add_u32 s46, s46, s37
    s_lshl_b32 s46, s46, 2
    v_add_u32 v4, s46, v2
    v_mul_lo_u32 v5, v4, s49
    v_lshrrev_b32 v5, 18, v5
    v_mul_u32_u24 v6, 5, v5
    v_sub_u32 v6, v4, v6
    v_mul_lo_u32 v5, v5, s52
    v_lshl_add_u32 v5, v6, 7, v5
    v_add_u32 v{8+uu}, v5, v3''')
    A('    s_branch K1_pre_done')
    A(f'''K1_pre_h:
    s_lshl_b32 s43, s33, 1
    s_add_u32 s43, s43, s41
    s_mul_i32 s43, s43, {48*4096}
    s_add_u32 s43, s43, {WS_H}
    s_add_u32 s56, s37, s44
    s_lshl_b32 s56, s56, 11
    s_add_u32 s56, s56, s43
    v_and_b32 v4, 1, v2
    v_lshlrev_b32 v4, 1, v4
    v_lshrrev_b32 v5, 1, v2
    v_add_u32 v4, v4, v5
    v_lshl_add_u32 v4, v4, 4, v1
    v_lshlrev_b32 v4, 4, v4
    s_add_u32 s57, s37, 6
    s_lshl_b32 s57, s57, 11
    s_add_u32 s57, s57, s43
    s_lshl_b32 s48, s42, 1
    v_add_u32 v5, s48, v5
    v_lshl_add_u32 v5, v5, 4, v1
    v_lshlrev_b32 v5, 4, v5
    v_and_b32 v6, 1, v2
    v_lshl_add_u32 v5, v6, 10, v5
K1_pre_done:''')
    mainloop('s', True)
    A('''
    s_cmp_eq_u32 s36, 2
    s_cbranch_scc1 K1_epi_h''')
    for uu in range(7):
        if uu < 6: A(f'    s_add_u32 s46, s44, {uu}')
        else:      A(f'    s_mov_b32 s46, s45')
        A(f'''
    s_add_u32 s46, s46, s37
    s_cmp_lt_u32 s46, 40
    s_cselect_b32 s54, s53, 1.0
    s_mov_b32 s55, s54''')
        for mt in range(4):
            d = acc(uu, mt); t = T + (uu * 4 + mt) * 2
            A(f'''
    v_pk_mul_f32 {vr(d,2)}, {vr(d,2)}, s[54:55]
    v_pk_mul_f32 {vr(d+2,2)}, {vr(d+2,2)}, s[54:55]
    v_cvt_pk_bf16_f32 v{t}, v{d}, v{d+1}
    v_cvt_pk_bf16_f32 v{t+1}, v{d+2}, v{d+3}
    buffer_store_dwordx2 {vr(t,2)}, v{8+uu}, s[16:19], 0 offen offset:{WS_QK + mt*768}{SF}''')
    A('    s_branch KF_p1done')
    A('K1_epi_h:')
    n = 0
    for pp in range(3):
        A(f'    s_add_u32 s49, s56, {pp*4096}')
        for mt in range(4):
            t = T + n * 4; n += 1
            d0 = acc(2 * pp, mt); d1 = acc(2 * pp + 1, mt)
            A(f'''
    v_cvt_pk_bf16_f32 v{t}, v{d0}, v{d0+1}
    v_cvt_pk_bf16_f32 v{t+1}, v{d0+2}, v{d0+3}
    v_cvt_pk_bf16_f32 v{t+2}, v{d1}, v{d1+1}
    v_cvt_pk_bf16_f32 v{t+3}, v{d1+2}, v{d1+3}
    v_pk_max_i16 v{t}, v{t}, 0
    v_pk_max_i16 v{t+1}, v{t+1}, 0
    v_pk_max_i16 v{t+2}, v{t+2}, 0
    v_pk_max_i16 v{t+3}, v{t+3}, 0
    v_permlane16_swap_b32 v{t}, v{t+2}
    v_permlane16_swap_b32 v{t+1}, v{t+3}
    buffer_store_dwordx4 {vr(t,4)}, v4, s[16:19], s49 offen offset:{1024*mt}{SF}''')
    for pm in range(2):
        t = T + n * 4; n += 1
        d0 = acc(6, 2 * pm); d1 = acc(6, 2 * pm + 1)
        A(f'''
    v_cvt_pk_bf16_f32 v{t}, v{d0}, v{d0+1}
    v_cvt_pk_bf16_f32 v{t+1}, v{d0+2}, v{d0+3}
    v_cvt_pk_bf16_f32 v{t+2}, v{d1}, v{d1+1}
    v_cvt_pk_bf16_f32 v{t+3}, v{d1+2}, v{d1+3}
    v_pk_max_i16 v{t}, v{t}, 0
    v_pk_max_i16 v{t+1}, v{t+1}, 0
    v_pk_max_i16 v{t+2}, v{t+2}, 0
    v_pk_max_i16 v{t+3}, v{t+3}, 0
    v_permlane16_swap_b32 v{t}, v{t+2}
    v_permlane16_swap_b32 v{t+1}, v{t+3}
    buffer_store_dwordx4 {vr(t,4)}, v5, s[16:19], s57 offen offset:{2048*pm}{SF}''')
    A('    s_branch KF_p1done')
    A('K1_main_v:')
    A(f'''
    s_lshl_b32 s43, s41, 1
    s_lshr_b32 s46, s40, 5
    s_add_u32 s43, s43, s46
    s_lshl_b32 s43, s43, 10
    s_add_u32 s43, s43, {WS_VT}
    v_lshlrev_b32 v3, 4, v0
    v_add_u32 v3, s43, v3''')
    for uu in range(7):
        if uu < 6: A(f'    s_add_u32 s46, s44, {uu}')
        else:      A(f'    s_mov_b32 s46, s45')
        A(f'''
    s_add_u32 s46, s46, s37
    s_lshl_b32 s46, s46, 16
    v_add_u32 v{8+uu}, s46, v3''')
    mainloop('n', False)
    for uu in range(7):
        for pa in range(2):
            t = T + (uu * 2 + pa) * 4
            d0 = acc(uu, 2 * pa); d1 = acc(uu, 2 * pa + 1)
            A(f'''
    v_cvt_pk_bf16_f32 v{t}, v{d0}, v{d0+1}
    v_cvt_pk_bf16_f32 v{t+1}, v{d0+2}, v{d0+3}
    v_cvt_pk_bf16_f32 v{t+2}, v{d1}, v{d1+1}
    v_cvt_pk_bf16_f32 v{t+3}, v{d1+2}, v{d1+3}
    buffer_store_dwordx4 {vr(t,4)}, v{8+uu}, s[16:19], 0 offen offset:{1024*pa}{SF}''')
    A('    s_branch KF_p1done')

def gen_p1_loader(A, opts, SF):
    A(f'''K1_loader:
    s_sub_u32 s41, s30, 4
    v_lshrrev_b32 v1, 3, v0
    v_and_b32 v2, 7, v0
    v_lshlrev_b32 v21, 4, v2
    v_xor_b32 v2, v2, v1
    v_lshlrev_b32 v2, 4, v2
    s_movk_i32 s43, 1280
    v_mul_lo_u32 v1, v1, s43
    v_add_u32 v2, v2, v1
    v_add_u32 v21, v21, v1
    v_lshrrev_b32 v4, 5, v0
    s_and_b32 s44, s41, 1
    s_lshr_b32 s45, s41, 1
    s_lshl_b32 s46, s44, 1
    s_lshl_b32 s47, s45, 2
    s_or_b32 s46, s46, s47
    v_or_b32 v5, s46, v4
    v_bfe_u32 v6, v0, 1, 4
    v_xor_b32 v6, v6, v5
    v_mul_lo_u32 v7, v4, s39
    v_lshl_add_u32 v7, v6, 5, v7
    v_and_b32 v8, 1, v0
    v_lshl_add_u32 v3, v8, 4, v7
    v_mov_b32 v9, 0x80000000
    v_cmp_le_u32 vcc, 14, v6
    v_cndmask_b32 v3, v3, v9, vcc
    s_lshl_b32 s50, s41, 5
    s_add_u32 s50, s50, s40
    s_mul_i32 s50, s50, 1280
    s_add_u32 s52, s44, s47
    s_lshl_b32 s53, s52, 1
    s_mul_i32 s51, s53, s39
    s_add_u32 s51, s51, s38
    s_lshl_b32 s54, s39, 2
    s_mul_i32 s55, s39, 12
    s_lshl_b32 s56, s39, 6
    s_lshl_b32 s57, s41, 12
    s_lshl_b32 s58, s52, 10
    s_add_u32 s58, s58, 16384
    s_mov_b32 s59, 0
    s_and_b32 s46, s32, 7
    s_lshr_b32 s47, s32, 3
    s_add_u32 s46, s46, s47
    s_and_b32 s46, s46, {opts.get('rotng', 1) - 1}
    s_mul_i32 s90, s46, {opts.get('rotr', 0)}
    s_lshl_b32 s46, s90, 7
    s_add_u32 s50, s50, s46
    s_mul_i32 s46, s90, s56
    s_add_u32 s51, s51, s46
    s_mul_i32 s91, s56, 10
    ''')
    def issue():
        A('    s_add_u32 s60, s59, s57\n    s_add_u32 s61, s59, s58')
        for jj in range(4):
            A(f'''
    s_add_u32 m0, s60, {jj*1024}
    s_add_u32 s62, s50, {jj*10240}
    buffer_load_dwordx4 v2, s[8:11], s62 offen lds''')
        A('    s_mov_b32 s62, s51')
        i = 0
        for b in range(4):
            for aa in range(2):
                A(f'    s_add_u32 m0, s61, {(2*aa+8*b)*1024}')
                if i > 0: A(f'    s_add_u32 s62, s62, {"s54" if aa == 1 else "s55"}')
                else: A('    s_nop 0')
                A('    buffer_load_dwordx4 v3, s[12:15], s62 offen lds')
                i += 1
        A(f'''
    s_add_u32 s50, s50, 128
    s_add_u32 s51, s51, s56
    s_add_u32 s90, s90, 1
    s_cmp_eq_u32 s90, 10
    s_cselect_b32 s46, 1280, 0
    s_cselect_b32 s47, s91, 0
    s_cselect_b32 s90, 0, s90
    s_sub_u32 s50, s50, s46
    s_sub_u32 s51, s51, s47
    s_add_u32 s59, s59, 49152
    s_cmp_eq_u32 s59, 147456
    s_cselect_b32 s59, 0, s59''')
    k1_srds(A, 'l')
    issue(); issue()
    A('    s_waitcnt vmcnt(12)\n    s_barrier')
    issue()
    A(f'''
    s_lshl_b32 s63, s2, 2
    s_add_u32 s63, s63, s41
    s_mul_hi_u32 s46, s63, 0x1999999a
    s_mul_i32 s47, s46, 10
    s_sub_u32 s47, s63, s47
    s_cmp_lt_u32 s46, 48
    s_cbranch_scc0 K1_pk_wo
    s_mov_b32 s20, s26
    s_mov_b32 s21, s27
    s_mov_b32 s22, 1966080
    s_mul_i32 s34, s46, 40960
    s_add_u32 s35, s34, {WS_W2F}
    s_lshl_b32 s46, s47, 7
    s_add_u32 s34, s34, s46
    v_mov_b32 v50, v21
    v_add_u32 v51, 10240, v21
    v_add_u32 v52, 20480, v21
    v_add_u32 v53, 30720, v21
    s_branch K1_pk_go
K1_pk_wo:
    s_mov_b32 s20, s66
    s_mov_b32 s21, s67
    s_mov_b32 s22, 819200
    s_sub_u32 s46, s46, 48
    s_mul_i32 s35, s46, 40960
    s_add_u32 s35, s35, {WS_WOF}
    s_lshl_b32 s34, s47, 7
    s_lshl_b32 s46, s46, 5
    v_lshrrev_b32 v54, 3, v0
    v_add_u32 v54, s46, v54
    s_mov_b32 s46, 0xaaaaaab
    v_and_b32 v55, 7, v0
    v_lshlrev_b32 v55, 4, v55
    v_mov_b32 v58, 0x80000000''')
    for jj in range(4):
        A(f'''
    v_mul_hi_u32 v56, v54, s46
    v_mul_u32_u24 v57, 24, v56
    v_sub_u32 v57, v54, v57
    v_mul_u32_u24 v56, 20, v56
    v_add_u32 v56, v56, v57
    v_mul_u32_u24 v56, 1280, v56
    v_add_u32 v56, v56, v55
    v_cmp_gt_u32 vcc, 20, v57
    v_cndmask_b32 v{50+jj}, v58, v56, vcc
    v_add_u32 v54, 8, v54''')
    A(f'''
K1_pk_go:
    s_mov_b32 s23, 0x00020000
    s_lshl_b32 s46, s47, 12
    s_add_u32 s35, s35, s46
    s_cmp_ge_u32 s63, 720
    s_cselect_b32 s35, 0x7f000000, s35
    s_cselect_b32 s34, 0x7f000000, s34
    s_add_u32 s46, s57, {PK}''')
    for jj in range(4):
        A(f'''
    s_add_u32 m0, s46, {jj*1024}
    s_nop 0
    buffer_load_dwordx4 v{50+jj}, s[20:23], s34 offen lds''')
    A('    s_waitcnt vmcnt(16)\n    s_barrier')
    issue()
    A('    s_waitcnt vmcnt(16)\n    s_barrier')
    issue()
    A('    s_waitcnt vmcnt(12)\n    s_barrier')
    A(f'''
    v_lshrrev_b32 v10, 4, v0
    v_bfe_u32 v11, v0, 2, 2
    v_lshl_add_u32 v10, v10, 3, v11
    v_lshlrev_b32 v10, 7, v10
    v_and_b32 v11, 3, v0
    v_lshl_add_u32 v10, v11, 3, v10
    s_add_u32 s46, s57, {PK}
    v_add_u32 v10, s46, v10
    v_lshlrev_b32 v11, 4, v0''')
    for u in range(4):
        for t in range(2):
            A(f'    ds_read_b64_tr_b16 {vr(24+4*u+2*t,2)}, v10 offset:{t*512 + u*32}')
    issue()
    A('    s_waitcnt lgkmcnt(0)')
    for u in range(4):
        A(f'    buffer_store_dwordx4 {vr(24+4*u,4)}, v11, s[16:19], s35 offen offset:{u*1024} sc1')
    A('    s_waitcnt vmcnt(16)\n    s_barrier')
    issue()
    A('    s_waitcnt vmcnt(16)\n    s_barrier')
    mp = opts.get('midpf', 0)
    if mp:
        A(f'''
    s_lshl_b32 s46, s32, 2
    s_add_u32 s46, s46, s41
    s_mul_i32 s46, s46, 192
    v_add_u32 v59, s46, v0
    v_lshlrev_b32 v60, 7, v59
    v_add_u32 v60, {WS_W2F}, v60
    v_mov_b32 v58, 0x80000000''')
        for n in range(3):
            A(f'''
    v_add_u32 v61, {64*n}, v59
    v_cmp_gt_u32 vcc, 23040, v61
    v_cndmask_b32 v{62+n}, v58, v60, vcc
    v_add_u32 v60, 8192, v60''')
    def tch(n):
        if mp: A(f'    buffer_load_dword v{66+n}, v{62+n}, s[16:19], 0 offen')
    if opts.get('midpf_early'): tch(0)
    issue()
    if not opts.get('midpf_early'): tch(0)
    A(f'    s_waitcnt vmcnt({12 + mp})\n    s_barrier')
    issue()
    tch(1)
    A(f'    s_waitcnt vmcnt({12 + 2*mp})\n    s_barrier')
    issue()
    tch(2)
    A(f'''
    s_lshr_b32 s34, s31, 1
    s_lshl_b32 s34, s34, 2
    s_lshr_b32 s35, s32, 3
    s_add_u32 s34, s34, s35
    s_lshl_b32 s44, s34, 3
    s_add_u32 s44, s44, s40
    s_lshl_b32 s45, s41, 1
    s_add_u32 s44, s44, s45
    s_mul_i32 s45, s44, 1280
    s_mov_b32 s20, s68
    s_mov_b32 s21, s69
    s_mov_b32 s22, 1280
    s_mov_b32 s23, 0x00020000
    v_lshlrev_b32 v10, 2, v0''')
    for j in range(5):
        A(f'    buffer_load_dword v{16+j}, v10, s[20:23], 0 offen offset:{256*j}')
    for rr in range(2):
        for j in range(5):
            A(f'    buffer_load_dword v{24+8*rr+j}, v10, s[8:11], s45 offen offset:{256*j + 1280*rr}')
    A(f'''
    v_mov_b32 v15, 0x80000000
    s_lshl_b32 s46, s2, 2
    s_add_u32 s46, s46, s41
    s_lshl_b32 s46, s46, 2
    v_lshrrev_b32 v11, 4, v0
    v_add_u32 v11, s46, v11
    v_mul_u32_u24 v11, 768, v11
    v_and_b32 v12, 15, v0
    v_lshl_add_u32 v11, v12, 3, v11
    v_add_u32 v11, {WS_QK + 32*98304 + 640}, v11
    v_mov_b32 v12, 0
    v_mov_b32 v13, 0
    buffer_store_dwordx2 v[12:13], v11, s[16:19], 0 offen{SF}
    s_add_u32 s46, s2, s41
    s_cmp_eq_u32 s46, 0
    s_cselect_b32 s46, 8, 0
    v_lshlrev_b32 v11, 4, v0
    v_add_u32 v11, {WS_ONES}, v11
    v_cmp_gt_u32 vcc, s46, v0
    v_cndmask_b32 v11, v15, v11, vcc
    v_mov_b32 v44, 0x3f803f80
    v_mov_b32 v45, 0x3f803f80
    v_mov_b32 v46, 0x3f803f80
    v_mov_b32 v47, 0x3f803f80
    buffer_store_dwordx4 v[44:47], v11, s[16:19], 0 offen{SF}
    s_cmp_eq_u32 s41, 0
    s_cselect_b32 s46, 4, 0
    s_lshl_b32 s47, s2, 4
    s_add_u32 s47, s47, {WS_FLAG2}
    v_lshl_add_u32 v11, v0, 2, s47
    v_cmp_gt_u32 vcc, s46, v0
    v_cndmask_b32 v11, v15, v11, vcc
    buffer_store_dword v12, v11, s[16:19], 0 offen{SF}
    s_waitcnt vmcnt({30 + 2*opts.get('midpf', 0)})
    s_barrier
    s_waitcnt vmcnt({18 + opts.get('midpf', 0)})
    s_barrier
    s_barrier
    s_waitcnt vmcnt(3)''')
    for rr in range(2):
        acc_ = 40 + rr
        A(f'    v_mov_b32 v{acc_}, 0')
        for j in range(5):
            A(f'    v_dot2c_f32_bf16 v{acc_}, v{16+j}, v{24+8*rr+j}')
    for rr in range(2):
        r = 40 + rr
        A(f'''
    v_add_f32_dpp v{r}, v{r}, v{r} quad_perm:[1,0,3,2] row_mask:0xf bank_mask:0xf
    v_add_f32_dpp v{r}, v{r}, v{r} quad_perm:[2,3,0,1] row_mask:0xf bank_mask:0xf
    v_add_f32_dpp v{r}, v{r}, v{r} row_half_mirror row_mask:0xf bank_mask:0xf
    v_add_f32_dpp v{r}, v{r}, v{r} row_mirror row_mask:0xf bank_mask:0xf
    v_mov_b32 v43, v{r}
    v_permlane16_swap_b32 v43, v{r}
    v_add_f32 v{r}, v{r}, v43
    v_mov_b32 v43, v{r}
    v_permlane32_swap_b32 v43, v{r}
    v_add_f32 v{r}, v{r}, v43''')
    A(f'''
    v_cmp_eq_u32 vcc, 1, v0
    v_cndmask_b32 v40, v40, v41, vcc
    v_mul_f32 v40, 0xbfb8aa3b, v40
    v_exp_f32 v40, v40
    v_add_f32 v40, 1.0, v40
    v_rcp_f32 v40, v40
    s_lshl_b32 s46, s44, 2
    s_add_u32 s46, s46, {WS_G}
    v_lshl_add_u32 v14, v0, 2, s46
    v_cmp_gt_u32 vcc, 2, v0
    v_cndmask_b32 v14, v15, v14, vcc
    buffer_store_dword v40, v14, s[16:19], 0 offen{SF}''')
    npf = opts.get('w2pf', 0)
    if npf:
        A(f'''
    s_lshl_b32 s46, s32, 2
    s_add_u32 s46, s46, s41
    s_mul_i32 s46, s46, 192
    v_add_u32 v59, s46, v0
    v_lshlrev_b32 v60, 7, v59
    v_add_u32 v60, {WS_W2F}, v60''')
        for n in range(npf):
            A(f'''
    v_add_u32 v61, {64*n}, v59
    v_cmp_gt_u32 vcc, 23040, v61
    v_cndmask_b32 v{62+n}, v15, v60, vcc
    buffer_load_dword v{66+n}, v{62+n}, s[16:19], 0 offen
    v_add_u32 v60, 8192, v60''')
    stamp(A, opts, 1)

def gen_attn(A, opts):
    NAW = 4
    SA = 16; KB = 48; VB = 64; Q = 80; O = 96; G = 112
    VK = 116; VK2 = 117; VV0 = 118; VV1 = 119; VO1 = 120; VO2 = 121
    NQT = 4; KPW = 6
    A(f'''
    {'s_setprio 2' if opts.get('prio', 1) else ''}
    s_lshr_b32 s59, s32, 2              ; qb
    s_lshl_b32 s33, s59, 8              ; Q0
    s_and_b32 s34, s32, 3
    s_lshl_b32 s35, s31, 2
    s_add_u32 s34, s34, s35             ; head
    s_add_u32 s35, s34, 32
    s_mul_i32 s35, s35, 98304
    s_mul_i32 s40, s33, 48
    s_add_u32 s35, s35, s40
    s_sub_u32 s35, s35, {256*48 - WS_QK}
    v_lshlrev_b32 v3, 4, v0
    s_mul_i32 s37, s30, {KPW*1024}
    s_add_u32 s35, s35, s37
    s_cmp_eq_u32 s59, 0
    s_cselect_b32 s38, 1, 0
    s_cmp_lt_u32 s30, {NAW//2}
    s_cselect_b32 s39, s38, 0
    s_waitcnt lgkmcnt(0)
    s_mov_b32 s16, s28
    s_mov_b32 s17, s29
    s_mov_b32 s18, {WS_END}
    s_mov_b32 s19, 0x00020000
    s_mov_b32 s92, s28
    s_mov_b32 s93, s29
    s_mov_b32 s94, {WS_PROF_END}
    s_mov_b32 s95, 0x00020000
    s_cmp_eq_u32 s39, 1
    s_cbranch_scc1 K2_kfill''')
    for j in range(KPW):
        A(f'''
    s_add_u32 m0, s37, {KL + j*1024}
    s_add_u32 s40, s35, {j*1024}
    buffer_load_dwordx4 v3, s[16:19], s40 offen lds''')
    A(f'''
    s_branch K2_kdone
K2_kfill:
    v_mov_b32 v5, 0
    v_mov_b32 v7, 0
    s_mul_i32 s40, s30, {KPW*64}
    v_add_u32 v8, s40, v0
    s_mov_b32 s41, 0x5555556''')
    for j in range(KPW):
        A(f'''
    v_mul_hi_u32 v9, v8, s41
    v_mul_u32_u24 v9, 48, v9
    v_sub_u32 v9, v8, v9
    v_cmp_le_u32 vcc, 40, v9
    v_mov_b32 v6, 0x3f80
    v_cndmask_b32 v6, 0, v6, vcc
    v_mov_b32 v4, v6
    v_lshlrev_b32 v9, 4, v8
    ds_write_b128 v9, v[4:7] offset:{KL}
    v_add_u32 v8, 64, v8''')
    A(f'''
K2_kdone:
    s_mul_i32 s36, s30, {NQT*16}
    s_add_u32 s36, s36, s33
    s_mul_i32 s35, s34, 98304
    s_mul_i32 s40, s36, 48
    s_add_u32 s35, s35, s40
    v_lshlrev_b32 v4, 3, v0
    v_lshlrev_b32 v5, 3, v1''')
    for t in range(NQT):
        A(f'    buffer_load_dwordx2 {vr(Q+4*t,2)}, v4, s[16:19], s35 offen offset:{WS_QK + t*768}')
        A(f'    buffer_load_dwordx2 {vr(Q+4*t+2,2)}, v5, s[16:19], s35 offen offset:{WS_QK + t*768 + 512}')
    A(f'''
    s_lshl_b32 s40, s36, 2
    s_add_u32 s40, s40, {WS_G}
    v_lshlrev_b32 v5, 2, v1''')
    for t in range(NQT):
        A(f'    buffer_load_dword v{G+t}, v5, s[16:19], s40 offen offset:{t*64}')
    A(f'''
    ; V gather: q = 64*(w+4j) + lane ; bg = q/21, d = q%21 ; blk = Q0/32 - 8 + bg/4 ; g = bg&3 ; n = 20*head + d
    s_lshl_b32 s40, s30, 6
    v_add_u32 v3, s40, v0
    s_mov_b32 s41, 0xc30c30d
    s_mul_i32 s43, s34, 20
    s_lshr_b32 s35, s33, 5
    s_sub_u32 s35, s35, 8
    v_mov_b32 v9, {WS_ONES}
    s_lshl_b32 s37, s30, 10''')
    for j in range(6):
        if j == 5: A('    s_cmp_eq_u32 s30, 0\n    s_cbranch_scc0 K2_vdone')
        A(f'''
    v_mul_hi_u32 v4, v3, s41
    v_mul_u32_u24 v5, 21, v4
    v_sub_u32 v5, v3, v5
    v_lshrrev_b32 v6, 2, v4
    v_add_u32 v6, s35, v6
    v_and_b32 v4, 3, v4
    v_add_u32 v7, s43, v5
    v_lshrrev_b32 v8, 4, v7
    v_lshl_add_u32 v6, v8, 6, v6
    v_lshl_add_u32 v6, v6, 2, v4
    v_and_b32 v7, 15, v7
    v_lshlrev_b32 v7, 4, v7
    v_lshl_add_u32 v6, v6, 8, v7
    v_add_u32 v6, {WS_VT}, v6
    v_cmp_eq_u32 vcc, 20, v5
    v_cndmask_b32 v6, v6, v9, vcc
    s_add_u32 m0, s37, {VL + j*4096}
    v_add_u32 v3, 256, v3
    buffer_load_dwordx4 v6, s[16:19], 0 offen lds''')
    A(f'''K2_vdone:
    s_barrier
    v_mov_b32 v3, {C1}
    v_mov_b32 v4, 1
    s_mov_b64 exec, 1
    ds_add_u32 v3, v4
    s_mov_b64 exec, -1
    s_mul_i32 s40, s30, {NQT*768}
    v_lshlrev_b32 v{VK}, 3, v0
    v_add_u32 v{VK}, s40, v{VK}
    v_add_u32 v{VK2}, 768, v{VK}
    s_mul_i32 s40, s30, {NQT*672}
    s_add_u32 s40, s40, {VL}
    v_mul_u32_u24 v6, 336, v2
    v_add_u32 v6, s40, v6
    v_lshl_add_u32 v{VV0}, v1, 4, v6
    v_add_u32 v7, 16, v1
    v_min_u32 v7, 20, v7
    v_lshl_add_u32 v{VV1}, v7, 4, v6
    s_mul_i32 s41, s34, 3
    v_lshrrev_b32 v6, 1, v2
    v_add_u32 v6, s41, v6
    v_lshrrev_b32 v7, 2, v6
    v_lshlrev_b32 v7, 12, v7
    v_and_b32 v8, 3, v6
    v_lshl_add_u32 v7, v8, 8, v7
    v_and_b32 v8, 1, v2
    v_lshl_add_u32 v7, v8, 10, v7
    v_lshl_add_u32 v{VO1}, v1, 4, v7
    s_add_u32 s41, s41, 2
    s_lshr_b32 s42, s41, 2
    s_lshl_b32 s42, s42, 12
    s_and_b32 s43, s41, 3
    s_lshl_b32 s43, s43, 8
    s_add_u32 s42, s42, s43
    v_lshl_add_u32 v7, v2, 10, s42
    v_lshl_add_u32 v{VO2}, v1, 4, v7
    v_mov_b32 v13, 0x80000000
    v_cmp_gt_u32 vcc, 2, v2
    v_cndmask_b32 v{VO2}, v13, v{VO2}, vcc
    s_lshr_b32 s42, s36, 6
    s_mul_i32 s42, s42, {24*4096}
    s_add_u32 s42, s42, {WS_OP}
    v_lshlrev_b32 v8, 2, v2
    v_sub_u32 v8, v1, v8''')
    for r in range(4):
        A(f'    v_cmp_gt_i32 s[{44+2*r}:{45+2*r}], {r}, v8')
    A(f'''
    v_mov_b32 v14, 0xff800000
    v_cmp_eq_u32 s[54:55], 1, v2
    v_cmp_lt_u32 s[52:53], 0, v2
    s_cmp_eq_u32 s30, 0
    s_cbranch_scc0 K2_nopad
    v_mov_b32 v8, 0
    v_lshlrev_b32 v9, 2, v0
    ds_write_b32 v9, v8 offset:24576
K2_nopad:''')
    stamp(A, opts, 3)
    A(f'''
    v_mov_b32 v9, 0xf149
    v_mov_b32 v3, {CK}
    v_mov_b32 v4, 1
    s_waitcnt vmcnt(0) lgkmcnt(0)
    s_mov_b64 exec, 1
    ds_add_u32 v3, v4
    s_mov_b64 exec, -1''')
    for t in range(NQT):
        q = Q + 4 * t
        A(f'''
    v_cndmask_b32 v{q+2}, v{q+2}, 0, s[52:53]
    v_cndmask_b32 v{q+3}, v{q+3}, 0, s[52:53]
    v_cndmask_b32 v{q+2}, v{q+2}, v9, s[54:55]''')
    A(f'''
K2_kwait:
    ds_read_b32 v4, v3
    s_waitcnt lgkmcnt(0)
    v_readfirstlane_b32 s58, v4
    s_cmp_lt_u32 s58, {NAW}
    s_cbranch_scc1 K2_kwait''')
    stamp(A, opts, 4)
    def sa(st, q, t): return SA + 16 * st + 8 * q + 4 * t
    def kb(st, t): return KB + 8 * st + 4 * t
    def vb(st, d): return VB + 8 * st + 4 * d
    def loads(st):
        return [f'    ds_read2st64_b64 {vr(kb(st,0),4)}, v{VK} offset0:0 offset1:1',
                f'    ds_read2st64_b64 {vr(kb(st,1),4)}, v{VK2} offset0:0 offset1:1',
                f'    ds_read_b128 {vr(vb(st,0),4)}, v{VV0}',
                f'    ds_read_b128 {vr(vb(st,1),4)}, v{VV1}']
    def adv(n=1):
        return [f'    v_add_u32 v{VK}, {1536*n & 0xffffffff}, v{VK}', f'    v_add_u32 v{VK2}, {1536*n & 0xffffffff}, v{VK2}',
                f'    v_add_u32 v{VV0}, {1344*n & 0xffffffff}, v{VV0}', f'    v_add_u32 v{VV1}, {1344*n & 0xffffffff}, v{VV1}']
    def skip(q, T): return (q == 0 and T == 17) or (q == 1 and T == 0)
    def smfma(st, bb):
        return [f'    v_mfma_f32_16x16x32_bf16 {vr(sa(st,q,t),4)}, {vr(kb(st,t),4)}, {vr(Q+4*q,4)}, 0'
                for q in range(2) for t in range(2) if not skip(q, 2 * bb + t)]
    def masks(q, T, v):
        L = []
        if (q == 0 and T == 0) or (q == 1 and T == 1):
            L += [f'    v_cndmask_b32 v{v+r}, v14, v{v+r}, s[{44+2*r}:{45+2*r}]' for r in range(4)]
        if (q == 0 and T == 16) or (q == 1 and T == 17):
            L += [f'    v_cndmask_b32 v{v+r}, v{v+r}, v14, s[{44+2*r}:{45+2*r}]' for r in range(4)]
        return L
    def packpv(st, bb, q):
        L = []
        p = sa(st, q, 0)
        for t in range(2):
            v = sa(st, q, t)
            if skip(q, 2 * bb + t):
                L += [f'    v_mov_b32 v{p+2*t}, 0', f'    v_mov_b32 v{p+2*t+1}, 0']
            else:
                L += [f'    v_cvt_pk_bf16_f32 v{p+2*t}, v{v}, v{v+1}', f'    v_cvt_pk_bf16_f32 v{p+2*t+1}, v{v+2}, v{v+3}']
        M = []
        for d in range(2):
            o = O + 8 * q + 4 * d
            M.append(f'    v_mfma_f32_16x16x32_bf16 {vr(o,4)}, {vr(vb(st,d),4)}, {vr(p,4)}, {vr(o,4)}')
        return L, M
    def body(st, bb, has_next):
        nx = st ^ 1
        if has_next:
            for l in adv(): A(l)
            for l in loads(nx): A(l)
        def valu(q):
            L = []
            for t in range(2):
                T = 2 * bb + t; v = sa(st, q, t)
                if skip(q, T): continue
                L += masks(q, T, v)
                L += [f'    v_exp_f32 v{v+r}, v{v+r}' for r in range(4)]
            return L
        for l in valu(0): A(l)
        P0, M0 = packpv(st, bb, 0)
        for l in P0: A(l)
        v1 = valu(1)
        ms = list(M0)
        if has_next:
            ms = ms + ['    s_waitcnt lgkmcnt(0)'] + smfma(nx, bb + 1)
        i = 0
        for l in v1:
            A(l)
            if i < len(ms):
                A(ms[i]); i += 1
                if i < len(ms) and ms[i - 1].strip().startswith('s_waitcnt'):
                    A(ms[i]); i += 1
        while i < len(ms):
            A(ms[i]); i += 1
        P1, M1 = packpv(st, bb, 1)
        for l in P1: A(l)
        for l in M1: A(l)
    A('    s_mov_b32 s60, 0')
    A('K2_pair:')
    for r in range(16): A(f'    v_mov_b32 v{O+r}, 0')
    for l in loads(0): A(l)
    A('    s_waitcnt lgkmcnt(0)')
    for l in smfma(0, 0): A(l)
    body(0, 0, True)
    A('    s_mov_b32 s58, 0')
    A('K2_floop:')
    body(1, 1, True)
    body(0, 2, True)
    A('''
    s_add_u32 s58, s58, 1
    s_cmp_lt_u32 s58, 3
    s_cbranch_scc1 K2_floop''')
    body(1, 7, True)
    body(0, 8, False)
    def lbcast():
        A(f'''
    v_mov_b32 v3, v{O+4}
    v_mov_b32 v4, v{O+4}
    v_permlane16_swap_b32 v4, v3
    v_mov_b32 v4, v3
    v_permlane32_swap_b32 v4, v3
    v_mov_b32 v5, v{O+12}
    v_mov_b32 v6, v{O+12}
    v_permlane16_swap_b32 v6, v5
    v_mov_b32 v6, v5
    v_permlane32_swap_b32 v6, v5''')
    lbcast()
    A(f'''
    v_min_f32 v7, v4, v6
    v_max_f32 v8, v4, v6
    s_mov_b32 s61, 0x17800000          ; 2^-80
    s_mov_b32 s62, 0x5d800000          ; 2^60
    v_cmp_nle_f32 vcc, s61, v7
    s_mov_b64 s[56:57], vcc
    v_cmp_nge_f32 vcc, s62, v8
    s_or_b64 s[56:57], s[56:57], vcc
    s_cmp_lg_u64 s[56:57], 0
    s_cbranch_scc1 K2_fallback
K2_fin:
    v_rcp_f32 v4, v4
    v_rcp_f32 v6, v6
    v_mul_f32 v4, v4, v{G}
    v_mul_f32 v6, v6, v{G+1}''')
    for q in range(2):
        o = O + 8 * q; sc = 4 if q == 0 else 6
        for r in range(8): A(f'    v_mul_f32 v{o+r}, v{o+r}, v{sc}')
    oa = O; ob = O + 8
    A(f'''
    v_cvt_pk_bf16_f32 v16, v{oa}, v{oa+1}
    v_cvt_pk_bf16_f32 v17, v{oa+2}, v{oa+3}
    v_cvt_pk_bf16_f32 v18, v{ob}, v{ob+1}
    v_cvt_pk_bf16_f32 v19, v{ob+2}, v{ob+3}
    v_cvt_pk_bf16_f32 v20, v{oa+4}, v{oa+5}
    v_cvt_pk_bf16_f32 v21, v{oa+6}, v{oa+7}
    v_cvt_pk_bf16_f32 v24, v{ob+4}, v{ob+5}
    v_cvt_pk_bf16_f32 v25, v{ob+6}, v{ob+7}
    v_mov_b32 v22, 0
    v_mov_b32 v23, 0
    v_permlane16_swap_b32 v16, v18
    v_permlane16_swap_b32 v17, v19
    v_permlane16_swap_b32 v20, v24
    v_permlane16_swap_b32 v21, v25
    buffer_store_dwordx4 v[16:19], v{VO1}, s[16:19], s42 offen sc1
    buffer_store_dwordx4 v[20:23], v{VO2}, s[16:19], s42 offen sc1
    s_add_u32 s42, s42, 2048
    s_add_u32 s60, s60, 1
    s_cmp_ge_u32 s60, 2
    s_cbranch_scc1 K2_attn_end''')
    for l in adv(-7): A(l)
    for r in range(8): A(f'    v_mov_b32 v{Q+r}, v{Q+8+r}')
    A(f'''
    v_mov_b32 v{G}, v{G+2}
    v_mov_b32 v{G+1}, v{G+3}
    s_branch K2_pair
K2_attn_end:''')
    stamp(A, opts, 5)
    A(f'''
    s_lshr_b32 s58, s36, 6
    s_lshl_b32 s58, s58, 5
    s_add_u32 s58, s58, s34
    s_lshl_b32 s58, s58, 2
    s_add_u32 s58, s58, {WS_FLAG2}
    v_mov_b32 v3, s58
    v_mov_b32 v4, 1
    s_waitcnt vmcnt(0)
    s_mov_b64 exec, 1
    buffer_store_dword v4, v3, s[16:19], 0 offen sc1
    s_mov_b64 exec, -1''')
    if opts.get('wo_attn', 0): gen_wo(A, opts)
    else:
        if opts.get('prof'):
            A('    s_waitcnt vmcnt(0)')
            stamp(A, opts, 7)
            stamp_flush(A, opts)
        A('    s_branch KF_done')
    def _fallback():
        A('K2_fallback:')
        for l in adv(-8): A(l)
        A('    v_mov_b32 v10, 0xff7fffff\n    v_mov_b32 v11, 0xff7fffff')
        for r in range(16): A(f'    v_mov_b32 v{O+r}, 0')
        for bb in range(9):
            for l in loads(0): A(l)
            if bb < 8:
                for l in adv(): A(l)
            A('    s_waitcnt lgkmcnt(0)')
            for l in smfma(0, bb): A(l)
            A('    s_nop 7')
            for q in range(2):
                vals = []
                for t in range(2):
                    T = 2 * bb + t; v = sa(0, q, t)
                    if skip(q, T): continue
                    for l in masks(q, T, v): A(l)
                    vals += [v + r for r in range(4)]
                m = 10 + q
                A(f'    v_mov_b32 v5, v{m}')
                for v in vals: A(f'    v_max_f32 v5, v5, v{v}')
                A(f'''
        v_mov_b32 v6, v5
        v_permlane16_swap_b32 v6, v5
        v_max_f32 v5, v5, v6
        v_mov_b32 v6, v5
        v_permlane32_swap_b32 v6, v5
        v_max_f32 v5, v5, v6
        v_sub_f32 v6, v{m}, v5
        v_exp_f32 v6, v6
        v_mov_b32 v{m}, v5''')
                o = O + 8 * q
                for r in range(8): A(f'    v_mul_f32 v{o+r}, v{o+r}, v6')
                for v in vals:
                    A(f'    v_sub_f32 v{v}, v{v}, v5')
                    A(f'    v_exp_f32 v{v}, v{v}')
                P, M = packpv(0, bb, q)
                for l in P + M: A(l)
                A('    s_nop 7')
        A('    s_nop 7')
        lbcast()
        A('    s_branch K2_fin')
    return _fallback

ACC = 16
RB = 96
VL16 = 240; VL16B = 241; GM = 12
CG = C1 + 12; CF = C1 + 16
def acc(u, mt): return ACC + (u * 4 + mt) * 4
def aslot(s, mt): return RB + 36 * s + 4 * mt
def wslot(s, u): return RB + 36 * s + 16 + 4 * u
def loadsA(slot, sc=''):
    L = [f'    buffer_load_dwordx4 {vr(aslot(slot,mt),4)}, v{VL16}, s[16:19], s41 offen offset:{mt*1024}{sc}' for mt in range(4)]
    L[-1] += '\n    s_add_u32 s41, s41, 4096'
    return L
def loadsW(slot):
    L = [f'    buffer_load_dwordx4 {vr(wslot(slot,u),4)}, v{VL16}, s[16:19], s42 offen offset:{u*1024}' for u in range(4)]
    L.append(f'    buffer_load_dwordx4 {vr(wslot(slot,4),4)}, v{VL16B}, s[16:19], s42 offen\n    s_add_u32 s42, s42, 40960')
    return L
def gstep(A, slot, loads, wait, first=False):
    A(f'    s_waitcnt vmcnt({wait})')
    li = 0; k = 0
    for u in range(5):
        for mt in range(4):
            d = vr(acc(u, mt), 4)
            c = '0' if first else d
            A(f'    v_mfma_f32_16x16x32_bf16 {d}, {vr(wslot(slot,u),4)}, {vr(aslot(slot,mt),4)}, {c}')
            k += 1
            if k % 2 == 0 and li < len(loads):
                A(loads[li]); li += 1
    while li < len(loads):
        A(loads[li]); li += 1
def gemm_ids(A, wsub, opts={}):
    if opts.get('gmap', 1) == 0:
        gm = '''s_and_b32 s34, s32, 3
    s_lshl_b32 s35, s31, 2
    s_add_u32 s34, s34, s35
    s_lshr_b32 s35, s32, 2'''
    else:
        gm = '''s_lshr_b32 s34, s31, 1
    s_lshl_b32 s34, s34, 3
    s_and_b32 s35, s32, 7
    s_add_u32 s34, s34, s35
    s_and_b32 s35, s31, 1
    s_lshl_b32 s35, s35, 2
    s_lshr_b32 s46, s32, 3
    s_add_u32 s35, s35, s46'''
    A(f'''
    s_sub_u32 s33, s30, {wsub}
    {gm}
    s_lshl_b32 s36, s34, 6             ; row0
    s_mul_i32 s43, s35, 5
    v_lshlrev_b32 v{VL16}, 4, v0
    v_add_u32 v{VL16B}, 4096, v{VL16}''')

def gen_gemm(A, opts):
    A('    s_barrier')
    gemm_ids(A, 4, opts)
    A(f'''
    s_mul_i32 s41, s34, 48
    s_mul_i32 s42, s33, 12
    s_add_u32 s41, s41, s42
    s_lshl_b32 s41, s41, 12
    s_add_u32 s41, s41, {WS_H}
    s_mul_i32 s42, s42, 40
    s_add_u32 s42, s42, s43
    s_lshl_b32 s42, s42, 10
    s_add_u32 s42, s42, {WS_W2F}
    s_lshl_b32 s40, s36, 2
    s_add_u32 s40, s40, {WS_G}
    v_lshlrev_b32 v3, 2, v1''')
    stamp(A, opts, 3)
    for mt in range(4):
        A(f'    buffer_load_dword v{GM+mt}, v3, s[16:19], s40 offen offset:{64*mt}')
    gd = opts.get('gdelay', 2)
    if gd:
        wait_lds(A, 'K2_gwait', CK if gd == 1 else C1, 4)
    for sl in range(3):
        for l in loadsW(sl) + loadsA(sl): A(l)
    stamp(A, opts, 4)
    gstep(A, 0, loadsA(3) + loadsW(3), 18, first=True)
    for sl in range(1, 4):
        gstep(A, sl, loadsA((sl + 3) % 4) + loadsW((sl + 3) % 4), 18)
    for sl in range(4):
        gstep(A, sl, loadsA((sl + 3) % 4) + loadsW((sl + 3) % 4), 18)
    gstep(A, 0, loadsA(3) + loadsW(3), 18)
    gstep(A, 1, [], 18)
    gstep(A, 2, [], 9)
    gstep(A, 3, [], 0)
    stamp(A, opts, 5)
    for mt in range(4):
        A(f'    v_sub_f32 v{GM+mt}, 1.0, v{GM+mt}')
    A(f'''
    s_mul_i32 s39, s33, 20480
    s_add_u32 s39, s39, {RED0}
    v_add_u32 v4, s39, v{VL16}
    s_nop 4''')
    for u in range(5):
        for mt in range(4):
            for r in range(4):
                a0 = acc(u, mt) + r
                A(f'    v_mul_f32 v{a0}, v{a0}, v{GM+mt}')
            A(f'    ds_write_b128 v4, {vr(acc(u,mt),4)} offset:{(mt*5+u)*1024}')
    A(f'''
    v_mov_b32 v3, {CG}
    v_mov_b32 v4, 1
    s_waitcnt lgkmcnt(0)
    s_mov_b64 exec, 1
    ds_add_u32 v3, v4
    s_mov_b64 exec, -1''')
    wait_lds(A, 'K2_cg', CG, 4, 1)
    A(f'''
    s_mul_i32 s45, s33, 5120
    s_add_u32 s45, s45, {RED0}
    v_add_u32 v4, s45, v{VL16}
    v_add_u32 v8, {2*20480}, v4''')
    T = RB
    for w in range(4):
        for u in range(5):
            A(f'    ds_read_b128 {vr(T+(w*5+u)*4,4)}, v{4 if w < 2 else 8} offset:{(w%2)*20480 + u*1024}')
    A('    s_waitcnt lgkmcnt(0)')
    for u in range(5):
        for r in range(4):
            t0 = T + u * 4 + r
            A(f'''
    v_add_f32 v{t0}, v{t0}, v{t0+20}
    v_add_f32 v{t0+40}, v{t0+40}, v{t0+60}
    v_add_f32 v{t0}, v{t0}, v{t0+40}''')
    A(f'''
    s_mul_i32 s45, s33, 5120
    s_add_u32 s45, s45, s39
    v_add_u32 v4, s45, v{VL16}''')
    for u in range(5):
        A(f'    ds_write_b128 v4, {vr(T+u*4,4)} offset:{u*1024}')
    A(f'''
    v_mov_b32 v3, {CF}
    v_mov_b32 v4, 1
    s_waitcnt lgkmcnt(0)
    s_mov_b64 exec, 1
    ds_add_u32 v3, v4
    s_waitcnt lgkmcnt(0)
    s_mov_b64 exec, -1''')
    if opts.get('prof'):
        stamp(A, opts, 7)
        stamp_flush(A, opts)

def final_reduce(A, opts):
    T = RB
    OSF = {0: '', 1: ' sc1', 2: ' nt'}[opts.get('osf', 0)]
    A(f'''
    s_mul_i32 s39, s33, 20480
    s_add_u32 s39, s39, {RED0}
    v_add_u32 v4, s39, v{VL16}
    s_nop 7''')
    for mt in range(4):
        A(f'    s_cmp_eq_u32 s33, {mt}\n    s_cbranch_scc1 K2_skipw{mt}')
        for u in range(5):
            A(f'    ds_write_b128 v4, {vr(acc(u,mt),4)} offset:{(mt*5+u)*1024}')
        A(f'    s_branch K2_donew{mt}')
        A(f'K2_skipw{mt}:')
        for u in range(5):
            for r in range(4):
                A(f'    v_mov_b32 v{T+60+u*4+r}, v{acc(u,mt)+r}')
        A(f'K2_donew{mt}:')
    A(f'''
    s_lshl_b32 s45, s33, 4
    s_add_u32 s45, s45, s36
    s_mul_i32 s45, s45, 1280
    s_mul_i32 s46, s35, 160
    s_add_u32 s45, s45, s46
    s_movk_i32 s37, 1280
    v_mul_lo_u32 v5, v1, s37
    v_and_b32 v6, 1, v2
    v_lshlrev_b32 v6, 5, v6
    v_lshrrev_b32 v7, 1, v2
    v_lshl_add_u32 v6, v7, 4, v6
    v_add_u32 v6, v6, v5
    v_lshl_add_u32 v7, v2, 3, v5
    s_mul_i32 s46, s33, 5120
    s_add_u32 s46, s46, {RED0}''')
    for k in range(1, 4):
        A(f'''
    s_add_u32 s47, s33, {k}
    s_and_b32 s47, s47, 3
    s_mul_i32 s47, s47, 20480
    s_add_u32 s47, s47, s46
    v_add_u32 v{8+k}, s47, v{VL16}''')
    A('    s_waitcnt lgkmcnt(0)\n    s_barrier')
    for k in range(1, 4):
        for u in range(5):
            A(f'    ds_read_b128 {vr(T+((k-1)*5+u)*4,4)}, v{8+k} offset:{u*1024}')
    for u in range(5):
        A(f'    s_waitcnt lgkmcnt({14 - (10 + u)})' if False else '')
    A('    s_waitcnt lgkmcnt(0)')
    for u in range(5):
        for r in range(4):
            t0 = T + u * 4 + r
            A(f'''
    v_add_f32 v{t0}, v{t0}, v{t0+20}
    v_add_f32 v{t0+40}, v{t0+40}, v{t0+60}
    v_add_f32 v{t0}, v{t0}, v{t0+40}''')
    P = 16
    for pp in range(2):
        t = P + 4 * pp; d0 = T + 8 * pp; d1 = T + 8 * pp + 4
        A(f'''
    v_cvt_pk_bf16_f32 v{t}, v{d0}, v{d0+1}
    v_cvt_pk_bf16_f32 v{t+1}, v{d0+2}, v{d0+3}
    v_cvt_pk_bf16_f32 v{t+2}, v{d1}, v{d1+1}
    v_cvt_pk_bf16_f32 v{t+3}, v{d1+2}, v{d1+3}
    v_permlane16_swap_b32 v{t}, v{t+2}
    v_permlane16_swap_b32 v{t+1}, v{t+3}
    buffer_store_dwordx4 {vr(t,4)}, v6, s[20:23], s45 offen offset:{64*pp}{OSF}''')
    d0 = T + 16
    A(f'''
    v_cvt_pk_bf16_f32 v24, v{d0}, v{d0+1}
    v_cvt_pk_bf16_f32 v25, v{d0+2}, v{d0+3}
    buffer_store_dwordx2 v[24:25], v7, s[20:23], s45 offen offset:128{OSF}''')
    if opts.get('prof'):
        A('    s_waitcnt vmcnt(0)')
        stamp(A, opts, 7)
        stamp_flush(A, opts)

def gen_gemm_full(A, opts):
    gemm_ids(A, 4, opts)
    A(f'''
    s_waitcnt lgkmcnt(0)
    s_mov_b32 s16, s28
    s_mov_b32 s17, s29
    s_mov_b32 s18, {WS_END}
    s_mov_b32 s19, 0x00020000
    s_mov_b32 s92, s28
    s_mov_b32 s93, s29
    s_mov_b32 s94, {WS_PROF_END}
    s_mov_b32 s95, 0x00020000
    s_barrier
    s_mov_b32 s20, s90
    s_mov_b32 s21, s91
    s_mov_b32 s22, 2621440
    s_mov_b32 s23, 0x00020000
    s_mul_i32 s41, s34, 48
    s_mul_i32 s42, s33, 12
    s_add_u32 s41, s41, s42
    s_lshl_b32 s41, s41, 12
    s_add_u32 s41, s41, {WS_H}
    s_mul_i32 s42, s42, 40
    s_add_u32 s42, s42, s43
    s_lshl_b32 s42, s42, 10
    s_add_u32 s42, s42, {WS_W2F}
    s_lshl_b32 s40, s36, 2
    s_add_u32 s40, s40, {WS_G}
    v_lshlrev_b32 v3, 2, v1''')
    rot = opts.get('rot2', 0)
    if rot:
        A(f'''
    s_and_b32 s46, s34, 3
    s_mul_i32 s46, s46, 3
    s_mul_hi_u32 s47, s35, 0x55555556
    s_mul_i32 s47, s47, 3
    s_sub_u32 s47, s35, s47
    s_add_u32 s48, s46, s47
    s_lshl_b32 s46, s48, 12
    s_add_u32 s41, s41, s46
    s_mul_i32 s46, s48, 40960
    s_add_u32 s42, s42, s46''')
    WRAP = f'''
    s_add_u32 s48, s48, 1
    s_cmp_eq_u32 s48, 12
    s_cselect_b32 s46, {12*4096}, 0
    s_cselect_b32 s47, {12*40960}, 0
    s_cselect_b32 s48, 0, s48
    s_sub_u32 s41, s41, s46
    s_sub_u32 s42, s42, s47''' if rot else ''
    def stage_loads(sl, wfirst=False):
        L = (loadsW(sl) + loadsA(sl)) if wfirst else (loadsA(sl) + loadsW(sl))
        L[-1] += WRAP
        return L
    stamp(A, opts, 3)
    for mt in range(4):
        A(f'    buffer_load_dword v{GM+mt}, v3, s[16:19], s40 offen offset:{64*mt}')
    gd = opts.get('gdelay', 2)
    if gd:
        wait_lds(A, 'K2_gwait', CK if gd == 1 else C1, 4)
    for sl in range(3):
        for l in stage_loads(sl, True): A(l)
    stamp(A, opts, 4)
    gstep(A, 0, stage_loads(3), 18, first=True)
    for sl in range(1, 4):
        gstep(A, sl, stage_loads((sl + 3) % 4), 18)
    for sl in range(4):
        gstep(A, sl, stage_loads((sl + 3) % 4), 18)
    gstep(A, 0, stage_loads(3), 18)
    A(f'''
    s_mul_i32 s42, s33, 240
    s_add_u32 s42, s42, s43
    s_lshl_b32 s42, s42, 10
    s_add_u32 s42, s42, {WS_WOF}''')
    gstep(A, 1, loadsW(0), 18)
    gstep(A, 2, loadsW(1), 9 + 5)
    gstep(A, 3, loadsW(2), 5 + 5)
    stamp(A, opts, 5)
    for l in loadsW(3): A(l)
    for mt in range(4):
        A(f'    v_sub_f32 v{GM+mt}, 1.0, v{GM+mt}')
    A(f'''
    s_lshl_b32 s45, s34, 5
    s_lshl_b32 s46, s33, 3
    s_add_u32 s45, s45, s46
    s_lshl_b32 s45, s45, 2
    s_add_u32 s45, s45, {WS_FLAG2}
    s_mul_i32 s41, s34, 24
    s_mul_i32 s44, s33, 6
    s_add_u32 s41, s41, s44
    s_lshl_b32 s41, s41, 12
    s_add_u32 s41, s41, {WS_OP}
    s_nop 2''')
    for u in range(5):
        for mt in range(4):
            for r in range(4):
                a0 = acc(u, mt) + r
                A(f'    v_mul_f32 v{a0}, v{a0}, v{GM+mt}')
    poll_all(A, 'K2_s2', 's45', 2, opts.get('psleep2', 1))
    stamp(A, opts, 6)
    for sl in range(4):
        for l in loadsA(sl, ' sc1'): A(l)
    gstep(A, 0, [], 12)
    gstep(A, 1, loadsA(0, ' sc1') + loadsW(0), 8)
    gstep(A, 2, loadsA(1, ' sc1') + loadsW(1), 4 + 9)
    gstep(A, 3, [], 18)
    gstep(A, 0, [], 9)
    gstep(A, 1, [], 0)
    final_reduce(A, opts)

def gen_wo(A, opts):
    gemm_ids(A, 0, opts)
    A(f'''
    s_mov_b32 s20, s90
    s_mov_b32 s21, s91
    s_mov_b32 s22, 2621440
    s_mov_b32 s23, 0x00020000
    s_mul_i32 s42, s33, 240
    s_add_u32 s42, s42, s43
    s_lshl_b32 s42, s42, 10
    s_add_u32 s42, s42, {WS_WOF}''')
    for sl in range(4):
        for l in loadsW(sl): A(l)
    A(f'''
    s_lshl_b32 s45, s34, 5
    s_lshl_b32 s46, s33, 3
    s_add_u32 s45, s45, s46
    s_lshl_b32 s45, s45, 2
    s_add_u32 s45, s45, {WS_FLAG2}
    s_mul_i32 s41, s34, 24
    s_mul_i32 s44, s33, 6
    s_add_u32 s41, s41, s44
    s_lshl_b32 s41, s41, 12
    s_add_u32 s41, s41, {WS_OP}''')
    poll_all(A, 'K2_s2', 's45', 2, opts.get('psleep2', 1))
    stamp(A, opts, 6)
    for sl in range(4):
        for l in loadsA(sl, ' sc1'): A(l)
    gstep(A, 0, [], 12, first=True)
    stamp(A, opts, 3)
    gstep(A, 1, loadsA(0, ' sc1') + loadsW(0), 8)
    gstep(A, 2, loadsA(1, ' sc1') + loadsW(1), 4 + 9)
    gstep(A, 3, [], 18)
    gstep(A, 0, [], 9)
    gstep(A, 1, [], 0)
    stamp(A, opts, 1)
    wait_lds(A, 'K2_cf', CF, 4, 1)
    A(f'''
    s_mul_i32 s39, s33, 20480
    s_add_u32 s39, s39, {RED0}
    v_add_u32 v4, s39, v{VL16}
    s_mul_i32 s45, s33, 5120
    s_add_u32 s45, s45, s39
    v_add_u32 v5, s45, v{VL16}''')
    T = RB
    for mt in range(4):
        A(f'    s_cmp_eq_u32 s33, {mt}\n    s_cbranch_scc1 K2_skipw{mt}')
        for u in range(5):
            A(f'    ds_write_b128 v4, {vr(acc(u,mt),4)} offset:{(mt*5+u)*1024}')
        A(f'    s_branch K2_donew{mt}')
        A(f'K2_skipw{mt}:')
        for u in range(5):
            for r in range(4):
                A(f'    v_mov_b32 v{T+100+u*4+r}, v{acc(u,mt)+r}')
        A(f'K2_donew{mt}:')
    A('    s_waitcnt lgkmcnt(0)\n    s_barrier')
    stamp(A, opts, 2)
    A(f'''
    s_mul_i32 s45, s33, 5120
    s_add_u32 s45, s45, {RED0}
    v_add_u32 v4, s45, v{VL16}
    v_add_u32 v8, {2*20480}, v4''')
    for w in range(4):
        for u in range(5):
            A(f'    ds_read_b128 {vr(T+(w*5+u)*4,4)}, v{4 if w < 2 else 8} offset:{(w%2)*20480 + u*1024}')
    A(f'''
    s_lshl_b32 s45, s33, 4
    s_add_u32 s45, s45, s36
    s_mul_i32 s45, s45, 1280
    s_mul_i32 s46, s35, 160
    s_add_u32 s45, s45, s46
    s_movk_i32 s37, 1280
    v_mul_lo_u32 v5, v1, s37
    v_and_b32 v6, 1, v2
    v_lshlrev_b32 v6, 5, v6
    v_lshrrev_b32 v7, 1, v2
    v_lshl_add_u32 v6, v7, 4, v6
    v_add_u32 v6, v6, v5
    v_lshl_add_u32 v7, v2, 3, v5
    s_waitcnt lgkmcnt(0)''')
    for u in range(5):
        for r in range(4):
            t0 = T + u * 4 + r
            A(f'''
    v_add_f32 v{t0}, v{t0}, v{t0+20}
    v_add_f32 v{t0+40}, v{t0+40}, v{t0+60}
    v_add_f32 v{t0}, v{t0}, v{t0+100}
    v_add_f32 v{t0}, v{t0}, v{t0+40}''')
    P = 16
    for pp in range(2):
        t = P + 4 * pp; d0 = T + 8 * pp; d1 = T + 8 * pp + 4
        A(f'''
    v_cvt_pk_bf16_f32 v{t}, v{d0}, v{d0+1}
    v_cvt_pk_bf16_f32 v{t+1}, v{d0+2}, v{d0+3}
    v_cvt_pk_bf16_f32 v{t+2}, v{d1}, v{d1+1}
    v_cvt_pk_bf16_f32 v{t+3}, v{d1+2}, v{d1+3}
    v_permlane16_swap_b32 v{t}, v{t+2}
    v_permlane16_swap_b32 v{t+1}, v{t+3}
    buffer_store_dwordx4 {vr(t,4)}, v6, s[20:23], s45 offen offset:{64*pp}''')
    d0 = T + 16
    A(f'''
    v_cvt_pk_bf16_f32 v24, v{d0}, v{d0+1}
    v_cvt_pk_bf16_f32 v25, v{d0+2}, v{d0+3}
    buffer_store_dwordx2 v[24:25], v7, s[20:23], s45 offen offset:128''')
    if opts.get('prof'):
        A('    s_waitcnt vmcnt(0)')
        stamp(A, opts, 7)
        stamp_flush(A, opts)
    A('    s_branch KF_done')

def desc(name, vg):
    return f'''
.amdhsa_kernel {name}
  .amdhsa_next_free_vgpr {vg}
  .amdhsa_next_free_sgpr 102
  .amdhsa_accum_offset {vg}
  .amdhsa_group_segment_fixed_size 0
  .amdhsa_kernarg_size 80
  .amdhsa_user_sgpr_count 2
  .amdhsa_user_sgpr_kernarg_segment_ptr 1
  .amdhsa_system_sgpr_workgroup_id_x 1
.end_amdhsa_kernel
'''

if __name__ == '__main__':
    import sys
    out = sys.argv[1]
    opts = {}
    for kv in sys.argv[2:]:
        k, v = kv.split('=')
        opts[k] = int(v)
    HEADER = open('gated_mix__sliding_block__dense_activation_relu__prompt.s.ref').read().split('; Override launch')[0]
    o1 = dict(opts); o2 = dict(opts)
    if opts.get('prof') == 2: o1.pop('prof')
    a1 = Asm(); gen_k1(a1, o1)
    a2 = Asm(); gen_k2(a2, o2)
    txt = HEADER + f'; @launch kernel=k1_kernel grid=(256,1,1) block=(512,1,1) lds={LDS_BYTES}\n'
    if not opts.get('k1only'): txt += f'; @launch kernel=k2_kernel grid=(256,1,1) block=(512,1,1) lds={K2_LDS}\n'
    txt += '.amdgcn_target "amdgcn-amd-amdhsa--gfx950"\n.text\n'
    txt += '.globl k1_kernel\n.p2align 8\n.type k1_kernel,@function\n' + a1.fix() + '\n'
    txt += '.globl k2_kernel\n.p2align 8\n.type k2_kernel,@function\n' + a2.fix() + '\n'
    txt += '.section .rodata,"a"\n.p2align 6' + desc('k1_kernel', 232) + '.p2align 6' + desc('k2_kernel', 248)
    open(out, 'w').write(txt)
```

```python
from asmlib import *

WS_QK   = 0x000000
WS_VT   = 0x600000
WS_H    = 0x900000
WS_OP   = 0xF00000
WS_W2F  = 0x1200000
WS_WOF  = 0x13E0000
WS_G    = 0x14D0000
WS_FLAG2 = 0x14D2000
WS_ONES = 0x14D3000
WS_END  = 0x14D3100
WS_PROF = 0x1500000
WS_PROF_END = 0x1600000
LDS_BYTES = 163840
PK = 147456
C1 = 46336; CK = C1 + 4; CA = C1 + 8
KL = 0; VL = 24832; RED0 = 46592; K2_LDS = RED0 + 4*20480
KNAME = 'gated_mix__sliding_block__dense_activation_relu__prompt_kernel'

def stamp(A, opts, idx):
    if not opts.get('prof'): return
    A(f'    s_memtime s[{70+2*idx}:{71+2*idx}]')
    if idx == 0 or idx == 7:
        A(f'    s_memrealtime s[{86+2*(idx != 0)}:{87+2*(idx != 0)}]')

def stamp_flush(A, opts):
    if not opts.get('prof'): return
    A(f'''
    s_waitcnt lgkmcnt(0)
    s_lshl_b32 s96, s2, 4
    s_add_u32 s96, s96, s30
    s_lshl_b32 s96, s96, 7
    s_add_u32 s96, s96, {WS_PROF}
    v_mov_b32 v100, s96
    s_mov_b64 exec, 1''')
    for i in range(20):
        A(f'    v_mov_b32 v101, s{70+i}\n    buffer_store_dword v101, v100, s[92:95], 0 offen offset:{4*i}')
    A('    s_mov_b64 exec, -1')

def gen_k1(a, opts):
    A = a
    SF = {0: '', 1: ' sc1'}[opts.get('sf', 1)]
    A('k1_kernel:')
    A('''
    s_cmp_ge_u32 s2, 256
    s_cbranch_scc1 K1_done
    s_getpc_b64 s[60:61]''')
    stamp(A, opts, 0)
    A(f'''
    s_load_dwordx2 s[4:5], s[0:1], 0
    s_load_dwordx4 s[64:67], s[0:1], 8
    s_load_dwordx4 s[24:27], s[0:1], 32
    s_load_dwordx2 s[68:69], s[0:1], 48
    s_load_dwordx2 s[28:29], s[0:1], 72
    v_lshrrev_b32 v1, 6, v0
    v_and_b32 v0, 63, v0
    v_readfirstlane_b32 s30, v1
    s_and_b32 s31, s2, 7
    s_lshr_b32 s32, s2, 3
    s_cmp_lt_u32 s32, {opts.get('cpf', 1)}
    s_cbranch_scc0 K1_nocpf
    s_cmp_lt_u32 s30, 3
    s_cbranch_scc0 K1_nocpf
    s_lshl_b32 s46, s30, 13
    v_lshlrev_b32 v10, 7, v0
    v_add_u32 v10, s46, v10
    global_load_dword v226, v10, s[60:61]
K1_nocpf:
    s_and_b32 s33, s31, 1
    s_lshl_b32 s33, s33, 3
    s_and_b32 s34, s32, 7
    s_add_u32 s33, s33, s34
    s_lshr_b32 s34, s31, 1
    s_lshl_b32 s34, s34, 2
    s_lshr_b32 s35, s32, 3
    s_add_u32 s34, s34, s35
    s_lshl_b32 s40, s33, 7
    s_cmp_lt_u32 s34, 6
    s_cbranch_scc1 K1_sec_qk
    s_cmp_lt_u32 s34, 9
    s_cbranch_scc1 K1_sec_v
    s_mov_b32 s36, 2
    s_sub_u32 s37, s34, 9
    s_mul_i32 s37, s37, 14
    s_min_u32 s37, s37, 82
    s_lshl_b32 s38, s37, 5
    s_mov_b32 s39, 3072
    s_branch K1_sec_done
K1_sec_qk:
    s_mov_b32 s36, 0
    s_mul_i32 s37, s34, 14
    s_min_u32 s37, s37, 66
    s_lshl_b32 s38, s37, 5
    s_mov_b32 s39, 3840
    s_branch K1_sec_done
K1_sec_v:
    s_mov_b32 s36, 1
    s_sub_u32 s37, s34, 6
    s_mul_i32 s37, s37, 14
    s_min_u32 s37, s37, 26
    s_lshl_b32 s38, s37, 5
    s_add_u32 s38, s38, 2560
    s_mov_b32 s39, 3840
K1_sec_done:
    s_cmp_ge_u32 s30, 4
    s_cbranch_scc{'0 K1_compute' if opts.get('lfirst', 1) else '1 K1_loader'}
    ''')
    if opts.get('lfirst', 1):
        gen_p1_loader(A, opts, SF)
        A('    s_branch KF_p1done')
        A('K1_compute:')
        gen_p1_compute(A, opts, SF)
    else:
        gen_p1_compute(A, opts, SF)
        gen_p1_loader(A, opts, SF)
    A('KF_p1done:')
    if opts.get('prof') == 1:
        stamp(A, opts, 6)
        A('    s_waitcnt vmcnt(0)')
        stamp(A, opts, 7); stamp_flush(A, opts)
    A('K1_done:\n    s_endpgm')

def gen_k2(a, opts):
    A = a
    A('k2_kernel:')
    A('''
    s_cmp_ge_u32 s2, 256
    s_cbranch_scc1 KF_done''')
    stamp(A, opts, 0)
    A(f'''
    s_load_dwordx2 s[90:91], s[0:1], 56
    s_load_dwordx2 s[28:29], s[0:1], 72
    v_lshrrev_b32 v1, 6, v0
    v_and_b32 v0, 63, v0
    v_readfirstlane_b32 s30, v1
    s_and_b32 s31, s2, 7
    s_lshr_b32 s32, s2, 3
    v_and_b32 v1, 15, v0
    v_lshrrev_b32 v2, 4, v0
    s_mov_b32 s97, 1
    s_cmp_eq_u32 s30, 0
    s_cbranch_scc0 K2_noinit
    v_mov_b32 v8, 0
    v_mov_b32 v9, {C1}
    ds_write_b32 v9, v8 offset:0
    ds_write_b32 v9, v8 offset:4
    ds_write_b32 v9, v8 offset:8
    ds_write_b32 v9, v8 offset:12
    ds_write_b32 v9, v8 offset:16
    ds_write_b32 v9, v8 offset:20
    ds_write_b32 v9, v8 offset:24
K2_noinit:
    s_cmp_ge_u32 s30, 4
    s_cbranch_scc1 K2_gemm''')
    fbk = gen_attn(A, opts)
    A('K2_gemm:')
    if opts.get('wo_attn', 0): gen_gemm(A, opts)
    else: gen_gemm_full(A, opts)
    A('KF_done:\n    s_endpgm')
    fbk()

def wait_lds(A, label, addr, val, sleep=2):
    A(f'''
    v_mov_b32 v8, {addr}
{label}:
    ds_read_b32 v9, v8
    s_waitcnt lgkmcnt(0)
    v_readfirstlane_b32 s58, v9
    s_cmp_lt_u32 s58, {val}
    s_cbranch_scc0 {label}_ok
    s_sleep {sleep}
    s_branch {label}
{label}_ok:''')

def poll_all(A, label, base, n_lanes_x4, sleep=1):
    A(f'''
    v_lshlrev_b32 v3, 4, v0
    v_mov_b32 v8, 0x80000000
    v_cmp_gt_u32 vcc, {n_lanes_x4}, v0
    v_cndmask_b32 v3, v8, v3, vcc
    s_mov_b64 s[56:57], vcc
{label}:
    buffer_load_dwordx4 v[4:7], v3, s[16:19], {base} offen sc1
    s_waitcnt vmcnt(0)
    v_xor_b32 v4, s97, v4
    v_xor_b32 v5, s97, v5
    v_xor_b32 v6, s97, v6
    v_xor_b32 v7, s97, v7
    v_or3_b32 v4, v4, v5, v6
    v_or_b32 v4, v4, v7
    v_cmp_ne_u32 vcc, 0, v4
    s_and_b64 vcc, vcc, s[56:57]
    s_cbranch_vccz {label}_ok
    s_sleep {sleep}
    s_branch {label}
{label}_ok:''')

def k1_srds(A, tag):
    A(f'''
    s_waitcnt lgkmcnt(0)
    s_mov_b32 s8, s4
    s_mov_b32 s9, s5
    s_mov_b32 s10, 2621440
    s_mov_b32 s11, 0x00020000
    s_mov_b32 s15, 0x00020000
    s_cmp_eq_u32 s36, 2
    s_cbranch_scc1 K1_srd_h{tag}
    s_mov_b32 s12, s64
    s_mov_b32 s13, s65
    s_mov_b32 s14, 2457600
    s_branch K1_srd_d{tag}
K1_srd_h{tag}:
    s_mov_b32 s12, s24
    s_mov_b32 s13, s25
    s_mov_b32 s14, 1966080
K1_srd_d{tag}:
    s_mov_b32 s16, s28
    s_mov_b32 s17, s29
    s_mov_b32 s18, {WS_END}
    s_mov_b32 s19, 0x00020000
    s_mov_b32 s92, s28
    s_mov_b32 s93, s29
    s_mov_b32 s94, {WS_PROF_END}
    s_mov_b32 s95, 0x00020000''')

def gen_p1_compute(A, opts, SF):
    ACC = 16
    def acc(uu, mt): return ACC + (uu * 4 + mt) * 4
    XS = [128, 172]; WSs = [144, 188]
    VAX = [216, 217]; VW = 218
    T = 128
    A(f'''
    s_and_b32 s41, s30, 1
    s_lshr_b32 s42, s30, 1
    v_and_b32 v1, 15, v0
    v_lshrrev_b32 v2, 4, v0
    v_and_b32 v3, 7, v1
    v_xor_b32 v3, v2, v3
    v_lshlrev_b32 v3, 4, v3
    v_lshl_add_u32 v3, v1, 7, v3
    s_lshl_b32 s43, s41, 13
    v_add_u32 v{VAX[0]}, s43, v3
    v_xor_b32 v{VAX[1]}, 64, v{VAX[0]}
    v_lshrrev_b32 v4, 2, v1
    v_and_b32 v5, 3, v0
    v_and_b32 v6, 1, v2
    v_lshl_or_b32 v6, v6, 2, v4
    v_lshl_add_u32 v7, v2, 3, v4
    v_lshlrev_b32 v7, 9, v7
    v_lshl_add_u32 v7, v5, 3, v7
    v_add_u32 v7, 16384, v7
    s_lshl_b32 s44, s42, 3
    s_add_u32 s45, s42, 6
    ''')
    for uu in range(7):
        if uu < 6: A(f'    s_add_u32 s46, s44, {uu}\n    v_xor_b32 v8, s46, v6')
        else:      A(f'    v_xor_b32 v8, s45, v6')
        A(f'    v_lshl_add_u32 v{VW+uu}, v8, 5, v7')
    for r in range(ACC, ACC + 112):
        A(f'    v_mov_b32 v{r}, 0')
    def reads(st, ks):
        R = []
        for mt in range(4):
            R.append(f'    ds_read_b128 {vr(XS[st]+4*mt,4)}, v{VAX[ks]} offset:{mt*2048}')
        for uu in range(7):
            for t in range(2):
                R.append(f'    ds_read_b64_tr_b16 {vr(WSs[st]+4*uu+2*t,2)}, v{VW+uu} offset:{(32*ks+4*t)*512}')
        return R
    def phase(st, rd, swapped, extra=()):
        k = 0
        extra = list(extra)
        for uu in range(7):
            for mt in range(4):
                w = vr(WSs[st] + 4 * uu, 4); x = vr(XS[st] + 4 * mt, 4); d = vr(acc(uu, mt), 4)
                if swapped: A(f'    v_mfma_f32_16x16x32_bf16 {d}, {w}, {x}, {d}')
                else:       A(f'    v_mfma_f32_16x16x32_bf16 {d}, {x}, {w}, {d}')
                if k < len(rd): A(rd[k])
                elif extra: A(extra.pop(0))
                k += 1
        for e in extra: A(e)
    def mainloop(tag, swapped):
        A(f'''
    s_mov_b32 s46, 0
    s_mov_b32 s47, 0
    s_mov_b32 s50, 0xfffe8000
    s_mov_b32 s51, 49152
    s_barrier''')
        for l in reads(0, 0): A(l)
        A(f'K1_loop_{tag}:')
        A('''
    s_add_u32 s47, s47, 1
    s_cmp_eq_u32 s47, 3
    s_cselect_b32 s48, s50, s51
    s_cselect_b32 s47, 0, s47
    s_waitcnt lgkmcnt(0)''')
        upd = [f'    v_add_u32 v{r}, s48, v{r}' for r in VAX + [VW + i for i in range(7)]]
        phase(0, reads(1, 1), swapped, upd)
        A('''
    s_waitcnt lgkmcnt(0)
    s_barrier''')
        phase(1, reads(0, 0), swapped, ['    s_add_u32 s46, s46, 1', '    s_cmp_lt_u32 s46, 10'])
        A(f'''
    s_cbranch_scc1 K1_loop_{tag}
    s_waitcnt lgkmcnt(0)
    s_nop 7''')
        stamp(A, opts, 1)
    k1_srds(A, 'c')
    for r in range(9, 15): A(f'    v_mov_b32 v{r}, 0x80000000')
    A('''
    s_cmp_eq_u32 s36, 1
    s_cbranch_scc1 K1_main_v
    s_cmp_eq_u32 s36, 2
    s_cbranch_scc1 K1_pre_h''')
    A(f'''
    s_lshl_b32 s43, s41, 2
    s_lshr_b32 s46, s40, 4
    s_add_u32 s43, s43, s46
    s_mul_i32 s43, s43, 768
    v_lshlrev_b32 v3, 3, v1
    v_add_u32 v3, s43, v3
    s_mov_b32 s49, 52429
    s_mov_b32 s52, 98304
    s_mov_b32 s53, 0x3ea52b5c''')
    for uu in range(7):
        if uu < 6: A(f'    s_add_u32 s46, s44, {uu}')
        else:      A(f'    s_mov_b32 s46, s45')
        A(f'''
    s_add_u32 s46, s46, s37
    s_lshl_b32 s46, s46, 2
    v_add_u32 v4, s46, v2
    v_mul_lo_u32 v5, v4, s49
    v_lshrrev_b32 v5, 18, v5
    v_mul_u32_u24 v6, 5, v5
    v_sub_u32 v6, v4, v6
    v_mul_lo_u32 v5, v5, s52
    v_lshl_add_u32 v5, v6, 7, v5
    v_add_u32 v{8+uu}, v5, v3''')
    A('    s_branch K1_pre_done')
    A(f'''K1_pre_h:
    s_lshl_b32 s43, s33, 1
    s_add_u32 s43, s43, s41
    s_mul_i32 s43, s43, {48*4096}
    s_add_u32 s43, s43, {WS_H}
    s_add_u32 s56, s37, s44
    s_lshl_b32 s56, s56, 11
    s_add_u32 s56, s56, s43
    v_and_b32 v4, 1, v2
    v_lshlrev_b32 v4, 1, v4
    v_lshrrev_b32 v5, 1, v2
    v_add_u32 v4, v4, v5
    v_lshl_add_u32 v4, v4, 4, v1
    v_lshlrev_b32 v4, 4, v4
    s_add_u32 s57, s37, 6
    s_lshl_b32 s57, s57, 11
    s_add_u32 s57, s57, s43
    s_lshl_b32 s48, s42, 1
    v_add_u32 v5, s48, v5
    v_lshl_add_u32 v5, v5, 4, v1
    v_lshlrev_b32 v5, 4, v5
    v_and_b32 v6, 1, v2
    v_lshl_add_u32 v5, v6, 10, v5
K1_pre_done:''')
    mainloop('s', True)
    A('''
    s_cmp_eq_u32 s36, 2
    s_cbranch_scc1 K1_epi_h''')
    for uu in range(7):
        if uu < 6: A(f'    s_add_u32 s46, s44, {uu}')
        else:      A(f'    s_mov_b32 s46, s45')
        A(f'''
    s_add_u32 s46, s46, s37
    s_cmp_lt_u32 s46, 40
    s_cselect_b32 s54, s53, 1.0
    s_mov_b32 s55, s54''')
        for mt in range(4):
            d = acc(uu, mt); t = T + (uu * 4 + mt) * 2
            A(f'''
    v_pk_mul_f32 {vr(d,2)}, {vr(d,2)}, s[54:55]
    v_pk_mul_f32 {vr(d+2,2)}, {vr(d+2,2)}, s[54:55]
    v_cvt_pk_bf16_f32 v{t}, v{d}, v{d+1}
    v_cvt_pk_bf16_f32 v{t+1}, v{d+2}, v{d+3}
    buffer_store_dwordx2 {vr(t,2)}, v{8+uu}, s[16:19], 0 offen offset:{WS_QK + mt*768}{SF}''')
    A('    s_branch KF_p1done')
    A('K1_epi_h:')
    n = 0
    for pp in range(3):
        A(f'    s_add_u32 s49, s56, {pp*4096}')
        for mt in range(4):
            t = T + n * 4; n += 1
            d0 = acc(2 * pp, mt); d1 = acc(2 * pp + 1, mt)
            A(f'''
    v_cvt_pk_bf16_f32 v{t}, v{d0}, v{d0+1}
    v_cvt_pk_bf16_f32 v{t+1}, v{d0+2}, v{d0+3}
    v_cvt_pk_bf16_f32 v{t+2}, v{d1}, v{d1+1}
    v_cvt_pk_bf16_f32 v{t+3}, v{d1+2}, v{d1+3}
    v_pk_max_i16 v{t}, v{t}, 0
    v_pk_max_i16 v{t+1}, v{t+1}, 0
    v_pk_max_i16 v{t+2}, v{t+2}, 0
    v_pk_max_i16 v{t+3}, v{t+3}, 0
    v_permlane16_swap_b32 v{t}, v{t+2}
    v_permlane16_swap_b32 v{t+1}, v{t+3}
    buffer_store_dwordx4 {vr(t,4)}, v4, s[16:19], s49 offen offset:{1024*mt}{SF}''')
    for pm in range(2):
        t = T + n * 4; n += 1
        d0 = acc(6, 2 * pm); d1 = acc(6, 2 * pm + 1)
        A(f'''
    v_cvt_pk_bf16_f32 v{t}, v{d0}, v{d0+1}
    v_cvt_pk_bf16_f32 v{t+1}, v{d0+2}, v{d0+3}
    v_cvt_pk_bf16_f32 v{t+2}, v{d1}, v{d1+1}
    v_cvt_pk_bf16_f32 v{t+3}, v{d1+2}, v{d1+3}
    v_pk_max_i16 v{t}, v{t}, 0
    v_pk_max_i16 v{t+1}, v{t+1}, 0
    v_pk_max_i16 v{t+2}, v{t+2}, 0
    v_pk_max_i16 v{t+3}, v{t+3}, 0
    v_permlane16_swap_b32 v{t}, v{t+2}
    v_permlane16_swap_b32 v{t+1}, v{t+3}
    buffer_store_dwordx4 {vr(t,4)}, v5, s[16:19], s57 offen offset:{2048*pm}{SF}''')
    A('    s_branch KF_p1done')
    A('K1_main_v:')
    A(f'''
    s_lshl_b32 s43, s41, 1
    s_lshr_b32 s46, s40, 5
    s_add_u32 s43, s43, s46
    s_lshl_b32 s43, s43, 10
    s_add_u32 s43, s43, {WS_VT}
    v_lshlrev_b32 v3, 4, v0
    v_add_u32 v3, s43, v3''')
    for uu in range(7):
        if uu < 6: A(f'    s_add_u32 s46, s44, {uu}')
        else:      A(f'    s_mov_b32 s46, s45')
        A(f'''
    s_add_u32 s46, s46, s37
    s_lshl_b32 s46, s46, 16
    v_add_u32 v{8+uu}, s46, v3''')
    mainloop('n', False)
    for uu in range(7):
        for pa in range(2):
            t = T + (uu * 2 + pa) * 4
            d0 = acc(uu, 2 * pa); d1 = acc(uu, 2 * pa + 1)
            A(f'''
    v_cvt_pk_bf16_f32 v{t}, v{d0}, v{d0+1}
    v_cvt_pk_bf16_f32 v{t+1}, v{d0+2}, v{d0+3}
    v_cvt_pk_bf16_f32 v{t+2}, v{d1}, v{d1+1}
    v_cvt_pk_bf16_f32 v{t+3}, v{d1+2}, v{d1+3}
    buffer_store_dwordx4 {vr(t,4)}, v{8+uu}, s[16:19], 0 offen offset:{1024*pa}{SF}''')
    A('    s_branch KF_p1done')

def gen_p1_loader(A, opts, SF):
    A(f'''K1_loader:
    s_sub_u32 s41, s30, 4
    v_lshrrev_b32 v1, 3, v0
    v_and_b32 v2, 7, v0
    v_lshlrev_b32 v21, 4, v2
    v_xor_b32 v2, v2, v1
    v_lshlrev_b32 v2, 4, v2
    s_movk_i32 s43, 1280
    v_mul_lo_u32 v1, v1, s43
    v_add_u32 v2, v2, v1
    v_add_u32 v21, v21, v1
    v_lshrrev_b32 v4, 5, v0
    s_and_b32 s44, s41, 1
    s_lshr_b32 s45, s41, 1
    s_lshl_b32 s46, s44, 1
    s_lshl_b32 s47, s45, 2
    s_or_b32 s46, s46, s47
    v_or_b32 v5, s46, v4
    v_bfe_u32 v6, v0, 1, 4
    v_xor_b32 v6, v6, v5
    v_mul_lo_u32 v7, v4, s39
    v_lshl_add_u32 v7, v6, 5, v7
    v_and_b32 v8, 1, v0
    v_lshl_add_u32 v3, v8, 4, v7
    v_mov_b32 v9, 0x80000000
    v_cmp_le_u32 vcc, 14, v6
    v_cndmask_b32 v3, v3, v9, vcc
    s_lshl_b32 s50, s41, 5
    s_add_u32 s50, s50, s40
    s_mul_i32 s50, s50, 1280
    s_add_u32 s52, s44, s47
    s_lshl_b32 s53, s52, 1
    s_mul_i32 s51, s53, s39
    s_add_u32 s51, s51, s38
    s_lshl_b32 s54, s39, 2
    s_mul_i32 s55, s39, 12
    s_lshl_b32 s56, s39, 6
    s_lshl_b32 s57, s41, 12
    s_lshl_b32 s58, s52, 10
    s_add_u32 s58, s58, 16384
    s_mov_b32 s59, 0
    s_and_b32 s46, s32, 7
    s_lshr_b32 s47, s32, 3
    s_add_u32 s46, s46, s47
    s_and_b32 s46, s46, {opts.get('rotng', 1) - 1}
    s_mul_i32 s90, s46, {opts.get('rotr', 0)}
    s_lshl_b32 s46, s90, 7
    s_add_u32 s50, s50, s46
    s_mul_i32 s46, s90, s56
    s_add_u32 s51, s51, s46
    s_mul_i32 s91, s56, 10
    ''')
    def issue():
        A('    s_add_u32 s60, s59, s57\n    s_add_u32 s61, s59, s58')
        for jj in range(4):
            A(f'''
    s_add_u32 m0, s60, {jj*1024}
    s_add_u32 s62, s50, {jj*10240}
    buffer_load_dwordx4 v2, s[8:11], s62 offen lds''')
        A('    s_mov_b32 s62, s51')
        i = 0
        for b in range(4):
            for aa in range(2):
                A(f'    s_add_u32 m0, s61, {(2*aa+8*b)*1024}')
                if i > 0: A(f'    s_add_u32 s62, s62, {"s54" if aa == 1 else "s55"}')
                else: A('    s_nop 0')
                A('    buffer_load_dwordx4 v3, s[12:15], s62 offen lds')
                i += 1
        A(f'''
    s_add_u32 s50, s50, 128
    s_add_u32 s51, s51, s56
    s_add_u32 s90, s90, 1
    s_cmp_eq_u32 s90, 10
    s_cselect_b32 s46, 1280, 0
    s_cselect_b32 s47, s91, 0
    s_cselect_b32 s90, 0, s90
    s_sub_u32 s50, s50, s46
    s_sub_u32 s51, s51, s47
    s_add_u32 s59, s59, 49152
    s_cmp_eq_u32 s59, 147456
    s_cselect_b32 s59, 0, s59''')
    k1_srds(A, 'l')
    issue(); issue()
    A('    s_waitcnt vmcnt(12)\n    s_barrier')
    issue()
    A(f'''
    s_lshl_b32 s63, s2, 2
    s_add_u32 s63, s63, s41
    s_mul_hi_u32 s46, s63, 0x1999999a
    s_mul_i32 s47, s46, 10
    s_sub_u32 s47, s63, s47
    s_cmp_lt_u32 s46, 48
    s_cbranch_scc0 K1_pk_wo
    s_mov_b32 s20, s26
    s_mov_b32 s21, s27
    s_mov_b32 s22, 1966080
    s_mul_i32 s34, s46, 40960
    s_add_u32 s35, s34, {WS_W2F}
    s_lshl_b32 s46, s47, 7
    s_add_u32 s34, s34, s46
    v_mov_b32 v50, v21
    v_add_u32 v51, 10240, v21
    v_add_u32 v52, 20480, v21
    v_add_u32 v53, 30720, v21
    s_branch K1_pk_go
K1_pk_wo:
    s_mov_b32 s20, s66
    s_mov_b32 s21, s67
    s_mov_b32 s22, 819200
    s_sub_u32 s46, s46, 48
    s_mul_i32 s35, s46, 40960
    s_add_u32 s35, s35, {WS_WOF}
    s_lshl_b32 s34, s47, 7
    s_lshl_b32 s46, s46, 5
    v_lshrrev_b32 v54, 3, v0
    v_add_u32 v54, s46, v54
    s_mov_b32 s46, 0xaaaaaab
    v_and_b32 v55, 7, v0
    v_lshlrev_b32 v55, 4, v55
    v_mov_b32 v58, 0x80000000''')
    for jj in range(4):
        A(f'''
    v_mul_hi_u32 v56, v54, s46
    v_mul_u32_u24 v57, 24, v56
    v_sub_u32 v57, v54, v57
    v_mul_u32_u24 v56, 20, v56
    v_add_u32 v56, v56, v57
    v_mul_u32_u24 v56, 1280, v56
    v_add_u32 v56, v56, v55
    v_cmp_gt_u32 vcc, 20, v57
    v_cndmask_b32 v{50+jj}, v58, v56, vcc
    v_add_u32 v54, 8, v54''')
    A(f'''
K1_pk_go:
    s_mov_b32 s23, 0x00020000
    s_lshl_b32 s46, s47, 12
    s_add_u32 s35, s35, s46
    s_cmp_ge_u32 s63, 720
    s_cselect_b32 s35, 0x7f000000, s35
    s_cselect_b32 s34, 0x7f000000, s34
    s_add_u32 s46, s57, {PK}''')
    for jj in range(4):
        A(f'''
    s_add_u32 m0, s46, {jj*1024}
    s_nop 0
    buffer_load_dwordx4 v{50+jj}, s[20:23], s34 offen lds''')
    A('    s_waitcnt vmcnt(16)\n    s_barrier')
    issue()
    A('    s_waitcnt vmcnt(16)\n    s_barrier')
    issue()
    A('    s_waitcnt vmcnt(12)\n    s_barrier')
    A(f'''
    v_lshrrev_b32 v10, 4, v0
    v_bfe_u32 v11, v0, 2, 2
    v_lshl_add_u32 v10, v10, 3, v11
    v_lshlrev_b32 v10, 7, v10
    v_and_b32 v11, 3, v0
    v_lshl_add_u32 v10, v11, 3, v10
    s_add_u32 s46, s57, {PK}
    v_add_u32 v10, s46, v10
    v_lshlrev_b32 v11, 4, v0''')
    for u in range(4):
        for t in range(2):
            A(f'    ds_read_b64_tr_b16 {vr(24+4*u+2*t,2)}, v10 offset:{t*512 + u*32}')
    issue()
    A('    s_waitcnt lgkmcnt(0)')
    for u in range(4):
        A(f'    buffer_store_dwordx4 {vr(24+4*u,4)}, v11, s[16:19], s35 offen offset:{u*1024} sc1')
    A('    s_waitcnt vmcnt(16)\n    s_barrier')
    issue()
    A('    s_waitcnt vmcnt(16)\n    s_barrier')
    mp = opts.get('midpf', 0)
    if mp:
        A(f'''
    s_lshl_b32 s46, s32, 2
    s_add_u32 s46, s46, s41
    s_mul_i32 s46, s46, 192
    v_add_u32 v59, s46, v0
    v_lshlrev_b32 v60, 7, v59
    v_add_u32 v60, {WS_W2F}, v60
    v_mov_b32 v58, 0x80000000''')
        for n in range(3):
            A(f'''
    v_add_u32 v61, {64*n}, v59
    v_cmp_gt_u32 vcc, 23040, v61
    v_cndmask_b32 v{62+n}, v58, v60, vcc
    v_add_u32 v60, 8192, v60''')
    def tch(n):
        if mp: A(f'    buffer_load_dword v{66+n}, v{62+n}, s[16:19], 0 offen')
    if opts.get('midpf_early'): tch(0)
    issue()
    if not opts.get('midpf_early'): tch(0)
    A(f'    s_waitcnt vmcnt({12 + mp})\n    s_barrier')
    issue()
    tch(1)
    A(f'    s_waitcnt vmcnt({12 + 2*mp})\n    s_barrier')
    issue()
    tch(2)
    A(f'''
    s_lshr_b32 s34, s31, 1
    s_lshl_b32 s34, s34, 2
    s_lshr_b32 s35, s32, 3
    s_add_u32 s34, s34, s35
    s_lshl_b32 s44, s34, 3
    s_add_u32 s44, s44, s40
    s_lshl_b32 s45, s41, 1
    s_add_u32 s44, s44, s45
    s_mul_i32 s45, s44, 1280
    s_mov_b32 s20, s68
    s_mov_b32 s21, s69
    s_mov_b32 s22, 1280
    s_mov_b32 s23, 0x00020000
    v_lshlrev_b32 v10, 2, v0''')
    for j in range(5):
        A(f'    buffer_load_dword v{16+j}, v10, s[20:23], 0 offen offset:{256*j}')
    for rr in range(2):
        for j in range(5):
            A(f'    buffer_load_dword v{24+8*rr+j}, v10, s[8:11], s45 offen offset:{256*j + 1280*rr}')
    A(f'''
    v_mov_b32 v15, 0x80000000
    s_lshl_b32 s46, s2, 2
    s_add_u32 s46, s46, s41
    s_lshl_b32 s46, s46, 2
    v_lshrrev_b32 v11, 4, v0
    v_add_u32 v11, s46, v11
    v_mul_u32_u24 v11, 768, v11
    v_and_b32 v12, 15, v0
    v_lshl_add_u32 v11, v12, 3, v11
    v_add_u32 v11, {WS_QK + 32*98304 + 640}, v11
    v_mov_b32 v12, 0
    v_mov_b32 v13, 0
    buffer_store_dwordx2 v[12:13], v11, s[16:19], 0 offen{SF}
    s_add_u32 s46, s2, s41
    s_cmp_eq_u32 s46, 0
    s_cselect_b32 s46, 8, 0
    v_lshlrev_b32 v11, 4, v0
    v_add_u32 v11, {WS_ONES}, v11
    v_cmp_gt_u32 vcc, s46, v0
    v_cndmask_b32 v11, v15, v11, vcc
    v_mov_b32 v44, 0x3f803f80
    v_mov_b32 v45, 0x3f803f80
    v_mov_b32 v46, 0x3f803f80
    v_mov_b32 v47, 0x3f803f80
    buffer_store_dwordx4 v[44:47], v11, s[16:19], 0 offen{SF}
    s_cmp_eq_u32 s41, 0
    s_cselect_b32 s46, 4, 0
    s_lshl_b32 s47, s2, 4
    s_add_u32 s47, s47, {WS_FLAG2}
    v_lshl_add_u32 v11, v0, 2, s47
    v_cmp_gt_u32 vcc, s46, v0
    v_cndmask_b32 v11, v15, v11, vcc
    buffer_store_dword v12, v11, s[16:19], 0 offen{SF}
    s_waitcnt vmcnt({30 + 2*opts.get('midpf', 0)})
    s_barrier
    s_waitcnt vmcnt({18 + opts.get('midpf', 0)})
    s_barrier
    s_barrier
    s_waitcnt vmcnt(3)''')
    for rr in range(2):
        acc_ = 40 + rr
        A(f'    v_mov_b32 v{acc_}, 0')
        for j in range(5):
            A(f'    v_dot2c_f32_bf16 v{acc_}, v{16+j}, v{24+8*rr+j}')
    for rr in range(2):
        r = 40 + rr
        A(f'''
    v_add_f32_dpp v{r}, v{r}, v{r} quad_perm:[1,0,3,2] row_mask:0xf bank_mask:0xf
    v_add_f32_dpp v{r}, v{r}, v{r} quad_perm:[2,3,0,1] row_mask:0xf bank_mask:0xf
    v_add_f32_dpp v{r}, v{r}, v{r} row_half_mirror row_mask:0xf bank_mask:0xf
    v_add_f32_dpp v{r}, v{r}, v{r} row_mirror row_mask:0xf bank_mask:0xf
    v_mov_b32 v43, v{r}
    v_permlane16_swap_b32 v43, v{r}
    v_add_f32 v{r}, v{r}, v43
    v_mov_b32 v43, v{r}
    v_permlane32_swap_b32 v43, v{r}
    v_add_f32 v{r}, v{r}, v43''')
    A(f'''
    v_cmp_eq_u32 vcc, 1, v0
    v_cndmask_b32 v40, v40, v41, vcc
    v_mul_f32 v40, 0xbfb8aa3b, v40
    v_exp_f32 v40, v40
    v_add_f32 v40, 1.0, v40
    v_rcp_f32 v40, v40
    s_lshl_b32 s46, s44, 2
    s_add_u32 s46, s46, {WS_G}
    v_lshl_add_u32 v14, v0, 2, s46
    v_cmp_gt_u32 vcc, 2, v0
    v_cndmask_b32 v14, v15, v14, vcc
    buffer_store_dword v40, v14, s[16:19], 0 offen{SF}''')
    npf = opts.get('w2pf', 0)
    if npf:
        A(f'''
    s_lshl_b32 s46, s32, 2
    s_add_u32 s46, s46, s41
    s_mul_i32 s46, s46, 192
    v_add_u32 v59, s46, v0
    v_lshlrev_b32 v60, 7, v59
    v_add_u32 v60, {WS_W2F}, v60''')
        for n in range(npf):
            A(f'''
    v_add_u32 v61, {64*n}, v59
    v_cmp_gt_u32 vcc, 23040, v61
    v_cndmask_b32 v{62+n}, v15, v60, vcc
    buffer_load_dword v{66+n}, v{62+n}, s[16:19], 0 offen
    v_add_u32 v60, 8192, v60''')
    stamp(A, opts, 1)

def gen_attn(A, opts):
    NAW = 4
    SA = 16; KB = 48; VB = 64; Q = 80; O = 96; G = 112
    VK = 116; VK2 = 117; VV0 = 118; VV1 = 119; VO1 = 120; VO2 = 121
    NQT = 4; KPW = 6
    A(f'''
    {'s_setprio 2' if opts.get('prio', 1) else ''}
    s_lshr_b32 s59, s32, 2              ; qb
    s_lshl_b32 s33, s59, 8              ; Q0
    s_and_b32 s34, s32, 3
    s_lshl_b32 s35, s31, 2
    s_add_u32 s34, s34, s35             ; head
    s_add_u32 s35, s34, 32
    s_mul_i32 s35, s35, 98304
    s_mul_i32 s40, s33, 48
    s_add_u32 s35, s35, s40
    s_sub_u32 s35, s35, {256*48 - WS_QK}
    v_lshlrev_b32 v3, 4, v0
    s_mul_i32 s37, s30, {KPW*1024}
    s_add_u32 s35, s35, s37
    s_cmp_eq_u32 s59, 0
    s_cselect_b32 s38, 1, 0
    s_cmp_lt_u32 s30, {NAW//2}
    s_cselect_b32 s39, s38, 0
    s_waitcnt lgkmcnt(0)
    s_mov_b32 s16, s28
    s_mov_b32 s17, s29
    s_mov_b32 s18, {WS_END}
    s_mov_b32 s19, 0x00020000
    s_mov_b32 s92, s28
    s_mov_b32 s93, s29
    s_mov_b32 s94, {WS_PROF_END}
    s_mov_b32 s95, 0x00020000
    s_cmp_eq_u32 s39, 1
    s_cbranch_scc1 K2_kfill''')
    for j in range(KPW):
        A(f'''
    s_add_u32 m0, s37, {KL + j*1024}
    s_add_u32 s40, s35, {j*1024}
    buffer_load_dwordx4 v3, s[16:19], s40 offen lds''')
    A(f'''
    s_branch K2_kdone
K2_kfill:
    v_mov_b32 v5, 0
    v_mov_b32 v7, 0
    s_mul_i32 s40, s30, {KPW*64}
    v_add_u32 v8, s40, v0
    s_mov_b32 s41, 0x5555556''')
    for j in range(KPW):
        A(f'''
    v_mul_hi_u32 v9, v8, s41
    v_mul_u32_u24 v9, 48, v9
    v_sub_u32 v9, v8, v9
    v_cmp_le_u32 vcc, 40, v9
    v_mov_b32 v6, 0x3f80
    v_cndmask_b32 v6, 0, v6, vcc
    v_mov_b32 v4, v6
    v_lshlrev_b32 v9, 4, v8
    ds_write_b128 v9, v[4:7] offset:{KL}
    v_add_u32 v8, 64, v8''')
    A(f'''
K2_kdone:
    s_mul_i32 s36, s30, {NQT*16}
    s_add_u32 s36, s36, s33
    s_mul_i32 s35, s34, 98304
    s_mul_i32 s40, s36, 48
    s_add_u32 s35, s35, s40
    v_lshlrev_b32 v4, 3, v0
    v_lshlrev_b32 v5, 3, v1''')
    for t in range(NQT):
        A(f'    buffer_load_dwordx2 {vr(Q+4*t,2)}, v4, s[16:19], s35 offen offset:{WS_QK + t*768}')
        A(f'    buffer_load_dwordx2 {vr(Q+4*t+2,2)}, v5, s[16:19], s35 offen offset:{WS_QK + t*768 + 512}')
    A(f'''
    s_lshl_b32 s40, s36, 2
    s_add_u32 s40, s40, {WS_G}
    v_lshlrev_b32 v5, 2, v1''')
    for t in range(NQT):
        A(f'    buffer_load_dword v{G+t}, v5, s[16:19], s40 offen offset:{t*64}')
    A(f'''
    ; V gather: q = 64*(w+4j) + lane ; bg = q/21, d = q%21 ; blk = Q0/32 - 8 + bg/4 ; g = bg&3 ; n = 20*head + d
    s_lshl_b32 s40, s30, 6
    v_add_u32 v3, s40, v0
    s_mov_b32 s41, 0xc30c30d
    s_mul_i32 s43, s34, 20
    s_lshr_b32 s35, s33, 5
    s_sub_u32 s35, s35, 8
    v_mov_b32 v9, {WS_ONES}
    s_lshl_b32 s37, s30, 10''')
    for j in range(6):
        if j == 5: A('    s_cmp_eq_u32 s30, 0\n    s_cbranch_scc0 K2_vdone')
        A(f'''
    v_mul_hi_u32 v4, v3, s41
    v_mul_u32_u24 v5, 21, v4
    v_sub_u32 v5, v3, v5
    v_lshrrev_b32 v6, 2, v4
    v_add_u32 v6, s35, v6
    v_and_b32 v4, 3, v4
    v_add_u32 v7, s43, v5
    v_lshrrev_b32 v8, 4, v7
    v_lshl_add_u32 v6, v8, 6, v6
    v_lshl_add_u32 v6, v6, 2, v4
    v_and_b32 v7, 15, v7
    v_lshlrev_b32 v7, 4, v7
    v_lshl_add_u32 v6, v6, 8, v7
    v_add_u32 v6, {WS_VT}, v6
    v_cmp_eq_u32 vcc, 20, v5
    v_cndmask_b32 v6, v6, v9, vcc
    s_add_u32 m0, s37, {VL + j*4096}
    v_add_u32 v3, 256, v3
    buffer_load_dwordx4 v6, s[16:19], 0 offen lds''')
    A(f'''K2_vdone:
    s_barrier
    v_mov_b32 v3, {C1}
    v_mov_b32 v4, 1
    s_mov_b64 exec, 1
    ds_add_u32 v3, v4
    s_mov_b64 exec, -1
    s_mul_i32 s40, s30, {NQT*768}
    v_lshlrev_b32 v{VK}, 3, v0
    v_add_u32 v{VK}, s40, v{VK}
    v_add_u32 v{VK2}, 768, v{VK}
    s_mul_i32 s40, s30, {NQT*672}
    s_add_u32 s40, s40, {VL}
    v_mul_u32_u24 v6, 336, v2
    v_add_u32 v6, s40, v6
    v_lshl_add_u32 v{VV0}, v1, 4, v6
    v_add_u32 v7, 16, v1
    v_min_u32 v7, 20, v7
    v_lshl_add_u32 v{VV1}, v7, 4, v6
    s_mul_i32 s41, s34, 3
    v_lshrrev_b32 v6, 1, v2
    v_add_u32 v6, s41, v6
    v_lshrrev_b32 v7, 2, v6
    v_lshlrev_b32 v7, 12, v7
    v_and_b32 v8, 3, v6
    v_lshl_add_u32 v7, v8, 8, v7
    v_and_b32 v8, 1, v2
    v_lshl_add_u32 v7, v8, 10, v7
    v_lshl_add_u32 v{VO1}, v1, 4, v7
    s_add_u32 s41, s41, 2
    s_lshr_b32 s42, s41, 2
    s_lshl_b32 s42, s42, 12
    s_and_b32 s43, s41, 3
    s_lshl_b32 s43, s43, 8
    s_add_u32 s42, s42, s43
    v_lshl_add_u32 v7, v2, 10, s42
    v_lshl_add_u32 v{VO2}, v1, 4, v7
    v_mov_b32 v13, 0x80000000
    v_cmp_gt_u32 vcc, 2, v2
    v_cndmask_b32 v{VO2}, v13, v{VO2}, vcc
    s_lshr_b32 s42, s36, 6
    s_mul_i32 s42, s42, {24*4096}
    s_add_u32 s42, s42, {WS_OP}
    v_lshlrev_b32 v8, 2, v2
    v_sub_u32 v8, v1, v8''')
    for r in range(4):
        A(f'    v_cmp_gt_i32 s[{44+2*r}:{45+2*r}], {r}, v8')
    A(f'''
    v_mov_b32 v14, 0xff800000
    v_cmp_eq_u32 s[54:55], 1, v2
    v_cmp_lt_u32 s[52:53], 0, v2
    s_cmp_eq_u32 s30, 0
    s_cbranch_scc0 K2_nopad
    v_mov_b32 v8, 0
    v_lshlrev_b32 v9, 2, v0
    ds_write_b32 v9, v8 offset:24576
K2_nopad:''')
    stamp(A, opts, 3)
    A(f'''
    v_mov_b32 v9, 0xf149
    v_mov_b32 v3, {CK}
    v_mov_b32 v4, 1
    s_waitcnt vmcnt(0) lgkmcnt(0)
    s_mov_b64 exec, 1
    ds_add_u32 v3, v4
    s_mov_b64 exec, -1''')
    for t in range(NQT):
        q = Q + 4 * t
        A(f'''
    v_cndmask_b32 v{q+2}, v{q+2}, 0, s[52:53]
    v_cndmask_b32 v{q+3}, v{q+3}, 0, s[52:53]
    v_cndmask_b32 v{q+2}, v{q+2}, v9, s[54:55]''')
    A(f'''
K2_kwait:
    ds_read_b32 v4, v3
    s_waitcnt lgkmcnt(0)
    v_readfirstlane_b32 s58, v4
    s_cmp_lt_u32 s58, {NAW}
    s_cbranch_scc1 K2_kwait''')
    stamp(A, opts, 4)
    def sa(st, q, t): return SA + 16 * st + 8 * q + 4 * t
    def kb(st, t): return KB + 8 * st + 4 * t
    def vb(st, d): return VB + 8 * st + 4 * d
    def loads(st):
        return [f'    ds_read2st64_b64 {vr(kb(st,0),4)}, v{VK} offset0:0 offset1:1',
                f'    ds_read2st64_b64 {vr(kb(st,1),4)}, v{VK2} offset0:0 offset1:1',
                f'    ds_read_b128 {vr(vb(st,0),4)}, v{VV0}',
                f'    ds_read_b128 {vr(vb(st,1),4)}, v{VV1}']
    def adv(n=1):
        return [f'    v_add_u32 v{VK}, {1536*n & 0xffffffff}, v{VK}', f'    v_add_u32 v{VK2}, {1536*n & 0xffffffff}, v{VK2}',
                f'    v_add_u32 v{VV0}, {1344*n & 0xffffffff}, v{VV0}', f'    v_add_u32 v{VV1}, {1344*n & 0xffffffff}, v{VV1}']
    def skip(q, T): return (q == 0 and T == 17) or (q == 1 and T == 0)
    def smfma(st, bb):
        return [f'    v_mfma_f32_16x16x32_bf16 {vr(sa(st,q,t),4)}, {vr(kb(st,t),4)}, {vr(Q+4*q,4)}, 0'
                for q in range(2) for t in range(2) if not skip(q, 2 * bb + t)]
    def masks(q, T, v):
        L = []
        if (q == 0 and T == 0) or (q == 1 and T == 1):
            L += [f'    v_cndmask_b32 v{v+r}, v14, v{v+r}, s[{44+2*r}:{45+2*r}]' for r in range(4)]
        if (q == 0 and T == 16) or (q == 1 and T == 17):
            L += [f'    v_cndmask_b32 v{v+r}, v{v+r}, v14, s[{44+2*r}:{45+2*r}]' for r in range(4)]
        return L
    def packpv(st, bb, q):
        L = []
        p = sa(st, q, 0)
        for t in range(2):
            v = sa(st, q, t)
            if skip(q, 2 * bb + t):
                L += [f'    v_mov_b32 v{p+2*t}, 0', f'    v_mov_b32 v{p+2*t+1}, 0']
            else:
                L += [f'    v_cvt_pk_bf16_f32 v{p+2*t}, v{v}, v{v+1}', f'    v_cvt_pk_bf16_f32 v{p+2*t+1}, v{v+2}, v{v+3}']
        M = []
        for d in range(2):
            o = O + 8 * q + 4 * d
            M.append(f'    v_mfma_f32_16x16x32_bf16 {vr(o,4)}, {vr(vb(st,d),4)}, {vr(p,4)}, {vr(o,4)}')
        return L, M
    def body(st, bb, has_next):
        nx = st ^ 1
        if has_next:
            for l in adv(): A(l)
            for l in loads(nx): A(l)
        def valu(q):
            L = []
            for t in range(2):
                T = 2 * bb + t; v = sa(st, q, t)
                if skip(q, T): continue
                L += masks(q, T, v)
                L += [f'    v_exp_f32 v{v+r}, v{v+r}' for r in range(4)]
            return L
        for l in valu(0): A(l)
        P0, M0 = packpv(st, bb, 0)
        for l in P0: A(l)
        v1 = valu(1)
        ms = list(M0)
        if has_next:
            ms = ms + ['    s_waitcnt lgkmcnt(0)'] + smfma(nx, bb + 1)
        i = 0
        for l in v1:
            A(l)
            if i < len(ms):
                A(ms[i]); i += 1
                if i < len(ms) and ms[i - 1].strip().startswith('s_waitcnt'):
                    A(ms[i]); i += 1
        while i < len(ms):
            A(ms[i]); i += 1
        P1, M1 = packpv(st, bb, 1)
        for l in P1: A(l)
        for l in M1: A(l)
    A('    s_mov_b32 s60, 0')
    A('K2_pair:')
    for r in range(16): A(f'    v_mov_b32 v{O+r}, 0')
    for l in loads(0): A(l)
    A('    s_waitcnt lgkmcnt(0)')
    for l in smfma(0, 0): A(l)
    body(0, 0, True)
    A('    s_mov_b32 s58, 0')
    A('K2_floop:')
    body(1, 1, True)
    body(0, 2, True)
    A('''
    s_add_u32 s58, s58, 1
    s_cmp_lt_u32 s58, 3
    s_cbranch_scc1 K2_floop''')
    body(1, 7, True)
    body(0, 8, False)
    def lbcast():
        A(f'''
    v_mov_b32 v3, v{O+4}
    v_mov_b32 v4, v{O+4}
    v_permlane16_swap_b32 v4, v3
    v_mov_b32 v4, v3
    v_permlane32_swap_b32 v4, v3
    v_mov_b32 v5, v{O+12}
    v_mov_b32 v6, v{O+12}
    v_permlane16_swap_b32 v6, v5
    v_mov_b32 v6, v5
    v_permlane32_swap_b32 v6, v5''')
    lbcast()
    A(f'''
    v_min_f32 v7, v4, v6
    v_max_f32 v8, v4, v6
    s_mov_b32 s61, 0x17800000          ; 2^-80
    s_mov_b32 s62, 0x5d800000          ; 2^60
    v_cmp_nle_f32 vcc, s61, v7
    s_mov_b64 s[56:57], vcc
    v_cmp_nge_f32 vcc, s62, v8
    s_or_b64 s[56:57], s[56:57], vcc
    s_cmp_lg_u64 s[56:57], 0
    s_cbranch_scc1 K2_fallback
K2_fin:
    v_rcp_f32 v4, v4
    v_rcp_f32 v6, v6
    v_mul_f32 v4, v4, v{G}
    v_mul_f32 v6, v6, v{G+1}''')
    for q in range(2):
        o = O + 8 * q; sc = 4 if q == 0 else 6
        for r in range(8): A(f'    v_mul_f32 v{o+r}, v{o+r}, v{sc}')
    oa = O; ob = O + 8
    A(f'''
    v_cvt_pk_bf16_f32 v16, v{oa}, v{oa+1}
    v_cvt_pk_bf16_f32 v17, v{oa+2}, v{oa+3}
    v_cvt_pk_bf16_f32 v18, v{ob}, v{ob+1}
    v_cvt_pk_bf16_f32 v19, v{ob+2}, v{ob+3}
    v_cvt_pk_bf16_f32 v20, v{oa+4}, v{oa+5}
    v_cvt_pk_bf16_f32 v21, v{oa+6}, v{oa+7}
    v_cvt_pk_bf16_f32 v24, v{ob+4}, v{ob+5}
    v_cvt_pk_bf16_f32 v25, v{ob+6}, v{ob+7}
    v_mov_b32 v22, 0
    v_mov_b32 v23, 0
    v_permlane16_swap_b32 v16, v18
    v_permlane16_swap_b32 v17, v19
    v_permlane16_swap_b32 v20, v24
    v_permlane16_swap_b32 v21, v25
    buffer_store_dwordx4 v[16:19], v{VO1}, s[16:19], s42 offen sc1
    buffer_store_dwordx4 v[20:23], v{VO2}, s[16:19], s42 offen sc1
    s_add_u32 s42, s42, 2048
    s_add_u32 s60, s60, 1
    s_cmp_ge_u32 s60, 2
    s_cbranch_scc1 K2_attn_end''')
    for l in adv(-7): A(l)
    for r in range(8): A(f'    v_mov_b32 v{Q+r}, v{Q+8+r}')
    A(f'''
    v_mov_b32 v{G}, v{G+2}
    v_mov_b32 v{G+1}, v{G+3}
    s_branch K2_pair
K2_attn_end:''')
    stamp(A, opts, 5)
    A(f'''
    s_lshr_b32 s58, s36, 6
    s_lshl_b32 s58, s58, 5
    s_add_u32 s58, s58, s34
    s_lshl_b32 s58, s58, 2
    s_add_u32 s58, s58, {WS_FLAG2}
    v_mov_b32 v3, s58
    v_mov_b32 v4, 1
    s_waitcnt vmcnt(0)
    s_mov_b64 exec, 1
    buffer_store_dword v4, v3, s[16:19], 0 offen sc1
    s_mov_b64 exec, -1''')
    if opts.get('wo_attn', 0): gen_wo(A, opts)
    else:
        if opts.get('prof'):
            A('    s_waitcnt vmcnt(0)')
            stamp(A, opts, 7)
            stamp_flush(A, opts)
        A('    s_branch KF_done')
    def _fallback():
        A('K2_fallback:')
        for l in adv(-8): A(l)
        A('    v_mov_b32 v10, 0xff7fffff\n    v_mov_b32 v11, 0xff7fffff')
        for r in range(16): A(f'    v_mov_b32 v{O+r}, 0')
        for bb in range(9):
            for l in loads(0): A(l)
            if bb < 8:
                for l in adv(): A(l)
            A('    s_waitcnt lgkmcnt(0)')
            for l in smfma(0, bb): A(l)
            A('    s_nop 7')
            for q in range(2):
                vals = []
                for t in range(2):
                    T = 2 * bb + t; v = sa(0, q, t)
                    if skip(q, T): continue
                    for l in masks(q, T, v): A(l)
                    vals += [v + r for r in range(4)]
                m = 10 + q
                A(f'    v_mov_b32 v5, v{m}')
                for v in vals: A(f'    v_max_f32 v5, v5, v{v}')
                A(f'''
        v_mov_b32 v6, v5
        v_permlane16_swap_b32 v6, v5
        v_max_f32 v5, v5, v6
        v_mov_b32 v6, v5
        v_permlane32_swap_b32 v6, v5
        v_max_f32 v5, v5, v6
        v_sub_f32 v6, v{m}, v5
        v_exp_f32 v6, v6
        v_mov_b32 v{m}, v5''')
                o = O + 8 * q
                for r in range(8): A(f'    v_mul_f32 v{o+r}, v{o+r}, v6')
                for v in vals:
                    A(f'    v_sub_f32 v{v}, v{v}, v5')
                    A(f'    v_exp_f32 v{v}, v{v}')
                P, M = packpv(0, bb, q)
                for l in P + M: A(l)
                A('    s_nop 7')
        A('    s_nop 7')
        lbcast()
        A('    s_branch K2_fin')
    return _fallback

ACC = 16
RB = 96
VL16 = 240; VL16B = 241; GM = 12
CG = C1 + 12; CF = C1 + 16
def acc(u, mt): return ACC + (u * 4 + mt) * 4
def aslot(s, mt): return RB + 36 * s + 4 * mt
def wslot(s, u): return RB + 36 * s + 16 + 4 * u
def loadsA(slot, sc=''):
    L = [f'    buffer_load_dwordx4 {vr(aslot(slot,mt),4)}, v{VL16}, s[16:19], s41 offen offset:{mt*1024}{sc}' for mt in range(4)]
    L[-1] += '\n    s_add_u32 s41, s41, 4096'
    return L
def loadsW(slot):
    L = [f'    buffer_load_dwordx4 {vr(wslot(slot,u),4)}, v{VL16}, s[16:19], s42 offen offset:{u*1024}' for u in range(4)]
    L.append(f'    buffer_load_dwordx4 {vr(wslot(slot,4),4)}, v{VL16B}, s[16:19], s42 offen\n    s_add_u32 s42, s42, 40960')
    return L
def gstep(A, slot, loads, wait, first=False):
    A(f'    s_waitcnt vmcnt({wait})')
    li = 0; k = 0
    for u in range(5):
        for mt in range(4):
            d = vr(acc(u, mt), 4)
            c = '0' if first else d
            A(f'    v_mfma_f32_16x16x32_bf16 {d}, {vr(wslot(slot,u),4)}, {vr(aslot(slot,mt),4)}, {c}')
            k += 1
            if k % 2 == 0 and li < len(loads):
                A(loads[li]); li += 1
    while li < len(loads):
        A(loads[li]); li += 1
def gemm_ids(A, wsub, opts={}):
    if opts.get('gmap', 1) == 0:
        gm = '''s_and_b32 s34, s32, 3
    s_lshl_b32 s35, s31, 2
    s_add_u32 s34, s34, s35
    s_lshr_b32 s35, s32, 2'''
    else:
        gm = '''s_lshr_b32 s34, s31, 1
    s_lshl_b32 s34, s34, 3
    s_and_b32 s35, s32, 7
    s_add_u32 s34, s34, s35
    s_and_b32 s35, s31, 1
    s_lshl_b32 s35, s35, 2
    s_lshr_b32 s46, s32, 3
    s_add_u32 s35, s35, s46'''
    A(f'''
    s_sub_u32 s33, s30, {wsub}
    {gm}
    s_lshl_b32 s36, s34, 6             ; row0
    s_mul_i32 s43, s35, 5
    v_lshlrev_b32 v{VL16}, 4, v0
    v_add_u32 v{VL16B}, 4096, v{VL16}''')

def gen_gemm(A, opts):
    A('    s_barrier')
    gemm_ids(A, 4, opts)
    A(f'''
    s_mul_i32 s41, s34, 48
    s_mul_i32 s42, s33, 12
    s_add_u32 s41, s41, s42
    s_lshl_b32 s41, s41, 12
    s_add_u32 s41, s41, {WS_H}
    s_mul_i32 s42, s42, 40
    s_add_u32 s42, s42, s43
    s_lshl_b32 s42, s42, 10
    s_add_u32 s42, s42, {WS_W2F}
    s_lshl_b32 s40, s36, 2
    s_add_u32 s40, s40, {WS_G}
    v_lshlrev_b32 v3, 2, v1''')
    stamp(A, opts, 3)
    for mt in range(4):
        A(f'    buffer_load_dword v{GM+mt}, v3, s[16:19], s40 offen offset:{64*mt}')
    gd = opts.get('gdelay', 2)
    if gd:
        wait_lds(A, 'K2_gwait', CK if gd == 1 else C1, 4)
    for sl in range(3):
        for l in loadsW(sl) + loadsA(sl): A(l)
    stamp(A, opts, 4)
    gstep(A, 0, loadsA(3) + loadsW(3), 18, first=True)
    for sl in range(1, 4):
        gstep(A, sl, loadsA((sl + 3) % 4) + loadsW((sl + 3) % 4), 18)
    for sl in range(4):
        gstep(A, sl, loadsA((sl + 3) % 4) + loadsW((sl + 3) % 4), 18)
    gstep(A, 0, loadsA(3) + loadsW(3), 18)
    gstep(A, 1, [], 18)
    gstep(A, 2, [], 9)
    gstep(A, 3, [], 0)
    stamp(A, opts, 5)
    for mt in range(4):
        A(f'    v_sub_f32 v{GM+mt}, 1.0, v{GM+mt}')
    A(f'''
    s_mul_i32 s39, s33, 20480
    s_add_u32 s39, s39, {RED0}
    v_add_u32 v4, s39, v{VL16}
    s_nop 4''')
    for u in range(5):
        for mt in range(4):
            for r in range(4):
                a0 = acc(u, mt) + r
                A(f'    v_mul_f32 v{a0}, v{a0}, v{GM+mt}')
            A(f'    ds_write_b128 v4, {vr(acc(u,mt),4)} offset:{(mt*5+u)*1024}')
    A(f'''
    v_mov_b32 v3, {CG}
    v_mov_b32 v4, 1
    s_waitcnt lgkmcnt(0)
    s_mov_b64 exec, 1
    ds_add_u32 v3, v4
    s_mov_b64 exec, -1''')
    wait_lds(A, 'K2_cg', CG, 4, 1)
    A(f'''
    s_mul_i32 s45, s33, 5120
    s_add_u32 s45, s45, {RED0}
    v_add_u32 v4, s45, v{VL16}
    v_add_u32 v8, {2*20480}, v4''')
    T = RB
    for w in range(4):
        for u in range(5):
            A(f'    ds_read_b128 {vr(T+(w*5+u)*4,4)}, v{4 if w < 2 else 8} offset:{(w%2)*20480 + u*1024}')
    A('    s_waitcnt lgkmcnt(0)')
    for u in range(5):
        for r in range(4):
            t0 = T + u * 4 + r
            A(f'''
    v_add_f32 v{t0}, v{t0}, v{t0+20}
    v_add_f32 v{t0+40}, v{t0+40}, v{t0+60}
    v_add_f32 v{t0}, v{t0}, v{t0+40}''')
    A(f'''
    s_mul_i32 s45, s33, 5120
    s_add_u32 s45, s45, s39
    v_add_u32 v4, s45, v{VL16}''')
    for u in range(5):
        A(f'    ds_write_b128 v4, {vr(T+u*4,4)} offset:{u*1024}')
    A(f'''
    v_mov_b32 v3, {CF}
    v_mov_b32 v4, 1
    s_waitcnt lgkmcnt(0)
    s_mov_b64 exec, 1
    ds_add_u32 v3, v4
    s_waitcnt lgkmcnt(0)
    s_mov_b64 exec, -1''')
    if opts.get('prof'):
        stamp(A, opts, 7)
        stamp_flush(A, opts)

def final_reduce(A, opts):
    T = RB
    OSF = {0: '', 1: ' sc1', 2: ' nt'}[opts.get('osf', 0)]
    A(f'''
    s_mul_i32 s39, s33, 20480
    s_add_u32 s39, s39, {RED0}
    v_add_u32 v4, s39, v{VL16}
    s_nop 7''')
    for mt in range(4):
        A(f'    s_cmp_eq_u32 s33, {mt}\n    s_cbranch_scc1 K2_skipw{mt}')
        for u in range(5):
            A(f'    ds_write_b128 v4, {vr(acc(u,mt),4)} offset:{(mt*5+u)*1024}')
        A(f'    s_branch K2_donew{mt}')
        A(f'K2_skipw{mt}:')
        for u in range(5):
            for r in range(4):
                A(f'    v_mov_b32 v{T+60+u*4+r}, v{acc(u,mt)+r}')
        A(f'K2_donew{mt}:')
    A(f'''
    s_lshl_b32 s45, s33, 4
    s_add_u32 s45, s45, s36
    s_mul_i32 s45, s45, 1280
    s_mul_i32 s46, s35, 160
    s_add_u32 s45, s45, s46
    s_movk_i32 s37, 1280
    v_mul_lo_u32 v5, v1, s37
    v_and_b32 v6, 1, v2
    v_lshlrev_b32 v6, 5, v6
    v_lshrrev_b32 v7, 1, v2
    v_lshl_add_u32 v6, v7, 4, v6
    v_add_u32 v6, v6, v5
    v_lshl_add_u32 v7, v2, 3, v5
    s_mul_i32 s46, s33, 5120
    s_add_u32 s46, s46, {RED0}''')
    for k in range(1, 4):
        A(f'''
    s_add_u32 s47, s33, {k}
    s_and_b32 s47, s47, 3
    s_mul_i32 s47, s47, 20480
    s_add_u32 s47, s47, s46
    v_add_u32 v{8+k}, s47, v{VL16}''')
    A('    s_waitcnt lgkmcnt(0)\n    s_barrier')
    for k in range(1, 4):
        for u in range(5):
            A(f'    ds_read_b128 {vr(T+((k-1)*5+u)*4,4)}, v{8+k} offset:{u*1024}')
    for u in range(5):
        A(f'    s_waitcnt lgkmcnt({14 - (10 + u)})' if False else '')
    A('    s_waitcnt lgkmcnt(0)')
    for u in range(5):
        for r in range(4):
            t0 = T + u * 4 + r
            A(f'''
    v_add_f32 v{t0}, v{t0}, v{t0+20}
    v_add_f32 v{t0+40}, v{t0+40}, v{t0+60}
    v_add_f32 v{t0}, v{t0}, v{t0+40}''')
    P = 16
    for pp in range(2):
        t = P + 4 * pp; d0 = T + 8 * pp; d1 = T + 8 * pp + 4
        A(f'''
    v_cvt_pk_bf16_f32 v{t}, v{d0}, v{d0+1}
    v_cvt_pk_bf16_f32 v{t+1}, v{d0+2}, v{d0+3}
    v_cvt_pk_bf16_f32 v{t+2}, v{d1}, v{d1+1}
    v_cvt_pk_bf16_f32 v{t+3}, v{d1+2}, v{d1+3}
    v_permlane16_swap_b32 v{t}, v{t+2}
    v_permlane16_swap_b32 v{t+1}, v{t+3}
    buffer_store_dwordx4 {vr(t,4)}, v6, s[20:23], s45 offen offset:{64*pp}{OSF}''')
    d0 = T + 16
    A(f'''
    v_cvt_pk_bf16_f32 v24, v{d0}, v{d0+1}
    v_cvt_pk_bf16_f32 v25, v{d0+2}, v{d0+3}
    buffer_store_dwordx2 v[24:25], v7, s[20:23], s45 offen offset:128{OSF}''')
    if opts.get('prof'):
        A('    s_waitcnt vmcnt(0)')
        stamp(A, opts, 7)
        stamp_flush(A, opts)

def gen_gemm_full(A, opts):
    gemm_ids(A, 4, opts)
    A(f'''
    s_waitcnt lgkmcnt(0)
    s_mov_b32 s16, s28
    s_mov_b32 s17, s29
    s_mov_b32 s18, {WS_END}
    s_mov_b32 s19, 0x00020000
    s_mov_b32 s92, s28
    s_mov_b32 s93, s29
    s_mov_b32 s94, {WS_PROF_END}
    s_mov_b32 s95, 0x00020000
    s_barrier
    s_mov_b32 s20, s90
    s_mov_b32 s21, s91
    s_mov_b32 s22, 2621440
    s_mov_b32 s23, 0x00020000
    s_mul_i32 s41, s34, 48
    s_mul_i32 s42, s33, 12
    s_add_u32 s41, s41, s42
    s_lshl_b32 s41, s41, 12
    s_add_u32 s41, s41, {WS_H}
    s_mul_i32 s42, s42, 40
    s_add_u32 s42, s42, s43
    s_lshl_b32 s42, s42, 10
    s_add_u32 s42, s42, {WS_W2F}
    s_lshl_b32 s40, s36, 2
    s_add_u32 s40, s40, {WS_G}
    v_lshlrev_b32 v3, 2, v1''')
    rot = opts.get('rot2', 0)
    if rot:
        A(f'''
    s_and_b32 s46, s34, 3
    s_mul_i32 s46, s46, 3
    s_mul_hi_u32 s47, s35, 0x55555556
    s_mul_i32 s47, s47, 3
    s_sub_u32 s47, s35, s47
    s_add_u32 s48, s46, s47
    s_lshl_b32 s46, s48, 12
    s_add_u32 s41, s41, s46
    s_mul_i32 s46, s48, 40960
    s_add_u32 s42, s42, s46''')
    WRAP = f'''
    s_add_u32 s48, s48, 1
    s_cmp_eq_u32 s48, 12
    s_cselect_b32 s46, {12*4096}, 0
    s_cselect_b32 s47, {12*40960}, 0
    s_cselect_b32 s48, 0, s48
    s_sub_u32 s41, s41, s46
    s_sub_u32 s42, s42, s47''' if rot else ''
    def stage_loads(sl, wfirst=False):
        L = (loadsW(sl) + loadsA(sl)) if wfirst else (loadsA(sl) + loadsW(sl))
        L[-1] += WRAP
        return L
    stamp(A, opts, 3)
    for mt in range(4):
        A(f'    buffer_load_dword v{GM+mt}, v3, s[16:19], s40 offen offset:{64*mt}')
    gd = opts.get('gdelay', 2)
    if gd:
        wait_lds(A, 'K2_gwait', CK if gd == 1 else C1, 4)
    for sl in range(3):
        for l in stage_loads(sl, True): A(l)
    stamp(A, opts, 4)
    gstep(A, 0, stage_loads(3), 18, first=True)
    for sl in range(1, 4):
        gstep(A, sl, stage_loads((sl + 3) % 4), 18)
    for sl in range(4):
        gstep(A, sl, stage_loads((sl + 3) % 4), 18)
    gstep(A, 0, stage_loads(3), 18)
    A(f'''
    s_mul_i32 s42, s33, 240
    s_add_u32 s42, s42, s43
    s_lshl_b32 s42, s42, 10
    s_add_u32 s42, s42, {WS_WOF}''')
    gstep(A, 1, loadsW(0), 18)
    gstep(A, 2, loadsW(1), 9 + 5)
    gstep(A, 3, loadsW(2), 5 + 5)
    stamp(A, opts, 5)
    for l in loadsW(3): A(l)
    for mt in range(4):
        A(f'    v_sub_f32 v{GM+mt}, 1.0, v{GM+mt}')
    A(f'''
    s_lshl_b32 s45, s34, 5
    s_lshl_b32 s46, s33, 3
    s_add_u32 s45, s45, s46
    s_lshl_b32 s45, s45, 2
    s_add_u32 s45, s45, {WS_FLAG2}
    s_mul_i32 s41, s34, 24
    s_mul_i32 s44, s33, 6
    s_add_u32 s41, s41, s44
    s_lshl_b32 s41, s41, 12
    s_add_u32 s41, s41, {WS_OP}
    s_nop 2''')
    for u in range(5):
        for mt in range(4):
            for r in range(4):
                a0 = acc(u, mt) + r
                A(f'    v_mul_f32 v{a0}, v{a0}, v{GM+mt}')
    poll_all(A, 'K2_s2', 's45', 2, opts.get('psleep2', 1))
    stamp(A, opts, 6)
    for sl in range(4):
        for l in loadsA(sl, ' sc1'): A(l)
    gstep(A, 0, [], 12)
    gstep(A, 1, loadsA(0, ' sc1') + loadsW(0), 8)
    gstep(A, 2, loadsA(1, ' sc1') + loadsW(1), 4 + 9)
    gstep(A, 3, [], 18)
    gstep(A, 0, [], 9)
    gstep(A, 1, [], 0)
    final_reduce(A, opts)

def gen_wo(A, opts):
    gemm_ids(A, 0, opts)
    A(f'''
    s_mov_b32 s20, s90
    s_mov_b32 s21, s91
    s_mov_b32 s22, 2621440
    s_mov_b32 s23, 0x00020000
    s_mul_i32 s42, s33, 240
    s_add_u32 s42, s42, s43
    s_lshl_b32 s42, s42, 10
    s_add_u32 s42, s42, {WS_WOF}''')
    for sl in range(4):
        for l in loadsW(sl): A(l)
    A(f'''
    s_lshl_b32 s45, s34, 5
    s_lshl_b32 s46, s33, 3
    s_add_u32 s45, s45, s46
    s_lshl_b32 s45, s45, 2
    s_add_u32 s45, s45, {WS_FLAG2}
    s_mul_i32 s41, s34, 24
    s_mul_i32 s44, s33, 6
    s_add_u32 s41, s41, s44
    s_lshl_b32 s41, s41, 12
    s_add_u32 s41, s41, {WS_OP}''')
    poll_all(A, 'K2_s2', 's45', 2, opts.get('psleep2', 1))
    stamp(A, opts, 6)
    for sl in range(4):
        for l in loadsA(sl, ' sc1'): A(l)
    gstep(A, 0, [], 12, first=True)
    stamp(A, opts, 3)
    gstep(A, 1, loadsA(0, ' sc1') + loadsW(0), 8)
    gstep(A, 2, loadsA(1, ' sc1') + loadsW(1), 4 + 9)
    gstep(A, 3, [], 18)
    gstep(A, 0, [], 9)
    gstep(A, 1, [], 0)
    stamp(A, opts, 1)
    wait_lds(A, 'K2_cf', CF, 4, 1)
    A(f'''
    s_mul_i32 s39, s33, 20480
    s_add_u32 s39, s39, {RED0}
    v_add_u32 v4, s39, v{VL16}
    s_mul_i32 s45, s33, 5120
    s_add_u32 s45, s45, s39
    v_add_u32 v5, s45, v{VL16}''')
    T = RB
    for mt in range(4):
        A(f'    s_cmp_eq_u32 s33, {mt}\n    s_cbranch_scc1 K2_skipw{mt}')
        for u in range(5):
            A(f'    ds_write_b128 v4, {vr(acc(u,mt),4)} offset:{(mt*5+u)*1024}')
        A(f'    s_branch K2_donew{mt}')
        A(f'K2_skipw{mt}:')
        for u in range(5):
            for r in range(4):
                A(f'    v_mov_b32 v{T+100+u*4+r}, v{acc(u,mt)+r}')
        A(f'K2_donew{mt}:')
    A('    s_waitcnt lgkmcnt(0)\n    s_barrier')
    stamp(A, opts, 2)
    A(f'''
    s_mul_i32 s45, s33, 5120
    s_add_u32 s45, s45, {RED0}
    v_add_u32 v4, s45, v{VL16}
    v_add_u32 v8, {2*20480}, v4''')
    for w in range(4):
        for u in range(5):
            A(f'    ds_read_b128 {vr(T+(w*5+u)*4,4)}, v{4 if w < 2 else 8} offset:{(w%2)*20480 + u*1024}')
    A(f'''
    s_lshl_b32 s45, s33, 4
    s_add_u32 s45, s45, s36
    s_mul_i32 s45, s45, 1280
    s_mul_i32 s46, s35, 160
    s_add_u32 s45, s45, s46
    s_movk_i32 s37, 1280
    v_mul_lo_u32 v5, v1, s37
    v_and_b32 v6, 1, v2
    v_lshlrev_b32 v6, 5, v6
    v_lshrrev_b32 v7, 1, v2
    v_lshl_add_u32 v6, v7, 4, v6
    v_add_u32 v6, v6, v5
    v_lshl_add_u32 v7, v2, 3, v5
    s_waitcnt lgkmcnt(0)''')
    for u in range(5):
        for r in range(4):
            t0 = T + u * 4 + r
            A(f'''
    v_add_f32 v{t0}, v{t0}, v{t0+20}
    v_add_f32 v{t0+40}, v{t0+40}, v{t0+60}
    v_add_f32 v{t0}, v{t0}, v{t0+100}
    v_add_f32 v{t0}, v{t0}, v{t0+40}''')
    P = 16
    for pp in range(2):
        t = P + 4 * pp; d0 = T + 8 * pp; d1 = T + 8 * pp + 4
        A(f'''
    v_cvt_pk_bf16_f32 v{t}, v{d0}, v{d0+1}
    v_cvt_pk_bf16_f32 v{t+1}, v{d0+2}, v{d0+3}
    v_cvt_pk_bf16_f32 v{t+2}, v{d1}, v{d1+1}
    v_cvt_pk_bf16_f32 v{t+3}, v{d1+2}, v{d1+3}
    v_permlane16_swap_b32 v{t}, v{t+2}
    v_permlane16_swap_b32 v{t+1}, v{t+3}
    buffer_store_dwordx4 {vr(t,4)}, v6, s[20:23], s45 offen offset:{64*pp}''')
    d0 = T + 16
    A(f'''
    v_cvt_pk_bf16_f32 v24, v{d0}, v{d0+1}
    v_cvt_pk_bf16_f32 v25, v{d0+2}, v{d0+3}
    buffer_store_dwordx2 v[24:25], v7, s[20:23], s45 offen offset:128''')
    if opts.get('prof'):
        A('    s_waitcnt vmcnt(0)')
        stamp(A, opts, 7)
        stamp_flush(A, opts)
    A('    s_branch KF_done')

def desc(name, vg):
    return f'''
.amdhsa_kernel {name}
  .amdhsa_next_free_vgpr {vg}
  .amdhsa_next_free_sgpr 102
  .amdhsa_accum_offset {vg}
  .amdhsa_group_segment_fixed_size 0
  .amdhsa_kernarg_size 80
  .amdhsa_user_sgpr_count 2
  .amdhsa_user_sgpr_kernarg_segment_ptr 1
  .amdhsa_system_sgpr_workgroup_id_x 1
.end_amdhsa_kernel
'''

if __name__ == '__main__':
    import sys
    out = sys.argv[1]
    opts = {}
    for kv in sys.argv[2:]:
        k, v = kv.split('=')
        opts[k] = int(v)
    HEADER = open('gated_mix__sliding_block__dense_activation_relu__prompt.s.ref').read().split('; Override launch')[0]
    o1 = dict(opts); o2 = dict(opts)
    if opts.get('prof') == 2: o1.pop('prof')
    a1 = Asm(); gen_k1(a1, o1)
    a2 = Asm(); gen_k2(a2, o2)
    txt = HEADER + f'; @launch kernel=k1_kernel grid=(256,1,1) block=(512,1,1) lds={LDS_BYTES}\n'
    if not opts.get('k1only'): txt += f'; @launch kernel=k2_kernel grid=(256,1,1) block=(512,1,1) lds={K2_LDS}\n'
    txt += '.amdgcn_target "amdgcn-amd-amdhsa--gfx950"\n.text\n'
    txt += '.globl k1_kernel\n.p2align 8\n.type k1_kernel,@function\n' + a1.fix() + '\n'
    txt += '.globl k2_kernel\n.p2align 8\n.type k2_kernel,@function\n' + a2.fix() + '\n'
    txt += '.section .rodata,"a"\n.p2align 6' + desc('k1_kernel', 232) + '.p2align 6' + desc('k2_kernel', 248)
    open(out, 'w').write(txt)
```

```python
from asmlib import *

WS_QK   = 0x000000
WS_VT   = 0x600000
WS_H    = 0x900000
WS_OP   = 0xF00000
WS_W2F  = 0x1200000
WS_WOF  = 0x13E0000
WS_G    = 0x14D0000
WS_FLAG2 = 0x14D2000
WS_ONES = 0x14D3000
WS_END  = 0x14D3100
WS_PROF = 0x1500000
WS_PROF_END = 0x1600000
LDS_BYTES = 163840
PK = 147456
C1 = 46336; CK = C1 + 4; CA = C1 + 8
KL = 0; VL = 24832; RED0 = 46592; K2_LDS = RED0 + 4*20480
KNAME = 'gated_mix__sliding_block__dense_activation_relu__prompt_kernel'

def stamp(A, opts, idx):
    if not opts.get('prof'): return
    A(f'    s_memtime s[{70+2*idx}:{71+2*idx}]')
    if idx == 0 or idx == 7:
        A(f'    s_memrealtime s[{86+2*(idx != 0)}:{87+2*(idx != 0)}]')

def stamp_flush(A, opts):
    if not opts.get('prof'): return
    A(f'''
    s_waitcnt lgkmcnt(0)
    s_lshl_b32 s96, s2, 4
    s_add_u32 s96, s96, s30
    s_lshl_b32 s96, s96, 7
    s_add_u32 s96, s96, {WS_PROF}
    v_mov_b32 v100, s96
    s_mov_b64 exec, 1''')
    for i in range(20):
        A(f'    v_mov_b32 v101, s{70+i}\n    buffer_store_dword v101, v100, s[92:95], 0 offen offset:{4*i}')
    A('    s_mov_b64 exec, -1')

def gen_k1(a, opts):
    A = a
    SF = {0: '', 1: ' sc1'}[opts.get('sf', 1)]
    A('k1_kernel:')
    A('''
    s_cmp_ge_u32 s2, 256
    s_cbranch_scc1 K1_done
    s_getpc_b64 s[60:61]''')
    stamp(A, opts, 0)
    A(f'''
    s_load_dwordx2 s[4:5], s[0:1], 0
    s_load_dwordx4 s[64:67], s[0:1], 8
    s_load_dwordx4 s[24:27], s[0:1], 32
    s_load_dwordx2 s[68:69], s[0:1], 48
    s_load_dwordx2 s[28:29], s[0:1], 72
    v_lshrrev_b32 v1, 6, v0
    v_and_b32 v0, 63, v0
    v_readfirstlane_b32 s30, v1
    s_and_b32 s31, s2, 7
    s_lshr_b32 s32, s2, 3
    s_cmp_lt_u32 s32, {opts.get('cpf', 1)}
    s_cbranch_scc0 K1_nocpf
    s_cmp_lt_u32 s30, 3
    s_cbranch_scc0 K1_nocpf
    s_lshl_b32 s46, s30, 13
    v_lshlrev_b32 v10, 7, v0
    v_add_u32 v10, s46, v10
    global_load_dword v226, v10, s[60:61]
K1_nocpf:
    s_and_b32 s33, s31, 1
    s_lshl_b32 s33, s33, 3
    s_and_b32 s34, s32, 7
    s_add_u32 s33, s33, s34
    s_lshr_b32 s34, s31, 1
    s_lshl_b32 s34, s34, 2
    s_lshr_b32 s35, s32, 3
    s_add_u32 s34, s34, s35
    s_lshl_b32 s40, s33, 7
    s_cmp_lt_u32 s34, 6
    s_cbranch_scc1 K1_sec_qk
    s_cmp_lt_u32 s34, 9
    s_cbranch_scc1 K1_sec_v
    s_mov_b32 s36, 2
    s_sub_u32 s37, s34, 9
    s_mul_i32 s37, s37, 14
    s_min_u32 s37, s37, 82
    s_lshl_b32 s38, s37, 5
    s_mov_b32 s39, 3072
    s_branch K1_sec_done
K1_sec_qk:
    s_mov_b32 s36, 0
    s_mul_i32 s37, s34, 14
    s_min_u32 s37, s37, 66
    s_lshl_b32 s38, s37, 5
    s_mov_b32 s39, 3840
    s_branch K1_sec_done
K1_sec_v:
    s_mov_b32 s36, 1
    s_sub_u32 s37, s34, 6
    s_mul_i32 s37, s37, 14
    s_min_u32 s37, s37, 26
    s_lshl_b32 s38, s37, 5
    s_add_u32 s38, s38, 2560
    s_mov_b32 s39, 3840
K1_sec_done:
    s_cmp_ge_u32 s30, 4
    s_cbranch_scc{'0 K1_compute' if opts.get('lfirst', 0) else '1 K1_loader'}
    ''')
    if opts.get('lfirst', 0):
        gen_p1_loader(A, opts, SF)
        A('    s_branch KF_p1done')
        A('K1_compute:')
        gen_p1_compute(A, opts, SF)
    else:
        gen_p1_compute(A, opts, SF)
        gen_p1_loader(A, opts, SF)
    A('KF_p1done:')
    if opts.get('prof') == 1:
        stamp(A, opts, 6)
        A('    s_waitcnt vmcnt(0)')
        stamp(A, opts, 7); stamp_flush(A, opts)
    A('K1_done:\n    s_endpgm')

def gen_k2(a, opts):
    A = a
    A('k2_kernel:')
    A('''
    s_cmp_ge_u32 s2, 256
    s_cbranch_scc1 KF_done''')
    stamp(A, opts, 0)
    A(f'''
    s_load_dwordx2 s[90:91], s[0:1], 56
    s_load_dwordx2 s[28:29], s[0:1], 72
    v_lshrrev_b32 v1, 6, v0
    v_and_b32 v0, 63, v0
    v_readfirstlane_b32 s30, v1
    s_and_b32 s31, s2, 7
    s_lshr_b32 s32, s2, 3
    v_and_b32 v1, 15, v0
    v_lshrrev_b32 v2, 4, v0
    s_mov_b32 s97, 1
    s_cmp_eq_u32 s30, 0
    s_cbranch_scc0 K2_noinit
    v_mov_b32 v8, 0
    v_mov_b32 v9, {C1}
    ds_write_b32 v9, v8 offset:0
    ds_write_b32 v9, v8 offset:4
    ds_write_b32 v9, v8 offset:8
    ds_write_b32 v9, v8 offset:12
    ds_write_b32 v9, v8 offset:16
    ds_write_b32 v9, v8 offset:20
    ds_write_b32 v9, v8 offset:24
K2_noinit:
    s_cmp_ge_u32 s30, 4
    s_cbranch_scc1 K2_gemm''')
    fbk = gen_attn(A, opts)
    A('K2_gemm:')
    if opts.get('wo_attn', 0): gen_gemm(A, opts)
    else: gen_gemm_full(A, opts)
    A('KF_done:\n    s_endpgm')
    fbk()

def wait_lds(A, label, addr, val, sleep=2):
    A(f'''
    v_mov_b32 v8, {addr}
{label}:
    ds_read_b32 v9, v8
    s_waitcnt lgkmcnt(0)
    v_readfirstlane_b32 s58, v9
    s_cmp_lt_u32 s58, {val}
    s_cbranch_scc0 {label}_ok
    s_sleep {sleep}
    s_branch {label}
{label}_ok:''')

def poll_all(A, label, base, n_lanes_x4, sleep=1):
    A(f'''
    v_lshlrev_b32 v3, 4, v0
    v_mov_b32 v8, 0x80000000
    v_cmp_gt_u32 vcc, {n_lanes_x4}, v0
    v_cndmask_b32 v3, v8, v3, vcc
    s_mov_b64 s[56:57], vcc
{label}:
    buffer_load_dwordx4 v[4:7], v3, s[16:19], {base} offen sc1
    s_waitcnt vmcnt(0)
    v_xor_b32 v4, s97, v4
    v_xor_b32 v5, s97, v5
    v_xor_b32 v6, s97, v6
    v_xor_b32 v7, s97, v7
    v_or3_b32 v4, v4, v5, v6
    v_or_b32 v4, v4, v7
    v_cmp_ne_u32 vcc, 0, v4
    s_and_b64 vcc, vcc, s[56:57]
    s_cbranch_vccz {label}_ok
    s_sleep {sleep}
    s_branch {label}
{label}_ok:''')

def k1_srds(A, tag):
    A(f'''
    s_waitcnt lgkmcnt(0)
    s_mov_b32 s8, s4
    s_mov_b32 s9, s5
    s_mov_b32 s10, 2621440
    s_mov_b32 s11, 0x00020000
    s_mov_b32 s15, 0x00020000
    s_cmp_eq_u32 s36, 2
    s_cbranch_scc1 K1_srd_h{tag}
    s_mov_b32 s12, s64
    s_mov_b32 s13, s65
    s_mov_b32 s14, 2457600
    s_branch K1_srd_d{tag}
K1_srd_h{tag}:
    s_mov_b32 s12, s24
    s_mov_b32 s13, s25
    s_mov_b32 s14, 1966080
K1_srd_d{tag}:
    s_mov_b32 s16, s28
    s_mov_b32 s17, s29
    s_mov_b32 s18, {WS_END}
    s_mov_b32 s19, 0x00020000
    s_mov_b32 s92, s28
    s_mov_b32 s93, s29
    s_mov_b32 s94, {WS_PROF_END}
    s_mov_b32 s95, 0x00020000''')

def gen_p1_compute(A, opts, SF):
    ACC = 16
    def acc(uu, mt): return ACC + (uu * 4 + mt) * 4
    XS = [128, 172]; WSs = [144, 188]
    VAX = [216, 217]; VW = 218
    T = 128
    A(f'''
    s_and_b32 s41, s30, 1
    s_lshr_b32 s42, s30, 1
    v_and_b32 v1, 15, v0
    v_lshrrev_b32 v2, 4, v0
    v_and_b32 v3, 7, v1
    v_xor_b32 v3, v2, v3
    v_lshlrev_b32 v3, 4, v3
    v_lshl_add_u32 v3, v1, 7, v3
    s_lshl_b32 s43, s41, 13
    v_add_u32 v{VAX[0]}, s43, v3
    v_xor_b32 v{VAX[1]}, 64, v{VAX[0]}
    v_lshrrev_b32 v4, 2, v1
    v_and_b32 v5, 3, v0
    v_and_b32 v6, 1, v2
    v_lshl_or_b32 v6, v6, 2, v4
    v_lshl_add_u32 v7, v2, 3, v4
    v_lshlrev_b32 v7, 9, v7
    v_lshl_add_u32 v7, v5, 3, v7
    v_add_u32 v7, 16384, v7
    s_lshl_b32 s44, s42, 3
    s_add_u32 s45, s42, 6
    ''')
    for uu in range(7):
        if uu < 6: A(f'    s_add_u32 s46, s44, {uu}\n    v_xor_b32 v8, s46, v6')
        else:      A(f'    v_xor_b32 v8, s45, v6')
        A(f'    v_lshl_add_u32 v{VW+uu}, v8, 5, v7')
    for r in range(ACC, ACC + 112):
        A(f'    v_mov_b32 v{r}, 0')
    def reads(st, ks):
        R = []
        for mt in range(4):
            R.append(f'    ds_read_b128 {vr(XS[st]+4*mt,4)}, v{VAX[ks]} offset:{mt*2048}')
        for uu in range(7):
            for t in range(2):
                R.append(f'    ds_read_b64_tr_b16 {vr(WSs[st]+4*uu+2*t,2)}, v{VW+uu} offset:{(32*ks+4*t)*512}')
        return R
    def phase(st, rd, swapped, extra=()):
        k = 0
        extra = list(extra)
        for uu in range(7):
            for mt in range(4):
                w = vr(WSs[st] + 4 * uu, 4); x = vr(XS[st] + 4 * mt, 4); d = vr(acc(uu, mt), 4)
                if swapped: A(f'    v_mfma_f32_16x16x32_bf16 {d}, {w}, {x}, {d}')
                else:       A(f'    v_mfma_f32_16x16x32_bf16 {d}, {x}, {w}, {d}')
                if k < len(rd): A(rd[k])
                elif extra: A(extra.pop(0))
                k += 1
        for e in extra: A(e)
    def mainloop(tag, swapped):
        A(f'''
    s_mov_b32 s46, 0
    s_mov_b32 s47, 0
    s_mov_b32 s50, 0xfffe8000
    s_mov_b32 s51, 49152
    s_barrier''')
        for l in reads(0, 0): A(l)
        A(f'K1_loop_{tag}:')
        A('''
    s_add_u32 s47, s47, 1
    s_cmp_eq_u32 s47, 3
    s_cselect_b32 s48, s50, s51
    s_cselect_b32 s47, 0, s47
    s_waitcnt lgkmcnt(0)''')
        upd = [f'    v_add_u32 v{r}, s48, v{r}' for r in VAX + [VW + i for i in range(7)]]
        phase(0, reads(1, 1), swapped, upd)
        A('''
    s_waitcnt lgkmcnt(0)
    s_barrier''')
        phase(1, reads(0, 0), swapped, ['    s_add_u32 s46, s46, 1', '    s_cmp_lt_u32 s46, 10'])
        A(f'''
    s_cbranch_scc1 K1_loop_{tag}
    s_waitcnt lgkmcnt(0)
    s_nop 7''')
        stamp(A, opts, 1)
    k1_srds(A, 'c')
    if opts.get('tlbw', 0):
        G = opts.get('tlbw')
        A(f'''
    s_cmp_eq_u32 s32, 0
    s_cbranch_scc0 K1_notlb
    s_cmp_eq_u32 s30, 3
    s_cbranch_scc0 K1_notlb
    v_lshlrev_b32 v10, {G}, v0
    buffer_load_dword v227, v10, s[16:19], 0 offen
    s_load_dwordx2 s[62:63], s[0:1], 56
    s_waitcnt lgkmcnt(0)
    s_mov_b32 s20, s62
    s_mov_b32 s21, s63
    s_mov_b32 s22, 2621440
    s_mov_b32 s23, 0x00020000
    buffer_load_dword v228, v10, s[20:23], 0 offen
K1_notlb:''')
    for r in range(9, 15): A(f'    v_mov_b32 v{r}, 0x80000000')
    A('''
    s_cmp_eq_u32 s36, 1
    s_cbranch_scc1 K1_main_v
    s_cmp_eq_u32 s36, 2
    s_cbranch_scc1 K1_pre_h''')
    A(f'''
    s_lshl_b32 s43, s41, 2
    s_lshr_b32 s46, s40, 4
    s_add_u32 s43, s43, s46
    s_mul_i32 s43, s43, 768
    v_lshlrev_b32 v3, 3, v1
    v_add_u32 v3, s43, v3
    s_mov_b32 s49, 52429
    s_mov_b32 s52, 98304
    s_mov_b32 s53, 0x3ea52b5c''')
    for uu in range(7):
        if uu < 6: A(f'    s_add_u32 s46, s44, {uu}')
        else:      A(f'    s_mov_b32 s46, s45')
        A(f'''
    s_add_u32 s46, s46, s37
    s_lshl_b32 s46, s46, 2
    v_add_u32 v4, s46, v2
    v_mul_lo_u32 v5, v4, s49
    v_lshrrev_b32 v5, 18, v5
    v_mul_u32_u24 v6, 5, v5
    v_sub_u32 v6, v4, v6
    v_mul_lo_u32 v5, v5, s52
    v_lshl_add_u32 v5, v6, 7, v5
    v_add_u32 v{8+uu}, v5, v3''')
    A('    s_branch K1_pre_done')
    A(f'''K1_pre_h:
    s_lshl_b32 s43, s33, 1
    s_add_u32 s43, s43, s41
    s_mul_i32 s43, s43, {48*4096}
    s_add_u32 s43, s43, {WS_H}
    s_add_u32 s56, s37, s44
    s_lshl_b32 s56, s56, 11
    s_add_u32 s56, s56, s43
    v_and_b32 v4, 1, v2
    v_lshlrev_b32 v4, 1, v4
    v_lshrrev_b32 v5, 1, v2
    v_add_u32 v4, v4, v5
    v_lshl_add_u32 v4, v4, 4, v1
    v_lshlrev_b32 v4, 4, v4
    s_add_u32 s57, s37, 6
    s_lshl_b32 s57, s57, 11
    s_add_u32 s57, s57, s43
    s_lshl_b32 s48, s42, 1
    v_add_u32 v5, s48, v5
    v_lshl_add_u32 v5, v5, 4, v1
    v_lshlrev_b32 v5, 4, v5
    v_and_b32 v6, 1, v2
    v_lshl_add_u32 v5, v6, 10, v5
K1_pre_done:''')
    mainloop('s', True)
    A('''
    s_cmp_eq_u32 s36, 2
    s_cbranch_scc1 K1_epi_h''')
    for uu in range(7):
        if uu < 6: A(f'    s_add_u32 s46, s44, {uu}')
        else:      A(f'    s_mov_b32 s46, s45')
        A(f'''
    s_add_u32 s46, s46, s37
    s_cmp_lt_u32 s46, 40
    s_cselect_b32 s54, s53, 1.0
    s_mov_b32 s55, s54''')
        for mt in range(4):
            d = acc(uu, mt); t = T + (uu * 4 + mt) * 2
            A(f'''
    v_pk_mul_f32 {vr(d,2)}, {vr(d,2)}, s[54:55]
    v_pk_mul_f32 {vr(d+2,2)}, {vr(d+2,2)}, s[54:55]
    v_cvt_pk_bf16_f32 v{t}, v{d}, v{d+1}
    v_cvt_pk_bf16_f32 v{t+1}, v{d+2}, v{d+3}
    buffer_store_dwordx2 {vr(t,2)}, v{8+uu}, s[16:19], 0 offen offset:{WS_QK + mt*768}{SF}''')
    A('    s_branch KF_p1done')
    A('K1_epi_h:')
    n = 0
    for pp in range(3):
        A(f'    s_add_u32 s49, s56, {pp*4096}')
        for mt in range(4):
            t = T + n * 4; n += 1
            d0 = acc(2 * pp, mt); d1 = acc(2 * pp + 1, mt)
            A(f'''
    v_cvt_pk_bf16_f32 v{t}, v{d0}, v{d0+1}
    v_cvt_pk_bf16_f32 v{t+1}, v{d0+2}, v{d0+3}
    v_cvt_pk_bf16_f32 v{t+2}, v{d1}, v{d1+1}
    v_cvt_pk_bf16_f32 v{t+3}, v{d1+2}, v{d1+3}
    v_pk_max_i16 v{t}, v{t}, 0
    v_pk_max_i16 v{t+1}, v{t+1}, 0
    v_pk_max_i16 v{t+2}, v{t+2}, 0
    v_pk_max_i16 v{t+3}, v{t+3}, 0
    v_permlane16_swap_b32 v{t}, v{t+2}
    v_permlane16_swap_b32 v{t+1}, v{t+3}
    buffer_store_dwordx4 {vr(t,4)}, v4, s[16:19], s49 offen offset:{1024*mt}{SF}''')
    for pm in range(2):
        t = T + n * 4; n += 1
        d0 = acc(6, 2 * pm); d1 = acc(6, 2 * pm + 1)
        A(f'''
    v_cvt_pk_bf16_f32 v{t}, v{d0}, v{d0+1}
    v_cvt_pk_bf16_f32 v{t+1}, v{d0+2}, v{d0+3}
    v_cvt_pk_bf16_f32 v{t+2}, v{d1}, v{d1+1}
    v_cvt_pk_bf16_f32 v{t+3}, v{d1+2}, v{d1+3}
    v_pk_max_i16 v{t}, v{t}, 0
    v_pk_max_i16 v{t+1}, v{t+1}, 0
    v_pk_max_i16 v{t+2}, v{t+2}, 0
    v_pk_max_i16 v{t+3}, v{t+3}, 0
    v_permlane16_swap_b32 v{t}, v{t+2}
    v_permlane16_swap_b32 v{t+1}, v{t+3}
    buffer_store_dwordx4 {vr(t,4)}, v5, s[16:19], s57 offen offset:{2048*pm}{SF}''')
    A('    s_branch KF_p1done')
    A('K1_main_v:')
    A(f'''
    s_lshl_b32 s43, s41, 1
    s_lshr_b32 s46, s40, 5
    s_add_u32 s43, s43, s46
    s_lshl_b32 s43, s43, 10
    s_add_u32 s43, s43, {WS_VT}
    v_lshlrev_b32 v3, 4, v0
    v_add_u32 v3, s43, v3''')
    for uu in range(7):
        if uu < 6: A(f'    s_add_u32 s46, s44, {uu}')
        else:      A(f'    s_mov_b32 s46, s45')
        A(f'''
    s_add_u32 s46, s46, s37
    s_lshl_b32 s46, s46, 16
    v_add_u32 v{8+uu}, s46, v3''')
    mainloop('n', False)
    for uu in range(7):
        for pa in range(2):
            t = T + (uu * 2 + pa) * 4
            d0 = acc(uu, 2 * pa); d1 = acc(uu, 2 * pa + 1)
            A(f'''
    v_cvt_pk_bf16_f32 v{t}, v{d0}, v{d0+1}
    v_cvt_pk_bf16_f32 v{t+1}, v{d0+2}, v{d0+3}
    v_cvt_pk_bf16_f32 v{t+2}, v{d1}, v{d1+1}
    v_cvt_pk_bf16_f32 v{t+3}, v{d1+2}, v{d1+3}
    buffer_store_dwordx4 {vr(t,4)}, v{8+uu}, s[16:19], 0 offen offset:{1024*pa}{SF}''')
    A('    s_branch KF_p1done')

def gen_p1_loader(A, opts, SF):
    A(f'''K1_loader:
    s_sub_u32 s41, s30, 4
    v_lshrrev_b32 v1, 3, v0
    v_and_b32 v2, 7, v0
    v_lshlrev_b32 v21, 4, v2
    v_xor_b32 v2, v2, v1
    v_lshlrev_b32 v2, 4, v2
    s_movk_i32 s43, 1280
    v_mul_lo_u32 v1, v1, s43
    v_add_u32 v2, v2, v1
    v_add_u32 v21, v21, v1
    v_lshrrev_b32 v4, 5, v0
    s_and_b32 s44, s41, 1
    s_lshr_b32 s45, s41, 1
    s_lshl_b32 s46, s44, 1
    s_lshl_b32 s47, s45, 2
    s_or_b32 s46, s46, s47
    v_or_b32 v5, s46, v4
    v_bfe_u32 v6, v0, 1, 4
    v_xor_b32 v6, v6, v5
    v_mul_lo_u32 v7, v4, s39
    v_lshl_add_u32 v7, v6, 5, v7
    v_and_b32 v8, 1, v0
    v_lshl_add_u32 v3, v8, 4, v7
    v_mov_b32 v9, 0x80000000
    v_cmp_le_u32 vcc, 14, v6
    v_cndmask_b32 v3, v3, v9, vcc
    s_lshl_b32 s50, s41, 5
    s_add_u32 s50, s50, s40
    s_mul_i32 s50, s50, 1280
    s_add_u32 s52, s44, s47
    s_lshl_b32 s53, s52, 1
    s_mul_i32 s51, s53, s39
    s_add_u32 s51, s51, s38
    s_lshl_b32 s54, s39, 2
    s_mul_i32 s55, s39, 12
    s_lshl_b32 s56, s39, 6
    s_lshl_b32 s57, s41, 12
    s_lshl_b32 s58, s52, 10
    s_add_u32 s58, s58, 16384
    s_mov_b32 s59, 0
    s_and_b32 s46, s32, 7
    s_lshr_b32 s47, s32, 3
    s_add_u32 s46, s46, s47
    s_and_b32 s46, s46, {opts.get('rotng', 1) - 1}
    s_mul_i32 s90, s46, {opts.get('rotr', 0)}
    s_lshl_b32 s46, s90, 7
    s_add_u32 s50, s50, s46
    s_mul_i32 s46, s90, s56
    s_add_u32 s51, s51, s46
    s_mul_i32 s91, s56, 10
    ''')
    def issue():
        A('    s_add_u32 s60, s59, s57\n    s_add_u32 s61, s59, s58')
        for jj in range(4):
            A(f'''
    s_add_u32 m0, s60, {jj*1024}
    s_add_u32 s62, s50, {jj*10240}
    buffer_load_dwordx4 v2, s[8:11], s62 offen lds''')
        A('    s_mov_b32 s62, s51')
        i = 0
        for b in range(4):
            for aa in range(2):
                A(f'    s_add_u32 m0, s61, {(2*aa+8*b)*1024}')
                if i > 0: A(f'    s_add_u32 s62, s62, {"s54" if aa == 1 else "s55"}')
                else: A('    s_nop 0')
                A('    buffer_load_dwordx4 v3, s[12:15], s62 offen lds')
                i += 1
        A(f'''
    s_add_u32 s50, s50, 128
    s_add_u32 s51, s51, s56
    s_add_u32 s90, s90, 1
    s_cmp_eq_u32 s90, 10
    s_cselect_b32 s46, 1280, 0
    s_cselect_b32 s47, s91, 0
    s_cselect_b32 s90, 0, s90
    s_sub_u32 s50, s50, s46
    s_sub_u32 s51, s51, s47
    s_add_u32 s59, s59, 49152
    s_cmp_eq_u32 s59, 147456
    s_cselect_b32 s59, 0, s59''')
    k1_srds(A, 'l')
    issue(); issue()
    A('    s_waitcnt vmcnt(12)\n    s_barrier')
    issue()
    A(f'''
    s_lshl_b32 s63, s2, 2
    s_add_u32 s63, s63, s41
    s_mul_hi_u32 s46, s63, 0x1999999a
    s_mul_i32 s47, s46, 10
    s_sub_u32 s47, s63, s47
    s_cmp_lt_u32 s46, 48
    s_cbranch_scc0 K1_pk_wo
    s_mov_b32 s20, s26
    s_mov_b32 s21, s27
    s_mov_b32 s22, 1966080
    s_mul_i32 s34, s46, 40960
    s_add_u32 s35, s34, {WS_W2F}
    s_lshl_b32 s46, s47, 7
    s_add_u32 s34, s34, s46
    v_mov_b32 v50, v21
    v_add_u32 v51, 10240, v21
    v_add_u32 v52, 20480, v21
    v_add_u32 v53, 30720, v21
    s_branch K1_pk_go
K1_pk_wo:
    s_mov_b32 s20, s66
    s_mov_b32 s21, s67
    s_mov_b32 s22, 819200
    s_sub_u32 s46, s46, 48
    s_mul_i32 s35, s46, 40960
    s_add_u32 s35, s35, {WS_WOF}
    s_lshl_b32 s34, s47, 7
    s_lshl_b32 s46, s46, 5
    v_lshrrev_b32 v54, 3, v0
    v_add_u32 v54, s46, v54
    s_mov_b32 s46, 0xaaaaaab
    v_and_b32 v55, 7, v0
    v_lshlrev_b32 v55, 4, v55
    v_mov_b32 v58, 0x80000000''')
    for jj in range(4):
        A(f'''
    v_mul_hi_u32 v56, v54, s46
    v_mul_u32_u24 v57, 24, v56
    v_sub_u32 v57, v54, v57
    v_mul_u32_u24 v56, 20, v56
    v_add_u32 v56, v56, v57
    v_mul_u32_u24 v56, 1280, v56
    v_add_u32 v56, v56, v55
    v_cmp_gt_u32 vcc, 20, v57
    v_cndmask_b32 v{50+jj}, v58, v56, vcc
    v_add_u32 v54, 8, v54''')
    A(f'''
K1_pk_go:
    s_mov_b32 s23, 0x00020000
    s_lshl_b32 s46, s47, 12
    s_add_u32 s35, s35, s46
    s_cmp_ge_u32 s63, 720
    s_cselect_b32 s35, 0x7f000000, s35
    s_cselect_b32 s34, 0x7f000000, s34
    s_add_u32 s46, s57, {PK}''')
    for jj in range(4):
        A(f'''
    s_add_u32 m0, s46, {jj*1024}
    s_nop 0
    buffer_load_dwordx4 v{50+jj}, s[20:23], s34 offen lds''')
    A('    s_waitcnt vmcnt(16)\n    s_barrier')
    issue()
    A('    s_waitcnt vmcnt(16)\n    s_barrier')
    issue()
    A('    s_waitcnt vmcnt(12)\n    s_barrier')
    A(f'''
    v_lshrrev_b32 v10, 4, v0
    v_bfe_u32 v11, v0, 2, 2
    v_lshl_add_u32 v10, v10, 3, v11
    v_lshlrev_b32 v10, 7, v10
    v_and_b32 v11, 3, v0
    v_lshl_add_u32 v10, v11, 3, v10
    s_add_u32 s46, s57, {PK}
    v_add_u32 v10, s46, v10
    v_lshlrev_b32 v11, 4, v0''')
    for u in range(4):
        for t in range(2):
            A(f'    ds_read_b64_tr_b16 {vr(24+4*u+2*t,2)}, v10 offset:{t*512 + u*32}')
    issue()
    A('    s_waitcnt lgkmcnt(0)')
    for u in range(4):
        A(f'    buffer_store_dwordx4 {vr(24+4*u,4)}, v11, s[16:19], s35 offen offset:{u*1024} sc1')
    A('    s_waitcnt vmcnt(16)\n    s_barrier')
    issue()
    A('    s_waitcnt vmcnt(16)\n    s_barrier')
    mp = opts.get('midpf', 0)
    if mp:
        A(f'''
    s_lshl_b32 s46, s32, 2
    s_add_u32 s46, s46, s41
    s_mul_i32 s46, s46, 192
    v_add_u32 v59, s46, v0
    v_lshlrev_b32 v60, 7, v59
    v_add_u32 v60, {WS_W2F}, v60
    v_mov_b32 v58, 0x80000000''')
        for n in range(3):
            A(f'''
    v_add_u32 v61, {64*n}, v59
    v_cmp_gt_u32 vcc, 23040, v61
    v_cndmask_b32 v{62+n}, v58, v60, vcc
    v_add_u32 v60, 8192, v60''')
    def tch(n):
        if mp: A(f'    buffer_load_dword v{66+n}, v{62+n}, s[16:19], 0 offen')
    if opts.get('midpf_early'): tch(0)
    issue()
    if not opts.get('midpf_early'): tch(0)
    A(f'    s_waitcnt vmcnt({12 + mp})\n    s_barrier')
    issue()
    tch(1)
    A(f'    s_waitcnt vmcnt({12 + 2*mp})\n    s_barrier')
    issue()
    tch(2)
    A(f'''
    s_lshr_b32 s34, s31, 1
    s_lshl_b32 s34, s34, 2
    s_lshr_b32 s35, s32, 3
    s_add_u32 s34, s34, s35
    s_lshl_b32 s44, s34, 3
    s_add_u32 s44, s44, s40
    s_lshl_b32 s45, s41, 1
    s_add_u32 s44, s44, s45
    s_mul_i32 s45, s44, 1280
    s_mov_b32 s20, s68
    s_mov_b32 s21, s69
    s_mov_b32 s22, 1280
    s_mov_b32 s23, 0x00020000
    v_lshlrev_b32 v10, 2, v0''')
    for j in range(5):
        A(f'    buffer_load_dword v{16+j}, v10, s[20:23], 0 offen offset:{256*j}')
    for rr in range(2):
        for j in range(5):
            A(f'    buffer_load_dword v{24+8*rr+j}, v10, s[8:11], s45 offen offset:{256*j + 1280*rr}')
    A(f'''
    v_mov_b32 v15, 0x80000000
    s_lshl_b32 s46, s2, 2
    s_add_u32 s46, s46, s41
    s_lshl_b32 s46, s46, 2
    v_lshrrev_b32 v11, 4, v0
    v_add_u32 v11, s46, v11
    v_mul_u32_u24 v11, 768, v11
    v_and_b32 v12, 15, v0
    v_lshl_add_u32 v11, v12, 3, v11
    v_add_u32 v11, {WS_QK + 32*98304 + 640}, v11
    v_mov_b32 v12, 0
    v_mov_b32 v13, 0
    buffer_store_dwordx2 v[12:13], v11, s[16:19], 0 offen{SF}
    s_add_u32 s46, s2, s41
    s_cmp_eq_u32 s46, 0
    s_cselect_b32 s46, 8, 0
    v_lshlrev_b32 v11, 4, v0
    v_add_u32 v11, {WS_ONES}, v11
    v_cmp_gt_u32 vcc, s46, v0
    v_cndmask_b32 v11, v15, v11, vcc
    v_mov_b32 v44, 0x3f803f80
    v_mov_b32 v45, 0x3f803f80
    v_mov_b32 v46, 0x3f803f80
    v_mov_b32 v47, 0x3f803f80
    buffer_store_dwordx4 v[44:47], v11, s[16:19], 0 offen{SF}
    s_cmp_eq_u32 s41, 0
    s_cselect_b32 s46, 4, 0
    s_lshl_b32 s47, s2, 4
    s_add_u32 s47, s47, {WS_FLAG2}
    v_lshl_add_u32 v11, v0, 2, s47
    v_cmp_gt_u32 vcc, s46, v0
    v_cndmask_b32 v11, v15, v11, vcc
    buffer_store_dword v12, v11, s[16:19], 0 offen{SF}
    s_waitcnt vmcnt({30 + 2*opts.get('midpf', 0)})
    s_barrier
    s_waitcnt vmcnt({18 + opts.get('midpf', 0)})
    s_barrier
    s_barrier
    s_waitcnt vmcnt(3)''')
    for rr in range(2):
        acc_ = 40 + rr
        A(f'    v_mov_b32 v{acc_}, 0')
        for j in range(5):
            A(f'    v_dot2c_f32_bf16 v{acc_}, v{16+j}, v{24+8*rr+j}')
    for rr in range(2):
        r = 40 + rr
        A(f'''
    v_add_f32_dpp v{r}, v{r}, v{r} quad_perm:[1,0,3,2] row_mask:0xf bank_mask:0xf
    v_add_f32_dpp v{r}, v{r}, v{r} quad_perm:[2,3,0,1] row_mask:0xf bank_mask:0xf
    v_add_f32_dpp v{r}, v{r}, v{r} row_half_mirror row_mask:0xf bank_mask:0xf
    v_add_f32_dpp v{r}, v{r}, v{r} row_mirror row_mask:0xf bank_mask:0xf
    v_mov_b32 v43, v{r}
    v_permlane16_swap_b32 v43, v{r}
    v_add_f32 v{r}, v{r}, v43
    v_mov_b32 v43, v{r}
    v_permlane32_swap_b32 v43, v{r}
    v_add_f32 v{r}, v{r}, v43''')
    A(f'''
    v_cmp_eq_u32 vcc, 1, v0
    v_cndmask_b32 v40, v40, v41, vcc
    v_mul_f32 v40, 0xbfb8aa3b, v40
    v_exp_f32 v40, v40
    v_add_f32 v40, 1.0, v40
    v_rcp_f32 v40, v40
    s_lshl_b32 s46, s44, 2
    s_add_u32 s46, s46, {WS_G}
    v_lshl_add_u32 v14, v0, 2, s46
    v_cmp_gt_u32 vcc, 2, v0
    v_cndmask_b32 v14, v15, v14, vcc
    buffer_store_dword v40, v14, s[16:19], 0 offen{SF}''')
    npf = opts.get('w2pf', 0)
    if npf:
        A(f'''
    s_lshl_b32 s46, s32, 2
    s_add_u32 s46, s46, s41
    s_mul_i32 s46, s46, 192
    v_add_u32 v59, s46, v0
    v_lshlrev_b32 v60, 7, v59
    v_add_u32 v60, {WS_W2F}, v60''')
        for n in range(npf):
            A(f'''
    v_add_u32 v61, {64*n}, v59
    v_cmp_gt_u32 vcc, 23040, v61
    v_cndmask_b32 v{62+n}, v15, v60, vcc
    buffer_load_dword v{66+n}, v{62+n}, s[16:19], 0 offen
    v_add_u32 v60, 8192, v60''')
    stamp(A, opts, 1)

def gen_attn(A, opts):
    NAW = 4
    SA = 16; KB = 48; VB = 64; Q = 80; O = 96; G = 112
    VK = 116; VK2 = 117; VV0 = 118; VV1 = 119; VO1 = 120; VO2 = 121
    NQT = 4; KPW = 6
    A(f'''
    {'s_setprio 2' if opts.get('prio', 1) else ''}
    s_lshr_b32 s59, s32, 2              ; qb
    s_lshl_b32 s33, s59, 8              ; Q0
    s_and_b32 s34, s32, 3
    s_lshl_b32 s35, s31, 2
    s_add_u32 s34, s34, s35             ; head
    s_add_u32 s35, s34, 32
    s_mul_i32 s35, s35, 98304
    s_mul_i32 s40, s33, 48
    s_add_u32 s35, s35, s40
    s_sub_u32 s35, s35, {256*48 - WS_QK}
    v_lshlrev_b32 v3, 4, v0
    s_mul_i32 s37, s30, {KPW*1024}
    s_add_u32 s35, s35, s37
    s_cmp_eq_u32 s59, 0
    s_cselect_b32 s38, 1, 0
    s_cmp_lt_u32 s30, {NAW//2}
    s_cselect_b32 s39, s38, 0
    s_waitcnt lgkmcnt(0)
    s_mov_b32 s16, s28
    s_mov_b32 s17, s29
    s_mov_b32 s18, {WS_END}
    s_mov_b32 s19, 0x00020000
    s_mov_b32 s92, s28
    s_mov_b32 s93, s29
    s_mov_b32 s94, {WS_PROF_END}
    s_mov_b32 s95, 0x00020000
    s_cmp_eq_u32 s39, 1
    s_cbranch_scc1 K2_kfill''')
    for j in range(KPW):
        A(f'''
    s_add_u32 m0, s37, {KL + j*1024}
    s_add_u32 s40, s35, {j*1024}
    buffer_load_dwordx4 v3, s[16:19], s40 offen lds''')
    A(f'''
    s_branch K2_kdone
K2_kfill:
    v_mov_b32 v5, 0
    v_mov_b32 v7, 0
    s_mul_i32 s40, s30, {KPW*64}
    v_add_u32 v8, s40, v0
    s_mov_b32 s41, 0x5555556''')
    for j in range(KPW):
        A(f'''
    v_mul_hi_u32 v9, v8, s41
    v_mul_u32_u24 v9, 48, v9
    v_sub_u32 v9, v8, v9
    v_cmp_le_u32 vcc, 40, v9
    v_mov_b32 v6, 0x3f80
    v_cndmask_b32 v6, 0, v6, vcc
    v_mov_b32 v4, v6
    v_lshlrev_b32 v9, 4, v8
    ds_write_b128 v9, v[4:7] offset:{KL}
    v_add_u32 v8, 64, v8''')
    A(f'''
K2_kdone:
    s_mul_i32 s36, s30, {NQT*16}
    s_add_u32 s36, s36, s33
    s_mul_i32 s35, s34, 98304
    s_mul_i32 s40, s36, 48
    s_add_u32 s35, s35, s40
    v_lshlrev_b32 v4, 3, v0
    v_lshlrev_b32 v5, 3, v1''')
    for t in range(NQT):
        A(f'    buffer_load_dwordx2 {vr(Q+4*t,2)}, v4, s[16:19], s35 offen offset:{WS_QK + t*768}')
        A(f'    buffer_load_dwordx2 {vr(Q+4*t+2,2)}, v5, s[16:19], s35 offen offset:{WS_QK + t*768 + 512}')
    A(f'''
    s_lshl_b32 s40, s36, 2
    s_add_u32 s40, s40, {WS_G}
    v_lshlrev_b32 v5, 2, v1''')
    for t in range(NQT):
        A(f'    buffer_load_dword v{G+t}, v5, s[16:19], s40 offen offset:{t*64}')
    A(f'''
    ; V gather: q = 64*(w+4j) + lane ; bg = q/21, d = q%21 ; blk = Q0/32 - 8 + bg/4 ; g = bg&3 ; n = 20*head + d
    s_lshl_b32 s40, s30, 6
    v_add_u32 v3, s40, v0
    s_mov_b32 s41, 0xc30c30d
    s_mul_i32 s43, s34, 20
    s_lshr_b32 s35, s33, 5
    s_sub_u32 s35, s35, 8
    v_mov_b32 v9, {WS_ONES}
    s_lshl_b32 s37, s30, 10''')
    for j in range(6):
        if j == 5: A('    s_cmp_eq_u32 s30, 0\n    s_cbranch_scc0 K2_vdone')
        A(f'''
    v_mul_hi_u32 v4, v3, s41
    v_mul_u32_u24 v5, 21, v4
    v_sub_u32 v5, v3, v5
    v_lshrrev_b32 v6, 2, v4
    v_add_u32 v6, s35, v6
    v_and_b32 v4, 3, v4
    v_add_u32 v7, s43, v5
    v_lshrrev_b32 v8, 4, v7
    v_lshl_add_u32 v6, v8, 6, v6
    v_lshl_add_u32 v6, v6, 2, v4
    v_and_b32 v7, 15, v7
    v_lshlrev_b32 v7, 4, v7
    v_lshl_add_u32 v6, v6, 8, v7
    v_add_u32 v6, {WS_VT}, v6
    v_cmp_eq_u32 vcc, 20, v5
    v_cndmask_b32 v6, v6, v9, vcc
    s_add_u32 m0, s37, {VL + j*4096}
    v_add_u32 v3, 256, v3
    buffer_load_dwordx4 v6, s[16:19], 0 offen lds''')
    A(f'''K2_vdone:
    s_barrier
    v_mov_b32 v3, {C1}
    v_mov_b32 v4, 1
    s_mov_b64 exec, 1
    ds_add_u32 v3, v4
    s_mov_b64 exec, -1
    s_mul_i32 s40, s30, {NQT*768}
    v_lshlrev_b32 v{VK}, 3, v0
    v_add_u32 v{VK}, s40, v{VK}
    v_add_u32 v{VK2}, 768, v{VK}
    s_mul_i32 s40, s30, {NQT*672}
    s_add_u32 s40, s40, {VL}
    v_mul_u32_u24 v6, 336, v2
    v_add_u32 v6, s40, v6
    v_lshl_add_u32 v{VV0}, v1, 4, v6
    v_add_u32 v7, 16, v1
    v_min_u32 v7, 20, v7
    v_lshl_add_u32 v{VV1}, v7, 4, v6
    s_mul_i32 s41, s34, 3
    v_lshrrev_b32 v6, 1, v2
    v_add_u32 v6, s41, v6
    v_lshrrev_b32 v7, 2, v6
    v_lshlrev_b32 v7, 12, v7
    v_and_b32 v8, 3, v6
    v_lshl_add_u32 v7, v8, 8, v7
    v_and_b32 v8, 1, v2
    v_lshl_add_u32 v7, v8, 10, v7
    v_lshl_add_u32 v{VO1}, v1, 4, v7
    s_add_u32 s41, s41, 2
    s_lshr_b32 s42, s41, 2
    s_lshl_b32 s42, s42, 12
    s_and_b32 s43, s41, 3
    s_lshl_b32 s43, s43, 8
    s_add_u32 s42, s42, s43
    v_lshl_add_u32 v7, v2, 10, s42
    v_lshl_add_u32 v{VO2}, v1, 4, v7
    v_mov_b32 v13, 0x80000000
    v_cmp_gt_u32 vcc, 2, v2
    v_cndmask_b32 v{VO2}, v13, v{VO2}, vcc
    s_lshr_b32 s42, s36, 6
    s_mul_i32 s42, s42, {24*4096}
    s_add_u32 s42, s42, {WS_OP}
    v_lshlrev_b32 v8, 2, v2
    v_sub_u32 v8, v1, v8''')
    for r in range(4):
        A(f'    v_cmp_gt_i32 s[{44+2*r}:{45+2*r}], {r}, v8')
    A(f'''
    v_mov_b32 v14, 0xff800000
    v_cmp_eq_u32 s[54:55], 1, v2
    v_cmp_lt_u32 s[52:53], 0, v2
    s_cmp_eq_u32 s30, 0
    s_cbranch_scc0 K2_nopad
    v_mov_b32 v8, 0
    v_lshlrev_b32 v9, 2, v0
    ds_write_b32 v9, v8 offset:24576
K2_nopad:''')
    stamp(A, opts, 3)
    A(f'''
    v_mov_b32 v9, 0xf149
    v_mov_b32 v3, {CK}
    v_mov_b32 v4, 1
    s_waitcnt vmcnt(0) lgkmcnt(0)
    s_mov_b64 exec, 1
    ds_add_u32 v3, v4
    s_mov_b64 exec, -1''')
    for t in range(NQT):
        q = Q + 4 * t
        A(f'''
    v_cndmask_b32 v{q+2}, v{q+2}, 0, s[52:53]
    v_cndmask_b32 v{q+3}, v{q+3}, 0, s[52:53]
    v_cndmask_b32 v{q+2}, v{q+2}, v9, s[54:55]''')
    A(f'''
K2_kwait:
    ds_read_b32 v4, v3
    s_waitcnt lgkmcnt(0)
    v_readfirstlane_b32 s58, v4
    s_cmp_lt_u32 s58, {NAW}
    s_cbranch_scc1 K2_kwait''')
    stamp(A, opts, 4)
    def sa(st, q, t): return SA + 16 * st + 8 * q + 4 * t
    def kb(st, t): return KB + 8 * st + 4 * t
    def vb(st, d): return VB + 8 * st + 4 * d
    def loads(st):
        return [f'    ds_read2st64_b64 {vr(kb(st,0),4)}, v{VK} offset0:0 offset1:1',
                f'    ds_read2st64_b64 {vr(kb(st,1),4)}, v{VK2} offset0:0 offset1:1',
                f'    ds_read_b128 {vr(vb(st,0),4)}, v{VV0}',
                f'    ds_read_b128 {vr(vb(st,1),4)}, v{VV1}']
    def adv(n=1):
        return [f'    v_add_u32 v{VK}, {1536*n & 0xffffffff}, v{VK}', f'    v_add_u32 v{VK2}, {1536*n & 0xffffffff}, v{VK2}',
                f'    v_add_u32 v{VV0}, {1344*n & 0xffffffff}, v{VV0}', f'    v_add_u32 v{VV1}, {1344*n & 0xffffffff}, v{VV1}']
    def skip(q, T): return (q == 0 and T == 17) or (q == 1 and T == 0)
    def smfma(st, bb):
        return [f'    v_mfma_f32_16x16x32_bf16 {vr(sa(st,q,t),4)}, {vr(kb(st,t),4)}, {vr(Q+4*q,4)}, 0'
                for q in range(2) for t in range(2) if not skip(q, 2 * bb + t)]
    def masks(q, T, v):
        L = []
        if (q == 0 and T == 0) or (q == 1 and T == 1):
            L += [f'    v_cndmask_b32 v{v+r}, v14, v{v+r}, s[{44+2*r}:{45+2*r}]' for r in range(4)]
        if (q == 0 and T == 16) or (q == 1 and T == 17):
            L += [f'    v_cndmask_b32 v{v+r}, v{v+r}, v14, s[{44+2*r}:{45+2*r}]' for r in range(4)]
        return L
    def packpv(st, bb, q):
        L = []
        p = sa(st, q, 0)
        for t in range(2):
            v = sa(st, q, t)
            if skip(q, 2 * bb + t):
                L += [f'    v_mov_b32 v{p+2*t}, 0', f'    v_mov_b32 v{p+2*t+1}, 0']
            else:
                L += [f'    v_cvt_pk_bf16_f32 v{p+2*t}, v{v}, v{v+1}', f'    v_cvt_pk_bf16_f32 v{p+2*t+1}, v{v+2}, v{v+3}']
        M = []
        for d in range(2):
            o = O + 8 * q + 4 * d
            M.append(f'    v_mfma_f32_16x16x32_bf16 {vr(o,4)}, {vr(vb(st,d),4)}, {vr(p,4)}, {vr(o,4)}')
        return L, M
    def body(st, bb, has_next):
        nx = st ^ 1
        if has_next:
            for l in adv(): A(l)
            for l in loads(nx): A(l)
        def valu(q):
            L = []
            for t in range(2):
                T = 2 * bb + t; v = sa(st, q, t)
                if skip(q, T): continue
                L += masks(q, T, v)
                L += [f'    v_exp_f32 v{v+r}, v{v+r}' for r in range(4)]
            return L
        for l in valu(0): A(l)
        P0, M0 = packpv(st, bb, 0)
        for l in P0: A(l)
        v1 = valu(1)
        ms = list(M0)
        if has_next:
            ms = ms + ['    s_waitcnt lgkmcnt(0)'] + smfma(nx, bb + 1)
        i = 0
        for l in v1:
            A(l)
            if i < len(ms):
                A(ms[i]); i += 1
                if i < len(ms) and ms[i - 1].strip().startswith('s_waitcnt'):
                    A(ms[i]); i += 1
        while i < len(ms):
            A(ms[i]); i += 1
        P1, M1 = packpv(st, bb, 1)
        for l in P1: A(l)
        for l in M1: A(l)
    A('    s_mov_b32 s60, 0')
    A('K2_pair:')
    for r in range(16): A(f'    v_mov_b32 v{O+r}, 0')
    for l in loads(0): A(l)
    A('    s_waitcnt lgkmcnt(0)')
    for l in smfma(0, 0): A(l)
    body(0, 0, True)
    A('    s_mov_b32 s58, 0')
    A('K2_floop:')
    body(1, 1, True)
    body(0, 2, True)
    A('''
    s_add_u32 s58, s58, 1
    s_cmp_lt_u32 s58, 3
    s_cbranch_scc1 K2_floop''')
    body(1, 7, True)
    body(0, 8, False)
    def lbcast():
        A(f'''
    v_mov_b32 v3, v{O+4}
    v_mov_b32 v4, v{O+4}
    v_permlane16_swap_b32 v4, v3
    v_mov_b32 v4, v3
    v_permlane32_swap_b32 v4, v3
    v_mov_b32 v5, v{O+12}
    v_mov_b32 v6, v{O+12}
    v_permlane16_swap_b32 v6, v5
    v_mov_b32 v6, v5
    v_permlane32_swap_b32 v6, v5''')
    lbcast()
    A(f'''
    v_min_f32 v7, v4, v6
    v_max_f32 v8, v4, v6
    s_mov_b32 s61, 0x17800000          ; 2^-80
    s_mov_b32 s62, 0x5d800000          ; 2^60
    v_cmp_nle_f32 vcc, s61, v7
    s_mov_b64 s[56:57], vcc
    v_cmp_nge_f32 vcc, s62, v8
    s_or_b64 s[56:57], s[56:57], vcc
    s_cmp_lg_u64 s[56:57], 0
    s_cbranch_scc1 K2_fallback
K2_fin:
    v_rcp_f32 v4, v4
    v_rcp_f32 v6, v6
    v_mul_f32 v4, v4, v{G}
    v_mul_f32 v6, v6, v{G+1}''')
    for q in range(2):
        o = O + 8 * q; sc = 4 if q == 0 else 6
        for r in range(8): A(f'    v_mul_f32 v{o+r}, v{o+r}, v{sc}')
    oa = O; ob = O + 8
    A(f'''
    v_cvt_pk_bf16_f32 v16, v{oa}, v{oa+1}
    v_cvt_pk_bf16_f32 v17, v{oa+2}, v{oa+3}
    v_cvt_pk_bf16_f32 v18, v{ob}, v{ob+1}
    v_cvt_pk_bf16_f32 v19, v{ob+2}, v{ob+3}
    v_cvt_pk_bf16_f32 v20, v{oa+4}, v{oa+5}
    v_cvt_pk_bf16_f32 v21, v{oa+6}, v{oa+7}
    v_cvt_pk_bf16_f32 v24, v{ob+4}, v{ob+5}
    v_cvt_pk_bf16_f32 v25, v{ob+6}, v{ob+7}
    v_mov_b32 v22, 0
    v_mov_b32 v23, 0
    v_permlane16_swap_b32 v16, v18
    v_permlane16_swap_b32 v17, v19
    v_permlane16_swap_b32 v20, v24
    v_permlane16_swap_b32 v21, v25
    buffer_store_dwordx4 v[16:19], v{VO1}, s[16:19], s42 offen sc1
    buffer_store_dwordx4 v[20:23], v{VO2}, s[16:19], s42 offen sc1
    s_add_u32 s42, s42, 2048
    s_add_u32 s60, s60, 1
    s_cmp_ge_u32 s60, 2
    s_cbranch_scc1 K2_attn_end''')
    for l in adv(-7): A(l)
    for r in range(8): A(f'    v_mov_b32 v{Q+r}, v{Q+8+r}')
    A(f'''
    v_mov_b32 v{G}, v{G+2}
    v_mov_b32 v{G+1}, v{G+3}
    s_branch K2_pair
K2_attn_end:''')
    stamp(A, opts, 5)
    A(f'''
    s_lshr_b32 s58, s36, 6
    s_lshl_b32 s58, s58, 5
    s_add_u32 s58, s58, s34
    s_lshl_b32 s58, s58, 2
    s_add_u32 s58, s58, {WS_FLAG2}
    v_mov_b32 v3, s58
    v_mov_b32 v4, 1
    s_waitcnt vmcnt(0)
    s_mov_b64 exec, 1
    buffer_store_dword v4, v3, s[16:19], 0 offen sc1
    s_mov_b64 exec, -1''')
    if opts.get('wo_attn', 0): gen_wo(A, opts)
    else:
        if opts.get('prof'):
            A('    s_waitcnt vmcnt(0)')
            stamp(A, opts, 7)
            stamp_flush(A, opts)
        A('    s_branch KF_done')
    def _fallback():
        A('K2_fallback:')
        for l in adv(-8): A(l)
        A('    v_mov_b32 v10, 0xff7fffff\n    v_mov_b32 v11, 0xff7fffff')
        for r in range(16): A(f'    v_mov_b32 v{O+r}, 0')
        for bb in range(9):
            for l in loads(0): A(l)
            if bb < 8:
                for l in adv(): A(l)
            A('    s_waitcnt lgkmcnt(0)')
            for l in smfma(0, bb): A(l)
            A('    s_nop 7')
            for q in range(2):
                vals = []
                for t in range(2):
                    T = 2 * bb + t; v = sa(0, q, t)
                    if skip(q, T): continue
                    for l in masks(q, T, v): A(l)
                    vals += [v + r for r in range(4)]
                m = 10 + q
                A(f'    v_mov_b32 v5, v{m}')
                for v in vals: A(f'    v_max_f32 v5, v5, v{v}')
                A(f'''
        v_mov_b32 v6, v5
        v_permlane16_swap_b32 v6, v5
        v_max_f32 v5, v5, v6
        v_mov_b32 v6, v5
        v_permlane32_swap_b32 v6, v5
        v_max_f32 v5, v5, v6
        v_sub_f32 v6, v{m}, v5
        v_exp_f32 v6, v6
        v_mov_b32 v{m}, v5''')
                o = O + 8 * q
                for r in range(8): A(f'    v_mul_f32 v{o+r}, v{o+r}, v6')
                for v in vals:
                    A(f'    v_sub_f32 v{v}, v{v}, v5')
                    A(f'    v_exp_f32 v{v}, v{v}')
                P, M = packpv(0, bb, q)
                for l in P + M: A(l)
                A('    s_nop 7')
        A('    s_nop 7')
        lbcast()
        A('    s_branch K2_fin')
    return _fallback

ACC = 16
RB = 96
VL16 = 240; VL16B = 241; GM = 12
CG = C1 + 12; CF = C1 + 16
def acc(u, mt): return ACC + (u * 4 + mt) * 4
def aslot(s, mt): return RB + 36 * s + 4 * mt
def wslot(s, u): return RB + 36 * s + 16 + 4 * u
def loadsA(slot, sc=''):
    L = [f'    buffer_load_dwordx4 {vr(aslot(slot,mt),4)}, v{VL16}, s[16:19], s41 offen offset:{mt*1024}{sc}' for mt in range(4)]
    L[-1] += '\n    s_add_u32 s41, s41, 4096'
    return L
def loadsW(slot):
    L = [f'    buffer_load_dwordx4 {vr(wslot(slot,u),4)}, v{VL16}, s[16:19], s42 offen offset:{u*1024}' for u in range(4)]
    L.append(f'    buffer_load_dwordx4 {vr(wslot(slot,4),4)}, v{VL16B}, s[16:19], s42 offen\n    s_add_u32 s42, s42, 40960')
    return L
def gstep(A, slot, loads, wait, first=False):
    A(f'    s_waitcnt vmcnt({wait})')
    li = 0; k = 0
    for u in range(5):
        for mt in range(4):
            d = vr(acc(u, mt), 4)
            c = '0' if first else d
            A(f'    v_mfma_f32_16x16x32_bf16 {d}, {vr(wslot(slot,u),4)}, {vr(aslot(slot,mt),4)}, {c}')
            k += 1
            if k % 2 == 0 and li < len(loads):
                A(loads[li]); li += 1
    while li < len(loads):
        A(loads[li]); li += 1
def gemm_ids(A, wsub, opts={}):
    if opts.get('gmap', 1) == 0:
        gm = '''s_and_b32 s34, s32, 3
    s_lshl_b32 s35, s31, 2
    s_add_u32 s34, s34, s35
    s_lshr_b32 s35, s32, 2'''
    else:
        gm = '''s_lshr_b32 s34, s31, 1
    s_lshl_b32 s34, s34, 3
    s_and_b32 s35, s32, 7
    s_add_u32 s34, s34, s35
    s_and_b32 s35, s31, 1
    s_lshl_b32 s35, s35, 2
    s_lshr_b32 s46, s32, 3
    s_add_u32 s35, s35, s46'''
    A(f'''
    s_sub_u32 s33, s30, {wsub}
    {gm}
    s_lshl_b32 s36, s34, 6             ; row0
    s_mul_i32 s43, s35, 5
    v_lshlrev_b32 v{VL16}, 4, v0
    v_add_u32 v{VL16B}, 4096, v{VL16}''')

def gen_gemm(A, opts):
    A('    s_barrier')
    gemm_ids(A, 4, opts)
    A(f'''
    s_mul_i32 s41, s34, 48
    s_mul_i32 s42, s33, 12
    s_add_u32 s41, s41, s42
    s_lshl_b32 s41, s41, 12
    s_add_u32 s41, s41, {WS_H}
    s_mul_i32 s42, s42, 40
    s_add_u32 s42, s42, s43
    s_lshl_b32 s42, s42, 10
    s_add_u32 s42, s42, {WS_W2F}
    s_lshl_b32 s40, s36, 2
    s_add_u32 s40, s40, {WS_G}
    v_lshlrev_b32 v3, 2, v1''')
    stamp(A, opts, 3)
    for mt in range(4):
        A(f'    buffer_load_dword v{GM+mt}, v3, s[16:19], s40 offen offset:{64*mt}')
    gd = opts.get('gdelay', 2)
    if gd:
        wait_lds(A, 'K2_gwait', CK if gd == 1 else C1, 4)
    for sl in range(3):
        for l in loadsW(sl) + loadsA(sl): A(l)
    stamp(A, opts, 4)
    gstep(A, 0, loadsA(3) + loadsW(3), 18, first=True)
    for sl in range(1, 4):
        gstep(A, sl, loadsA((sl + 3) % 4) + loadsW((sl + 3) % 4), 18)
    for sl in range(4):
        gstep(A, sl, loadsA((sl + 3) % 4) + loadsW((sl + 3) % 4), 18)
    gstep(A, 0, loadsA(3) + loadsW(3), 18)
    gstep(A, 1, [], 18)
    gstep(A, 2, [], 9)
    gstep(A, 3, [], 0)
    stamp(A, opts, 5)
    for mt in range(4):
        A(f'    v_sub_f32 v{GM+mt}, 1.0, v{GM+mt}')
    A(f'''
    s_mul_i32 s39, s33, 20480
    s_add_u32 s39, s39, {RED0}
    v_add_u32 v4, s39, v{VL16}
    s_nop 4''')
    for u in range(5):
        for mt in range(4):
            for r in range(4):
                a0 = acc(u, mt) + r
                A(f'    v_mul_f32 v{a0}, v{a0}, v{GM+mt}')
            A(f'    ds_write_b128 v4, {vr(acc(u,mt),4)} offset:{(mt*5+u)*1024}')
    A(f'''
    v_mov_b32 v3, {CG}
    v_mov_b32 v4, 1
    s_waitcnt lgkmcnt(0)
    s_mov_b64 exec, 1
    ds_add_u32 v3, v4
    s_mov_b64 exec, -1''')
    wait_lds(A, 'K2_cg', CG, 4, 1)
    A(f'''
    s_mul_i32 s45, s33, 5120
    s_add_u32 s45, s45, {RED0}
    v_add_u32 v4, s45, v{VL16}
    v_add_u32 v8, {2*20480}, v4''')
    T = RB
    for w in range(4):
        for u in range(5):
            A(f'    ds_read_b128 {vr(T+(w*5+u)*4,4)}, v{4 if w < 2 else 8} offset:{(w%2)*20480 + u*1024}')
    A('    s_waitcnt lgkmcnt(0)')
    for u in range(5):
        for r in range(4):
            t0 = T + u * 4 + r
            A(f'''
    v_add_f32 v{t0}, v{t0}, v{t0+20}
    v_add_f32 v{t0+40}, v{t0+40}, v{t0+60}
    v_add_f32 v{t0}, v{t0}, v{t0+40}''')
    A(f'''
    s_mul_i32 s45, s33, 5120
    s_add_u32 s45, s45, s39
    v_add_u32 v4, s45, v{VL16}''')
    for u in range(5):
        A(f'    ds_write_b128 v4, {vr(T+u*4,4)} offset:{u*1024}')
    A(f'''
    v_mov_b32 v3, {CF}
    v_mov_b32 v4, 1
    s_waitcnt lgkmcnt(0)
    s_mov_b64 exec, 1
    ds_add_u32 v3, v4
    s_waitcnt lgkmcnt(0)
    s_mov_b64 exec, -1''')
    if opts.get('prof'):
        stamp(A, opts, 7)
        stamp_flush(A, opts)

def final_reduce(A, opts):
    T = RB
    OSF = {0: '', 1: ' sc1', 2: ' nt'}[opts.get('osf', 0)]
    A(f'''
    s_mul_i32 s39, s33, 20480
    s_add_u32 s39, s39, {RED0}
    v_add_u32 v4, s39, v{VL16}
    s_nop 7''')
    for mt in range(4):
        A(f'    s_cmp_eq_u32 s33, {mt}\n    s_cbranch_scc1 K2_skipw{mt}')
        for u in range(5):
            A(f'    ds_write_b128 v4, {vr(acc(u,mt),4)} offset:{(mt*5+u)*1024}')
        A(f'    s_branch K2_donew{mt}')
        A(f'K2_skipw{mt}:')
        for u in range(5):
            for r in range(4):
                A(f'    v_mov_b32 v{T+60+u*4+r}, v{acc(u,mt)+r}')
        A(f'K2_donew{mt}:')
    A(f'''
    s_lshl_b32 s45, s33, 4
    s_add_u32 s45, s45, s36
    s_mul_i32 s45, s45, 1280
    s_mul_i32 s46, s35, 160
    s_add_u32 s45, s45, s46
    s_movk_i32 s37, 1280
    v_mul_lo_u32 v5, v1, s37
    v_and_b32 v6, 1, v2
    v_lshlrev_b32 v6, 5, v6
    v_lshrrev_b32 v7, 1, v2
    v_lshl_add_u32 v6, v7, 4, v6
    v_add_u32 v6, v6, v5
    v_lshl_add_u32 v7, v2, 3, v5
    s_mul_i32 s46, s33, 5120
    s_add_u32 s46, s46, {RED0}''')
    for k in range(1, 4):
        A(f'''
    s_add_u32 s47, s33, {k}
    s_and_b32 s47, s47, 3
    s_mul_i32 s47, s47, 20480
    s_add_u32 s47, s47, s46
    v_add_u32 v{8+k}, s47, v{VL16}''')
    A('    s_waitcnt lgkmcnt(0)\n    s_barrier')
    for k in range(1, 4):
        for u in range(5):
            A(f'    ds_read_b128 {vr(T+((k-1)*5+u)*4,4)}, v{8+k} offset:{u*1024}')
    for u in range(5):
        A(f'    s_waitcnt lgkmcnt({14 - (10 + u)})' if False else '')
    A('    s_waitcnt lgkmcnt(0)')
    for u in range(5):
        for r in range(4):
            t0 = T + u * 4 + r
            A(f'''
    v_add_f32 v{t0}, v{t0}, v{t0+20}
    v_add_f32 v{t0+40}, v{t0+40}, v{t0+60}
    v_add_f32 v{t0}, v{t0}, v{t0+40}''')
    P = 16
    for pp in range(2):
        t = P + 4 * pp; d0 = T + 8 * pp; d1 = T + 8 * pp + 4
        A(f'''
    v_cvt_pk_bf16_f32 v{t}, v{d0}, v{d0+1}
    v_cvt_pk_bf16_f32 v{t+1}, v{d0+2}, v{d0+3}
    v_cvt_pk_bf16_f32 v{t+2}, v{d1}, v{d1+1}
    v_cvt_pk_bf16_f32 v{t+3}, v{d1+2}, v{d1+3}
    v_permlane16_swap_b32 v{t}, v{t+2}
    v_permlane16_swap_b32 v{t+1}, v{t+3}
    buffer_store_dwordx4 {vr(t,4)}, v6, s[20:23], s45 offen offset:{64*pp}{OSF}''')
    d0 = T + 16
    A(f'''
    v_cvt_pk_bf16_f32 v24, v{d0}, v{d0+1}
    v_cvt_pk_bf16_f32 v25, v{d0+2}, v{d0+3}
    buffer_store_dwordx2 v[24:25], v7, s[20:23], s45 offen offset:128{OSF}''')
    if opts.get('prof'):
        A('    s_waitcnt vmcnt(0)')
        stamp(A, opts, 7)
        stamp_flush(A, opts)

def gen_gemm_full(A, opts):
    gemm_ids(A, 4, opts)
    A(f'''
    s_waitcnt lgkmcnt(0)
    s_mov_b32 s16, s28
    s_mov_b32 s17, s29
    s_mov_b32 s18, {WS_END}
    s_mov_b32 s19, 0x00020000
    s_mov_b32 s92, s28
    s_mov_b32 s93, s29
    s_mov_b32 s94, {WS_PROF_END}
    s_mov_b32 s95, 0x00020000
    s_barrier
    s_mov_b32 s20, s90
    s_mov_b32 s21, s91
    s_mov_b32 s22, 2621440
    s_mov_b32 s23, 0x00020000
    s_mul_i32 s41, s34, 48
    s_mul_i32 s42, s33, 12
    s_add_u32 s41, s41, s42
    s_lshl_b32 s41, s41, 12
    s_add_u32 s41, s41, {WS_H}
    s_mul_i32 s42, s42, 40
    s_add_u32 s42, s42, s43
    s_lshl_b32 s42, s42, 10
    s_add_u32 s42, s42, {WS_W2F}
    s_lshl_b32 s40, s36, 2
    s_add_u32 s40, s40, {WS_G}
    v_lshlrev_b32 v3, 2, v1''')
    rot = opts.get('rot2', 0)
    if rot:
        A(f'''
    s_and_b32 s46, s34, 3
    s_mul_i32 s46, s46, 3
    s_mul_hi_u32 s47, s35, 0x55555556
    s_mul_i32 s47, s47, 3
    s_sub_u32 s47, s35, s47
    s_add_u32 s48, s46, s47
    s_lshl_b32 s46, s48, 12
    s_add_u32 s41, s41, s46
    s_mul_i32 s46, s48, 40960
    s_add_u32 s42, s42, s46''')
    WRAP = f'''
    s_add_u32 s48, s48, 1
    s_cmp_eq_u32 s48, 12
    s_cselect_b32 s46, {12*4096}, 0
    s_cselect_b32 s47, {12*40960}, 0
    s_cselect_b32 s48, 0, s48
    s_sub_u32 s41, s41, s46
    s_sub_u32 s42, s42, s47''' if rot else ''
    def stage_loads(sl, wfirst=False):
        L = (loadsW(sl) + loadsA(sl)) if wfirst else (loadsA(sl) + loadsW(sl))
        L[-1] += WRAP
        return L
    stamp(A, opts, 3)
    for mt in range(4):
        A(f'    buffer_load_dword v{GM+mt}, v3, s[16:19], s40 offen offset:{64*mt}')
    gd = opts.get('gdelay', 2)
    if gd:
        wait_lds(A, 'K2_gwait', CK if gd == 1 else C1, 4)
    for sl in range(3):
        for l in stage_loads(sl, True): A(l)
    stamp(A, opts, 4)
    gstep(A, 0, stage_loads(3), 18, first=True)
    for sl in range(1, 4):
        gstep(A, sl, stage_loads((sl + 3) % 4), 18)
    for sl in range(4):
        gstep(A, sl, stage_loads((sl + 3) % 4), 18)
    gstep(A, 0, stage_loads(3), 18)
    A(f'''
    s_mul_i32 s42, s33, 240
    s_add_u32 s42, s42, s43
    s_lshl_b32 s42, s42, 10
    s_add_u32 s42, s42, {WS_WOF}''')
    gstep(A, 1, loadsW(0), 18)
    gstep(A, 2, loadsW(1), 9 + 5)
    gstep(A, 3, loadsW(2), 5 + 5)
    stamp(A, opts, 5)
    for l in loadsW(3): A(l)
    for mt in range(4):
        A(f'    v_sub_f32 v{GM+mt}, 1.0, v{GM+mt}')
    A(f'''
    s_lshl_b32 s45, s34, 5
    s_lshl_b32 s46, s33, 3
    s_add_u32 s45, s45, s46
    s_lshl_b32 s45, s45, 2
    s_add_u32 s45, s45, {WS_FLAG2}
    s_mul_i32 s41, s34, 24
    s_mul_i32 s44, s33, 6
    s_add_u32 s41, s41, s44
    s_lshl_b32 s41, s41, 12
    s_add_u32 s41, s41, {WS_OP}
    s_nop 2''')
    for u in range(5):
        for mt in range(4):
            for r in range(4):
                a0 = acc(u, mt) + r
                A(f'    v_mul_f32 v{a0}, v{a0}, v{GM+mt}')
    poll_all(A, 'K2_s2', 's45', 2, opts.get('psleep2', 1))
    stamp(A, opts, 6)
    for sl in range(4):
        for l in loadsA(sl, ' sc1'): A(l)
    gstep(A, 0, [], 12)
    gstep(A, 1, loadsA(0, ' sc1') + loadsW(0), 8)
    gstep(A, 2, loadsA(1, ' sc1') + loadsW(1), 4 + 9)
    gstep(A, 3, [], 18)
    gstep(A, 0, [], 9)
    gstep(A, 1, [], 0)
    final_reduce(A, opts)

def gen_wo(A, opts):
    gemm_ids(A, 0, opts)
    A(f'''
    s_mov_b32 s20, s90
    s_mov_b32 s21, s91
    s_mov_b32 s22, 2621440
    s_mov_b32 s23, 0x00020000
    s_mul_i32 s42, s33, 240
    s_add_u32 s42, s42, s43
    s_lshl_b32 s42, s42, 10
    s_add_u32 s42, s42, {WS_WOF}''')
    for sl in range(4):
        for l in loadsW(sl): A(l)
    A(f'''
    s_lshl_b32 s45, s34, 5
    s_lshl_b32 s46, s33, 3
    s_add_u32 s45, s45, s46
    s_lshl_b32 s45, s45, 2
    s_add_u32 s45, s45, {WS_FLAG2}
    s_mul_i32 s41, s34, 24
    s_mul_i32 s44, s33, 6
    s_add_u32 s41, s41, s44
    s_lshl_b32 s41, s41, 12
    s_add_u32 s41, s41, {WS_OP}''')
    poll_all(A, 'K2_s2', 's45', 2, opts.get('psleep2', 1))
    stamp(A, opts, 6)
    for sl in range(4):
        for l in loadsA(sl, ' sc1'): A(l)
    gstep(A, 0, [], 12, first=True)
    stamp(A, opts, 3)
    gstep(A, 1, loadsA(0, ' sc1') + loadsW(0), 8)
    gstep(A, 2, loadsA(1, ' sc1') + loadsW(1), 4 + 9)
    gstep(A, 3, [], 18)
    gstep(A, 0, [], 9)
    gstep(A, 1, [], 0)
    stamp(A, opts, 1)
    wait_lds(A, 'K2_cf', CF, 4, 1)
    A(f'''
    s_mul_i32 s39, s33, 20480
    s_add_u32 s39, s39, {RED0}
    v_add_u32 v4, s39, v{VL16}
    s_mul_i32 s45, s33, 5120
    s_add_u32 s45, s45, s39
    v_add_u32 v5, s45, v{VL16}''')
    T = RB
    for mt in range(4):
        A(f'    s_cmp_eq_u32 s33, {mt}\n    s_cbranch_scc1 K2_skipw{mt}')
        for u in range(5):
            A(f'    ds_write_b128 v4, {vr(acc(u,mt),4)} offset:{(mt*5+u)*1024}')
        A(f'    s_branch K2_donew{mt}')
        A(f'K2_skipw{mt}:')
        for u in range(5):
            for r in range(4):
                A(f'    v_mov_b32 v{T+100+u*4+r}, v{acc(u,mt)+r}')
        A(f'K2_donew{mt}:')
    A('    s_waitcnt lgkmcnt(0)\n    s_barrier')
    stamp(A, opts, 2)
    A(f'''
    s_mul_i32 s45, s33, 5120
    s_add_u32 s45, s45, {RED0}
    v_add_u32 v4, s45, v{VL16}
    v_add_u32 v8, {2*20480}, v4''')
    for w in range(4):
        for u in range(5):
            A(f'    ds_read_b128 {vr(T+(w*5+u)*4,4)}, v{4 if w < 2 else 8} offset:{(w%2)*20480 + u*1024}')
    A(f'''
    s_lshl_b32 s45, s33, 4
    s_add_u32 s45, s45, s36
    s_mul_i32 s45, s45, 1280
    s_mul_i32 s46, s35, 160
    s_add_u32 s45, s45, s46
    s_movk_i32 s37, 1280
    v_mul_lo_u32 v5, v1, s37
    v_and_b32 v6, 1, v2
    v_lshlrev_b32 v6, 5, v6
    v_lshrrev_b32 v7, 1, v2
    v_lshl_add_u32 v6, v7, 4, v6
    v_add_u32 v6, v6, v5
    v_lshl_add_u32 v7, v2, 3, v5
    s_waitcnt lgkmcnt(0)''')
    for u in range(5):
        for r in range(4):
            t0 = T + u * 4 + r
            A(f'''
    v_add_f32 v{t0}, v{t0}, v{t0+20}
    v_add_f32 v{t0+40}, v{t0+40}, v{t0+60}
    v_add_f32 v{t0}, v{t0}, v{t0+100}
    v_add_f32 v{t0}, v{t0}, v{t0+40}''')
    P = 16
    for pp in range(2):
        t = P + 4 * pp; d0 = T + 8 * pp; d1 = T + 8 * pp + 4
        A(f'''
    v_cvt_pk_bf16_f32 v{t}, v{d0}, v{d0+1}
    v_cvt_pk_bf16_f32 v{t+1}, v{d0+2}, v{d0+3}
    v_cvt_pk_bf16_f32 v{t+2}, v{d1}, v{d1+1}
    v_cvt_pk_bf16_f32 v{t+3}, v{d1+2}, v{d1+3}
    v_permlane16_swap_b32 v{t}, v{t+2}
    v_permlane16_swap_b32 v{t+1}, v{t+3}
    buffer_store_dwordx4 {vr(t,4)}, v6, s[20:23], s45 offen offset:{64*pp}''')
    d0 = T + 16
    A(f'''
    v_cvt_pk_bf16_f32 v24, v{d0}, v{d0+1}
    v_cvt_pk_bf16_f32 v25, v{d0+2}, v{d0+3}
    buffer_store_dwordx2 v[24:25], v7, s[20:23], s45 offen offset:128''')
    if opts.get('prof'):
        A('    s_waitcnt vmcnt(0)')
        stamp(A, opts, 7)
        stamp_flush(A, opts)
    A('    s_branch KF_done')

def desc(name, vg):
    return f'''
.amdhsa_kernel {name}
  .amdhsa_next_free_vgpr {vg}
  .amdhsa_next_free_sgpr 102
  .amdhsa_accum_offset {vg}
  .amdhsa_group_segment_fixed_size 0
  .amdhsa_kernarg_size 80
  .amdhsa_user_sgpr_count 2
  .amdhsa_user_sgpr_kernarg_segment_ptr 1
  .amdhsa_system_sgpr_workgroup_id_x 1
.end_amdhsa_kernel
'''

if __name__ == '__main__':
    import sys
    out = sys.argv[1]
    opts = {}
    for kv in sys.argv[2:]:
        k, v = kv.split('=')
        opts[k] = int(v)
    HEADER = open('gated_mix__sliding_block__dense_activation_relu__prompt.s.ref').read().split('; Override launch')[0]
    o1 = dict(opts); o2 = dict(opts)
    if opts.get('prof') == 2: o1.pop('prof')
    a1 = Asm(); gen_k1(a1, o1)
    a2 = Asm(); gen_k2(a2, o2)
    txt = HEADER + f'; @launch kernel=k1_kernel grid=(256,1,1) block=(512,1,1) lds={LDS_BYTES}\n'
    if not opts.get('k1only'): txt += f'; @launch kernel=k2_kernel grid=(256,1,1) block=(512,1,1) lds={K2_LDS}\n'
    txt += '.amdgcn_target "amdgcn-amd-amdhsa--gfx950"\n.text\n'
    txt += '.globl k1_kernel\n.p2align 8\n.type k1_kernel,@function\n' + a1.fix() + '\n'
    txt += '.globl k2_kernel\n.p2align 8\n.type k2_kernel,@function\n' + a2.fix() + '\n'
    txt += '.section .rodata,"a"\n.p2align 6' + desc('k1_kernel', 232) + '.p2align 6' + desc('k2_kernel', 248)
    open(out, 'w').write(txt)
```

```python
from asmlib import *

WS_QK   = 0x000000
WS_VT   = 0x600000
WS_H    = 0x900000
WS_OP   = 0xF00000
WS_W2F  = 0x1200000
WS_WOF  = 0x13E0000
WS_G    = 0x14D0000
WS_FLAG2 = 0x14D2000
WS_ONES = 0x14D3000
WS_END  = 0x14D3100
WS_PROF = 0x1500000
WS_PROF_END = 0x1600000
LDS_BYTES = 163840
PK = 147456
C1 = 46336; CK = C1 + 4; CA = C1 + 8
KL = 0; VL = 24832; RED0 = 46592; K2_LDS = RED0 + 4*20480
KNAME = 'gated_mix__sliding_block__dense_activation_relu__prompt_kernel'

def stamp(A, opts, idx):
    if not opts.get('prof'): return
    A(f'    s_memtime s[{70+2*idx}:{71+2*idx}]')
    if idx == 0 or idx == 7:
        A(f'    s_memrealtime s[{86+2*(idx != 0)}:{87+2*(idx != 0)}]')

def stamp_flush(A, opts):
    if not opts.get('prof'): return
    A(f'''
    s_waitcnt lgkmcnt(0)
    s_lshl_b32 s96, s2, 4
    s_add_u32 s96, s96, s30
    s_lshl_b32 s96, s96, 7
    s_add_u32 s96, s96, {WS_PROF}
    v_mov_b32 v100, s96
    s_mov_b64 exec, 1''')
    for i in range(20):
        A(f'    v_mov_b32 v101, s{70+i}\n    buffer_store_dword v101, v100, s[92:95], 0 offen offset:{4*i}')
    A('    s_mov_b64 exec, -1')

def gen_k1(a, opts):
    A = a
    SF = {0: '', 1: ' sc1'}[opts.get('sf', 1)]
    A('k1_kernel:')
    A('''
    s_cmp_ge_u32 s2, 256
    s_cbranch_scc1 K1_done
    s_getpc_b64 s[60:61]''')
    stamp(A, opts, 0)
    A(f'''
    s_load_dwordx2 s[4:5], s[0:1], 0
    s_load_dwordx4 s[64:67], s[0:1], 8
    s_load_dwordx4 s[24:27], s[0:1], 32
    s_load_dwordx2 s[68:69], s[0:1], 48
    s_load_dwordx2 s[28:29], s[0:1], 72
    v_lshrrev_b32 v1, 6, v0
    v_and_b32 v0, 63, v0
    v_readfirstlane_b32 s30, v1
    s_and_b32 s31, s2, 7
    s_lshr_b32 s32, s2, 3
    s_cmp_lt_u32 s32, {opts.get('cpf', 1)}
    s_cbranch_scc0 K1_nocpf
    s_cmp_lt_u32 s30, 3
    s_cbranch_scc0 K1_nocpf
    s_lshl_b32 s46, s30, 13
    v_lshlrev_b32 v10, 7, v0
    v_add_u32 v10, s46, v10
    global_load_dword v226, v10, s[60:61]
K1_nocpf:
    s_and_b32 s33, s31, 1
    s_lshl_b32 s33, s33, 3
    s_and_b32 s34, s32, 7
    s_add_u32 s33, s33, s34
    s_lshr_b32 s34, s31, 1
    s_lshl_b32 s34, s34, 2
    s_lshr_b32 s35, s32, 3
    s_add_u32 s34, s34, s35
    s_lshl_b32 s40, s33, 7
    s_cmp_lt_u32 s34, 6
    s_cbranch_scc1 K1_sec_qk
    s_cmp_lt_u32 s34, 9
    s_cbranch_scc1 K1_sec_v
    s_mov_b32 s36, 2
    s_sub_u32 s37, s34, 9
    s_mul_i32 s37, s37, 14
    s_min_u32 s37, s37, 82
    s_lshl_b32 s38, s37, 5
    s_mov_b32 s39, 3072
    s_branch K1_sec_done
K1_sec_qk:
    s_mov_b32 s36, 0
    s_mul_i32 s37, s34, 14
    s_min_u32 s37, s37, 66
    s_lshl_b32 s38, s37, 5
    s_mov_b32 s39, 3840
    s_branch K1_sec_done
K1_sec_v:
    s_mov_b32 s36, 1
    s_sub_u32 s37, s34, 6
    s_mul_i32 s37, s37, 14
    s_min_u32 s37, s37, 26
    s_lshl_b32 s38, s37, 5
    s_add_u32 s38, s38, 2560
    s_mov_b32 s39, 3840
K1_sec_done:
    s_cmp_ge_u32 s30, 4
    s_cbranch_scc{'0 K1_compute' if opts.get('lfirst', 0) else '1 K1_loader'}
    ''')
    if opts.get('lfirst', 0):
        gen_p1_loader(A, opts, SF)
        A('    s_branch KF_p1done')
        A('K1_compute:')
        gen_p1_compute(A, opts, SF)
    else:
        gen_p1_compute(A, opts, SF)
        gen_p1_loader(A, opts, SF)
    A('KF_p1done:')
    if opts.get('prof') == 1:
        stamp(A, opts, 6)
        A('    s_waitcnt vmcnt(0)')
        stamp(A, opts, 7); stamp_flush(A, opts)
    A('K1_done:\n    s_endpgm')

def gen_k2(a, opts):
    A = a
    A('k2_kernel:')
    A('''
    s_cmp_ge_u32 s2, 256
    s_cbranch_scc1 KF_done''')
    stamp(A, opts, 0)
    A(f'''
    s_load_dwordx2 s[90:91], s[0:1], 56
    s_load_dwordx2 s[28:29], s[0:1], 72
    v_lshrrev_b32 v1, 6, v0
    v_and_b32 v0, 63, v0
    v_readfirstlane_b32 s30, v1
    s_and_b32 s31, s2, 7
    s_lshr_b32 s32, s2, 3
    v_and_b32 v1, 15, v0
    v_lshrrev_b32 v2, 4, v0
    s_mov_b32 s97, 1
    s_cmp_eq_u32 s30, 0
    s_cbranch_scc0 K2_noinit
    v_mov_b32 v8, 0
    v_mov_b32 v9, {C1}
    ds_write_b32 v9, v8 offset:0
    ds_write_b32 v9, v8 offset:4
    ds_write_b32 v9, v8 offset:8
    ds_write_b32 v9, v8 offset:12
    ds_write_b32 v9, v8 offset:16
    ds_write_b32 v9, v8 offset:20
    ds_write_b32 v9, v8 offset:24
K2_noinit:
    s_cmp_ge_u32 s30, 4
    s_cbranch_scc1 K2_gemm''')
    fbk = gen_attn(A, opts)
    A('K2_gemm:')
    if opts.get('wo_attn', 0): gen_gemm(A, opts)
    else: gen_gemm_full(A, opts)
    A('KF_done:\n    s_endpgm')
    fbk()

def wait_lds(A, label, addr, val, sleep=2):
    A(f'''
    v_mov_b32 v8, {addr}
{label}:
    ds_read_b32 v9, v8
    s_waitcnt lgkmcnt(0)
    v_readfirstlane_b32 s58, v9
    s_cmp_lt_u32 s58, {val}
    s_cbranch_scc0 {label}_ok
    s_sleep {sleep}
    s_branch {label}
{label}_ok:''')

def poll_all(A, label, base, n_lanes_x4, sleep=1):
    A(f'''
    v_lshlrev_b32 v3, 4, v0
    v_mov_b32 v8, 0x80000000
    v_cmp_gt_u32 vcc, {n_lanes_x4}, v0
    v_cndmask_b32 v3, v8, v3, vcc
    s_mov_b64 s[56:57], vcc
{label}:
    buffer_load_dwordx4 v[4:7], v3, s[16:19], {base} offen sc1
    s_waitcnt vmcnt(0)
    v_xor_b32 v4, s97, v4
    v_xor_b32 v5, s97, v5
    v_xor_b32 v6, s97, v6
    v_xor_b32 v7, s97, v7
    v_or3_b32 v4, v4, v5, v6
    v_or_b32 v4, v4, v7
    v_cmp_ne_u32 vcc, 0, v4
    s_and_b64 vcc, vcc, s[56:57]
    s_cbranch_vccz {label}_ok
    s_sleep {sleep}
    s_branch {label}
{label}_ok:''')

def k1_srds(A, tag):
    A(f'''
    s_waitcnt lgkmcnt(0)
    s_mov_b32 s8, s4
    s_mov_b32 s9, s5
    s_mov_b32 s10, 2621440
    s_mov_b32 s11, 0x00020000
    s_mov_b32 s15, 0x00020000
    s_cmp_eq_u32 s36, 2
    s_cbranch_scc1 K1_srd_h{tag}
    s_mov_b32 s12, s64
    s_mov_b32 s13, s65
    s_mov_b32 s14, 2457600
    s_branch K1_srd_d{tag}
K1_srd_h{tag}:
    s_mov_b32 s12, s24
    s_mov_b32 s13, s25
    s_mov_b32 s14, 1966080
K1_srd_d{tag}:
    s_mov_b32 s16, s28
    s_mov_b32 s17, s29
    s_mov_b32 s18, {WS_END}
    s_mov_b32 s19, 0x00020000
    s_mov_b32 s92, s28
    s_mov_b32 s93, s29
    s_mov_b32 s94, {WS_PROF_END}
    s_mov_b32 s95, 0x00020000''')

def gen_p1_compute(A, opts, SF):
    ACC = 16
    def acc(uu, mt): return ACC + (uu * 4 + mt) * 4
    XS = [128, 172]; WSs = [144, 188]
    VAX = [216, 217]; VW = 218
    T = 128
    A(f'''
    s_and_b32 s41, s30, 1
    s_lshr_b32 s42, s30, 1
    v_and_b32 v1, 15, v0
    v_lshrrev_b32 v2, 4, v0
    v_and_b32 v3, 7, v1
    v_xor_b32 v3, v2, v3
    v_lshlrev_b32 v3, 4, v3
    v_lshl_add_u32 v3, v1, 7, v3
    s_lshl_b32 s43, s41, 13
    v_add_u32 v{VAX[0]}, s43, v3
    v_xor_b32 v{VAX[1]}, 64, v{VAX[0]}
    v_lshrrev_b32 v4, 2, v1
    v_and_b32 v5, 3, v0
    v_and_b32 v6, 1, v2
    v_lshl_or_b32 v6, v6, 2, v4
    v_lshl_add_u32 v7, v2, 3, v4
    v_lshlrev_b32 v7, 9, v7
    v_lshl_add_u32 v7, v5, 3, v7
    v_add_u32 v7, 16384, v7
    s_lshl_b32 s44, s42, 3
    s_add_u32 s45, s42, 6
    ''')
    for uu in range(7):
        if uu < 6: A(f'    s_add_u32 s46, s44, {uu}\n    v_xor_b32 v8, s46, v6')
        else:      A(f'    v_xor_b32 v8, s45, v6')
        A(f'    v_lshl_add_u32 v{VW+uu}, v8, 5, v7')
    for r in range(ACC, ACC + 112):
        A(f'    v_mov_b32 v{r}, 0')
    def reads(st, ks):
        R = []
        for mt in range(4):
            R.append(f'    ds_read_b128 {vr(XS[st]+4*mt,4)}, v{VAX[ks]} offset:{mt*2048}')
        for uu in range(7):
            for t in range(2):
                R.append(f'    ds_read_b64_tr_b16 {vr(WSs[st]+4*uu+2*t,2)}, v{VW+uu} offset:{(32*ks+4*t)*512}')
        return R
    def phase(st, rd, swapped, extra=()):
        k = 0
        extra = list(extra)
        for uu in range(7):
            for mt in range(4):
                w = vr(WSs[st] + 4 * uu, 4); x = vr(XS[st] + 4 * mt, 4); d = vr(acc(uu, mt), 4)
                if swapped: A(f'    v_mfma_f32_16x16x32_bf16 {d}, {w}, {x}, {d}')
                else:       A(f'    v_mfma_f32_16x16x32_bf16 {d}, {x}, {w}, {d}')
                if k < len(rd): A(rd[k])
                elif extra: A(extra.pop(0))
                k += 1
        for e in extra: A(e)
    def mainloop(tag, swapped):
        A(f'''
    s_mov_b32 s46, 0
    s_mov_b32 s47, 0
    s_mov_b32 s50, 0xfffe8000
    s_mov_b32 s51, 49152
    s_barrier''')
        for l in reads(0, 0): A(l)
        A(f'K1_loop_{tag}:')
        A('''
    s_add_u32 s47, s47, 1
    s_cmp_eq_u32 s47, 3
    s_cselect_b32 s48, s50, s51
    s_cselect_b32 s47, 0, s47
    s_waitcnt lgkmcnt(0)''')
        upd = [f'    v_add_u32 v{r}, s48, v{r}' for r in VAX + [VW + i for i in range(7)]]
        phase(0, reads(1, 1), swapped, upd)
        A('''
    s_waitcnt lgkmcnt(0)
    s_barrier''')
        phase(1, reads(0, 0), swapped, ['    s_add_u32 s46, s46, 1', '    s_cmp_lt_u32 s46, 10'])
        A(f'''
    s_cbranch_scc1 K1_loop_{tag}
    s_waitcnt lgkmcnt(0)
    s_nop 7''')
        stamp(A, opts, 1)
    k1_srds(A, 'c')
    if opts.get('tlbw', 0):
        G = opts.get('tlbw')
        A(f'''
    s_cmp_eq_u32 s32, 0
    s_cbranch_scc0 K1_notlb
    s_cmp_eq_u32 s30, 3
    s_cbranch_scc0 K1_notlb
    v_lshlrev_b32 v10, {G}, v0
    buffer_load_dword v227, v10, s[16:19], 0 offen
    s_load_dwordx2 s[62:63], s[0:1], 56
    s_waitcnt lgkmcnt(0)
    s_mov_b32 s20, s62
    s_mov_b32 s21, s63
    s_mov_b32 s22, 2621440
    s_mov_b32 s23, 0x00020000
    buffer_load_dword v228, v10, s[20:23], 0 offen
K1_notlb:''')
    for r in range(9, 15): A(f'    v_mov_b32 v{r}, 0x80000000')
    A('''
    s_cmp_eq_u32 s36, 1
    s_cbranch_scc1 K1_main_v
    s_cmp_eq_u32 s36, 2
    s_cbranch_scc1 K1_pre_h''')
    A(f'''
    s_lshl_b32 s43, s41, 2
    s_lshr_b32 s46, s40, 4
    s_add_u32 s43, s43, s46
    s_mul_i32 s43, s43, 768
    v_lshlrev_b32 v3, 3, v1
    v_add_u32 v3, s43, v3
    s_mov_b32 s49, 52429
    s_mov_b32 s52, 98304
    s_mov_b32 s53, 0x3ea52b5c''')
    for uu in range(7):
        if uu < 6: A(f'    s_add_u32 s46, s44, {uu}')
        else:      A(f'    s_mov_b32 s46, s45')
        A(f'''
    s_add_u32 s46, s46, s37
    s_lshl_b32 s46, s46, 2
    v_add_u32 v4, s46, v2
    v_mul_lo_u32 v5, v4, s49
    v_lshrrev_b32 v5, 18, v5
    v_mul_u32_u24 v6, 5, v5
    v_sub_u32 v6, v4, v6
    v_mul_lo_u32 v5, v5, s52
    v_lshl_add_u32 v5, v6, 7, v5
    v_add_u32 v{8+uu}, v5, v3''')
    A('    s_branch K1_pre_done')
    A(f'''K1_pre_h:
    s_lshl_b32 s43, s33, 1
    s_add_u32 s43, s43, s41
    s_mul_i32 s43, s43, {48*4096}
    s_add_u32 s43, s43, {WS_H}
    s_add_u32 s56, s37, s44
    s_lshl_b32 s56, s56, 11
    s_add_u32 s56, s56, s43
    v_and_b32 v4, 1, v2
    v_lshlrev_b32 v4, 1, v4
    v_lshrrev_b32 v5, 1, v2
    v_add_u32 v4, v4, v5
    v_lshl_add_u32 v4, v4, 4, v1
    v_lshlrev_b32 v4, 4, v4
    s_add_u32 s57, s37, 6
    s_lshl_b32 s57, s57, 11
    s_add_u32 s57, s57, s43
    s_lshl_b32 s48, s42, 1
    v_add_u32 v5, s48, v5
    v_lshl_add_u32 v5, v5, 4, v1
    v_lshlrev_b32 v5, 4, v5
    v_and_b32 v6, 1, v2
    v_lshl_add_u32 v5, v6, 10, v5
K1_pre_done:''')
    mainloop('s', True)
    A('''
    s_cmp_eq_u32 s36, 2
    s_cbranch_scc1 K1_epi_h''')
    for uu in range(7):
        if uu < 6: A(f'    s_add_u32 s46, s44, {uu}')
        else:      A(f'    s_mov_b32 s46, s45')
        A(f'''
    s_add_u32 s46, s46, s37
    s_cmp_lt_u32 s46, 40
    s_cselect_b32 s54, s53, 1.0
    s_mov_b32 s55, s54''')
        for mt in range(4):
            d = acc(uu, mt); t = T + (uu * 4 + mt) * 2
            A(f'''
    v_pk_mul_f32 {vr(d,2)}, {vr(d,2)}, s[54:55]
    v_pk_mul_f32 {vr(d+2,2)}, {vr(d+2,2)}, s[54:55]
    v_cvt_pk_bf16_f32 v{t}, v{d}, v{d+1}
    v_cvt_pk_bf16_f32 v{t+1}, v{d+2}, v{d+3}
    buffer_store_dwordx2 {vr(t,2)}, v{8+uu}, s[16:19], 0 offen offset:{WS_QK + mt*768}{SF}''')
    A('    s_branch KF_p1done')
    A('K1_epi_h:')
    n = 0
    for pp in range(3):
        A(f'    s_add_u32 s49, s56, {pp*4096}')
        for mt in range(4):
            t = T + n * 4; n += 1
            d0 = acc(2 * pp, mt); d1 = acc(2 * pp + 1, mt)
            A(f'''
    v_cvt_pk_bf16_f32 v{t}, v{d0}, v{d0+1}
    v_cvt_pk_bf16_f32 v{t+1}, v{d0+2}, v{d0+3}
    v_cvt_pk_bf16_f32 v{t+2}, v{d1}, v{d1+1}
    v_cvt_pk_bf16_f32 v{t+3}, v{d1+2}, v{d1+3}
    v_pk_max_i16 v{t}, v{t}, 0
    v_pk_max_i16 v{t+1}, v{t+1}, 0
    v_pk_max_i16 v{t+2}, v{t+2}, 0
    v_pk_max_i16 v{t+3}, v{t+3}, 0
    v_permlane16_swap_b32 v{t}, v{t+2}
    v_permlane16_swap_b32 v{t+1}, v{t+3}
    buffer_store_dwordx4 {vr(t,4)}, v4, s[16:19], s49 offen offset:{1024*mt}{SF}''')
    for pm in range(2):
        t = T + n * 4; n += 1
        d0 = acc(6, 2 * pm); d1 = acc(6, 2 * pm + 1)
        A(f'''
    v_cvt_pk_bf16_f32 v{t}, v{d0}, v{d0+1}
    v_cvt_pk_bf16_f32 v{t+1}, v{d0+2}, v{d0+3}
    v_cvt_pk_bf16_f32 v{t+2}, v{d1}, v{d1+1}
    v_cvt_pk_bf16_f32 v{t+3}, v{d1+2}, v{d1+3}
    v_pk_max_i16 v{t}, v{t}, 0
    v_pk_max_i16 v{t+1}, v{t+1}, 0
    v_pk_max_i16 v{t+2}, v{t+2}, 0
    v_pk_max_i16 v{t+3}, v{t+3}, 0
    v_permlane16_swap_b32 v{t}, v{t+2}
    v_permlane16_swap_b32 v{t+1}, v{t+3}
    buffer_store_dwordx4 {vr(t,4)}, v5, s[16:19], s57 offen offset:{2048*pm}{SF}''')
    A('    s_branch KF_p1done')
    A('K1_main_v:')
    A(f'''
    s_lshl_b32 s43, s41, 1
    s_lshr_b32 s46, s40, 5
    s_add_u32 s43, s43, s46
    s_lshl_b32 s43, s43, 10
    s_add_u32 s43, s43, {WS_VT}
    v_lshlrev_b32 v3, 4, v0
    v_add_u32 v3, s43, v3''')
    for uu in range(7):
        if uu < 6: A(f'    s_add_u32 s46, s44, {uu}')
        else:      A(f'    s_mov_b32 s46, s45')
        A(f'''
    s_add_u32 s46, s46, s37
    s_lshl_b32 s46, s46, 16
    v_add_u32 v{8+uu}, s46, v3''')
    mainloop('n', False)
    for uu in range(7):
        for pa in range(2):
            t = T + (uu * 2 + pa) * 4
            d0 = acc(uu, 2 * pa); d1 = acc(uu, 2 * pa + 1)
            A(f'''
    v_cvt_pk_bf16_f32 v{t}, v{d0}, v{d0+1}
    v_cvt_pk_bf16_f32 v{t+1}, v{d0+2}, v{d0+3}
    v_cvt_pk_bf16_f32 v{t+2}, v{d1}, v{d1+1}
    v_cvt_pk_bf16_f32 v{t+3}, v{d1+2}, v{d1+3}
    buffer_store_dwordx4 {vr(t,4)}, v{8+uu}, s[16:19], 0 offen offset:{1024*pa}{SF}''')
    A('    s_branch KF_p1done')

def gen_p1_loader(A, opts, SF):
    A(f'''K1_loader:
    s_sub_u32 s41, s30, 4
    v_lshrrev_b32 v1, 3, v0
    v_and_b32 v2, 7, v0
    v_lshlrev_b32 v21, 4, v2
    v_xor_b32 v2, v2, v1
    v_lshlrev_b32 v2, 4, v2
    s_movk_i32 s43, 1280
    v_mul_lo_u32 v1, v1, s43
    v_add_u32 v2, v2, v1
    v_add_u32 v21, v21, v1
    v_lshrrev_b32 v4, 5, v0
    s_and_b32 s44, s41, 1
    s_lshr_b32 s45, s41, 1
    s_lshl_b32 s46, s44, 1
    s_lshl_b32 s47, s45, 2
    s_or_b32 s46, s46, s47
    v_or_b32 v5, s46, v4
    v_bfe_u32 v6, v0, 1, 4
    v_xor_b32 v6, v6, v5
    v_mul_lo_u32 v7, v4, s39
    v_lshl_add_u32 v7, v6, 5, v7
    v_and_b32 v8, 1, v0
    v_lshl_add_u32 v3, v8, 4, v7
    v_mov_b32 v9, 0x80000000
    v_cmp_le_u32 vcc, 14, v6
    v_cndmask_b32 v3, v3, v9, vcc
    s_lshl_b32 s50, s41, 5
    s_add_u32 s50, s50, s40
    s_mul_i32 s50, s50, 1280
    s_add_u32 s52, s44, s47
    s_lshl_b32 s53, s52, 1
    s_mul_i32 s51, s53, s39
    s_add_u32 s51, s51, s38
    s_lshl_b32 s54, s39, 2
    s_mul_i32 s55, s39, 12
    s_lshl_b32 s56, s39, 6
    s_lshl_b32 s57, s41, 12
    s_lshl_b32 s58, s52, 10
    s_add_u32 s58, s58, 16384
    s_mov_b32 s59, 0
    s_and_b32 s46, s32, 7
    s_lshr_b32 s47, s32, 3
    s_add_u32 s46, s46, s47
    s_and_b32 s46, s46, {opts.get('rotng', 2) - 1}
    s_mul_i32 s90, s46, {opts.get('rotr', 3)}
    s_lshl_b32 s46, s90, 7
    s_add_u32 s50, s50, s46
    s_mul_i32 s46, s90, s56
    s_add_u32 s51, s51, s46
    s_mul_i32 s91, s56, 10
    ''')
    def issue():
        A('    s_add_u32 s60, s59, s57\n    s_add_u32 s61, s59, s58')
        for jj in range(4):
            A(f'''
    s_add_u32 m0, s60, {jj*1024}
    s_add_u32 s62, s50, {jj*10240}
    buffer_load_dwordx4 v2, s[8:11], s62 offen lds''')
        A('    s_mov_b32 s62, s51')
        i = 0
        for b in range(4):
            for aa in range(2):
                A(f'    s_add_u32 m0, s61, {(2*aa+8*b)*1024}')
                if i > 0: A(f'    s_add_u32 s62, s62, {"s54" if aa == 1 else "s55"}')
                else: A('    s_nop 0')
                A('    buffer_load_dwordx4 v3, s[12:15], s62 offen lds')
                i += 1
        A(f'''
    s_add_u32 s50, s50, 128
    s_add_u32 s51, s51, s56
    s_add_u32 s90, s90, 1
    s_cmp_eq_u32 s90, 10
    s_cselect_b32 s46, 1280, 0
    s_cselect_b32 s47, s91, 0
    s_cselect_b32 s90, 0, s90
    s_sub_u32 s50, s50, s46
    s_sub_u32 s51, s51, s47
    s_add_u32 s59, s59, 49152
    s_cmp_eq_u32 s59, 147456
    s_cselect_b32 s59, 0, s59''')
    k1_srds(A, 'l')
    issue(); issue()
    A('    s_waitcnt vmcnt(12)\n    s_barrier')
    issue()
    A(f'''
    s_lshl_b32 s63, s2, 2
    s_add_u32 s63, s63, s41
    s_mul_hi_u32 s46, s63, 0x1999999a
    s_mul_i32 s47, s46, 10
    s_sub_u32 s47, s63, s47
    s_cmp_lt_u32 s46, 48
    s_cbranch_scc0 K1_pk_wo
    s_mov_b32 s20, s26
    s_mov_b32 s21, s27
    s_mov_b32 s22, 1966080
    s_mul_i32 s34, s46, 40960
    s_add_u32 s35, s34, {WS_W2F}
    s_lshl_b32 s46, s47, 7
    s_add_u32 s34, s34, s46
    v_mov_b32 v50, v21
    v_add_u32 v51, 10240, v21
    v_add_u32 v52, 20480, v21
    v_add_u32 v53, 30720, v21
    s_branch K1_pk_go
K1_pk_wo:
    s_mov_b32 s20, s66
    s_mov_b32 s21, s67
    s_mov_b32 s22, 819200
    s_sub_u32 s46, s46, 48
    s_mul_i32 s35, s46, 40960
    s_add_u32 s35, s35, {WS_WOF}
    s_lshl_b32 s34, s47, 7
    s_lshl_b32 s46, s46, 5
    v_lshrrev_b32 v54, 3, v0
    v_add_u32 v54, s46, v54
    s_mov_b32 s46, 0xaaaaaab
    v_and_b32 v55, 7, v0
    v_lshlrev_b32 v55, 4, v55
    v_mov_b32 v58, 0x80000000''')
    for jj in range(4):
        A(f'''
    v_mul_hi_u32 v56, v54, s46
    v_mul_u32_u24 v57, 24, v56
    v_sub_u32 v57, v54, v57
    v_mul_u32_u24 v56, 20, v56
    v_add_u32 v56, v56, v57
    v_mul_u32_u24 v56, 1280, v56
    v_add_u32 v56, v56, v55
    v_cmp_gt_u32 vcc, 20, v57
    v_cndmask_b32 v{50+jj}, v58, v56, vcc
    v_add_u32 v54, 8, v54''')
    A(f'''
K1_pk_go:
    s_mov_b32 s23, 0x00020000
    s_lshl_b32 s46, s47, 12
    s_add_u32 s35, s35, s46
    s_cmp_ge_u32 s63, 720
    s_cselect_b32 s35, 0x7f000000, s35
    s_cselect_b32 s34, 0x7f000000, s34
    s_add_u32 s46, s57, {PK}''')
    for jj in range(4):
        A(f'''
    s_add_u32 m0, s46, {jj*1024}
    s_nop 0
    buffer_load_dwordx4 v{50+jj}, s[20:23], s34 offen lds''')
    A('    s_waitcnt vmcnt(16)\n    s_barrier')
    issue()
    A('    s_waitcnt vmcnt(16)\n    s_barrier')
    issue()
    A('    s_waitcnt vmcnt(12)\n    s_barrier')
    A(f'''
    v_lshrrev_b32 v10, 4, v0
    v_bfe_u32 v11, v0, 2, 2
    v_lshl_add_u32 v10, v10, 3, v11
    v_lshlrev_b32 v10, 7, v10
    v_and_b32 v11, 3, v0
    v_lshl_add_u32 v10, v11, 3, v10
    s_add_u32 s46, s57, {PK}
    v_add_u32 v10, s46, v10
    v_lshlrev_b32 v11, 4, v0''')
    for u in range(4):
        for t in range(2):
            A(f'    ds_read_b64_tr_b16 {vr(24+4*u+2*t,2)}, v10 offset:{t*512 + u*32}')
    issue()
    A('    s_waitcnt lgkmcnt(0)')
    for u in range(4):
        A(f'    buffer_store_dwordx4 {vr(24+4*u,4)}, v11, s[16:19], s35 offen offset:{u*1024} sc1')
    A('    s_waitcnt vmcnt(16)\n    s_barrier')
    issue()
    A('    s_waitcnt vmcnt(16)\n    s_barrier')
    mp = opts.get('midpf', 0)
    if mp:
        A(f'''
    s_lshl_b32 s46, s32, 2
    s_add_u32 s46, s46, s41
    s_mul_i32 s46, s46, 192
    v_add_u32 v59, s46, v0
    v_lshlrev_b32 v60, 7, v59
    v_add_u32 v60, {WS_W2F}, v60
    v_mov_b32 v58, 0x80000000''')
        for n in range(3):
            A(f'''
    v_add_u32 v61, {64*n}, v59
    v_cmp_gt_u32 vcc, 23040, v61
    v_cndmask_b32 v{62+n}, v58, v60, vcc
    v_add_u32 v60, 8192, v60''')
    def tch(n):
        if mp: A(f'    buffer_load_dword v{66+n}, v{62+n}, s[16:19], 0 offen')
    if opts.get('midpf_early'): tch(0)
    issue()
    if not opts.get('midpf_early'): tch(0)
    A(f'    s_waitcnt vmcnt({12 + mp})\n    s_barrier')
    issue()
    tch(1)
    A(f'    s_waitcnt vmcnt({12 + 2*mp})\n    s_barrier')
    issue()
    tch(2)
    A(f'''
    s_lshr_b32 s34, s31, 1
    s_lshl_b32 s34, s34, 2
    s_lshr_b32 s35, s32, 3
    s_add_u32 s34, s34, s35
    s_lshl_b32 s44, s34, 3
    s_add_u32 s44, s44, s40
    s_lshl_b32 s45, s41, 1
    s_add_u32 s44, s44, s45
    s_mul_i32 s45, s44, 1280
    s_mov_b32 s20, s68
    s_mov_b32 s21, s69
    s_mov_b32 s22, 1280
    s_mov_b32 s23, 0x00020000
    v_lshlrev_b32 v10, 2, v0''')
    for j in range(5):
        A(f'    buffer_load_dword v{16+j}, v10, s[20:23], 0 offen offset:{256*j}')
    for rr in range(2):
        for j in range(5):
            A(f'    buffer_load_dword v{24+8*rr+j}, v10, s[8:11], s45 offen offset:{256*j + 1280*rr}')
    A(f'''
    v_mov_b32 v15, 0x80000000
    s_lshl_b32 s46, s2, 2
    s_add_u32 s46, s46, s41
    s_lshl_b32 s46, s46, 2
    v_lshrrev_b32 v11, 4, v0
    v_add_u32 v11, s46, v11
    v_mul_u32_u24 v11, 768, v11
    v_and_b32 v12, 15, v0
    v_lshl_add_u32 v11, v12, 3, v11
    v_add_u32 v11, {WS_QK + 32*98304 + 640}, v11
    v_mov_b32 v12, 0
    v_mov_b32 v13, 0
    buffer_store_dwordx2 v[12:13], v11, s[16:19], 0 offen{SF}
    s_add_u32 s46, s2, s41
    s_cmp_eq_u32 s46, 0
    s_cselect_b32 s46, 8, 0
    v_lshlrev_b32 v11, 4, v0
    v_add_u32 v11, {WS_ONES}, v11
    v_cmp_gt_u32 vcc, s46, v0
    v_cndmask_b32 v11, v15, v11, vcc
    v_mov_b32 v44, 0x3f803f80
    v_mov_b32 v45, 0x3f803f80
    v_mov_b32 v46, 0x3f803f80
    v_mov_b32 v47, 0x3f803f80
    buffer_store_dwordx4 v[44:47], v11, s[16:19], 0 offen{SF}
    s_cmp_eq_u32 s41, 0
    s_cselect_b32 s46, 4, 0
    s_lshl_b32 s47, s2, 4
    s_add_u32 s47, s47, {WS_FLAG2}
    v_lshl_add_u32 v11, v0, 2, s47
    v_cmp_gt_u32 vcc, s46, v0
    v_cndmask_b32 v11, v15, v11, vcc
    buffer_store_dword v12, v11, s[16:19], 0 offen{SF}
    s_waitcnt vmcnt({30 + 2*opts.get('midpf', 0)})
    s_barrier
    s_waitcnt vmcnt({18 + opts.get('midpf', 0)})
    s_barrier
    s_barrier
    s_waitcnt vmcnt(3)''')
    for rr in range(2):
        acc_ = 40 + rr
        A(f'    v_mov_b32 v{acc_}, 0')
        for j in range(5):
            A(f'    v_dot2c_f32_bf16 v{acc_}, v{16+j}, v{24+8*rr+j}')
    for rr in range(2):
        r = 40 + rr
        A(f'''
    v_add_f32_dpp v{r}, v{r}, v{r} quad_perm:[1,0,3,2] row_mask:0xf bank_mask:0xf
    v_add_f32_dpp v{r}, v{r}, v{r} quad_perm:[2,3,0,1] row_mask:0xf bank_mask:0xf
    v_add_f32_dpp v{r}, v{r}, v{r} row_half_mirror row_mask:0xf bank_mask:0xf
    v_add_f32_dpp v{r}, v{r}, v{r} row_mirror row_mask:0xf bank_mask:0xf
    v_mov_b32 v43, v{r}
    v_permlane16_swap_b32 v43, v{r}
    v_add_f32 v{r}, v{r}, v43
    v_mov_b32 v43, v{r}
    v_permlane32_swap_b32 v43, v{r}
    v_add_f32 v{r}, v{r}, v43''')
    A(f'''
    v_cmp_eq_u32 vcc, 1, v0
    v_cndmask_b32 v40, v40, v41, vcc
    v_mul_f32 v40, 0xbfb8aa3b, v40
    v_exp_f32 v40, v40
    v_add_f32 v40, 1.0, v40
    v_rcp_f32 v40, v40
    s_lshl_b32 s46, s44, 2
    s_add_u32 s46, s46, {WS_G}
    v_lshl_add_u32 v14, v0, 2, s46
    v_cmp_gt_u32 vcc, 2, v0
    v_cndmask_b32 v14, v15, v14, vcc
    buffer_store_dword v40, v14, s[16:19], 0 offen{SF}''')
    npf = opts.get('w2pf', 0)
    if npf:
        A(f'''
    s_lshl_b32 s46, s32, 2
    s_add_u32 s46, s46, s41
    s_mul_i32 s46, s46, 192
    v_add_u32 v59, s46, v0
    v_lshlrev_b32 v60, 7, v59
    v_add_u32 v60, {WS_W2F}, v60''')
        for n in range(npf):
            A(f'''
    v_add_u32 v61, {64*n}, v59
    v_cmp_gt_u32 vcc, 23040, v61
    v_cndmask_b32 v{62+n}, v15, v60, vcc
    buffer_load_dword v{66+n}, v{62+n}, s[16:19], 0 offen
    v_add_u32 v60, 8192, v60''')
    stamp(A, opts, 1)

def gen_attn(A, opts):
    NAW = 4
    SA = 16; KB = 48; VB = 64; Q = 80; O = 96; G = 112
    VK = 116; VK2 = 117; VV0 = 118; VV1 = 119; VO1 = 120; VO2 = 121
    NQT = 4; KPW = 6
    A(f'''
    {'s_setprio 2' if opts.get('prio', 0) else ''}
    s_lshr_b32 s59, s32, 2              ; qb
    s_lshl_b32 s33, s59, 8              ; Q0
    s_and_b32 s34, s32, 3
    s_lshl_b32 s35, s31, 2
    s_add_u32 s34, s34, s35             ; head
    s_add_u32 s35, s34, 32
    s_mul_i32 s35, s35, 98304
    s_mul_i32 s40, s33, 48
    s_add_u32 s35, s35, s40
    s_sub_u32 s35, s35, {256*48 - WS_QK}
    v_lshlrev_b32 v3, 4, v0
    s_mul_i32 s37, s30, {KPW*1024}
    s_add_u32 s35, s35, s37
    s_cmp_eq_u32 s59, 0
    s_cselect_b32 s38, 1, 0
    s_cmp_lt_u32 s30, {NAW//2}
    s_cselect_b32 s39, s38, 0
    s_waitcnt lgkmcnt(0)
    s_mov_b32 s16, s28
    s_mov_b32 s17, s29
    s_mov_b32 s18, {WS_END}
    s_mov_b32 s19, 0x00020000
    s_mov_b32 s92, s28
    s_mov_b32 s93, s29
    s_mov_b32 s94, {WS_PROF_END}
    s_mov_b32 s95, 0x00020000
    s_cmp_eq_u32 s39, 1
    s_cbranch_scc1 K2_kfill''')
    for j in range(KPW):
        A(f'''
    s_add_u32 m0, s37, {KL + j*1024}
    s_add_u32 s40, s35, {j*1024}
    buffer_load_dwordx4 v3, s[16:19], s40 offen lds''')
    A(f'''
    s_branch K2_kdone
K2_kfill:
    v_mov_b32 v5, 0
    v_mov_b32 v7, 0
    s_mul_i32 s40, s30, {KPW*64}
    v_add_u32 v8, s40, v0
    s_mov_b32 s41, 0x5555556''')
    for j in range(KPW):
        A(f'''
    v_mul_hi_u32 v9, v8, s41
    v_mul_u32_u24 v9, 48, v9
    v_sub_u32 v9, v8, v9
    v_cmp_le_u32 vcc, 40, v9
    v_mov_b32 v6, 0x3f80
    v_cndmask_b32 v6, 0, v6, vcc
    v_mov_b32 v4, v6
    v_lshlrev_b32 v9, 4, v8
    ds_write_b128 v9, v[4:7] offset:{KL}
    v_add_u32 v8, 64, v8''')
    A(f'''
K2_kdone:
    s_mul_i32 s36, s30, {NQT*16}
    s_add_u32 s36, s36, s33
    s_mul_i32 s35, s34, 98304
    s_mul_i32 s40, s36, 48
    s_add_u32 s35, s35, s40
    v_lshlrev_b32 v4, 3, v0
    v_lshlrev_b32 v5, 3, v1''')
    for t in range(NQT):
        A(f'    buffer_load_dwordx2 {vr(Q+4*t,2)}, v4, s[16:19], s35 offen offset:{WS_QK + t*768}')
        A(f'    buffer_load_dwordx2 {vr(Q+4*t+2,2)}, v5, s[16:19], s35 offen offset:{WS_QK + t*768 + 512}')
    A(f'''
    s_lshl_b32 s40, s36, 2
    s_add_u32 s40, s40, {WS_G}
    v_lshlrev_b32 v5, 2, v1''')
    for t in range(NQT):
        A(f'    buffer_load_dword v{G+t}, v5, s[16:19], s40 offen offset:{t*64}')
    A(f'''
    ; V gather: q = 64*(w+4j) + lane ; bg = q/21, d = q%21 ; blk = Q0/32 - 8 + bg/4 ; g = bg&3 ; n = 20*head + d
    s_lshl_b32 s40, s30, 6
    v_add_u32 v3, s40, v0
    s_mov_b32 s41, 0xc30c30d
    s_mul_i32 s43, s34, 20
    s_lshr_b32 s35, s33, 5
    s_sub_u32 s35, s35, 8
    v_mov_b32 v9, {WS_ONES}
    s_lshl_b32 s37, s30, 10''')
    for j in range(6):
        if j == 5: A('    s_cmp_eq_u32 s30, 0\n    s_cbranch_scc0 K2_vdone')
        A(f'''
    v_mul_hi_u32 v4, v3, s41
    v_mul_u32_u24 v5, 21, v4
    v_sub_u32 v5, v3, v5
    v_lshrrev_b32 v6, 2, v4
    v_add_u32 v6, s35, v6
    v_and_b32 v4, 3, v4
    v_add_u32 v7, s43, v5
    v_lshrrev_b32 v8, 4, v7
    v_lshl_add_u32 v6, v8, 6, v6
    v_lshl_add_u32 v6, v6, 2, v4
    v_and_b32 v7, 15, v7
    v_lshlrev_b32 v7, 4, v7
    v_lshl_add_u32 v6, v6, 8, v7
    v_add_u32 v6, {WS_VT}, v6
    v_cmp_eq_u32 vcc, 20, v5
    v_cndmask_b32 v6, v6, v9, vcc
    s_add_u32 m0, s37, {VL + j*4096}
    v_add_u32 v3, 256, v3
    buffer_load_dwordx4 v6, s[16:19], 0 offen lds''')
    A(f'''K2_vdone:
    s_barrier
    v_mov_b32 v3, {C1}
    v_mov_b32 v4, 1
    s_mov_b64 exec, 1
    ds_add_u32 v3, v4
    s_mov_b64 exec, -1
    s_mul_i32 s40, s30, {NQT*768}
    v_lshlrev_b32 v{VK}, 3, v0
    v_add_u32 v{VK}, s40, v{VK}
    v_add_u32 v{VK2}, 768, v{VK}
    s_mul_i32 s40, s30, {NQT*672}
    s_add_u32 s40, s40, {VL}
    v_mul_u32_u24 v6, 336, v2
    v_add_u32 v6, s40, v6
    v_lshl_add_u32 v{VV0}, v1, 4, v6
    v_add_u32 v7, 16, v1
    v_min_u32 v7, 20, v7
    v_lshl_add_u32 v{VV1}, v7, 4, v6
    s_mul_i32 s41, s34, 3
    v_lshrrev_b32 v6, 1, v2
    v_add_u32 v6, s41, v6
    v_lshrrev_b32 v7, 2, v6
    v_lshlrev_b32 v7, 12, v7
    v_and_b32 v8, 3, v6
    v_lshl_add_u32 v7, v8, 8, v7
    v_and_b32 v8, 1, v2
    v_lshl_add_u32 v7, v8, 10, v7
    v_lshl_add_u32 v{VO1}, v1, 4, v7
    s_add_u32 s41, s41, 2
    s_lshr_b32 s42, s41, 2
    s_lshl_b32 s42, s42, 12
    s_and_b32 s43, s41, 3
    s_lshl_b32 s43, s43, 8
    s_add_u32 s42, s42, s43
    v_lshl_add_u32 v7, v2, 10, s42
    v_lshl_add_u32 v{VO2}, v1, 4, v7
    v_mov_b32 v13, 0x80000000
    v_cmp_gt_u32 vcc, 2, v2
    v_cndmask_b32 v{VO2}, v13, v{VO2}, vcc
    s_lshr_b32 s42, s36, 6
    s_mul_i32 s42, s42, {24*4096}
    s_add_u32 s42, s42, {WS_OP}
    v_lshlrev_b32 v8, 2, v2
    v_sub_u32 v8, v1, v8''')
    for r in range(4):
        A(f'    v_cmp_gt_i32 s[{44+2*r}:{45+2*r}], {r}, v8')
    A(f'''
    v_mov_b32 v14, 0xff800000
    v_cmp_eq_u32 s[54:55], 1, v2
    v_cmp_lt_u32 s[52:53], 0, v2
    s_cmp_eq_u32 s30, 0
    s_cbranch_scc0 K2_nopad
    v_mov_b32 v8, 0
    v_lshlrev_b32 v9, 2, v0
    ds_write_b32 v9, v8 offset:24576
K2_nopad:''')
    stamp(A, opts, 3)
    A(f'''
    v_mov_b32 v9, 0xf149
    v_mov_b32 v3, {CK}
    v_mov_b32 v4, 1
    s_waitcnt vmcnt(0) lgkmcnt(0)
    s_mov_b64 exec, 1
    ds_add_u32 v3, v4
    s_mov_b64 exec, -1''')
    for t in range(NQT):
        q = Q + 4 * t
        A(f'''
    v_cndmask_b32 v{q+2}, v{q+2}, 0, s[52:53]
    v_cndmask_b32 v{q+3}, v{q+3}, 0, s[52:53]
    v_cndmask_b32 v{q+2}, v{q+2}, v9, s[54:55]''')
    A(f'''
K2_kwait:
    ds_read_b32 v4, v3
    s_waitcnt lgkmcnt(0)
    v_readfirstlane_b32 s58, v4
    s_cmp_lt_u32 s58, {NAW}
    s_cbranch_scc1 K2_kwait''')
    stamp(A, opts, 4)
    def sa(st, q, t): return SA + 16 * st + 8 * q + 4 * t
    def kb(st, t): return KB + 8 * st + 4 * t
    def vb(st, d): return VB + 8 * st + 4 * d
    def loads(st):
        return [f'    ds_read2st64_b64 {vr(kb(st,0),4)}, v{VK} offset0:0 offset1:1',
                f'    ds_read2st64_b64 {vr(kb(st,1),4)}, v{VK2} offset0:0 offset1:1',
                f'    ds_read_b128 {vr(vb(st,0),4)}, v{VV0}',
                f'    ds_read_b128 {vr(vb(st,1),4)}, v{VV1}']
    def adv(n=1):
        return [f'    v_add_u32 v{VK}, {1536*n & 0xffffffff}, v{VK}', f'    v_add_u32 v{VK2}, {1536*n & 0xffffffff}, v{VK2}',
                f'    v_add_u32 v{VV0}, {1344*n & 0xffffffff}, v{VV0}', f'    v_add_u32 v{VV1}, {1344*n & 0xffffffff}, v{VV1}']
    def skip(q, T): return (q == 0 and T == 17) or (q == 1 and T == 0)
    def smfma(st, bb):
        return [f'    v_mfma_f32_16x16x32_bf16 {vr(sa(st,q,t),4)}, {vr(kb(st,t),4)}, {vr(Q+4*q,4)}, 0'
                for q in range(2) for t in range(2) if not skip(q, 2 * bb + t)]
    def masks(q, T, v):
        L = []
        if (q == 0 and T == 0) or (q == 1 and T == 1):
            L += [f'    v_cndmask_b32 v{v+r}, v14, v{v+r}, s[{44+2*r}:{45+2*r}]' for r in range(4)]
        if (q == 0 and T == 16) or (q == 1 and T == 17):
            L += [f'    v_cndmask_b32 v{v+r}, v{v+r}, v14, s[{44+2*r}:{45+2*r}]' for r in range(4)]
        return L
    def packpv(st, bb, q):
        L = []
        p = sa(st, q, 0)
        for t in range(2):
            v = sa(st, q, t)
            if skip(q, 2 * bb + t):
                L += [f'    v_mov_b32 v{p+2*t}, 0', f'    v_mov_b32 v{p+2*t+1}, 0']
            else:
                L += [f'    v_cvt_pk_bf16_f32 v{p+2*t}, v{v}, v{v+1}', f'    v_cvt_pk_bf16_f32 v{p+2*t+1}, v{v+2}, v{v+3}']
        M = []
        for d in range(2):
            o = O + 8 * q + 4 * d
            M.append(f'    v_mfma_f32_16x16x32_bf16 {vr(o,4)}, {vr(vb(st,d),4)}, {vr(p,4)}, {vr(o,4)}')
        return L, M
    def body(st, bb, has_next):
        nx = st ^ 1
        if has_next:
            for l in adv(): A(l)
            for l in loads(nx): A(l)
        def valu(q):
            L = []
            for t in range(2):
                T = 2 * bb + t; v = sa(st, q, t)
                if skip(q, T): continue
                L += masks(q, T, v)
                L += [f'    v_exp_f32 v{v+r}, v{v+r}' for r in range(4)]
            return L
        for l in valu(0): A(l)
        P0, M0 = packpv(st, bb, 0)
        for l in P0: A(l)
        v1 = valu(1)
        ms = list(M0)
        if has_next:
            ms = ms + ['    s_waitcnt lgkmcnt(0)'] + smfma(nx, bb + 1)
        i = 0
        for l in v1:
            A(l)
            if i < len(ms):
                A(ms[i]); i += 1
                if i < len(ms) and ms[i - 1].strip().startswith('s_waitcnt'):
                    A(ms[i]); i += 1
        while i < len(ms):
            A(ms[i]); i += 1
        P1, M1 = packpv(st, bb, 1)
        for l in P1: A(l)
        for l in M1: A(l)
    A('    s_mov_b32 s60, 0')
    A('K2_pair:')
    for r in range(16): A(f'    v_mov_b32 v{O+r}, 0')
    for l in loads(0): A(l)
    A('    s_waitcnt lgkmcnt(0)')
    for l in smfma(0, 0): A(l)
    body(0, 0, True)
    A('    s_mov_b32 s58, 0')
    A('K2_floop:')
    body(1, 1, True)
    body(0, 2, True)
    A('''
    s_add_u32 s58, s58, 1
    s_cmp_lt_u32 s58, 3
    s_cbranch_scc1 K2_floop''')
    body(1, 7, True)
    body(0, 8, False)
    def lbcast():
        A(f'''
    v_mov_b32 v3, v{O+4}
    v_mov_b32 v4, v{O+4}
    v_permlane16_swap_b32 v4, v3
    v_mov_b32 v4, v3
    v_permlane32_swap_b32 v4, v3
    v_mov_b32 v5, v{O+12}
    v_mov_b32 v6, v{O+12}
    v_permlane16_swap_b32 v6, v5
    v_mov_b32 v6, v5
    v_permlane32_swap_b32 v6, v5''')
    lbcast()
    A(f'''
    v_min_f32 v7, v4, v6
    v_max_f32 v8, v4, v6
    s_mov_b32 s61, 0x17800000          ; 2^-80
    s_mov_b32 s62, 0x5d800000          ; 2^60
    v_cmp_nle_f32 vcc, s61, v7
    s_mov_b64 s[56:57], vcc
    v_cmp_nge_f32 vcc, s62, v8
    s_or_b64 s[56:57], s[56:57], vcc
    s_cmp_lg_u64 s[56:57], 0
    s_cbranch_scc1 K2_fallback
K2_fin:
    v_rcp_f32 v4, v4
    v_rcp_f32 v6, v6
    v_mul_f32 v4, v4, v{G}
    v_mul_f32 v6, v6, v{G+1}''')
    for q in range(2):
        o = O + 8 * q; sc = 4 if q == 0 else 6
        for r in range(8): A(f'    v_mul_f32 v{o+r}, v{o+r}, v{sc}')
    oa = O; ob = O + 8
    A(f'''
    v_cvt_pk_bf16_f32 v16, v{oa}, v{oa+1}
    v_cvt_pk_bf16_f32 v17, v{oa+2}, v{oa+3}
    v_cvt_pk_bf16_f32 v18, v{ob}, v{ob+1}
    v_cvt_pk_bf16_f32 v19, v{ob+2}, v{ob+3}
    v_cvt_pk_bf16_f32 v20, v{oa+4}, v{oa+5}
    v_cvt_pk_bf16_f32 v21, v{oa+6}, v{oa+7}
    v_cvt_pk_bf16_f32 v24, v{ob+4}, v{ob+5}
    v_cvt_pk_bf16_f32 v25, v{ob+6}, v{ob+7}
    v_mov_b32 v22, 0
    v_mov_b32 v23, 0
    v_permlane16_swap_b32 v16, v18
    v_permlane16_swap_b32 v17, v19
    v_permlane16_swap_b32 v20, v24
    v_permlane16_swap_b32 v21, v25
    buffer_store_dwordx4 v[16:19], v{VO1}, s[16:19], s42 offen sc1
    buffer_store_dwordx4 v[20:23], v{VO2}, s[16:19], s42 offen sc1
    s_add_u32 s42, s42, 2048
    s_add_u32 s60, s60, 1
    s_cmp_ge_u32 s60, 2
    s_cbranch_scc1 K2_attn_end''')
    for l in adv(-7): A(l)
    for r in range(8): A(f'    v_mov_b32 v{Q+r}, v{Q+8+r}')
    A(f'''
    v_mov_b32 v{G}, v{G+2}
    v_mov_b32 v{G+1}, v{G+3}
    s_branch K2_pair
K2_attn_end:''')
    stamp(A, opts, 5)
    A(f'''
    s_lshr_b32 s58, s36, 6
    s_lshl_b32 s58, s58, 5
    s_add_u32 s58, s58, s34
    s_lshl_b32 s58, s58, 2
    s_add_u32 s58, s58, {WS_FLAG2}
    v_mov_b32 v3, s58
    v_mov_b32 v4, 1
    s_waitcnt vmcnt(0)
    s_mov_b64 exec, 1
    buffer_store_dword v4, v3, s[16:19], 0 offen sc1
    s_mov_b64 exec, -1''')
    if opts.get('wo_attn', 0): gen_wo(A, opts)
    else:
        if opts.get('prof'):
            A('    s_waitcnt vmcnt(0)')
            stamp(A, opts, 7)
            stamp_flush(A, opts)
        A('    s_branch KF_done')
    def _fallback():
        A('K2_fallback:')
        for l in adv(-8): A(l)
        A('    v_mov_b32 v10, 0xff7fffff\n    v_mov_b32 v11, 0xff7fffff')
        for r in range(16): A(f'    v_mov_b32 v{O+r}, 0')
        for bb in range(9):
            for l in loads(0): A(l)
            if bb < 8:
                for l in adv(): A(l)
            A('    s_waitcnt lgkmcnt(0)')
            for l in smfma(0, bb): A(l)
            A('    s_nop 7')
            for q in range(2):
                vals = []
                for t in range(2):
                    T = 2 * bb + t; v = sa(0, q, t)
                    if skip(q, T): continue
                    for l in masks(q, T, v): A(l)
                    vals += [v + r for r in range(4)]
                m = 10 + q
                A(f'    v_mov_b32 v5, v{m}')
                for v in vals: A(f'    v_max_f32 v5, v5, v{v}')
                A(f'''
        v_mov_b32 v6, v5
        v_permlane16_swap_b32 v6, v5
        v_max_f32 v5, v5, v6
        v_mov_b32 v6, v5
        v_permlane32_swap_b32 v6, v5
        v_max_f32 v5, v5, v6
        v_sub_f32 v6, v{m}, v5
        v_exp_f32 v6, v6
        v_mov_b32 v{m}, v5''')
                o = O + 8 * q
                for r in range(8): A(f'    v_mul_f32 v{o+r}, v{o+r}, v6')
                for v in vals:
                    A(f'    v_sub_f32 v{v}, v{v}, v5')
                    A(f'    v_exp_f32 v{v}, v{v}')
                P, M = packpv(0, bb, q)
                for l in P + M: A(l)
                A('    s_nop 7')
        A('    s_nop 7')
        lbcast()
        A('    s_branch K2_fin')
    return _fallback

ACC = 16
RB = 96
VL16 = 240; VL16B = 241; GM = 12
CG = C1 + 12; CF = C1 + 16
def acc(u, mt): return ACC + (u * 4 + mt) * 4
def aslot(s, mt): return RB + 36 * s + 4 * mt
def wslot(s, u): return RB + 36 * s + 16 + 4 * u
def loadsA(slot, sc=''):
    L = [f'    buffer_load_dwordx4 {vr(aslot(slot,mt),4)}, v{VL16}, s[16:19], s41 offen offset:{mt*1024}{sc}' for mt in range(4)]
    L[-1] += '\n    s_add_u32 s41, s41, 4096'
    return L
def loadsW(slot):
    L = [f'    buffer_load_dwordx4 {vr(wslot(slot,u),4)}, v{VL16}, s[16:19], s42 offen offset:{u*1024}' for u in range(4)]
    L.append(f'    buffer_load_dwordx4 {vr(wslot(slot,4),4)}, v{VL16B}, s[16:19], s42 offen\n    s_add_u32 s42, s42, 40960')
    return L
def gstep(A, slot, loads, wait, first=False):
    A(f'    s_waitcnt vmcnt({wait})')
    li = 0; k = 0
    for u in range(5):
        for mt in range(4):
            d = vr(acc(u, mt), 4)
            c = '0' if first else d
            A(f'    v_mfma_f32_16x16x32_bf16 {d}, {vr(wslot(slot,u),4)}, {vr(aslot(slot,mt),4)}, {c}')
            k += 1
            if k % 2 == 0 and li < len(loads):
                A(loads[li]); li += 1
    while li < len(loads):
        A(loads[li]); li += 1
def gemm_ids(A, wsub, opts={}):
    if opts.get('gmap', 1) == 0:
        gm = '''s_and_b32 s34, s32, 3
    s_lshl_b32 s35, s31, 2
    s_add_u32 s34, s34, s35
    s_lshr_b32 s35, s32, 2'''
    else:
        gm = '''s_lshr_b32 s34, s31, 1
    s_lshl_b32 s34, s34, 3
    s_and_b32 s35, s32, 7
    s_add_u32 s34, s34, s35
    s_and_b32 s35, s31, 1
    s_lshl_b32 s35, s35, 2
    s_lshr_b32 s46, s32, 3
    s_add_u32 s35, s35, s46'''
    A(f'''
    s_sub_u32 s33, s30, {wsub}
    {gm}
    s_lshl_b32 s36, s34, 6             ; row0
    s_mul_i32 s43, s35, 5
    v_lshlrev_b32 v{VL16}, 4, v0
    v_add_u32 v{VL16B}, 4096, v{VL16}''')

def gen_gemm(A, opts):
    A('    s_barrier')
    gemm_ids(A, 4, opts)
    A(f'''
    s_mul_i32 s41, s34, 48
    s_mul_i32 s42, s33, 12
    s_add_u32 s41, s41, s42
    s_lshl_b32 s41, s41, 12
    s_add_u32 s41, s41, {WS_H}
    s_mul_i32 s42, s42, 40
    s_add_u32 s42, s42, s43
    s_lshl_b32 s42, s42, 10
    s_add_u32 s42, s42, {WS_W2F}
    s_lshl_b32 s40, s36, 2
    s_add_u32 s40, s40, {WS_G}
    v_lshlrev_b32 v3, 2, v1''')
    stamp(A, opts, 3)
    for mt in range(4):
        A(f'    buffer_load_dword v{GM+mt}, v3, s[16:19], s40 offen offset:{64*mt}')
    gd = opts.get('gdelay', 1)
    if gd:
        wait_lds(A, 'K2_gwait', CK if gd == 1 else C1, 4)
    for sl in range(3):
        for l in loadsW(sl) + loadsA(sl): A(l)
    stamp(A, opts, 4)
    gstep(A, 0, loadsA(3) + loadsW(3), 18, first=True)
    for sl in range(1, 4):
        gstep(A, sl, loadsA((sl + 3) % 4) + loadsW((sl + 3) % 4), 18)
    for sl in range(4):
        gstep(A, sl, loadsA((sl + 3) % 4) + loadsW((sl + 3) % 4), 18)
    gstep(A, 0, loadsA(3) + loadsW(3), 18)
    gstep(A, 1, [], 18)
    gstep(A, 2, [], 9)
    gstep(A, 3, [], 0)
    stamp(A, opts, 5)
    for mt in range(4):
        A(f'    v_sub_f32 v{GM+mt}, 1.0, v{GM+mt}')
    A(f'''
    s_mul_i32 s39, s33, 20480
    s_add_u32 s39, s39, {RED0}
    v_add_u32 v4, s39, v{VL16}
    s_nop 4''')
    for u in range(5):
        for mt in range(4):
            for r in range(4):
                a0 = acc(u, mt) + r
                A(f'    v_mul_f32 v{a0}, v{a0}, v{GM+mt}')
            A(f'    ds_write_b128 v4, {vr(acc(u,mt),4)} offset:{(mt*5+u)*1024}')
    A(f'''
    v_mov_b32 v3, {CG}
    v_mov_b32 v4, 1
    s_waitcnt lgkmcnt(0)
    s_mov_b64 exec, 1
    ds_add_u32 v3, v4
    s_mov_b64 exec, -1''')
    wait_lds(A, 'K2_cg', CG, 4, 1)
    A(f'''
    s_mul_i32 s45, s33, 5120
    s_add_u32 s45, s45, {RED0}
    v_add_u32 v4, s45, v{VL16}
    v_add_u32 v8, {2*20480}, v4''')
    T = RB
    for w in range(4):
        for u in range(5):
            A(f'    ds_read_b128 {vr(T+(w*5+u)*4,4)}, v{4 if w < 2 else 8} offset:{(w%2)*20480 + u*1024}')
    A('    s_waitcnt lgkmcnt(0)')
    for u in range(5):
        for r in range(4):
            t0 = T + u * 4 + r
            A(f'''
    v_add_f32 v{t0}, v{t0}, v{t0+20}
    v_add_f32 v{t0+40}, v{t0+40}, v{t0+60}
    v_add_f32 v{t0}, v{t0}, v{t0+40}''')
    A(f'''
    s_mul_i32 s45, s33, 5120
    s_add_u32 s45, s45, s39
    v_add_u32 v4, s45, v{VL16}''')
    for u in range(5):
        A(f'    ds_write_b128 v4, {vr(T+u*4,4)} offset:{u*1024}')
    A(f'''
    v_mov_b32 v3, {CF}
    v_mov_b32 v4, 1
    s_waitcnt lgkmcnt(0)
    s_mov_b64 exec, 1
    ds_add_u32 v3, v4
    s_waitcnt lgkmcnt(0)
    s_mov_b64 exec, -1''')
    if opts.get('prof'):
        stamp(A, opts, 7)
        stamp_flush(A, opts)

def final_reduce(A, opts):
    T = RB
    OSF = {0: '', 1: ' sc1', 2: ' nt'}[opts.get('osf', 0)]
    A(f'''
    s_mul_i32 s39, s33, 20480
    s_add_u32 s39, s39, {RED0}
    v_add_u32 v4, s39, v{VL16}
    s_nop 7''')
    for mt in range(4):
        A(f'    s_cmp_eq_u32 s33, {mt}\n    s_cbranch_scc1 K2_skipw{mt}')
        for u in range(5):
            A(f'    ds_write_b128 v4, {vr(acc(u,mt),4)} offset:{(mt*5+u)*1024}')
        A(f'    s_branch K2_donew{mt}')
        A(f'K2_skipw{mt}:')
        for u in range(5):
            for r in range(4):
                A(f'    v_mov_b32 v{T+60+u*4+r}, v{acc(u,mt)+r}')
        A(f'K2_donew{mt}:')
    A(f'''
    s_lshl_b32 s45, s33, 4
    s_add_u32 s45, s45, s36
    s_mul_i32 s45, s45, 1280
    s_mul_i32 s46, s35, 160
    s_add_u32 s45, s45, s46
    s_movk_i32 s37, 1280
    v_mul_lo_u32 v5, v1, s37
    v_and_b32 v6, 1, v2
    v_lshlrev_b32 v6, 5, v6
    v_lshrrev_b32 v7, 1, v2
    v_lshl_add_u32 v6, v7, 4, v6
    v_add_u32 v6, v6, v5
    v_lshl_add_u32 v7, v2, 3, v5
    s_mul_i32 s46, s33, 5120
    s_add_u32 s46, s46, {RED0}''')
    for k in range(1, 4):
        A(f'''
    s_add_u32 s47, s33, {k}
    s_and_b32 s47, s47, 3
    s_mul_i32 s47, s47, 20480
    s_add_u32 s47, s47, s46
    v_add_u32 v{8+k}, s47, v{VL16}''')
    A('    s_waitcnt lgkmcnt(0)\n    s_barrier')
    for k in range(1, 4):
        for u in range(5):
            A(f'    ds_read_b128 {vr(T+((k-1)*5+u)*4,4)}, v{8+k} offset:{u*1024}')
    for u in range(5):
        A(f'    s_waitcnt lgkmcnt({14 - (10 + u)})' if False else '')
    A('    s_waitcnt lgkmcnt(0)')
    for u in range(5):
        for r in range(4):
            t0 = T + u * 4 + r
            A(f'''
    v_add_f32 v{t0}, v{t0}, v{t0+20}
    v_add_f32 v{t0+40}, v{t0+40}, v{t0+60}
    v_add_f32 v{t0}, v{t0}, v{t0+40}''')
    P = 16
    for pp in range(2):
        t = P + 4 * pp; d0 = T + 8 * pp; d1 = T + 8 * pp + 4
        A(f'''
    v_cvt_pk_bf16_f32 v{t}, v{d0}, v{d0+1}
    v_cvt_pk_bf16_f32 v{t+1}, v{d0+2}, v{d0+3}
    v_cvt_pk_bf16_f32 v{t+2}, v{d1}, v{d1+1}
    v_cvt_pk_bf16_f32 v{t+3}, v{d1+2}, v{d1+3}
    v_permlane16_swap_b32 v{t}, v{t+2}
    v_permlane16_swap_b32 v{t+1}, v{t+3}
    buffer_store_dwordx4 {vr(t,4)}, v6, s[20:23], s45 offen offset:{64*pp}{OSF}''')
    d0 = T + 16
    A(f'''
    v_cvt_pk_bf16_f32 v24, v{d0}, v{d0+1}
    v_cvt_pk_bf16_f32 v25, v{d0+2}, v{d0+3}
    buffer_store_dwordx2 v[24:25], v7, s[20:23], s45 offen offset:128{OSF}''')
    if opts.get('prof'):
        A('    s_waitcnt vmcnt(0)')
        stamp(A, opts, 7)
        stamp_flush(A, opts)

def gen_gemm_full(A, opts):
    gemm_ids(A, 4, opts)
    A(f'''
    s_waitcnt lgkmcnt(0)
    s_mov_b32 s16, s28
    s_mov_b32 s17, s29
    s_mov_b32 s18, {WS_END}
    s_mov_b32 s19, 0x00020000
    s_mov_b32 s92, s28
    s_mov_b32 s93, s29
    s_mov_b32 s94, {WS_PROF_END}
    s_mov_b32 s95, 0x00020000
    s_barrier
    s_mov_b32 s20, s90
    s_mov_b32 s21, s91
    s_mov_b32 s22, 2621440
    s_mov_b32 s23, 0x00020000
    s_mul_i32 s41, s34, 48
    s_mul_i32 s42, s33, 12
    s_add_u32 s41, s41, s42
    s_lshl_b32 s41, s41, 12
    s_add_u32 s41, s41, {WS_H}
    s_mul_i32 s42, s42, 40
    s_add_u32 s42, s42, s43
    s_lshl_b32 s42, s42, 10
    s_add_u32 s42, s42, {WS_W2F}
    s_lshl_b32 s40, s36, 2
    s_add_u32 s40, s40, {WS_G}
    v_lshlrev_b32 v3, 2, v1''')
    rot = opts.get('rot2', 0)
    if rot:
        A(f'''
    s_and_b32 s46, s34, 3
    s_mul_i32 s46, s46, 3
    s_mul_hi_u32 s47, s35, 0x55555556
    s_mul_i32 s47, s47, 3
    s_sub_u32 s47, s35, s47
    s_add_u32 s48, s46, s47
    s_lshl_b32 s46, s48, 12
    s_add_u32 s41, s41, s46
    s_mul_i32 s46, s48, 40960
    s_add_u32 s42, s42, s46''')
    WRAP = f'''
    s_add_u32 s48, s48, 1
    s_cmp_eq_u32 s48, 12
    s_cselect_b32 s46, {12*4096}, 0
    s_cselect_b32 s47, {12*40960}, 0
    s_cselect_b32 s48, 0, s48
    s_sub_u32 s41, s41, s46
    s_sub_u32 s42, s42, s47''' if rot else ''
    def stage_loads(sl, wfirst=False):
        L = (loadsW(sl) + loadsA(sl)) if wfirst else (loadsA(sl) + loadsW(sl))
        L[-1] += WRAP
        return L
    stamp(A, opts, 3)
    for mt in range(4):
        A(f'    buffer_load_dword v{GM+mt}, v3, s[16:19], s40 offen offset:{64*mt}')
    gd = opts.get('gdelay', 1)
    if gd:
        wait_lds(A, 'K2_gwait', CK if gd == 1 else C1, 4)
    for sl in range(3):
        for l in stage_loads(sl, True): A(l)
    stamp(A, opts, 4)
    gstep(A, 0, stage_loads(3), 18, first=True)
    for sl in range(1, 4):
        gstep(A, sl, stage_loads((sl + 3) % 4), 18)
    for sl in range(4):
        gstep(A, sl, stage_loads((sl + 3) % 4), 18)
    gstep(A, 0, stage_loads(3), 18)
    A(f'''
    s_mul_i32 s42, s33, 240
    s_add_u32 s42, s42, s43
    s_lshl_b32 s42, s42, 10
    s_add_u32 s42, s42, {WS_WOF}''')
    gstep(A, 1, loadsW(0), 18)
    gstep(A, 2, loadsW(1), 9 + 5)
    gstep(A, 3, loadsW(2), 5 + 5)
    stamp(A, opts, 5)
    for l in loadsW(3): A(l)
    for mt in range(4):
        A(f'    v_sub_f32 v{GM+mt}, 1.0, v{GM+mt}')
    A(f'''
    s_lshl_b32 s45, s34, 5
    s_lshl_b32 s46, s33, 3
    s_add_u32 s45, s45, s46
    s_lshl_b32 s45, s45, 2
    s_add_u32 s45, s45, {WS_FLAG2}
    s_mul_i32 s41, s34, 24
    s_mul_i32 s44, s33, 6
    s_add_u32 s41, s41, s44
    s_lshl_b32 s41, s41, 12
    s_add_u32 s41, s41, {WS_OP}
    s_nop 2''')
    for u in range(5):
        for mt in range(4):
            for r in range(4):
                a0 = acc(u, mt) + r
                A(f'    v_mul_f32 v{a0}, v{a0}, v{GM+mt}')
    poll_all(A, 'K2_s2', 's45', 2, opts.get('psleep2', 1))
    stamp(A, opts, 6)
    for sl in range(4):
        for l in loadsA(sl, ' sc1'): A(l)
    gstep(A, 0, [], 12)
    gstep(A, 1, loadsA(0, ' sc1') + loadsW(0), 8)
    gstep(A, 2, loadsA(1, ' sc1') + loadsW(1), 4 + 9)
    gstep(A, 3, [], 18)
    gstep(A, 0, [], 9)
    gstep(A, 1, [], 0)
    final_reduce(A, opts)

def gen_wo(A, opts):
    gemm_ids(A, 0, opts)
    A(f'''
    s_mov_b32 s20, s90
    s_mov_b32 s21, s91
    s_mov_b32 s22, 2621440
    s_mov_b32 s23, 0x00020000
    s_mul_i32 s42, s33, 240
    s_add_u32 s42, s42, s43
    s_lshl_b32 s42, s42, 10
    s_add_u32 s42, s42, {WS_WOF}''')
    for sl in range(4):
        for l in loadsW(sl): A(l)
    A(f'''
    s_lshl_b32 s45, s34, 5
    s_lshl_b32 s46, s33, 3
    s_add_u32 s45, s45, s46
    s_lshl_b32 s45, s45, 2
    s_add_u32 s45, s45, {WS_FLAG2}
    s_mul_i32 s41, s34, 24
    s_mul_i32 s44, s33, 6
    s_add_u32 s41, s41, s44
    s_lshl_b32 s41, s41, 12
    s_add_u32 s41, s41, {WS_OP}''')
    poll_all(A, 'K2_s2', 's45', 2, opts.get('psleep2', 1))
    stamp(A, opts, 6)
    for sl in range(4):
        for l in loadsA(sl, ' sc1'): A(l)
    gstep(A, 0, [], 12, first=True)
    stamp(A, opts, 3)
    gstep(A, 1, loadsA(0, ' sc1') + loadsW(0), 8)
    gstep(A, 2, loadsA(1, ' sc1') + loadsW(1), 4 + 9)
    gstep(A, 3, [], 18)
    gstep(A, 0, [], 9)
    gstep(A, 1, [], 0)
    stamp(A, opts, 1)
    wait_lds(A, 'K2_cf', CF, 4, 1)
    A(f'''
    s_mul_i32 s39, s33, 20480
    s_add_u32 s39, s39, {RED0}
    v_add_u32 v4, s39, v{VL16}
    s_mul_i32 s45, s33, 5120
    s_add_u32 s45, s45, s39
    v_add_u32 v5, s45, v{VL16}''')
    T = RB
    for mt in range(4):
        A(f'    s_cmp_eq_u32 s33, {mt}\n    s_cbranch_scc1 K2_skipw{mt}')
        for u in range(5):
            A(f'    ds_write_b128 v4, {vr(acc(u,mt),4)} offset:{(mt*5+u)*1024}')
        A(f'    s_branch K2_donew{mt}')
        A(f'K2_skipw{mt}:')
        for u in range(5):
            for r in range(4):
                A(f'    v_mov_b32 v{T+100+u*4+r}, v{acc(u,mt)+r}')
        A(f'K2_donew{mt}:')
    A('    s_waitcnt lgkmcnt(0)\n    s_barrier')
    stamp(A, opts, 2)
    A(f'''
    s_mul_i32 s45, s33, 5120
    s_add_u32 s45, s45, {RED0}
    v_add_u32 v4, s45, v{VL16}
    v_add_u32 v8, {2*20480}, v4''')
    for w in range(4):
        for u in range(5):
            A(f'    ds_read_b128 {vr(T+(w*5+u)*4,4)}, v{4 if w < 2 else 8} offset:{(w%2)*20480 + u*1024}')
    A(f'''
    s_lshl_b32 s45, s33, 4
    s_add_u32 s45, s45, s36
    s_mul_i32 s45, s45, 1280
    s_mul_i32 s46, s35, 160
    s_add_u32 s45, s45, s46
    s_movk_i32 s37, 1280
    v_mul_lo_u32 v5, v1, s37
    v_and_b32 v6, 1, v2
    v_lshlrev_b32 v6, 5, v6
    v_lshrrev_b32 v7, 1, v2
    v_lshl_add_u32 v6, v7, 4, v6
    v_add_u32 v6, v6, v5
    v_lshl_add_u32 v7, v2, 3, v5
    s_waitcnt lgkmcnt(0)''')
    for u in range(5):
        for r in range(4):
            t0 = T + u * 4 + r
            A(f'''
    v_add_f32 v{t0}, v{t0}, v{t0+20}
    v_add_f32 v{t0+40}, v{t0+40}, v{t0+60}
    v_add_f32 v{t0}, v{t0}, v{t0+100}
    v_add_f32 v{t0}, v{t0}, v{t0+40}''')
    P = 16
    for pp in range(2):
        t = P + 4 * pp; d0 = T + 8 * pp; d1 = T + 8 * pp + 4
        A(f'''
    v_cvt_pk_bf16_f32 v{t}, v{d0}, v{d0+1}
    v_cvt_pk_bf16_f32 v{t+1}, v{d0+2}, v{d0+3}
    v_cvt_pk_bf16_f32 v{t+2}, v{d1}, v{d1+1}
    v_cvt_pk_bf16_f32 v{t+3}, v{d1+2}, v{d1+3}
    v_permlane16_swap_b32 v{t}, v{t+2}
    v_permlane16_swap_b32 v{t+1}, v{t+3}
    buffer_store_dwordx4 {vr(t,4)}, v6, s[20:23], s45 offen offset:{64*pp}''')
    d0 = T + 16
    A(f'''
    v_cvt_pk_bf16_f32 v24, v{d0}, v{d0+1}
    v_cvt_pk_bf16_f32 v25, v{d0+2}, v{d0+3}
    buffer_store_dwordx2 v[24:25], v7, s[20:23], s45 offen offset:128''')
    if opts.get('prof'):
        A('    s_waitcnt vmcnt(0)')
        stamp(A, opts, 7)
        stamp_flush(A, opts)
    A('    s_branch KF_done')

def desc(name, vg):
    return f'''
.amdhsa_kernel {name}
  .amdhsa_next_free_vgpr {vg}
  .amdhsa_next_free_sgpr 102
  .amdhsa_accum_offset {vg}
  .amdhsa_group_segment_fixed_size 0
  .amdhsa_kernarg_size 80
  .amdhsa_user_sgpr_count 2
  .amdhsa_user_sgpr_kernarg_segment_ptr 1
  .amdhsa_system_sgpr_workgroup_id_x 1
.end_amdhsa_kernel
'''

if __name__ == '__main__':
    import sys
    out = sys.argv[1]
    opts = {}
    for kv in sys.argv[2:]:
        k, v = kv.split('=')
        opts[k] = int(v)
    HEADER = open('gated_mix__sliding_block__dense_activation_relu__prompt.s.ref').read().split('; Override launch')[0]
    o1 = dict(opts); o2 = dict(opts)
    if opts.get('prof') == 2: o1.pop('prof')
    a1 = Asm(); gen_k1(a1, o1)
    a2 = Asm(); gen_k2(a2, o2)
    txt = HEADER + f'; @launch kernel=k1_kernel grid=(256,1,1) block=(512,1,1) lds={LDS_BYTES}\n'
    if not opts.get('k1only'): txt += f'; @launch kernel=k2_kernel grid=(256,1,1) block=(512,1,1) lds={K2_LDS}\n'
    txt += '.amdgcn_target "amdgcn-amd-amdhsa--gfx950"\n.text\n'
    txt += '.globl k1_kernel\n.p2align 8\n.type k1_kernel,@function\n' + a1.fix() + '\n'
    txt += '.globl k2_kernel\n.p2align 8\n.type k2_kernel,@function\n' + a2.fix() + '\n'
    txt += '.section .rodata,"a"\n.p2align 6' + desc('k1_kernel', 232) + '.p2align 6' + desc('k2_kernel', 248)
    open(out, 'w').write(txt)
```

```python
from asmlib import *

WS_QK   = 0x000000
WS_VT   = 0x600000
WS_H    = 0x900000
WS_OP   = 0xF00000
WS_W2F  = 0x1200000
WS_WOF  = 0x13E0000
WS_G    = 0x14D0000
WS_FLAG2 = 0x14D2000
WS_ONES = 0x14D3000
WS_END  = 0x14D3100
WS_PROF = 0x1500000
WS_PROF_END = 0x1600000
LDS_BYTES = 163840
PK = 147456
C1 = 46336; CK = C1 + 4; CA = C1 + 8
KL = 0; VL = 24832; RED0 = 46592; K2_LDS = RED0 + 4*20480
KNAME = 'gated_mix__sliding_block__dense_activation_relu__prompt_kernel'

def stamp(A, opts, idx):
    if not opts.get('prof'): return
    A(f'    s_memtime s[{70+2*idx}:{71+2*idx}]')
    if idx == 0 or idx == 7:
        A(f'    s_memrealtime s[{86+2*(idx != 0)}:{87+2*(idx != 0)}]')

def stamp_flush(A, opts):
    if not opts.get('prof'): return
    A(f'''
    s_waitcnt lgkmcnt(0)
    s_lshl_b32 s96, s2, 4
    s_add_u32 s96, s96, s30
    s_lshl_b32 s96, s96, 7
    s_add_u32 s96, s96, {WS_PROF}
    v_mov_b32 v100, s96
    s_mov_b64 exec, 1''')
    for i in range(20):
        A(f'    v_mov_b32 v101, s{70+i}\n    buffer_store_dword v101, v100, s[92:95], 0 offen offset:{4*i}')
    A('    s_mov_b64 exec, -1')

def gen_k1(a, opts):
    A = a
    SF = {0: '', 1: ' sc1'}[opts.get('sf', 1)]
    A('k1_kernel:')
    A('''
    s_cmp_ge_u32 s2, 256
    s_cbranch_scc1 K1_done
    s_getpc_b64 s[60:61]''')
    stamp(A, opts, 0)
    A(f'''
    s_load_dwordx2 s[4:5], s[0:1], 0
    s_load_dwordx4 s[64:67], s[0:1], 8
    s_load_dwordx4 s[24:27], s[0:1], 32
    s_load_dwordx2 s[68:69], s[0:1], 48
    s_load_dwordx2 s[28:29], s[0:1], 72
    v_lshrrev_b32 v1, 6, v0
    v_and_b32 v0, 63, v0
    v_readfirstlane_b32 s30, v1
    s_and_b32 s31, s2, 7
    s_lshr_b32 s32, s2, 3
    s_cmp_lt_u32 s32, {opts.get('cpf', 1)}
    s_cbranch_scc0 K1_nocpf
    s_cmp_lt_u32 s30, 3
    s_cbranch_scc0 K1_nocpf
    s_lshl_b32 s46, s30, 13
    v_lshlrev_b32 v10, 7, v0
    v_add_u32 v10, s46, v10
    global_load_dword v226, v10, s[60:61]
K1_nocpf:
    s_and_b32 s33, s31, 1
    s_lshl_b32 s33, s33, 3
    s_and_b32 s34, s32, 7
    s_add_u32 s33, s33, s34
    s_lshr_b32 s34, s31, 1
    s_lshl_b32 s34, s34, 2
    s_lshr_b32 s35, s32, 3
    s_add_u32 s34, s34, s35
    s_lshl_b32 s40, s33, 7
    s_cmp_lt_u32 s34, 6
    s_cbranch_scc1 K1_sec_qk
    s_cmp_lt_u32 s34, 9
    s_cbranch_scc1 K1_sec_v
    s_mov_b32 s36, 2
    s_sub_u32 s37, s34, 9
    s_mul_i32 s37, s37, 14
    s_min_u32 s37, s37, 82
    s_lshl_b32 s38, s37, 5
    s_mov_b32 s39, 3072
    s_branch K1_sec_done
K1_sec_qk:
    s_mov_b32 s36, 0
    s_mul_i32 s37, s34, 14
    s_min_u32 s37, s37, 66
    s_lshl_b32 s38, s37, 5
    s_mov_b32 s39, 3840
    s_branch K1_sec_done
K1_sec_v:
    s_mov_b32 s36, 1
    s_sub_u32 s37, s34, 6
    s_mul_i32 s37, s37, 14
    s_min_u32 s37, s37, 26
    s_lshl_b32 s38, s37, 5
    s_add_u32 s38, s38, 2560
    s_mov_b32 s39, 3840
K1_sec_done:
    s_cmp_ge_u32 s30, 4
    s_cbranch_scc{'0 K1_compute' if opts.get('lfirst', 0) else '1 K1_loader'}
    ''')
    if opts.get('lfirst', 0):
        gen_p1_loader(A, opts, SF)
        A('    s_branch KF_p1done')
        A('K1_compute:')
        gen_p1_compute(A, opts, SF)
    else:
        gen_p1_compute(A, opts, SF)
        gen_p1_loader(A, opts, SF)
    A('KF_p1done:')
    if opts.get('prof') == 1:
        stamp(A, opts, 6)
        A('    s_waitcnt vmcnt(0)')
        stamp(A, opts, 7); stamp_flush(A, opts)
    A('K1_done:\n    s_endpgm')

def gen_k2(a, opts):
    A = a
    A('k2_kernel:')
    A('''
    s_cmp_ge_u32 s2, 256
    s_cbranch_scc1 KF_done''')
    stamp(A, opts, 0)
    A(f'''
    s_load_dwordx2 s[90:91], s[0:1], 56
    s_load_dwordx2 s[28:29], s[0:1], 72
    v_lshrrev_b32 v1, 6, v0
    v_and_b32 v0, 63, v0
    v_readfirstlane_b32 s30, v1
    s_and_b32 s31, s2, 7
    s_lshr_b32 s32, s2, 3
    v_and_b32 v1, 15, v0
    v_lshrrev_b32 v2, 4, v0
    s_mov_b32 s97, 1
    s_cmp_eq_u32 s30, 0
    s_cbranch_scc0 K2_noinit
    v_mov_b32 v8, 0
    v_mov_b32 v9, {C1}
    ds_write_b32 v9, v8 offset:0
    ds_write_b32 v9, v8 offset:4
    ds_write_b32 v9, v8 offset:8
    ds_write_b32 v9, v8 offset:12
    ds_write_b32 v9, v8 offset:16
    ds_write_b32 v9, v8 offset:20
    ds_write_b32 v9, v8 offset:24
K2_noinit:
    s_cmp_ge_u32 s30, 4
    s_cbranch_scc1 K2_gemm''')
    fbk = gen_attn(A, opts)
    A('K2_gemm:')
    if opts.get('wo_attn', 0): gen_gemm(A, opts)
    else: gen_gemm_full(A, opts)
    A('KF_done:\n    s_endpgm')
    fbk()

def wait_lds(A, label, addr, val, sleep=2):
    A(f'''
    v_mov_b32 v8, {addr}
{label}:
    ds_read_b32 v9, v8
    s_waitcnt lgkmcnt(0)
    v_readfirstlane_b32 s58, v9
    s_cmp_lt_u32 s58, {val}
    s_cbranch_scc0 {label}_ok
    s_sleep {sleep}
    s_branch {label}
{label}_ok:''')

def poll_all(A, label, base, n_lanes_x4, sleep=1):
    A(f'''
    v_lshlrev_b32 v3, 4, v0
    v_mov_b32 v8, 0x80000000
    v_cmp_gt_u32 vcc, {n_lanes_x4}, v0
    v_cndmask_b32 v3, v8, v3, vcc
    s_mov_b64 s[56:57], vcc
{label}:
    buffer_load_dwordx4 v[4:7], v3, s[16:19], {base} offen sc1
    s_waitcnt vmcnt(0)
    v_xor_b32 v4, s97, v4
    v_xor_b32 v5, s97, v5
    v_xor_b32 v6, s97, v6
    v_xor_b32 v7, s97, v7
    v_or3_b32 v4, v4, v5, v6
    v_or_b32 v4, v4, v7
    v_cmp_ne_u32 vcc, 0, v4
    s_and_b64 vcc, vcc, s[56:57]
    s_cbranch_vccz {label}_ok
    s_sleep {sleep}
    s_branch {label}
{label}_ok:''')

def k1_srds(A, tag):
    A(f'''
    s_waitcnt lgkmcnt(0)
    s_mov_b32 s8, s4
    s_mov_b32 s9, s5
    s_mov_b32 s10, 2621440
    s_mov_b32 s11, 0x00020000
    s_mov_b32 s15, 0x00020000
    s_cmp_eq_u32 s36, 2
    s_cbranch_scc1 K1_srd_h{tag}
    s_mov_b32 s12, s64
    s_mov_b32 s13, s65
    s_mov_b32 s14, 2457600
    s_branch K1_srd_d{tag}
K1_srd_h{tag}:
    s_mov_b32 s12, s24
    s_mov_b32 s13, s25
    s_mov_b32 s14, 1966080
K1_srd_d{tag}:
    s_mov_b32 s16, s28
    s_mov_b32 s17, s29
    s_mov_b32 s18, {WS_END}
    s_mov_b32 s19, 0x00020000
    s_mov_b32 s92, s28
    s_mov_b32 s93, s29
    s_mov_b32 s94, {WS_PROF_END}
    s_mov_b32 s95, 0x00020000''')

def gen_p1_compute(A, opts, SF):
    ACC = 16
    def acc(uu, mt): return ACC + (uu * 4 + mt) * 4
    XS = [128, 172]; WSs = [144, 188]
    VAX = [216, 217]; VW = 218
    T = 128
    A(f'''
    s_and_b32 s41, s30, 1
    s_lshr_b32 s42, s30, 1
    v_and_b32 v1, 15, v0
    v_lshrrev_b32 v2, 4, v0
    v_and_b32 v3, 7, v1
    v_xor_b32 v3, v2, v3
    v_lshlrev_b32 v3, 4, v3
    v_lshl_add_u32 v3, v1, 7, v3
    s_lshl_b32 s43, s41, 13
    v_add_u32 v{VAX[0]}, s43, v3
    v_xor_b32 v{VAX[1]}, 64, v{VAX[0]}
    v_lshrrev_b32 v4, 2, v1
    v_and_b32 v5, 3, v0
    v_and_b32 v6, 1, v2
    v_lshl_or_b32 v6, v6, 2, v4
    v_lshl_add_u32 v7, v2, 3, v4
    v_lshlrev_b32 v7, 9, v7
    v_lshl_add_u32 v7, v5, 3, v7
    v_add_u32 v7, 16384, v7
    s_lshl_b32 s44, s42, 3
    s_add_u32 s45, s42, 6
    ''')
    for uu in range(7):
        if uu < 6: A(f'    s_add_u32 s46, s44, {uu}\n    v_xor_b32 v8, s46, v6')
        else:      A(f'    v_xor_b32 v8, s45, v6')
        A(f'    v_lshl_add_u32 v{VW+uu}, v8, 5, v7')
    for r in range(ACC, ACC + 112):
        A(f'    v_mov_b32 v{r}, 0')
    def reads(st, ks):
        R = []
        for mt in range(4):
            R.append(f'    ds_read_b128 {vr(XS[st]+4*mt,4)}, v{VAX[ks]} offset:{mt*2048}')
        for uu in range(7):
            for t in range(2):
                R.append(f'    ds_read_b64_tr_b16 {vr(WSs[st]+4*uu+2*t,2)}, v{VW+uu} offset:{(32*ks+4*t)*512}')
        return R
    def phase(st, rd, swapped, extra=()):
        k = 0
        extra = list(extra)
        for uu in range(7):
            for mt in range(4):
                w = vr(WSs[st] + 4 * uu, 4); x = vr(XS[st] + 4 * mt, 4); d = vr(acc(uu, mt), 4)
                if swapped: A(f'    v_mfma_f32_16x16x32_bf16 {d}, {w}, {x}, {d}')
                else:       A(f'    v_mfma_f32_16x16x32_bf16 {d}, {x}, {w}, {d}')
                if k < len(rd): A(rd[k])
                elif extra: A(extra.pop(0))
                k += 1
        for e in extra: A(e)
    def mainloop(tag, swapped):
        A(f'''
    s_mov_b32 s46, 0
    s_mov_b32 s47, 0
    s_mov_b32 s50, 0xfffe8000
    s_mov_b32 s51, 49152
    s_barrier''')
        stamp(A, opts, 2)
        for l in reads(0, 0): A(l)
        A(f'K1_loop_{tag}:')
        A('''
    s_add_u32 s47, s47, 1
    s_cmp_eq_u32 s47, 3
    s_cselect_b32 s48, s50, s51
    s_cselect_b32 s47, 0, s47
    s_waitcnt lgkmcnt(0)''')
        upd = [f'    v_add_u32 v{r}, s48, v{r}' for r in VAX + [VW + i for i in range(7)]]
        phase(0, reads(1, 1), swapped, upd)
        A('''
    s_waitcnt lgkmcnt(0)
    s_barrier''')
        phase(1, reads(0, 0), swapped, ['    s_add_u32 s46, s46, 1', '    s_cmp_lt_u32 s46, 10'])
        A(f'''
    s_cbranch_scc1 K1_loop_{tag}
    s_waitcnt lgkmcnt(0)
    s_nop 7''')
        stamp(A, opts, 1)
    k1_srds(A, 'c')
    if opts.get('tpre', 0):
        S0 = opts.get('tpre0', 2)
        A(f'''
    v_and_b32 v9, 31, v0
    v_lshrrev_b32 v10, 5, v0
    s_lshl_b32 s46, s35, 5
    s_add_u32 s46, s46, s40
    v_add_u32 v11, s46, v9
    s_movk_i32 s47, 1280
    v_mul_lo_u32 v11, v11, s47
    s_lshl_b32 s46, s30, 1
    s_add_u32 s46, s46, {S0}
    v_add_u32 v12, s46, v10
    v_lshl_add_u32 v11, v12, 7, v11
    v_mov_b32 v13, 0x80000000
    v_cmp_gt_u32 vcc, 10, v12
    v_cndmask_b32 v11, v13, v11, vcc
    v_lshlrev_b32 v12, 6, v12
    s_and_b32 s46, s32, 7
    s_lshl_b32 s46, s46, 3
    v_bfe_u32 v13, v0, 2, 3
    v_add3_u32 v12, v12, s46, v13
    v_mul_lo_u32 v12, v12, s39
    v_and_b32 v13, 3, v0
    v_lshl_add_u32 v12, v13, 7, v12
    s_and_b32 s46, s38, 0xffffff80
    v_add_u32 v12, s46, v12
    {f's_sleep {opts.get("tsleep")}' if opts.get('tsleep') else ''}
    buffer_load_dword v227, v12, s[12:15], 0 offen
    buffer_load_dword v226, v11, s[8:11], 0 offen''')
    if opts.get('tlbw', 0):
        G = opts.get('tlbw')
        A(f'''
    s_cmp_eq_u32 s32, 0
    s_cbranch_scc0 K1_notlb
    s_cmp_eq_u32 s30, 3
    s_cbranch_scc0 K1_notlb
    v_lshlrev_b32 v10, {G}, v0
    buffer_load_dword v227, v10, s[16:19], 0 offen
    s_load_dwordx2 s[62:63], s[0:1], 56
    s_waitcnt lgkmcnt(0)
    s_mov_b32 s20, s62
    s_mov_b32 s21, s63
    s_mov_b32 s22, 2621440
    s_mov_b32 s23, 0x00020000
    buffer_load_dword v228, v10, s[20:23], 0 offen
K1_notlb:''')
    for r in range(9, 15): A(f'    v_mov_b32 v{r}, 0x80000000')
    A('''
    s_cmp_eq_u32 s36, 1
    s_cbranch_scc1 K1_main_v
    s_cmp_eq_u32 s36, 2
    s_cbranch_scc1 K1_pre_h''')
    A(f'''
    s_lshl_b32 s43, s41, 2
    s_lshr_b32 s46, s40, 4
    s_add_u32 s43, s43, s46
    s_mul_i32 s43, s43, 768
    v_lshlrev_b32 v3, 3, v1
    v_add_u32 v3, s43, v3
    s_mov_b32 s49, 52429
    s_mov_b32 s52, 98304
    s_mov_b32 s53, 0x3ea52b5c''')
    for uu in range(7):
        if uu < 6: A(f'    s_add_u32 s46, s44, {uu}')
        else:      A(f'    s_mov_b32 s46, s45')
        A(f'''
    s_add_u32 s46, s46, s37
    s_lshl_b32 s46, s46, 2
    v_add_u32 v4, s46, v2
    v_mul_lo_u32 v5, v4, s49
    v_lshrrev_b32 v5, 18, v5
    v_mul_u32_u24 v6, 5, v5
    v_sub_u32 v6, v4, v6
    v_mul_lo_u32 v5, v5, s52
    v_lshl_add_u32 v5, v6, 7, v5
    v_add_u32 v{8+uu}, v5, v3''')
    A('    s_branch K1_pre_done')
    A(f'''K1_pre_h:
    s_lshl_b32 s43, s33, 1
    s_add_u32 s43, s43, s41
    s_mul_i32 s43, s43, {48*4096}
    s_add_u32 s43, s43, {WS_H}
    s_add_u32 s56, s37, s44
    s_lshl_b32 s56, s56, 11
    s_add_u32 s56, s56, s43
    v_and_b32 v4, 1, v2
    v_lshlrev_b32 v4, 1, v4
    v_lshrrev_b32 v5, 1, v2
    v_add_u32 v4, v4, v5
    v_lshl_add_u32 v4, v4, 4, v1
    v_lshlrev_b32 v4, 4, v4
    s_add_u32 s57, s37, 6
    s_lshl_b32 s57, s57, 11
    s_add_u32 s57, s57, s43
    s_lshl_b32 s48, s42, 1
    v_add_u32 v5, s48, v5
    v_lshl_add_u32 v5, v5, 4, v1
    v_lshlrev_b32 v5, 4, v5
    v_and_b32 v6, 1, v2
    v_lshl_add_u32 v5, v6, 10, v5
K1_pre_done:''')
    mainloop('s', True)
    A('''
    s_cmp_eq_u32 s36, 2
    s_cbranch_scc1 K1_epi_h''')
    for uu in range(7):
        if uu < 6: A(f'    s_add_u32 s46, s44, {uu}')
        else:      A(f'    s_mov_b32 s46, s45')
        A(f'''
    s_add_u32 s46, s46, s37
    s_cmp_lt_u32 s46, 40
    s_cselect_b32 s54, s53, 1.0
    s_mov_b32 s55, s54''')
        for mt in range(4):
            d = acc(uu, mt); t = T + (uu * 4 + mt) * 2
            A(f'''
    v_pk_mul_f32 {vr(d,2)}, {vr(d,2)}, s[54:55]
    v_pk_mul_f32 {vr(d+2,2)}, {vr(d+2,2)}, s[54:55]
    v_cvt_pk_bf16_f32 v{t}, v{d}, v{d+1}
    v_cvt_pk_bf16_f32 v{t+1}, v{d+2}, v{d+3}
    buffer_store_dwordx2 {vr(t,2)}, v{8+uu}, s[16:19], 0 offen offset:{WS_QK + mt*768}{SF}''')
    A('    s_branch KF_p1done')
    A('K1_epi_h:')
    n = 0
    for pp in range(3):
        A(f'    s_add_u32 s49, s56, {pp*4096}')
        for mt in range(4):
            t = T + n * 4; n += 1
            d0 = acc(2 * pp, mt); d1 = acc(2 * pp + 1, mt)
            A(f'''
    v_cvt_pk_bf16_f32 v{t}, v{d0}, v{d0+1}
    v_cvt_pk_bf16_f32 v{t+1}, v{d0+2}, v{d0+3}
    v_cvt_pk_bf16_f32 v{t+2}, v{d1}, v{d1+1}
    v_cvt_pk_bf16_f32 v{t+3}, v{d1+2}, v{d1+3}
    v_pk_max_i16 v{t}, v{t}, 0
    v_pk_max_i16 v{t+1}, v{t+1}, 0
    v_pk_max_i16 v{t+2}, v{t+2}, 0
    v_pk_max_i16 v{t+3}, v{t+3}, 0
    v_permlane16_swap_b32 v{t}, v{t+2}
    v_permlane16_swap_b32 v{t+1}, v{t+3}
    buffer_store_dwordx4 {vr(t,4)}, v4, s[16:19], s49 offen offset:{1024*mt}{SF}''')
    for pm in range(2):
        t = T + n * 4; n += 1
        d0 = acc(6, 2 * pm); d1 = acc(6, 2 * pm + 1)
        A(f'''
    v_cvt_pk_bf16_f32 v{t}, v{d0}, v{d0+1}
    v_cvt_pk_bf16_f32 v{t+1}, v{d0+2}, v{d0+3}
    v_cvt_pk_bf16_f32 v{t+2}, v{d1}, v{d1+1}
    v_cvt_pk_bf16_f32 v{t+3}, v{d1+2}, v{d1+3}
    v_pk_max_i16 v{t}, v{t}, 0
    v_pk_max_i16 v{t+1}, v{t+1}, 0
    v_pk_max_i16 v{t+2}, v{t+2}, 0
    v_pk_max_i16 v{t+3}, v{t+3}, 0
    v_permlane16_swap_b32 v{t}, v{t+2}
    v_permlane16_swap_b32 v{t+1}, v{t+3}
    buffer_store_dwordx4 {vr(t,4)}, v5, s[16:19], s57 offen offset:{2048*pm}{SF}''')
    A('    s_branch KF_p1done')
    A('K1_main_v:')
    A(f'''
    s_lshl_b32 s43, s41, 1
    s_lshr_b32 s46, s40, 5
    s_add_u32 s43, s43, s46
    s_lshl_b32 s43, s43, 10
    s_add_u32 s43, s43, {WS_VT}
    v_lshlrev_b32 v3, 4, v0
    v_add_u32 v3, s43, v3''')
    for uu in range(7):
        if uu < 6: A(f'    s_add_u32 s46, s44, {uu}')
        else:      A(f'    s_mov_b32 s46, s45')
        A(f'''
    s_add_u32 s46, s46, s37
    s_lshl_b32 s46, s46, 16
    v_add_u32 v{8+uu}, s46, v3''')
    mainloop('n', False)
    for uu in range(7):
        for pa in range(2):
            t = T + (uu * 2 + pa) * 4
            d0 = acc(uu, 2 * pa); d1 = acc(uu, 2 * pa + 1)
            A(f'''
    v_cvt_pk_bf16_f32 v{t}, v{d0}, v{d0+1}
    v_cvt_pk_bf16_f32 v{t+1}, v{d0+2}, v{d0+3}
    v_cvt_pk_bf16_f32 v{t+2}, v{d1}, v{d1+1}
    v_cvt_pk_bf16_f32 v{t+3}, v{d1+2}, v{d1+3}
    buffer_store_dwordx4 {vr(t,4)}, v{8+uu}, s[16:19], 0 offen offset:{1024*pa}{SF}''')
    A('    s_branch KF_p1done')

def gen_p1_loader(A, opts, SF):
    rm = opts.get('rotmode', 0)
    if rm == 0:
        ROT = f'''s_add_u32 s46, s46, s47
    s_and_b32 s46, s46, {opts.get('rotng', 2) - 1}
    s_mul_i32 s90, s46, {opts.get('rotr', 3)}'''
    else:
        ROT = f'''s_mul_i32 s46, s46, {opts.get('rota', 1)}
    s_mul_i32 s47, s47, {opts.get('rotb', 3)}
    s_add_u32 s90, s46, s47
    s_mul_hi_u32 s46, s90, 0x1999999a
    s_mul_i32 s46, s46, 10
    s_sub_u32 s90, s90, s46'''
    A(f'''K1_loader:
    s_sub_u32 s41, s30, 4
    v_lshrrev_b32 v1, 3, v0
    v_and_b32 v2, 7, v0
    v_lshlrev_b32 v21, 4, v2
    v_xor_b32 v2, v2, v1
    v_lshlrev_b32 v2, 4, v2
    s_movk_i32 s43, 1280
    v_mul_lo_u32 v1, v1, s43
    v_add_u32 v2, v2, v1
    v_add_u32 v21, v21, v1
    v_lshrrev_b32 v4, 5, v0
    s_and_b32 s44, s41, 1
    s_lshr_b32 s45, s41, 1
    s_lshl_b32 s46, s44, 1
    s_lshl_b32 s47, s45, 2
    s_or_b32 s46, s46, s47
    v_or_b32 v5, s46, v4
    v_bfe_u32 v6, v0, 1, 4
    v_xor_b32 v6, v6, v5
    v_mul_lo_u32 v7, v4, s39
    v_lshl_add_u32 v7, v6, 5, v7
    v_and_b32 v8, 1, v0
    v_lshl_add_u32 v3, v8, 4, v7
    v_mov_b32 v9, 0x80000000
    v_cmp_le_u32 vcc, 14, v6
    v_cndmask_b32 v3, v3, v9, vcc
    s_lshl_b32 s50, s41, 5
    s_add_u32 s50, s50, s40
    s_mul_i32 s50, s50, 1280
    s_add_u32 s52, s44, s47
    s_lshl_b32 s53, s52, 1
    s_mul_i32 s51, s53, s39
    s_add_u32 s51, s51, s38
    s_lshl_b32 s54, s39, 2
    s_mul_i32 s55, s39, 12
    s_lshl_b32 s56, s39, 6
    s_lshl_b32 s57, s41, 12
    s_lshl_b32 s58, s52, 10
    s_add_u32 s58, s58, 16384
    s_mov_b32 s59, 0
    s_and_b32 s46, s32, 7
    s_lshr_b32 s47, s32, 3
    {ROT}
    s_lshl_b32 s46, s90, 7
    s_add_u32 s50, s50, s46
    s_mul_i32 s46, s90, s56
    s_add_u32 s51, s51, s46
    s_mul_i32 s91, s56, 10
    ''')
    def issue():
        A('    s_add_u32 s60, s59, s57\n    s_add_u32 s61, s59, s58')
        for jj in range(4):
            A(f'''
    s_add_u32 m0, s60, {jj*1024}
    s_add_u32 s62, s50, {jj*10240}
    buffer_load_dwordx4 v2, s[8:11], s62 offen lds''')
        A('    s_mov_b32 s62, s51')
        i = 0
        for b in range(4):
            for aa in range(2):
                A(f'    s_add_u32 m0, s61, {(2*aa+8*b)*1024}')
                if i > 0: A(f'    s_add_u32 s62, s62, {"s54" if aa == 1 else "s55"}')
                else: A('    s_nop 0')
                A('    buffer_load_dwordx4 v3, s[12:15], s62 offen lds')
                i += 1
        A(f'''
    s_add_u32 s50, s50, 128
    s_add_u32 s51, s51, s56
    s_add_u32 s90, s90, 1
    s_cmp_eq_u32 s90, 10
    s_cselect_b32 s46, 1280, 0
    s_cselect_b32 s47, s91, 0
    s_cselect_b32 s90, 0, s90
    s_sub_u32 s50, s50, s46
    s_sub_u32 s51, s51, s47
    s_add_u32 s59, s59, 49152
    s_cmp_eq_u32 s59, 147456
    s_cselect_b32 s59, 0, s59''')
    k1_srds(A, 'l')
    stamp(A, opts, 2)
    issue(); issue()
    stamp(A, opts, 3)
    A('    s_waitcnt vmcnt(12)\n    s_barrier')
    stamp(A, opts, 4)
    issue()
    A(f'''
    s_lshl_b32 s63, s2, 2
    s_add_u32 s63, s63, s41
    s_mul_hi_u32 s46, s63, 0x1999999a
    s_mul_i32 s47, s46, 10
    s_sub_u32 s47, s63, s47
    s_cmp_lt_u32 s46, 48
    s_cbranch_scc0 K1_pk_wo
    s_mov_b32 s20, s26
    s_mov_b32 s21, s27
    s_mov_b32 s22, 1966080
    s_mul_i32 s34, s46, 40960
    s_add_u32 s35, s34, {WS_W2F}
    s_lshl_b32 s46, s47, 7
    s_add_u32 s34, s34, s46
    v_mov_b32 v50, v21
    v_add_u32 v51, 10240, v21
    v_add_u32 v52, 20480, v21
    v_add_u32 v53, 30720, v21
    s_branch K1_pk_go
K1_pk_wo:
    s_mov_b32 s20, s66
    s_mov_b32 s21, s67
    s_mov_b32 s22, 819200
    s_sub_u32 s46, s46, 48
    s_mul_i32 s35, s46, 40960
    s_add_u32 s35, s35, {WS_WOF}
    s_lshl_b32 s34, s47, 7
    s_lshl_b32 s46, s46, 5
    v_lshrrev_b32 v54, 3, v0
    v_add_u32 v54, s46, v54
    s_mov_b32 s46, 0xaaaaaab
    v_and_b32 v55, 7, v0
    v_lshlrev_b32 v55, 4, v55
    v_mov_b32 v58, 0x80000000''')
    for jj in range(4):
        A(f'''
    v_mul_hi_u32 v56, v54, s46
    v_mul_u32_u24 v57, 24, v56
    v_sub_u32 v57, v54, v57
    v_mul_u32_u24 v56, 20, v56
    v_add_u32 v56, v56, v57
    v_mul_u32_u24 v56, 1280, v56
    v_add_u32 v56, v56, v55
    v_cmp_gt_u32 vcc, 20, v57
    v_cndmask_b32 v{50+jj}, v58, v56, vcc
    v_add_u32 v54, 8, v54''')
    A(f'''
K1_pk_go:
    s_mov_b32 s23, 0x00020000
    s_lshl_b32 s46, s47, 12
    s_add_u32 s35, s35, s46
    s_cmp_ge_u32 s63, 720
    s_cselect_b32 s35, 0x7f000000, s35
    s_cselect_b32 s34, 0x7f000000, s34
    s_add_u32 s46, s57, {PK}''')
    for jj in range(4):
        A(f'''
    s_add_u32 m0, s46, {jj*1024}
    s_nop 0
    buffer_load_dwordx4 v{50+jj}, s[20:23], s34 offen lds''')
    A('    s_waitcnt vmcnt(16)\n    s_barrier')
    issue()
    A('    s_waitcnt vmcnt(16)\n    s_barrier')
    issue()
    A('    s_waitcnt vmcnt(12)\n    s_barrier')
    stamp(A, opts, 5)
    A(f'''
    v_lshrrev_b32 v10, 4, v0
    v_bfe_u32 v11, v0, 2, 2
    v_lshl_add_u32 v10, v10, 3, v11
    v_lshlrev_b32 v10, 7, v10
    v_and_b32 v11, 3, v0
    v_lshl_add_u32 v10, v11, 3, v10
    s_add_u32 s46, s57, {PK}
    v_add_u32 v10, s46, v10
    v_lshlrev_b32 v11, 4, v0''')
    for u in range(4):
        for t in range(2):
            A(f'    ds_read_b64_tr_b16 {vr(24+4*u+2*t,2)}, v10 offset:{t*512 + u*32}')
    issue()
    A('    s_waitcnt lgkmcnt(0)')
    for u in range(4):
        A(f'    buffer_store_dwordx4 {vr(24+4*u,4)}, v11, s[16:19], s35 offen offset:{u*1024} sc1')
    A('    s_waitcnt vmcnt(16)\n    s_barrier')
    issue()
    A('    s_waitcnt vmcnt(16)\n    s_barrier')
    mp = opts.get('midpf', 0)
    if mp:
        A(f'''
    s_lshl_b32 s46, s32, 2
    s_add_u32 s46, s46, s41
    s_mul_i32 s46, s46, 192
    v_add_u32 v59, s46, v0
    v_lshlrev_b32 v60, 7, v59
    v_add_u32 v60, {WS_W2F}, v60
    v_mov_b32 v58, 0x80000000''')
        for n in range(3):
            A(f'''
    v_add_u32 v61, {64*n}, v59
    v_cmp_gt_u32 vcc, 23040, v61
    v_cndmask_b32 v{62+n}, v58, v60, vcc
    v_add_u32 v60, 8192, v60''')
    def tch(n):
        if mp: A(f'    buffer_load_dword v{66+n}, v{62+n}, s[16:19], 0 offen')
    if opts.get('midpf_early'): tch(0)
    issue()
    if not opts.get('midpf_early'): tch(0)
    A(f'    s_waitcnt vmcnt({12 + mp})\n    s_barrier')
    issue()
    tch(1)
    A(f'    s_waitcnt vmcnt({12 + 2*mp})\n    s_barrier')
    issue()
    tch(2)
    A(f'''
    s_lshr_b32 s34, s31, 1
    s_lshl_b32 s34, s34, 2
    s_lshr_b32 s35, s32, 3
    s_add_u32 s34, s34, s35
    s_lshl_b32 s44, s34, 3
    s_add_u32 s44, s44, s40
    s_lshl_b32 s45, s41, 1
    s_add_u32 s44, s44, s45
    s_mul_i32 s45, s44, 1280
    s_mov_b32 s20, s68
    s_mov_b32 s21, s69
    s_mov_b32 s22, 1280
    s_mov_b32 s23, 0x00020000
    v_lshlrev_b32 v10, 2, v0''')
    for j in range(5):
        A(f'    buffer_load_dword v{16+j}, v10, s[20:23], 0 offen offset:{256*j}')
    for rr in range(2):
        for j in range(5):
            A(f'    buffer_load_dword v{24+8*rr+j}, v10, s[8:11], s45 offen offset:{256*j + 1280*rr}')
    A(f'''
    v_mov_b32 v15, 0x80000000
    s_lshl_b32 s46, s2, 2
    s_add_u32 s46, s46, s41
    s_lshl_b32 s46, s46, 2
    v_lshrrev_b32 v11, 4, v0
    v_add_u32 v11, s46, v11
    v_mul_u32_u24 v11, 768, v11
    v_and_b32 v12, 15, v0
    v_lshl_add_u32 v11, v12, 3, v11
    v_add_u32 v11, {WS_QK + 32*98304 + 640}, v11
    v_mov_b32 v12, 0
    v_mov_b32 v13, 0
    buffer_store_dwordx2 v[12:13], v11, s[16:19], 0 offen{SF}
    s_add_u32 s46, s2, s41
    s_cmp_eq_u32 s46, 0
    s_cselect_b32 s46, 8, 0
    v_lshlrev_b32 v11, 4, v0
    v_add_u32 v11, {WS_ONES}, v11
    v_cmp_gt_u32 vcc, s46, v0
    v_cndmask_b32 v11, v15, v11, vcc
    v_mov_b32 v44, 0x3f803f80
    v_mov_b32 v45, 0x3f803f80
    v_mov_b32 v46, 0x3f803f80
    v_mov_b32 v47, 0x3f803f80
    buffer_store_dwordx4 v[44:47], v11, s[16:19], 0 offen{SF}
    s_cmp_eq_u32 s41, 0
    s_cselect_b32 s46, 4, 0
    s_lshl_b32 s47, s2, 4
    s_add_u32 s47, s47, {WS_FLAG2}
    v_lshl_add_u32 v11, v0, 2, s47
    v_cmp_gt_u32 vcc, s46, v0
    v_cndmask_b32 v11, v15, v11, vcc
    buffer_store_dword v12, v11, s[16:19], 0 offen{SF}
    s_waitcnt vmcnt({30 + 2*opts.get('midpf', 0)})
    s_barrier
    s_waitcnt vmcnt({18 + opts.get('midpf', 0)})
    s_barrier
    s_barrier
    s_waitcnt vmcnt(3)''')
    for rr in range(2):
        acc_ = 40 + rr
        A(f'    v_mov_b32 v{acc_}, 0')
        for j in range(5):
            A(f'    v_dot2c_f32_bf16 v{acc_}, v{16+j}, v{24+8*rr+j}')
    for rr in range(2):
        r = 40 + rr
        A(f'''
    v_add_f32_dpp v{r}, v{r}, v{r} quad_perm:[1,0,3,2] row_mask:0xf bank_mask:0xf
    v_add_f32_dpp v{r}, v{r}, v{r} quad_perm:[2,3,0,1] row_mask:0xf bank_mask:0xf
    v_add_f32_dpp v{r}, v{r}, v{r} row_half_mirror row_mask:0xf bank_mask:0xf
    v_add_f32_dpp v{r}, v{r}, v{r} row_mirror row_mask:0xf bank_mask:0xf
    v_mov_b32 v43, v{r}
    v_permlane16_swap_b32 v43, v{r}
    v_add_f32 v{r}, v{r}, v43
    v_mov_b32 v43, v{r}
    v_permlane32_swap_b32 v43, v{r}
    v_add_f32 v{r}, v{r}, v43''')
    A(f'''
    v_cmp_eq_u32 vcc, 1, v0
    v_cndmask_b32 v40, v40, v41, vcc
    v_mul_f32 v40, 0xbfb8aa3b, v40
    v_exp_f32 v40, v40
    v_add_f32 v40, 1.0, v40
    v_rcp_f32 v40, v40
    s_lshl_b32 s46, s44, 2
    s_add_u32 s46, s46, {WS_G}
    v_lshl_add_u32 v14, v0, 2, s46
    v_cmp_gt_u32 vcc, 2, v0
    v_cndmask_b32 v14, v15, v14, vcc
    buffer_store_dword v40, v14, s[16:19], 0 offen{SF}''')
    npf = opts.get('w2pf', 0)
    if npf:
        A(f'''
    s_lshl_b32 s46, s32, 2
    s_add_u32 s46, s46, s41
    s_mul_i32 s46, s46, 192
    v_add_u32 v59, s46, v0
    v_lshlrev_b32 v60, 7, v59
    v_add_u32 v60, {WS_W2F}, v60''')
        for n in range(npf):
            A(f'''
    v_add_u32 v61, {64*n}, v59
    v_cmp_gt_u32 vcc, 23040, v61
    v_cndmask_b32 v{62+n}, v15, v60, vcc
    buffer_load_dword v{66+n}, v{62+n}, s[16:19], 0 offen
    v_add_u32 v60, 8192, v60''')
    stamp(A, opts, 1)

def gen_attn(A, opts):
    NAW = 4
    SA = 16; KB = 48; VB = 64; Q = 80; O = 96; G = 112
    VK = 116; VK2 = 117; VV0 = 118; VV1 = 119; VO1 = 120; VO2 = 121
    NQT = 4; KPW = 6
    A(f'''
    {'s_setprio 2' if opts.get('prio', 0) else ''}
    s_lshr_b32 s59, s32, 2              ; qb
    s_lshl_b32 s33, s59, 8              ; Q0
    s_and_b32 s34, s32, 3
    s_lshl_b32 s35, s31, 2
    s_add_u32 s34, s34, s35             ; head
    s_add_u32 s35, s34, 32
    s_mul_i32 s35, s35, 98304
    s_mul_i32 s40, s33, 48
    s_add_u32 s35, s35, s40
    s_sub_u32 s35, s35, {256*48 - WS_QK}
    v_lshlrev_b32 v3, 4, v0
    s_mul_i32 s37, s30, {KPW*1024}
    s_add_u32 s35, s35, s37
    s_cmp_eq_u32 s59, 0
    s_cselect_b32 s38, 1, 0
    s_cmp_lt_u32 s30, {NAW//2}
    s_cselect_b32 s39, s38, 0
    s_waitcnt lgkmcnt(0)
    s_mov_b32 s16, s28
    s_mov_b32 s17, s29
    s_mov_b32 s18, {WS_END}
    s_mov_b32 s19, 0x00020000
    s_mov_b32 s92, s28
    s_mov_b32 s93, s29
    s_mov_b32 s94, {WS_PROF_END}
    s_mov_b32 s95, 0x00020000
    s_cmp_eq_u32 s39, 1
    s_cbranch_scc1 K2_kfill''')
    for j in range(KPW):
        A(f'''
    s_add_u32 m0, s37, {KL + j*1024}
    s_add_u32 s40, s35, {j*1024}
    buffer_load_dwordx4 v3, s[16:19], s40 offen lds''')
    A(f'''
    s_branch K2_kdone
K2_kfill:
    v_mov_b32 v5, 0
    v_mov_b32 v7, 0
    s_mul_i32 s40, s30, {KPW*64}
    v_add_u32 v8, s40, v0
    s_mov_b32 s41, 0x5555556''')
    for j in range(KPW):
        A(f'''
    v_mul_hi_u32 v9, v8, s41
    v_mul_u32_u24 v9, 48, v9
    v_sub_u32 v9, v8, v9
    v_cmp_le_u32 vcc, 40, v9
    v_mov_b32 v6, 0x3f80
    v_cndmask_b32 v6, 0, v6, vcc
    v_mov_b32 v4, v6
    v_lshlrev_b32 v9, 4, v8
    ds_write_b128 v9, v[4:7] offset:{KL}
    v_add_u32 v8, 64, v8''')
    A(f'''
K2_kdone:
    s_mul_i32 s36, s30, {NQT*16}
    s_add_u32 s36, s36, s33
    s_mul_i32 s35, s34, 98304
    s_mul_i32 s40, s36, 48
    s_add_u32 s35, s35, s40
    v_lshlrev_b32 v4, 3, v0
    v_lshlrev_b32 v5, 3, v1''')
    for t in range(NQT):
        A(f'    buffer_load_dwordx2 {vr(Q+4*t,2)}, v4, s[16:19], s35 offen offset:{WS_QK + t*768}')
        A(f'    buffer_load_dwordx2 {vr(Q+4*t+2,2)}, v5, s[16:19], s35 offen offset:{WS_QK + t*768 + 512}')
    A(f'''
    s_lshl_b32 s40, s36, 2
    s_add_u32 s40, s40, {WS_G}
    v_lshlrev_b32 v5, 2, v1''')
    for t in range(NQT):
        A(f'    buffer_load_dword v{G+t}, v5, s[16:19], s40 offen offset:{t*64}')
    A(f'''
    ; V gather: q = 64*(w+4j) + lane ; bg = q/21, d = q%21 ; blk = Q0/32 - 8 + bg/4 ; g = bg&3 ; n = 20*head + d
    s_lshl_b32 s40, s30, 6
    v_add_u32 v3, s40, v0
    s_mov_b32 s41, 0xc30c30d
    s_mul_i32 s43, s34, 20
    s_lshr_b32 s35, s33, 5
    s_sub_u32 s35, s35, 8
    v_mov_b32 v9, {WS_ONES}
    s_lshl_b32 s37, s30, 10''')
    for j in range(6):
        if j == 5: A('    s_cmp_eq_u32 s30, 0\n    s_cbranch_scc0 K2_vdone')
        A(f'''
    v_mul_hi_u32 v4, v3, s41
    v_mul_u32_u24 v5, 21, v4
    v_sub_u32 v5, v3, v5
    v_lshrrev_b32 v6, 2, v4
    v_add_u32 v6, s35, v6
    v_and_b32 v4, 3, v4
    v_add_u32 v7, s43, v5
    v_lshrrev_b32 v8, 4, v7
    v_lshl_add_u32 v6, v8, 6, v6
    v_lshl_add_u32 v6, v6, 2, v4
    v_and_b32 v7, 15, v7
    v_lshlrev_b32 v7, 4, v7
    v_lshl_add_u32 v6, v6, 8, v7
    v_add_u32 v6, {WS_VT}, v6
    v_cmp_eq_u32 vcc, 20, v5
    v_cndmask_b32 v6, v6, v9, vcc
    s_add_u32 m0, s37, {VL + j*4096}
    v_add_u32 v3, 256, v3
    buffer_load_dwordx4 v6, s[16:19], 0 offen lds''')
    A(f'''K2_vdone:
    s_barrier
    v_mov_b32 v3, {C1}
    v_mov_b32 v4, 1
    s_mov_b64 exec, 1
    ds_add_u32 v3, v4
    s_mov_b64 exec, -1
    s_mul_i32 s40, s30, {NQT*768}
    v_lshlrev_b32 v{VK}, 3, v0
    v_add_u32 v{VK}, s40, v{VK}
    v_add_u32 v{VK2}, 768, v{VK}
    s_mul_i32 s40, s30, {NQT*672}
    s_add_u32 s40, s40, {VL}
    v_mul_u32_u24 v6, 336, v2
    v_add_u32 v6, s40, v6
    v_lshl_add_u32 v{VV0}, v1, 4, v6
    v_add_u32 v7, 16, v1
    v_min_u32 v7, 20, v7
    v_lshl_add_u32 v{VV1}, v7, 4, v6
    s_mul_i32 s41, s34, 3
    v_lshrrev_b32 v6, 1, v2
    v_add_u32 v6, s41, v6
    v_lshrrev_b32 v7, 2, v6
    v_lshlrev_b32 v7, 12, v7
    v_and_b32 v8, 3, v6
    v_lshl_add_u32 v7, v8, 8, v7
    v_and_b32 v8, 1, v2
    v_lshl_add_u32 v7, v8, 10, v7
    v_lshl_add_u32 v{VO1}, v1, 4, v7
    s_add_u32 s41, s41, 2
    s_lshr_b32 s42, s41, 2
    s_lshl_b32 s42, s42, 12
    s_and_b32 s43, s41, 3
    s_lshl_b32 s43, s43, 8
    s_add_u32 s42, s42, s43
    v_lshl_add_u32 v7, v2, 10, s42
    v_lshl_add_u32 v{VO2}, v1, 4, v7
    v_mov_b32 v13, 0x80000000
    v_cmp_gt_u32 vcc, 2, v2
    v_cndmask_b32 v{VO2}, v13, v{VO2}, vcc
    s_lshr_b32 s42, s36, 6
    s_mul_i32 s42, s42, {24*4096}
    s_add_u32 s42, s42, {WS_OP}
    v_lshlrev_b32 v8, 2, v2
    v_sub_u32 v8, v1, v8''')
    for r in range(4):
        A(f'    v_cmp_gt_i32 s[{44+2*r}:{45+2*r}], {r}, v8')
    A(f'''
    v_mov_b32 v14, 0xff800000
    v_cmp_eq_u32 s[54:55], 1, v2
    v_cmp_lt_u32 s[52:53], 0, v2
    s_cmp_eq_u32 s30, 0
    s_cbranch_scc0 K2_nopad
    v_mov_b32 v8, 0
    v_lshlrev_b32 v9, 2, v0
    ds_write_b32 v9, v8 offset:24576
K2_nopad:''')
    stamp(A, opts, 3)
    A(f'''
    v_mov_b32 v9, 0xf149
    v_mov_b32 v3, {CK}
    v_mov_b32 v4, 1
    s_waitcnt vmcnt(0) lgkmcnt(0)
    s_mov_b64 exec, 1
    ds_add_u32 v3, v4
    s_mov_b64 exec, -1''')
    for t in range(NQT):
        q = Q + 4 * t
        A(f'''
    v_cndmask_b32 v{q+2}, v{q+2}, 0, s[52:53]
    v_cndmask_b32 v{q+3}, v{q+3}, 0, s[52:53]
    v_cndmask_b32 v{q+2}, v{q+2}, v9, s[54:55]''')
    A(f'''
K2_kwait:
    ds_read_b32 v4, v3
    s_waitcnt lgkmcnt(0)
    v_readfirstlane_b32 s58, v4
    s_cmp_lt_u32 s58, {NAW}
    s_cbranch_scc1 K2_kwait''')
    stamp(A, opts, 4)
    def sa(st, q, t): return SA + 16 * st + 8 * q + 4 * t
    def kb(st, t): return KB + 8 * st + 4 * t
    def vb(st, d): return VB + 8 * st + 4 * d
    def loads(st):
        return [f'    ds_read2st64_b64 {vr(kb(st,0),4)}, v{VK} offset0:0 offset1:1',
                f'    ds_read2st64_b64 {vr(kb(st,1),4)}, v{VK2} offset0:0 offset1:1',
                f'    ds_read_b128 {vr(vb(st,0),4)}, v{VV0}',
                f'    ds_read_b128 {vr(vb(st,1),4)}, v{VV1}']
    def adv(n=1):
        return [f'    v_add_u32 v{VK}, {1536*n & 0xffffffff}, v{VK}', f'    v_add_u32 v{VK2}, {1536*n & 0xffffffff}, v{VK2}',
                f'    v_add_u32 v{VV0}, {1344*n & 0xffffffff}, v{VV0}', f'    v_add_u32 v{VV1}, {1344*n & 0xffffffff}, v{VV1}']
    def skip(q, T): return (q == 0 and T == 17) or (q == 1 and T == 0)
    def smfma(st, bb):
        return [f'    v_mfma_f32_16x16x32_bf16 {vr(sa(st,q,t),4)}, {vr(kb(st,t),4)}, {vr(Q+4*q,4)}, 0'
                for q in range(2) for t in range(2) if not skip(q, 2 * bb + t)]
    def masks(q, T, v):
        L = []
        if (q == 0 and T == 0) or (q == 1 and T == 1):
            L += [f'    v_cndmask_b32 v{v+r}, v14, v{v+r}, s[{44+2*r}:{45+2*r}]' for r in range(4)]
        if (q == 0 and T == 16) or (q == 1 and T == 17):
            L += [f'    v_cndmask_b32 v{v+r}, v{v+r}, v14, s[{44+2*r}:{45+2*r}]' for r in range(4)]
        return L
    def packpv(st, bb, q):
        L = []
        p = sa(st, q, 0)
        for t in range(2):
            v = sa(st, q, t)
            if skip(q, 2 * bb + t):
                L += [f'    v_mov_b32 v{p+2*t}, 0', f'    v_mov_b32 v{p+2*t+1}, 0']
            else:
                L += [f'    v_cvt_pk_bf16_f32 v{p+2*t}, v{v}, v{v+1}', f'    v_cvt_pk_bf16_f32 v{p+2*t+1}, v{v+2}, v{v+3}']
        M = []
        for d in range(2):
            o = O + 8 * q + 4 * d
            M.append(f'    v_mfma_f32_16x16x32_bf16 {vr(o,4)}, {vr(vb(st,d),4)}, {vr(p,4)}, {vr(o,4)}')
        return L, M
    def body(st, bb, has_next):
        nx = st ^ 1
        if has_next:
            for l in adv(): A(l)
            for l in loads(nx): A(l)
        def valu(q):
            L = []
            for t in range(2):
                T = 2 * bb + t; v = sa(st, q, t)
                if skip(q, T): continue
                L += masks(q, T, v)
                L += [f'    v_exp_f32 v{v+r}, v{v+r}' for r in range(4)]
            return L
        for l in valu(0): A(l)
        P0, M0 = packpv(st, bb, 0)
        for l in P0: A(l)
        v1 = valu(1)
        ms = list(M0)
        if has_next:
            ms = ms + ['    s_waitcnt lgkmcnt(0)'] + smfma(nx, bb + 1)
        i = 0
        for l in v1:
            A(l)
            if i < len(ms):
                A(ms[i]); i += 1
                if i < len(ms) and ms[i - 1].strip().startswith('s_waitcnt'):
                    A(ms[i]); i += 1
        while i < len(ms):
            A(ms[i]); i += 1
        P1, M1 = packpv(st, bb, 1)
        for l in P1: A(l)
        for l in M1: A(l)
    A('    s_mov_b32 s60, 0')
    A('K2_pair:')
    for r in range(16): A(f'    v_mov_b32 v{O+r}, 0')
    for l in loads(0): A(l)
    A('    s_waitcnt lgkmcnt(0)')
    for l in smfma(0, 0): A(l)
    body(0, 0, True)
    A('    s_mov_b32 s58, 0')
    A('K2_floop:')
    body(1, 1, True)
    body(0, 2, True)
    A('''
    s_add_u32 s58, s58, 1
    s_cmp_lt_u32 s58, 3
    s_cbranch_scc1 K2_floop''')
    body(1, 7, True)
    body(0, 8, False)
    def lbcast():
        A(f'''
    v_mov_b32 v3, v{O+4}
    v_mov_b32 v4, v{O+4}
    v_permlane16_swap_b32 v4, v3
    v_mov_b32 v4, v3
    v_permlane32_swap_b32 v4, v3
    v_mov_b32 v5, v{O+12}
    v_mov_b32 v6, v{O+12}
    v_permlane16_swap_b32 v6, v5
    v_mov_b32 v6, v5
    v_permlane32_swap_b32 v6, v5''')
    lbcast()
    A(f'''
    v_min_f32 v7, v4, v6
    v_max_f32 v8, v4, v6
    s_mov_b32 s61, 0x17800000          ; 2^-80
    s_mov_b32 s62, 0x5d800000          ; 2^60
    v_cmp_nle_f32 vcc, s61, v7
    s_mov_b64 s[56:57], vcc
    v_cmp_nge_f32 vcc, s62, v8
    s_or_b64 s[56:57], s[56:57], vcc
    s_cmp_lg_u64 s[56:57], 0
    s_cbranch_scc1 K2_fallback
K2_fin:
    v_rcp_f32 v4, v4
    v_rcp_f32 v6, v6
    v_mul_f32 v4, v4, v{G}
    v_mul_f32 v6, v6, v{G+1}''')
    for q in range(2):
        o = O + 8 * q; sc = 4 if q == 0 else 6
        for r in range(8): A(f'    v_mul_f32 v{o+r}, v{o+r}, v{sc}')
    oa = O; ob = O + 8
    A(f'''
    v_cvt_pk_bf16_f32 v16, v{oa}, v{oa+1}
    v_cvt_pk_bf16_f32 v17, v{oa+2}, v{oa+3}
    v_cvt_pk_bf16_f32 v18, v{ob}, v{ob+1}
    v_cvt_pk_bf16_f32 v19, v{ob+2}, v{ob+3}
    v_cvt_pk_bf16_f32 v20, v{oa+4}, v{oa+5}
    v_cvt_pk_bf16_f32 v21, v{oa+6}, v{oa+7}
    v_cvt_pk_bf16_f32 v24, v{ob+4}, v{ob+5}
    v_cvt_pk_bf16_f32 v25, v{ob+6}, v{ob+7}
    v_mov_b32 v22, 0
    v_mov_b32 v23, 0
    v_permlane16_swap_b32 v16, v18
    v_permlane16_swap_b32 v17, v19
    v_permlane16_swap_b32 v20, v24
    v_permlane16_swap_b32 v21, v25
    buffer_store_dwordx4 v[16:19], v{VO1}, s[16:19], s42 offen sc1
    buffer_store_dwordx4 v[20:23], v{VO2}, s[16:19], s42 offen sc1
    s_add_u32 s42, s42, 2048
    s_add_u32 s60, s60, 1
    s_cmp_ge_u32 s60, 2
    s_cbranch_scc1 K2_attn_end''')
    for l in adv(-7): A(l)
    for r in range(8): A(f'    v_mov_b32 v{Q+r}, v{Q+8+r}')
    A(f'''
    v_mov_b32 v{G}, v{G+2}
    v_mov_b32 v{G+1}, v{G+3}
    s_branch K2_pair
K2_attn_end:''')
    stamp(A, opts, 5)
    A(f'''
    s_lshr_b32 s58, s36, 6
    s_lshl_b32 s58, s58, 5
    s_add_u32 s58, s58, s34
    s_lshl_b32 s58, s58, 2
    s_add_u32 s58, s58, {WS_FLAG2}
    v_mov_b32 v3, s58
    v_mov_b32 v4, 1
    s_waitcnt vmcnt(0)
    s_mov_b64 exec, 1
    buffer_store_dword v4, v3, s[16:19], 0 offen sc1
    s_mov_b64 exec, -1''')
    if opts.get('wo_attn', 0): gen_wo(A, opts)
    else:
        if opts.get('prof'):
            A('    s_waitcnt vmcnt(0)')
            stamp(A, opts, 7)
            stamp_flush(A, opts)
        A('    s_branch KF_done')
    def _fallback():
        A('K2_fallback:')
        for l in adv(-8): A(l)
        A('    v_mov_b32 v10, 0xff7fffff\n    v_mov_b32 v11, 0xff7fffff')
        for r in range(16): A(f'    v_mov_b32 v{O+r}, 0')
        for bb in range(9):
            for l in loads(0): A(l)
            if bb < 8:
                for l in adv(): A(l)
            A('    s_waitcnt lgkmcnt(0)')
            for l in smfma(0, bb): A(l)
            A('    s_nop 7')
            for q in range(2):
                vals = []
                for t in range(2):
                    T = 2 * bb + t; v = sa(0, q, t)
                    if skip(q, T): continue
                    for l in masks(q, T, v): A(l)
                    vals += [v + r for r in range(4)]
                m = 10 + q
                A(f'    v_mov_b32 v5, v{m}')
                for v in vals: A(f'    v_max_f32 v5, v5, v{v}')
                A(f'''
        v_mov_b32 v6, v5
        v_permlane16_swap_b32 v6, v5
        v_max_f32 v5, v5, v6
        v_mov_b32 v6, v5
        v_permlane32_swap_b32 v6, v5
        v_max_f32 v5, v5, v6
        v_sub_f32 v6, v{m}, v5
        v_exp_f32 v6, v6
        v_mov_b32 v{m}, v5''')
                o = O + 8 * q
                for r in range(8): A(f'    v_mul_f32 v{o+r}, v{o+r}, v6')
                for v in vals:
                    A(f'    v_sub_f32 v{v}, v{v}, v5')
                    A(f'    v_exp_f32 v{v}, v{v}')
                P, M = packpv(0, bb, q)
                for l in P + M: A(l)
                A('    s_nop 7')
        A('    s_nop 7')
        lbcast()
        A('    s_branch K2_fin')
    return _fallback

ACC = 16
RB = 96
VL16 = 240; VL16B = 241; GM = 12
CG = C1 + 12; CF = C1 + 16
def acc(u, mt): return ACC + (u * 4 + mt) * 4
def aslot(s, mt): return RB + 36 * s + 4 * mt
def wslot(s, u): return RB + 36 * s + 16 + 4 * u
def loadsA(slot, sc=''):
    L = [f'    buffer_load_dwordx4 {vr(aslot(slot,mt),4)}, v{VL16}, s[16:19], s41 offen offset:{mt*1024}{sc}' for mt in range(4)]
    L[-1] += '\n    s_add_u32 s41, s41, 4096'
    return L
def loadsW(slot):
    L = [f'    buffer_load_dwordx4 {vr(wslot(slot,u),4)}, v{VL16}, s[16:19], s42 offen offset:{u*1024}' for u in range(4)]
    L.append(f'    buffer_load_dwordx4 {vr(wslot(slot,4),4)}, v{VL16B}, s[16:19], s42 offen\n    s_add_u32 s42, s42, 40960')
    return L
def gstep(A, slot, loads, wait, first=False):
    A(f'    s_waitcnt vmcnt({wait})')
    li = 0; k = 0
    for u in range(5):
        for mt in range(4):
            d = vr(acc(u, mt), 4)
            c = '0' if first else d
            A(f'    v_mfma_f32_16x16x32_bf16 {d}, {vr(wslot(slot,u),4)}, {vr(aslot(slot,mt),4)}, {c}')
            k += 1
            if k % 2 == 0 and li < len(loads):
                A(loads[li]); li += 1
    while li < len(loads):
        A(loads[li]); li += 1
def gemm_ids(A, wsub, opts={}):
    if opts.get('gmap', 1) == 0:
        gm = '''s_and_b32 s34, s32, 3
    s_lshl_b32 s35, s31, 2
    s_add_u32 s34, s34, s35
    s_lshr_b32 s35, s32, 2'''
    else:
        gm = '''s_lshr_b32 s34, s31, 1
    s_lshl_b32 s34, s34, 3
    s_and_b32 s35, s32, 7
    s_add_u32 s34, s34, s35
    s_and_b32 s35, s31, 1
    s_lshl_b32 s35, s35, 2
    s_lshr_b32 s46, s32, 3
    s_add_u32 s35, s35, s46'''
    A(f'''
    s_sub_u32 s33, s30, {wsub}
    {gm}
    s_lshl_b32 s36, s34, 6             ; row0
    s_mul_i32 s43, s35, 5
    v_lshlrev_b32 v{VL16}, 4, v0
    v_add_u32 v{VL16B}, 4096, v{VL16}''')

def gen_gemm(A, opts):
    A('    s_barrier')
    gemm_ids(A, 4, opts)
    A(f'''
    s_mul_i32 s41, s34, 48
    s_mul_i32 s42, s33, 12
    s_add_u32 s41, s41, s42
    s_lshl_b32 s41, s41, 12
    s_add_u32 s41, s41, {WS_H}
    s_mul_i32 s42, s42, 40
    s_add_u32 s42, s42, s43
    s_lshl_b32 s42, s42, 10
    s_add_u32 s42, s42, {WS_W2F}
    s_lshl_b32 s40, s36, 2
    s_add_u32 s40, s40, {WS_G}
    v_lshlrev_b32 v3, 2, v1''')
    stamp(A, opts, 3)
    for mt in range(4):
        A(f'    buffer_load_dword v{GM+mt}, v3, s[16:19], s40 offen offset:{64*mt}')
    gd = opts.get('gdelay', 1)
    if gd:
        wait_lds(A, 'K2_gwait', CK if gd == 1 else C1, 4)
    for sl in range(3):
        for l in loadsW(sl) + loadsA(sl): A(l)
    stamp(A, opts, 4)
    gstep(A, 0, loadsA(3) + loadsW(3), 18, first=True)
    for sl in range(1, 4):
        gstep(A, sl, loadsA((sl + 3) % 4) + loadsW((sl + 3) % 4), 18)
    for sl in range(4):
        gstep(A, sl, loadsA((sl + 3) % 4) + loadsW((sl + 3) % 4), 18)
    gstep(A, 0, loadsA(3) + loadsW(3), 18)
    gstep(A, 1, [], 18)
    gstep(A, 2, [], 9)
    gstep(A, 3, [], 0)
    stamp(A, opts, 5)
    for mt in range(4):
        A(f'    v_sub_f32 v{GM+mt}, 1.0, v{GM+mt}')
    A(f'''
    s_mul_i32 s39, s33, 20480
    s_add_u32 s39, s39, {RED0}
    v_add_u32 v4, s39, v{VL16}
    s_nop 4''')
    for u in range(5):
        for mt in range(4):
            for r in range(4):
                a0 = acc(u, mt) + r
                A(f'    v_mul_f32 v{a0}, v{a0}, v{GM+mt}')
            A(f'    ds_write_b128 v4, {vr(acc(u,mt),4)} offset:{(mt*5+u)*1024}')
    A(f'''
    v_mov_b32 v3, {CG}
    v_mov_b32 v4, 1
    s_waitcnt lgkmcnt(0)
    s_mov_b64 exec, 1
    ds_add_u32 v3, v4
    s_mov_b64 exec, -1''')
    wait_lds(A, 'K2_cg', CG, 4, 1)
    A(f'''
    s_mul_i32 s45, s33, 5120
    s_add_u32 s45, s45, {RED0}
    v_add_u32 v4, s45, v{VL16}
    v_add_u32 v8, {2*20480}, v4''')
    T = RB
    for w in range(4):
        for u in range(5):
            A(f'    ds_read_b128 {vr(T+(w*5+u)*4,4)}, v{4 if w < 2 else 8} offset:{(w%2)*20480 + u*1024}')
    A('    s_waitcnt lgkmcnt(0)')
    for u in range(5):
        for r in range(4):
            t0 = T + u * 4 + r
            A(f'''
    v_add_f32 v{t0}, v{t0}, v{t0+20}
    v_add_f32 v{t0+40}, v{t0+40}, v{t0+60}
    v_add_f32 v{t0}, v{t0}, v{t0+40}''')
    A(f'''
    s_mul_i32 s45, s33, 5120
    s_add_u32 s45, s45, s39
    v_add_u32 v4, s45, v{VL16}''')
    for u in range(5):
        A(f'    ds_write_b128 v4, {vr(T+u*4,4)} offset:{u*1024}')
    A(f'''
    v_mov_b32 v3, {CF}
    v_mov_b32 v4, 1
    s_waitcnt lgkmcnt(0)
    s_mov_b64 exec, 1
    ds_add_u32 v3, v4
    s_waitcnt lgkmcnt(0)
    s_mov_b64 exec, -1''')
    if opts.get('prof'):
        stamp(A, opts, 7)
        stamp_flush(A, opts)

def final_reduce(A, opts):
    T = RB
    OSF = {0: '', 1: ' sc1', 2: ' nt'}[opts.get('osf', 0)]
    A(f'''
    s_mul_i32 s39, s33, 20480
    s_add_u32 s39, s39, {RED0}
    v_add_u32 v4, s39, v{VL16}
    s_nop 7''')
    for mt in range(4):
        A(f'    s_cmp_eq_u32 s33, {mt}\n    s_cbranch_scc1 K2_skipw{mt}')
        for u in range(5):
            A(f'    ds_write_b128 v4, {vr(acc(u,mt),4)} offset:{(mt*5+u)*1024}')
        A(f'    s_branch K2_donew{mt}')
        A(f'K2_skipw{mt}:')
        for u in range(5):
            for r in range(4):
                A(f'    v_mov_b32 v{T+60+u*4+r}, v{acc(u,mt)+r}')
        A(f'K2_donew{mt}:')
    A(f'''
    s_lshl_b32 s45, s33, 4
    s_add_u32 s45, s45, s36
    s_mul_i32 s45, s45, 1280
    s_mul_i32 s46, s35, 160
    s_add_u32 s45, s45, s46
    s_movk_i32 s37, 1280
    v_mul_lo_u32 v5, v1, s37
    v_and_b32 v6, 1, v2
    v_lshlrev_b32 v6, 5, v6
    v_lshrrev_b32 v7, 1, v2
    v_lshl_add_u32 v6, v7, 4, v6
    v_add_u32 v6, v6, v5
    v_lshl_add_u32 v7, v2, 3, v5
    s_mul_i32 s46, s33, 5120
    s_add_u32 s46, s46, {RED0}''')
    for k in range(1, 4):
        A(f'''
    s_add_u32 s47, s33, {k}
    s_and_b32 s47, s47, 3
    s_mul_i32 s47, s47, 20480
    s_add_u32 s47, s47, s46
    v_add_u32 v{8+k}, s47, v{VL16}''')
    A('    s_waitcnt lgkmcnt(0)\n    s_barrier')
    for k in range(1, 4):
        for u in range(5):
            A(f'    ds_read_b128 {vr(T+((k-1)*5+u)*4,4)}, v{8+k} offset:{u*1024}')
    for u in range(5):
        A(f'    s_waitcnt lgkmcnt({14 - (10 + u)})' if False else '')
    A('    s_waitcnt lgkmcnt(0)')
    for u in range(5):
        for r in range(4):
            t0 = T + u * 4 + r
            A(f'''
    v_add_f32 v{t0}, v{t0}, v{t0+20}
    v_add_f32 v{t0+40}, v{t0+40}, v{t0+60}
    v_add_f32 v{t0}, v{t0}, v{t0+40}''')
    P = 16
    for pp in range(2):
        t = P + 4 * pp; d0 = T + 8 * pp; d1 = T + 8 * pp + 4
        A(f'''
    v_cvt_pk_bf16_f32 v{t}, v{d0}, v{d0+1}
    v_cvt_pk_bf16_f32 v{t+1}, v{d0+2}, v{d0+3}
    v_cvt_pk_bf16_f32 v{t+2}, v{d1}, v{d1+1}
    v_cvt_pk_bf16_f32 v{t+3}, v{d1+2}, v{d1+3}
    v_permlane16_swap_b32 v{t}, v{t+2}
    v_permlane16_swap_b32 v{t+1}, v{t+3}
    buffer_store_dwordx4 {vr(t,4)}, v6, s[20:23], s45 offen offset:{64*pp}{OSF}''')
    d0 = T + 16
    A(f'''
    v_cvt_pk_bf16_f32 v24, v{d0}, v{d0+1}
    v_cvt_pk_bf16_f32 v25, v{d0+2}, v{d0+3}
    buffer_store_dwordx2 v[24:25], v7, s[20:23], s45 offen offset:128{OSF}''')
    if opts.get('prof'):
        A('    s_waitcnt vmcnt(0)')
        stamp(A, opts, 7)
        stamp_flush(A, opts)

def gen_gemm_full(A, opts):
    gemm_ids(A, 4, opts)
    A(f'''
    s_waitcnt lgkmcnt(0)
    s_mov_b32 s16, s28
    s_mov_b32 s17, s29
    s_mov_b32 s18, {WS_END}
    s_mov_b32 s19, 0x00020000
    s_mov_b32 s92, s28
    s_mov_b32 s93, s29
    s_mov_b32 s94, {WS_PROF_END}
    s_mov_b32 s95, 0x00020000
    s_barrier
    s_mov_b32 s20, s90
    s_mov_b32 s21, s91
    s_mov_b32 s22, 2621440
    s_mov_b32 s23, 0x00020000
    s_mul_i32 s41, s34, 48
    s_mul_i32 s42, s33, 12
    s_add_u32 s41, s41, s42
    s_lshl_b32 s41, s41, 12
    s_add_u32 s41, s41, {WS_H}
    s_mul_i32 s42, s42, 40
    s_add_u32 s42, s42, s43
    s_lshl_b32 s42, s42, 10
    s_add_u32 s42, s42, {WS_W2F}
    s_lshl_b32 s40, s36, 2
    s_add_u32 s40, s40, {WS_G}
    v_lshlrev_b32 v3, 2, v1''')
    rot = opts.get('rot2', 0)
    if rot:
        A(f'''
    s_and_b32 s46, s34, 3
    s_mul_i32 s46, s46, 3
    s_mul_hi_u32 s47, s35, 0x55555556
    s_mul_i32 s47, s47, 3
    s_sub_u32 s47, s35, s47
    s_add_u32 s48, s46, s47
    s_lshl_b32 s46, s48, 12
    s_add_u32 s41, s41, s46
    s_mul_i32 s46, s48, 40960
    s_add_u32 s42, s42, s46''')
    WRAP = f'''
    s_add_u32 s48, s48, 1
    s_cmp_eq_u32 s48, 12
    s_cselect_b32 s46, {12*4096}, 0
    s_cselect_b32 s47, {12*40960}, 0
    s_cselect_b32 s48, 0, s48
    s_sub_u32 s41, s41, s46
    s_sub_u32 s42, s42, s47''' if rot else ''
    def stage_loads(sl, wfirst=False):
        L = (loadsW(sl) + loadsA(sl)) if wfirst else (loadsA(sl) + loadsW(sl))
        L[-1] += WRAP
        return L
    stamp(A, opts, 3)
    for mt in range(4):
        A(f'    buffer_load_dword v{GM+mt}, v3, s[16:19], s40 offen offset:{64*mt}')
    gd = opts.get('gdelay', 1)
    if gd:
        wait_lds(A, 'K2_gwait', CK if gd == 1 else C1, 4)
    for sl in range(3):
        for l in stage_loads(sl, True): A(l)
    stamp(A, opts, 4)
    gstep(A, 0, stage_loads(3), 18, first=True)
    for sl in range(1, 4):
        gstep(A, sl, stage_loads((sl + 3) % 4), 18)
    for sl in range(4):
        gstep(A, sl, stage_loads((sl + 3) % 4), 18)
    gstep(A, 0, stage_loads(3), 18)
    A(f'''
    s_mul_i32 s42, s33, 240
    s_add_u32 s42, s42, s43
    s_lshl_b32 s42, s42, 10
    s_add_u32 s42, s42, {WS_WOF}''')
    gstep(A, 1, loadsW(0), 18)
    gstep(A, 2, loadsW(1), 9 + 5)
    gstep(A, 3, loadsW(2), 5 + 5)
    stamp(A, opts, 5)
    for l in loadsW(3): A(l)
    for mt in range(4):
        A(f'    v_sub_f32 v{GM+mt}, 1.0, v{GM+mt}')
    A(f'''
    s_lshl_b32 s45, s34, 5
    s_lshl_b32 s46, s33, 3
    s_add_u32 s45, s45, s46
    s_lshl_b32 s45, s45, 2
    s_add_u32 s45, s45, {WS_FLAG2}
    s_mul_i32 s41, s34, 24
    s_mul_i32 s44, s33, 6
    s_add_u32 s41, s41, s44
    s_lshl_b32 s41, s41, 12
    s_add_u32 s41, s41, {WS_OP}
    s_nop 2''')
    for u in range(5):
        for mt in range(4):
            for r in range(4):
                a0 = acc(u, mt) + r
                A(f'    v_mul_f32 v{a0}, v{a0}, v{GM+mt}')
    poll_all(A, 'K2_s2', 's45', 2, opts.get('psleep2', 1))
    stamp(A, opts, 6)
    for sl in range(4):
        for l in loadsA(sl, ' sc1'): A(l)
    gstep(A, 0, [], 12)
    gstep(A, 1, loadsA(0, ' sc1') + loadsW(0), 8)
    gstep(A, 2, loadsA(1, ' sc1') + loadsW(1), 4 + 9)
    gstep(A, 3, [], 18)
    gstep(A, 0, [], 9)
    gstep(A, 1, [], 0)
    final_reduce(A, opts)

def gen_wo(A, opts):
    gemm_ids(A, 0, opts)
    A(f'''
    s_mov_b32 s20, s90
    s_mov_b32 s21, s91
    s_mov_b32 s22, 2621440
    s_mov_b32 s23, 0x00020000
    s_mul_i32 s42, s33, 240
    s_add_u32 s42, s42, s43
    s_lshl_b32 s42, s42, 10
    s_add_u32 s42, s42, {WS_WOF}''')
    for sl in range(4):
        for l in loadsW(sl): A(l)
    A(f'''
    s_lshl_b32 s45, s34, 5
    s_lshl_b32 s46, s33, 3
    s_add_u32 s45, s45, s46
    s_lshl_b32 s45, s45, 2
    s_add_u32 s45, s45, {WS_FLAG2}
    s_mul_i32 s41, s34, 24
    s_mul_i32 s44, s33, 6
    s_add_u32 s41, s41, s44
    s_lshl_b32 s41, s41, 12
    s_add_u32 s41, s41, {WS_OP}''')
    poll_all(A, 'K2_s2', 's45', 2, opts.get('psleep2', 1))
    stamp(A, opts, 6)
    for sl in range(4):
        for l in loadsA(sl, ' sc1'): A(l)
    gstep(A, 0, [], 12, first=True)
    stamp(A, opts, 3)
    gstep(A, 1, loadsA(0, ' sc1') + loadsW(0), 8)
    gstep(A, 2, loadsA(1, ' sc1') + loadsW(1), 4 + 9)
    gstep(A, 3, [], 18)
    gstep(A, 0, [], 9)
    gstep(A, 1, [], 0)
    stamp(A, opts, 1)
    wait_lds(A, 'K2_cf', CF, 4, 1)
    A(f'''
    s_mul_i32 s39, s33, 20480
    s_add_u32 s39, s39, {RED0}
    v_add_u32 v4, s39, v{VL16}
    s_mul_i32 s45, s33, 5120
    s_add_u32 s45, s45, s39
    v_add_u32 v5, s45, v{VL16}''')
    T = RB
    for mt in range(4):
        A(f'    s_cmp_eq_u32 s33, {mt}\n    s_cbranch_scc1 K2_skipw{mt}')
        for u in range(5):
            A(f'    ds_write_b128 v4, {vr(acc(u,mt),4)} offset:{(mt*5+u)*1024}')
        A(f'    s_branch K2_donew{mt}')
        A(f'K2_skipw{mt}:')
        for u in range(5):
            for r in range(4):
                A(f'    v_mov_b32 v{T+100+u*4+r}, v{acc(u,mt)+r}')
        A(f'K2_donew{mt}:')
    A('    s_waitcnt lgkmcnt(0)\n    s_barrier')
    stamp(A, opts, 2)
    A(f'''
    s_mul_i32 s45, s33, 5120
    s_add_u32 s45, s45, {RED0}
    v_add_u32 v4, s45, v{VL16}
    v_add_u32 v8, {2*20480}, v4''')
    for w in range(4):
        for u in range(5):
            A(f'    ds_read_b128 {vr(T+(w*5+u)*4,4)}, v{4 if w < 2 else 8} offset:{(w%2)*20480 + u*1024}')
    A(f'''
    s_lshl_b32 s45, s33, 4
    s_add_u32 s45, s45, s36
    s_mul_i32 s45, s45, 1280
    s_mul_i32 s46, s35, 160
    s_add_u32 s45, s45, s46
    s_movk_i32 s37, 1280
    v_mul_lo_u32 v5, v1, s37
    v_and_b32 v6, 1, v2
    v_lshlrev_b32 v6, 5, v6
    v_lshrrev_b32 v7, 1, v2
    v_lshl_add_u32 v6, v7, 4, v6
    v_add_u32 v6, v6, v5
    v_lshl_add_u32 v7, v2, 3, v5
    s_waitcnt lgkmcnt(0)''')
    for u in range(5):
        for r in range(4):
            t0 = T + u * 4 + r
            A(f'''
    v_add_f32 v{t0}, v{t0}, v{t0+20}
    v_add_f32 v{t0+40}, v{t0+40}, v{t0+60}
    v_add_f32 v{t0}, v{t0}, v{t0+100}
    v_add_f32 v{t0}, v{t0}, v{t0+40}''')
    P = 16
    for pp in range(2):
        t = P + 4 * pp; d0 = T + 8 * pp; d1 = T + 8 * pp + 4
        A(f'''
    v_cvt_pk_bf16_f32 v{t}, v{d0}, v{d0+1}
    v_cvt_pk_bf16_f32 v{t+1}, v{d0+2}, v{d0+3}
    v_cvt_pk_bf16_f32 v{t+2}, v{d1}, v{d1+1}
    v_cvt_pk_bf16_f32 v{t+3}, v{d1+2}, v{d1+3}
    v_permlane16_swap_b32 v{t}, v{t+2}
    v_permlane16_swap_b32 v{t+1}, v{t+3}
    buffer_store_dwordx4 {vr(t,4)}, v6, s[20:23], s45 offen offset:{64*pp}''')
    d0 = T + 16
    A(f'''
    v_cvt_pk_bf16_f32 v24, v{d0}, v{d0+1}
    v_cvt_pk_bf16_f32 v25, v{d0+2}, v{d0+3}
    buffer_store_dwordx2 v[24:25], v7, s[20:23], s45 offen offset:128''')
    if opts.get('prof'):
        A('    s_waitcnt vmcnt(0)')
        stamp(A, opts, 7)
        stamp_flush(A, opts)
    A('    s_branch KF_done')

def desc(name, vg):
    return f'''
.amdhsa_kernel {name}
  .amdhsa_next_free_vgpr {vg}
  .amdhsa_next_free_sgpr 102
  .amdhsa_accum_offset {vg}
  .amdhsa_group_segment_fixed_size 0
  .amdhsa_kernarg_size 80
  .amdhsa_user_sgpr_count 2
  .amdhsa_user_sgpr_kernarg_segment_ptr 1
  .amdhsa_system_sgpr_workgroup_id_x 1
.end_amdhsa_kernel
'''

if __name__ == '__main__':
    import sys
    out = sys.argv[1]
    opts = {}
    for kv in sys.argv[2:]:
        k, v = kv.split('=')
        opts[k] = int(v)
    HEADER = open('gated_mix__sliding_block__dense_activation_relu__prompt.s.ref').read().split('; Override launch')[0]
    o1 = dict(opts); o2 = dict(opts)
    if opts.get('prof') == 2: o1.pop('prof')
    a1 = Asm(); gen_k1(a1, o1)
    a2 = Asm(); gen_k2(a2, o2)
    txt = HEADER + f'; @launch kernel=k1_kernel grid=(256,1,1) block=(512,1,1) lds={LDS_BYTES}\n'
    if not opts.get('k1only'): txt += f'; @launch kernel=k2_kernel grid=(256,1,1) block=(512,1,1) lds={K2_LDS}\n'
    txt += '.amdgcn_target "amdgcn-amd-amdhsa--gfx950"\n.text\n'
    txt += '.globl k1_kernel\n.p2align 8\n.type k1_kernel,@function\n' + a1.fix() + '\n'
    txt += '.globl k2_kernel\n.p2align 8\n.type k2_kernel,@function\n' + a2.fix() + '\n'
    txt += '.section .rodata,"a"\n.p2align 6' + desc('k1_kernel', 232) + '.p2align 6' + desc('k2_kernel', 248)
    open(out, 'w').write(txt)
```

```python
from asmlib import *

WS_QK   = 0x000000
WS_VT   = 0x600000
WS_H    = 0x900000
WS_OP   = 0xF00000
WS_W2F  = 0x1200000
WS_WOF  = 0x13E0000
WS_G    = 0x14D0000
WS_FLAG2 = 0x14D2000
WS_ONES = 0x14D3000
WS_END  = 0x14D3100
WS_PROF = 0x1500000
WS_PROF_END = 0x1600000
LDS_BYTES = 163840
PK = 147456
C1 = 46336; CK = C1 + 4; CA = C1 + 8
KL = 0; VL = 24832; RED0 = 46592; K2_LDS = RED0 + 4*20480
KNAME = 'gated_mix__sliding_block__dense_activation_relu__prompt_kernel'

def stamp(A, opts, idx):
    if not opts.get('prof'): return
    A(f'    s_memtime s[{70+2*idx}:{71+2*idx}]')
    if idx == 0 or idx == 7:
        A(f'    s_memrealtime s[{86+2*(idx != 0)}:{87+2*(idx != 0)}]')

def stamp_flush(A, opts):
    if not opts.get('prof'): return
    A(f'''
    s_waitcnt lgkmcnt(0)
    s_lshl_b32 s96, s2, 4
    s_add_u32 s96, s96, s30
    s_lshl_b32 s96, s96, 7
    s_add_u32 s96, s96, {WS_PROF}
    v_mov_b32 v100, s96
    s_mov_b64 exec, 1''')
    for i in range(20):
        A(f'    v_mov_b32 v101, s{70+i}\n    buffer_store_dword v101, v100, s[92:95], 0 offen offset:{4*i}')
    A('    s_mov_b64 exec, -1')

def gen_k1(a, opts):
    A = a
    SF = {0: '', 1: ' sc1'}[opts.get('sf', 1)]
    A('k1_kernel:')
    A('''
    s_cmp_ge_u32 s2, 256
    s_cbranch_scc1 K1_done
    s_getpc_b64 s[60:61]''')
    stamp(A, opts, 0)
    A(f'''
    s_load_dwordx2 s[4:5], s[0:1], 0
    s_load_dwordx4 s[64:67], s[0:1], 8
    s_load_dwordx4 s[24:27], s[0:1], 32
    s_load_dwordx2 s[68:69], s[0:1], 48
    s_load_dwordx2 s[28:29], s[0:1], 72
    v_lshrrev_b32 v1, 6, v0
    v_and_b32 v0, 63, v0
    v_readfirstlane_b32 s30, v1
    s_and_b32 s31, s2, 7
    s_lshr_b32 s32, s2, 3
    s_cmp_lt_u32 s32, {opts.get('cpf', 1)}
    s_cbranch_scc0 K1_nocpf
    s_cmp_lt_u32 s30, 3
    s_cbranch_scc0 K1_nocpf
    s_lshl_b32 s46, s30, 13
    v_lshlrev_b32 v10, 7, v0
    v_add_u32 v10, s46, v10
    global_load_dword v226, v10, s[60:61]
K1_nocpf:
    s_and_b32 s33, s31, 1
    s_lshl_b32 s33, s33, 3
    s_and_b32 s34, s32, 7
    s_add_u32 s33, s33, s34
    s_lshr_b32 s34, s31, 1
    s_lshl_b32 s34, s34, 2
    s_lshr_b32 s35, s32, 3
    s_add_u32 s34, s34, s35
    s_lshl_b32 s40, s33, 7
    s_cmp_lt_u32 s34, 6
    s_cbranch_scc1 K1_sec_qk
    s_cmp_lt_u32 s34, 9
    s_cbranch_scc1 K1_sec_v
    s_mov_b32 s36, 2
    s_sub_u32 s37, s34, 9
    s_mul_i32 s37, s37, 14
    s_mov_b32 s62, s37
    s_min_u32 s37, s37, 82
    s_lshl_b32 s38, s37, 5
    s_mov_b32 s39, 3072
    s_branch K1_sec_done
K1_sec_qk:
    s_mov_b32 s36, 0
    s_mul_i32 s37, s34, 14
    s_mov_b32 s62, s37
    s_min_u32 s37, s37, 66
    s_lshl_b32 s38, s37, 5
    s_mov_b32 s39, 3840
    s_branch K1_sec_done
K1_sec_v:
    s_mov_b32 s36, 1
    s_sub_u32 s37, s34, 6
    s_mul_i32 s37, s37, 14
    s_mov_b32 s62, s37
    s_min_u32 s37, s37, 26
    s_lshl_b32 s38, s37, 5
    s_add_u32 s38, s38, 2560
    s_mov_b32 s39, 3840
K1_sec_done:
    s_cmp_ge_u32 s30, 4
    s_cbranch_scc{'0 K1_compute' if opts.get('lfirst', 0) else '1 K1_loader'}
    ''')
    if opts.get('lfirst', 0):
        gen_p1_loader(A, opts, SF)
        A('    s_branch KF_p1done')
        A('K1_compute:')
        gen_p1_compute(A, opts, SF)
    else:
        gen_p1_compute(A, opts, SF)
        gen_p1_loader(A, opts, SF)
    A('KF_p1done:')
    if opts.get('prof') == 1:
        stamp(A, opts, 6)
        A('    s_waitcnt vmcnt(0)')
        stamp(A, opts, 7); stamp_flush(A, opts)
    A('K1_done:\n    s_endpgm')

def gen_k2(a, opts):
    A = a
    A('k2_kernel:')
    A('''
    s_cmp_ge_u32 s2, 256
    s_cbranch_scc1 KF_done''')
    stamp(A, opts, 0)
    A(f'''
    s_load_dwordx2 s[90:91], s[0:1], 56
    s_load_dwordx2 s[28:29], s[0:1], 72
    v_lshrrev_b32 v1, 6, v0
    v_and_b32 v0, 63, v0
    v_readfirstlane_b32 s30, v1
    s_and_b32 s31, s2, 7
    s_lshr_b32 s32, s2, 3
    v_and_b32 v1, 15, v0
    v_lshrrev_b32 v2, 4, v0
    s_mov_b32 s97, 1
    s_cmp_eq_u32 s30, 0
    s_cbranch_scc0 K2_noinit
    v_mov_b32 v8, 0
    v_mov_b32 v9, {C1}
    ds_write_b32 v9, v8 offset:0
    ds_write_b32 v9, v8 offset:4
    ds_write_b32 v9, v8 offset:8
    ds_write_b32 v9, v8 offset:12
    ds_write_b32 v9, v8 offset:16
    ds_write_b32 v9, v8 offset:20
    ds_write_b32 v9, v8 offset:24
K2_noinit:
    s_cmp_ge_u32 s30, 4
    s_cbranch_scc1 K2_gemm''')
    fbk = gen_attn(A, opts)
    A('K2_gemm:')
    if opts.get('wo_attn', 0): gen_gemm(A, opts)
    else: gen_gemm_full(A, opts)
    A('KF_done:\n    s_endpgm')
    fbk()

def wait_lds(A, label, addr, val, sleep=2):
    A(f'''
    v_mov_b32 v8, {addr}
{label}:
    ds_read_b32 v9, v8
    s_waitcnt lgkmcnt(0)
    v_readfirstlane_b32 s58, v9
    s_cmp_lt_u32 s58, {val}
    s_cbranch_scc0 {label}_ok
    s_sleep {sleep}
    s_branch {label}
{label}_ok:''')

def poll_all(A, label, base, n_lanes_x4, sleep=1):
    A(f'''
    v_lshlrev_b32 v3, 4, v0
    v_mov_b32 v8, 0x80000000
    v_cmp_gt_u32 vcc, {n_lanes_x4}, v0
    v_cndmask_b32 v3, v8, v3, vcc
    s_mov_b64 s[56:57], vcc
{label}:
    buffer_load_dwordx4 v[4:7], v3, s[16:19], {base} offen sc1
    s_waitcnt vmcnt(0)
    v_xor_b32 v4, s97, v4
    v_xor_b32 v5, s97, v5
    v_xor_b32 v6, s97, v6
    v_xor_b32 v7, s97, v7
    v_or3_b32 v4, v4, v5, v6
    v_or_b32 v4, v4, v7
    v_cmp_ne_u32 vcc, 0, v4
    s_and_b64 vcc, vcc, s[56:57]
    s_cbranch_vccz {label}_ok
    s_sleep {sleep}
    s_branch {label}
{label}_ok:''')

def k1_srds(A, tag):
    A(f'''
    s_waitcnt lgkmcnt(0)
    s_mov_b32 s8, s4
    s_mov_b32 s9, s5
    s_mov_b32 s10, 2621440
    s_mov_b32 s11, 0x00020000
    s_mov_b32 s15, 0x00020000
    s_cmp_eq_u32 s36, 2
    s_cbranch_scc1 K1_srd_h{tag}
    s_mov_b32 s12, s64
    s_mov_b32 s13, s65
    s_mov_b32 s14, 2457600
    s_branch K1_srd_d{tag}
K1_srd_h{tag}:
    s_mov_b32 s12, s24
    s_mov_b32 s13, s25
    s_mov_b32 s14, 1966080
K1_srd_d{tag}:
    s_mov_b32 s16, s28
    s_mov_b32 s17, s29
    s_mov_b32 s18, {WS_END}
    s_mov_b32 s19, 0x00020000
    s_mov_b32 s92, s28
    s_mov_b32 s93, s29
    s_mov_b32 s94, {WS_PROF_END}
    s_mov_b32 s95, 0x00020000''')

def gen_p1_compute(A, opts, SF):
    ACC = 16
    def acc(uu, mt): return ACC + (uu * 4 + mt) * 4
    XS = [128, 172]; WSs = [144, 188]
    VAX = [216, 217]; VW = 218
    T = 128
    A(f'''
    s_and_b32 s41, s30, 1
    s_lshr_b32 s42, s30, 1
    v_and_b32 v1, 15, v0
    v_lshrrev_b32 v2, 4, v0
    v_and_b32 v3, 7, v1
    v_xor_b32 v3, v2, v3
    v_lshlrev_b32 v3, 4, v3
    v_lshl_add_u32 v3, v1, 7, v3
    s_lshl_b32 s43, s41, 13
    v_add_u32 v{VAX[0]}, s43, v3
    v_xor_b32 v{VAX[1]}, 64, v{VAX[0]}
    v_lshrrev_b32 v4, 2, v1
    v_and_b32 v5, 3, v0
    v_and_b32 v6, 1, v2
    v_lshl_or_b32 v6, v6, 2, v4
    v_lshl_add_u32 v7, v2, 3, v4
    v_lshlrev_b32 v7, 9, v7
    v_lshl_add_u32 v7, v5, 3, v7
    v_add_u32 v7, 16384, v7
    s_lshl_b32 s44, s42, 3
    s_add_u32 s45, s42, 6
    ''')
    for uu in range(7):
        if uu < 6: A(f'    s_add_u32 s46, s44, {uu}\n    v_xor_b32 v8, s46, v6')
        else:      A(f'    v_xor_b32 v8, s45, v6')
        A(f'    v_lshl_add_u32 v{VW+uu}, v8, 5, v7')
    for r in range(ACC, ACC + 112):
        A(f'    v_mov_b32 v{r}, 0')
    def reads(st, ks):
        R = []
        for mt in range(4):
            R.append(f'    ds_read_b128 {vr(XS[st]+4*mt,4)}, v{VAX[ks]} offset:{mt*2048}')
        for uu in range(7):
            for t in range(2):
                R.append(f'    ds_read_b64_tr_b16 {vr(WSs[st]+4*uu+2*t,2)}, v{VW+uu} offset:{(32*ks+4*t)*512}')
        return R
    def phase(st, rd, swapped, extra=()):
        k = 0
        extra = list(extra)
        for uu in range(7):
            for mt in range(4):
                w = vr(WSs[st] + 4 * uu, 4); x = vr(XS[st] + 4 * mt, 4); d = vr(acc(uu, mt), 4)
                if swapped: A(f'    v_mfma_f32_16x16x32_bf16 {d}, {w}, {x}, {d}')
                else:       A(f'    v_mfma_f32_16x16x32_bf16 {d}, {x}, {w}, {d}')
                if k < len(rd): A(rd[k])
                elif extra: A(extra.pop(0))
                k += 1
        for e in extra: A(e)
    def mainloop(tag, swapped):
        A(f'''
    s_mov_b32 s46, 0
    s_mov_b32 s47, 0
    s_mov_b32 s50, 0xfffe8000
    s_mov_b32 s51, 49152
    s_barrier''')
        stamp(A, opts, 2)
        for l in reads(0, 0): A(l)
        A(f'K1_loop_{tag}:')
        A('''
    s_add_u32 s47, s47, 1
    s_cmp_eq_u32 s47, 3
    s_cselect_b32 s48, s50, s51
    s_cselect_b32 s47, 0, s47
    s_waitcnt lgkmcnt(0)''')
        upd = [f'    v_add_u32 v{r}, s48, v{r}' for r in VAX + [VW + i for i in range(7)]]
        phase(0, reads(1, 1), swapped, upd)
        A('''
    s_waitcnt lgkmcnt(0)
    s_barrier''')
        phase(1, reads(0, 0), swapped, ['    s_add_u32 s46, s46, 1', '    s_cmp_lt_u32 s46, 10'])
        A(f'''
    s_cbranch_scc1 K1_loop_{tag}
    s_waitcnt lgkmcnt(0)
    s_nop 7''')
        stamp(A, opts, 1)
    k1_srds(A, 'c')
    if opts.get('tpre', 0):
        S0 = opts.get('tpre0', 2)
        A(f'''
    v_and_b32 v9, 31, v0
    v_lshrrev_b32 v10, 5, v0
    s_lshl_b32 s46, s35, 5
    s_add_u32 s46, s46, s40
    v_add_u32 v11, s46, v9
    s_movk_i32 s47, 1280
    v_mul_lo_u32 v11, v11, s47
    s_lshl_b32 s46, s30, 1
    s_add_u32 s46, s46, {S0}
    v_add_u32 v12, s46, v10
    v_lshl_add_u32 v11, v12, 7, v11
    v_mov_b32 v13, 0x80000000
    v_cmp_gt_u32 vcc, 10, v12
    v_cndmask_b32 v11, v13, v11, vcc
    v_lshlrev_b32 v12, 6, v12
    s_and_b32 s46, s32, 7
    s_lshl_b32 s46, s46, 3
    v_bfe_u32 v13, v0, 2, 3
    v_add3_u32 v12, v12, s46, v13
    v_mul_lo_u32 v12, v12, s39
    v_and_b32 v13, 3, v0
    v_lshl_add_u32 v12, v13, 7, v12
    s_and_b32 s46, s38, 0xffffff80
    v_add_u32 v12, s46, v12
    {f's_sleep {opts.get("tsleep")}' if opts.get('tsleep') else ''}
    buffer_load_dword v227, v12, s[12:15], 0 offen
    buffer_load_dword v226, v11, s[8:11], 0 offen''')
    if opts.get('tlbw', 0):
        G = opts.get('tlbw')
        A(f'''
    s_cmp_eq_u32 s32, 0
    s_cbranch_scc0 K1_notlb
    s_cmp_eq_u32 s30, 3
    s_cbranch_scc0 K1_notlb
    v_lshlrev_b32 v10, {G}, v0
    buffer_load_dword v227, v10, s[16:19], 0 offen
    s_load_dwordx2 s[62:63], s[0:1], 56
    s_waitcnt lgkmcnt(0)
    s_mov_b32 s20, s62
    s_mov_b32 s21, s63
    s_mov_b32 s22, 2621440
    s_mov_b32 s23, 0x00020000
    buffer_load_dword v228, v10, s[20:23], 0 offen
K1_notlb:''')
    for r in range(9, 15): A(f'    v_mov_b32 v{r}, 0x80000000')
    A('''
    s_cmp_eq_u32 s36, 1
    s_cbranch_scc1 K1_main_v
    s_cmp_eq_u32 s36, 2
    s_cbranch_scc1 K1_pre_h''')
    A(f'''
    s_lshl_b32 s43, s41, 2
    s_lshr_b32 s46, s40, 4
    s_add_u32 s43, s43, s46
    s_mul_i32 s43, s43, 768
    v_lshlrev_b32 v3, 3, v1
    v_add_u32 v3, s43, v3
    s_mov_b32 s49, 52429
    s_mov_b32 s52, 98304
    s_mov_b32 s53, 0x3ea52b5c''')
    for uu in range(7):
        if uu < 6: A(f'    s_add_u32 s46, s44, {uu}')
        else:      A(f'    s_mov_b32 s46, s45')
        A(f'''
    s_add_u32 s46, s46, s37
    s_cmp_lt_u32 s46, s62
    s_cselect_b32 s47, 0x80000000, 0
    s_lshl_b32 s46, s46, 2
    v_add_u32 v4, s46, v2
    v_mul_lo_u32 v5, v4, s49
    v_lshrrev_b32 v5, 18, v5
    v_mul_u32_u24 v6, 5, v5
    v_sub_u32 v6, v4, v6
    v_mul_lo_u32 v5, v5, s52
    v_lshl_add_u32 v5, v6, 7, v5
    v_add3_u32 v{8+uu}, v5, v3, s47''')
    A('    s_branch K1_pre_done')
    A(f'''K1_pre_h:
    s_lshl_b32 s43, s33, 1
    s_add_u32 s43, s43, s41
    s_mul_i32 s43, s43, {48*4096}
    s_add_u32 s43, s43, {WS_H}
    s_add_u32 s56, s37, s44
    s_lshl_b32 s56, s56, 11
    s_add_u32 s56, s56, s43
    v_and_b32 v4, 1, v2
    v_lshlrev_b32 v4, 1, v4
    v_lshrrev_b32 v5, 1, v2
    v_add_u32 v4, v4, v5
    v_lshl_add_u32 v4, v4, 4, v1
    v_lshlrev_b32 v4, 4, v4
    s_add_u32 s57, s37, 6
    s_lshl_b32 s57, s57, 11
    s_add_u32 s57, s57, s43
    s_lshl_b32 s48, s42, 1
    v_add_u32 v5, s48, v5
    v_lshl_add_u32 v5, v5, 4, v1
    v_lshlrev_b32 v5, 4, v5
    v_and_b32 v6, 1, v2
    v_lshl_add_u32 v5, v6, 10, v5
K1_pre_done:''')
    mainloop('s', True)
    A('''
    s_cmp_eq_u32 s36, 2
    s_cbranch_scc1 K1_epi_h''')
    for uu in range(7):
        if uu < 6: A(f'    s_add_u32 s46, s44, {uu}')
        else:      A(f'    s_mov_b32 s46, s45')
        A(f'''
    s_add_u32 s46, s46, s37
    s_cmp_lt_u32 s46, 40
    s_cselect_b32 s54, s53, 1.0
    s_mov_b32 s55, s54''')
        for mt in range(4):
            d = acc(uu, mt); t = T + (uu * 4 + mt) * 2
            A(f'''
    v_pk_mul_f32 {vr(d,2)}, {vr(d,2)}, s[54:55]
    v_pk_mul_f32 {vr(d+2,2)}, {vr(d+2,2)}, s[54:55]
    v_cvt_pk_bf16_f32 v{t}, v{d}, v{d+1}
    v_cvt_pk_bf16_f32 v{t+1}, v{d+2}, v{d+3}
    buffer_store_dwordx2 {vr(t,2)}, v{8+uu}, s[16:19], 0 offen offset:{WS_QK + mt*768}{SF}''')
    A('    s_branch KF_p1done')
    A('K1_epi_h:')
    n = 0
    for pp in range(3):
        A(f'    s_add_u32 s49, s56, {pp*4096}\n    s_add_u32 s46, s37, s44\n    s_add_u32 s46, s46, {2*pp}\n    s_cmp_lt_u32 s46, s62\n    s_cselect_b32 s49, 0x7f000000, s49')
        for mt in range(4):
            t = T + n * 4; n += 1
            d0 = acc(2 * pp, mt); d1 = acc(2 * pp + 1, mt)
            A(f'''
    v_cvt_pk_bf16_f32 v{t}, v{d0}, v{d0+1}
    v_cvt_pk_bf16_f32 v{t+1}, v{d0+2}, v{d0+3}
    v_cvt_pk_bf16_f32 v{t+2}, v{d1}, v{d1+1}
    v_cvt_pk_bf16_f32 v{t+3}, v{d1+2}, v{d1+3}
    v_pk_max_i16 v{t}, v{t}, 0
    v_pk_max_i16 v{t+1}, v{t+1}, 0
    v_pk_max_i16 v{t+2}, v{t+2}, 0
    v_pk_max_i16 v{t+3}, v{t+3}, 0
    v_permlane16_swap_b32 v{t}, v{t+2}
    v_permlane16_swap_b32 v{t+1}, v{t+3}
    buffer_store_dwordx4 {vr(t,4)}, v4, s[16:19], s49 offen offset:{1024*mt}{SF}''')
    for pm in range(2):
        t = T + n * 4; n += 1
        d0 = acc(6, 2 * pm); d1 = acc(6, 2 * pm + 1)
        A(f'''
    v_cvt_pk_bf16_f32 v{t}, v{d0}, v{d0+1}
    v_cvt_pk_bf16_f32 v{t+1}, v{d0+2}, v{d0+3}
    v_cvt_pk_bf16_f32 v{t+2}, v{d1}, v{d1+1}
    v_cvt_pk_bf16_f32 v{t+3}, v{d1+2}, v{d1+3}
    v_pk_max_i16 v{t}, v{t}, 0
    v_pk_max_i16 v{t+1}, v{t+1}, 0
    v_pk_max_i16 v{t+2}, v{t+2}, 0
    v_pk_max_i16 v{t+3}, v{t+3}, 0
    v_permlane16_swap_b32 v{t}, v{t+2}
    v_permlane16_swap_b32 v{t+1}, v{t+3}
    buffer_store_dwordx4 {vr(t,4)}, v5, s[16:19], s57 offen offset:{2048*pm}{SF}''')
    A('    s_branch KF_p1done')
    A('K1_main_v:')
    A(f'''
    s_lshl_b32 s43, s41, 1
    s_lshr_b32 s46, s40, 5
    s_add_u32 s43, s43, s46
    s_lshl_b32 s43, s43, 10
    s_add_u32 s43, s43, {WS_VT}
    v_lshlrev_b32 v3, 4, v0
    v_add_u32 v3, s43, v3''')
    for uu in range(7):
        if uu < 6: A(f'    s_add_u32 s46, s44, {uu}')
        else:      A(f'    s_mov_b32 s46, s45')
        A(f'''
    s_add_u32 s46, s46, s37
    s_cmp_lt_u32 s46, s62
    s_cselect_b32 s47, 0x80000000, 0
    s_lshl_b32 s46, s46, 16
    s_or_b32 s46, s46, s47
    v_add_u32 v{8+uu}, s46, v3''')
    mainloop('n', False)
    for uu in range(7):
        for pa in range(2):
            t = T + (uu * 2 + pa) * 4
            d0 = acc(uu, 2 * pa); d1 = acc(uu, 2 * pa + 1)
            A(f'''
    v_cvt_pk_bf16_f32 v{t}, v{d0}, v{d0+1}
    v_cvt_pk_bf16_f32 v{t+1}, v{d0+2}, v{d0+3}
    v_cvt_pk_bf16_f32 v{t+2}, v{d1}, v{d1+1}
    v_cvt_pk_bf16_f32 v{t+3}, v{d1+2}, v{d1+3}
    buffer_store_dwordx4 {vr(t,4)}, v{8+uu}, s[16:19], 0 offen offset:{1024*pa}{SF}''')
    A('    s_branch KF_p1done')

def gen_p1_loader(A, opts, SF):
    rm = opts.get('rotmode', 0)
    if rm == 0:
        ROT = f'''s_add_u32 s46, s46, s47
    s_and_b32 s46, s46, {opts.get('rotng', 2) - 1}
    s_mul_i32 s90, s46, {opts.get('rotr', 3)}'''
    else:
        ROT = f'''s_mul_i32 s46, s46, {opts.get('rota', 1)}
    s_mul_i32 s47, s47, {opts.get('rotb', 3)}
    s_add_u32 s90, s46, s47
    s_mul_hi_u32 s46, s90, 0x1999999a
    s_mul_i32 s46, s46, 10
    s_sub_u32 s90, s90, s46'''
    A(f'''K1_loader:
    s_sub_u32 s41, s30, 4
    v_lshrrev_b32 v1, 3, v0
    v_and_b32 v2, 7, v0
    v_lshlrev_b32 v21, 4, v2
    v_xor_b32 v2, v2, v1
    v_lshlrev_b32 v2, 4, v2
    s_movk_i32 s43, 1280
    v_mul_lo_u32 v1, v1, s43
    v_add_u32 v2, v2, v1
    v_add_u32 v21, v21, v1
    v_lshrrev_b32 v4, 5, v0
    s_and_b32 s44, s41, 1
    s_lshr_b32 s45, s41, 1
    s_lshl_b32 s46, s44, 1
    s_lshl_b32 s47, s45, 2
    s_or_b32 s46, s46, s47
    v_or_b32 v5, s46, v4
    v_bfe_u32 v6, v0, 1, 4
    v_xor_b32 v6, v6, v5
    v_mul_lo_u32 v7, v4, s39
    v_lshl_add_u32 v7, v6, 5, v7
    v_and_b32 v8, 1, v0
    v_lshl_add_u32 v3, v8, 4, v7
    v_mov_b32 v9, 0x80000000
    v_cmp_le_u32 vcc, 14, v6
    v_cndmask_b32 v3, v3, v9, vcc
    s_lshl_b32 s50, s41, 5
    s_add_u32 s50, s50, s40
    s_mul_i32 s50, s50, 1280
    s_add_u32 s52, s44, s47
    s_lshl_b32 s53, s52, 1
    s_mul_i32 s51, s53, s39
    s_add_u32 s51, s51, s38
    s_lshl_b32 s54, s39, 2
    s_mul_i32 s55, s39, 12
    s_lshl_b32 s56, s39, 6
    s_lshl_b32 s57, s41, 12
    s_lshl_b32 s58, s52, 10
    s_add_u32 s58, s58, 16384
    s_mov_b32 s59, 0
    s_and_b32 s46, s32, 7
    s_lshr_b32 s47, s32, 3
    {ROT}
    s_lshl_b32 s46, s90, 7
    s_add_u32 s50, s50, s46
    s_mul_i32 s46, s90, s56
    s_add_u32 s51, s51, s46
    s_mul_i32 s91, s56, 10
    ''')
    def issue():
        A('    s_add_u32 s60, s59, s57\n    s_add_u32 s61, s59, s58')
        for jj in range(4):
            A(f'''
    s_add_u32 m0, s60, {jj*1024}
    s_add_u32 s62, s50, {jj*10240}
    buffer_load_dwordx4 v2, s[8:11], s62 offen lds''')
        A('    s_mov_b32 s62, s51')
        i = 0
        for b in range(4):
            for aa in range(2):
                A(f'    s_add_u32 m0, s61, {(2*aa+8*b)*1024}')
                if i > 0: A(f'    s_add_u32 s62, s62, {"s54" if aa == 1 else "s55"}')
                else: A('    s_nop 0')
                A('    buffer_load_dwordx4 v3, s[12:15], s62 offen lds')
                i += 1
        A(f'''
    s_add_u32 s50, s50, 128
    s_add_u32 s51, s51, s56
    s_add_u32 s90, s90, 1
    s_cmp_eq_u32 s90, 10
    s_cselect_b32 s46, 1280, 0
    s_cselect_b32 s47, s91, 0
    s_cselect_b32 s90, 0, s90
    s_sub_u32 s50, s50, s46
    s_sub_u32 s51, s51, s47
    s_add_u32 s59, s59, 49152
    s_cmp_eq_u32 s59, 147456
    s_cselect_b32 s59, 0, s59''')
    k1_srds(A, 'l')
    stamp(A, opts, 2)
    issue(); issue()
    stamp(A, opts, 3)
    A('    s_waitcnt vmcnt(12)\n    s_barrier')
    stamp(A, opts, 4)
    issue()
    A(f'''
    s_lshl_b32 s63, s2, 2
    s_add_u32 s63, s63, s41
    s_mul_hi_u32 s46, s63, 0x1999999a
    s_mul_i32 s47, s46, 10
    s_sub_u32 s47, s63, s47
    s_cmp_lt_u32 s46, 48
    s_cbranch_scc0 K1_pk_wo
    s_mov_b32 s20, s26
    s_mov_b32 s21, s27
    s_mov_b32 s22, 1966080
    s_mul_i32 s34, s46, 40960
    s_add_u32 s35, s34, {WS_W2F}
    s_lshl_b32 s46, s47, 7
    s_add_u32 s34, s34, s46
    v_mov_b32 v50, v21
    v_add_u32 v51, 10240, v21
    v_add_u32 v52, 20480, v21
    v_add_u32 v53, 30720, v21
    s_branch K1_pk_go
K1_pk_wo:
    s_mov_b32 s20, s66
    s_mov_b32 s21, s67
    s_mov_b32 s22, 819200
    s_sub_u32 s46, s46, 48
    s_mul_i32 s35, s46, 40960
    s_add_u32 s35, s35, {WS_WOF}
    s_lshl_b32 s34, s47, 7
    s_lshl_b32 s46, s46, 5
    v_lshrrev_b32 v54, 3, v0
    v_add_u32 v54, s46, v54
    s_mov_b32 s46, 0xaaaaaab
    v_and_b32 v55, 7, v0
    v_lshlrev_b32 v55, 4, v55
    v_mov_b32 v58, 0x80000000''')
    for jj in range(4):
        A(f'''
    v_mul_hi_u32 v56, v54, s46
    v_mul_u32_u24 v57, 24, v56
    v_sub_u32 v57, v54, v57
    v_mul_u32_u24 v56, 20, v56
    v_add_u32 v56, v56, v57
    v_mul_u32_u24 v56, 1280, v56
    v_add_u32 v56, v56, v55
    v_cmp_gt_u32 vcc, 20, v57
    v_cndmask_b32 v{50+jj}, v58, v56, vcc
    v_add_u32 v54, 8, v54''')
    A(f'''
K1_pk_go:
    s_mov_b32 s23, 0x00020000
    s_lshl_b32 s46, s47, 12
    s_add_u32 s35, s35, s46
    s_cmp_ge_u32 s63, 720
    s_cselect_b32 s35, 0x7f000000, s35
    s_cselect_b32 s34, 0x7f000000, s34
    s_add_u32 s46, s57, {PK}''')
    for jj in range(4):
        A(f'''
    s_add_u32 m0, s46, {jj*1024}
    s_nop 0
    buffer_load_dwordx4 v{50+jj}, s[20:23], s34 offen lds''')
    A('    s_waitcnt vmcnt(16)\n    s_barrier')
    issue()
    A('    s_waitcnt vmcnt(16)\n    s_barrier')
    issue()
    A('    s_waitcnt vmcnt(12)\n    s_barrier')
    stamp(A, opts, 5)
    A(f'''
    v_lshrrev_b32 v10, 4, v0
    v_bfe_u32 v11, v0, 2, 2
    v_lshl_add_u32 v10, v10, 3, v11
    v_lshlrev_b32 v10, 7, v10
    v_and_b32 v11, 3, v0
    v_lshl_add_u32 v10, v11, 3, v10
    s_add_u32 s46, s57, {PK}
    v_add_u32 v10, s46, v10
    v_lshlrev_b32 v11, 4, v0''')
    for u in range(4):
        for t in range(2):
            A(f'    ds_read_b64_tr_b16 {vr(24+4*u+2*t,2)}, v10 offset:{t*512 + u*32}')
    issue()
    A('    s_waitcnt lgkmcnt(0)')
    for u in range(4):
        A(f'    buffer_store_dwordx4 {vr(24+4*u,4)}, v11, s[16:19], s35 offen offset:{u*1024} sc1')
    A('    s_waitcnt vmcnt(16)\n    s_barrier')
    issue()
    A('    s_waitcnt vmcnt(16)\n    s_barrier')
    mp = opts.get('midpf', 0)
    if mp:
        A(f'''
    s_lshl_b32 s46, s32, 2
    s_add_u32 s46, s46, s41
    s_mul_i32 s46, s46, 192
    v_add_u32 v59, s46, v0
    v_lshlrev_b32 v60, 7, v59
    v_add_u32 v60, {WS_W2F}, v60
    v_mov_b32 v58, 0x80000000''')
        for n in range(3):
            A(f'''
    v_add_u32 v61, {64*n}, v59
    v_cmp_gt_u32 vcc, 23040, v61
    v_cndmask_b32 v{62+n}, v58, v60, vcc
    v_add_u32 v60, 8192, v60''')
    def tch(n):
        if mp: A(f'    buffer_load_dword v{66+n}, v{62+n}, s[16:19], 0 offen')
    if opts.get('midpf_early'): tch(0)
    issue()
    if not opts.get('midpf_early'): tch(0)
    A(f'    s_waitcnt vmcnt({12 + mp})\n    s_barrier')
    issue()
    tch(1)
    A(f'    s_waitcnt vmcnt({12 + 2*mp})\n    s_barrier')
    issue()
    tch(2)
    A(f'''
    s_lshr_b32 s34, s31, 1
    s_lshl_b32 s34, s34, 2
    s_lshr_b32 s35, s32, 3
    s_add_u32 s34, s34, s35
    s_lshl_b32 s44, s34, 3
    s_add_u32 s44, s44, s40
    s_lshl_b32 s45, s41, 1
    s_add_u32 s44, s44, s45
    s_mul_i32 s45, s44, 1280
    s_mov_b32 s20, s68
    s_mov_b32 s21, s69
    s_mov_b32 s22, 1280
    s_mov_b32 s23, 0x00020000
    v_lshlrev_b32 v10, 2, v0''')
    for j in range(5):
        A(f'    buffer_load_dword v{16+j}, v10, s[20:23], 0 offen offset:{256*j}')
    for rr in range(2):
        for j in range(5):
            A(f'    buffer_load_dword v{24+8*rr+j}, v10, s[8:11], s45 offen offset:{256*j + 1280*rr}')
    A(f'''
    v_mov_b32 v15, 0x80000000
    s_lshl_b32 s46, s2, 2
    s_add_u32 s46, s46, s41
    s_lshl_b32 s46, s46, 2
    v_lshrrev_b32 v11, 4, v0
    v_add_u32 v11, s46, v11
    v_mul_u32_u24 v11, 768, v11
    v_and_b32 v12, 15, v0
    v_lshl_add_u32 v11, v12, 3, v11
    v_add_u32 v11, {WS_QK + 32*98304 + 640}, v11
    v_mov_b32 v12, 0
    v_mov_b32 v13, 0
    buffer_store_dwordx2 v[12:13], v11, s[16:19], 0 offen{SF}
    s_add_u32 s46, s2, s41
    s_cmp_eq_u32 s46, 0
    s_cselect_b32 s46, 8, 0
    v_lshlrev_b32 v11, 4, v0
    v_add_u32 v11, {WS_ONES}, v11
    v_cmp_gt_u32 vcc, s46, v0
    v_cndmask_b32 v11, v15, v11, vcc
    v_mov_b32 v44, 0x3f803f80
    v_mov_b32 v45, 0x3f803f80
    v_mov_b32 v46, 0x3f803f80
    v_mov_b32 v47, 0x3f803f80
    buffer_store_dwordx4 v[44:47], v11, s[16:19], 0 offen{SF}
    s_cmp_eq_u32 s41, 0
    s_cselect_b32 s46, 4, 0
    s_lshl_b32 s47, s2, 4
    s_add_u32 s47, s47, {WS_FLAG2}
    v_lshl_add_u32 v11, v0, 2, s47
    v_cmp_gt_u32 vcc, s46, v0
    v_cndmask_b32 v11, v15, v11, vcc
    buffer_store_dword v12, v11, s[16:19], 0 offen{SF}
    s_waitcnt vmcnt({30 + 2*opts.get('midpf', 0)})
    s_barrier
    s_waitcnt vmcnt({18 + opts.get('midpf', 0)})
    s_barrier
    s_barrier
    s_waitcnt vmcnt(3)''')
    for rr in range(2):
        acc_ = 40 + rr
        A(f'    v_mov_b32 v{acc_}, 0')
        for j in range(5):
            A(f'    v_dot2c_f32_bf16 v{acc_}, v{16+j}, v{24+8*rr+j}')
    for rr in range(2):
        r = 40 + rr
        A(f'''
    v_add_f32_dpp v{r}, v{r}, v{r} quad_perm:[1,0,3,2] row_mask:0xf bank_mask:0xf
    v_add_f32_dpp v{r}, v{r}, v{r} quad_perm:[2,3,0,1] row_mask:0xf bank_mask:0xf
    v_add_f32_dpp v{r}, v{r}, v{r} row_half_mirror row_mask:0xf bank_mask:0xf
    v_add_f32_dpp v{r}, v{r}, v{r} row_mirror row_mask:0xf bank_mask:0xf
    v_mov_b32 v43, v{r}
    v_permlane16_swap_b32 v43, v{r}
    v_add_f32 v{r}, v{r}, v43
    v_mov_b32 v43, v{r}
    v_permlane32_swap_b32 v43, v{r}
    v_add_f32 v{r}, v{r}, v43''')
    A(f'''
    v_cmp_eq_u32 vcc, 1, v0
    v_cndmask_b32 v40, v40, v41, vcc
    v_mul_f32 v40, 0xbfb8aa3b, v40
    v_exp_f32 v40, v40
    v_add_f32 v40, 1.0, v40
    v_rcp_f32 v40, v40
    s_lshl_b32 s46, s44, 2
    s_add_u32 s46, s46, {WS_G}
    v_lshl_add_u32 v14, v0, 2, s46
    v_cmp_gt_u32 vcc, 2, v0
    v_cndmask_b32 v14, v15, v14, vcc
    buffer_store_dword v40, v14, s[16:19], 0 offen{SF}''')
    npf = opts.get('w2pf', 0)
    if npf:
        A(f'''
    s_lshl_b32 s46, s32, 2
    s_add_u32 s46, s46, s41
    s_mul_i32 s46, s46, 192
    v_add_u32 v59, s46, v0
    v_lshlrev_b32 v60, 7, v59
    v_add_u32 v60, {WS_W2F}, v60''')
        for n in range(npf):
            A(f'''
    v_add_u32 v61, {64*n}, v59
    v_cmp_gt_u32 vcc, 23040, v61
    v_cndmask_b32 v{62+n}, v15, v60, vcc
    buffer_load_dword v{66+n}, v{62+n}, s[16:19], 0 offen
    v_add_u32 v60, 8192, v60''')
    stamp(A, opts, 1)

def gen_attn(A, opts):
    NAW = 4
    SA = 16; KB = 48; VB = 64; Q = 80; O = 96; G = 112
    VK = 116; VK2 = 117; VV0 = 118; VV1 = 119; VO1 = 120; VO2 = 121
    NQT = 4; KPW = 6
    A(f'''
    {'s_setprio 2' if opts.get('prio', 0) else ''}
    s_lshr_b32 s59, s32, 2              ; qb
    s_lshl_b32 s33, s59, 8              ; Q0
    s_and_b32 s34, s32, 3
    s_lshl_b32 s35, s31, 2
    s_add_u32 s34, s34, s35             ; head
    s_add_u32 s35, s34, 32
    s_mul_i32 s35, s35, 98304
    s_mul_i32 s40, s33, 48
    s_add_u32 s35, s35, s40
    s_sub_u32 s35, s35, {256*48 - WS_QK}
    v_lshlrev_b32 v3, 4, v0
    s_mul_i32 s37, s30, {KPW*1024}
    s_add_u32 s35, s35, s37
    s_cmp_eq_u32 s59, 0
    s_cselect_b32 s38, 1, 0
    s_cmp_lt_u32 s30, {NAW//2}
    s_cselect_b32 s39, s38, 0
    s_waitcnt lgkmcnt(0)
    s_mov_b32 s16, s28
    s_mov_b32 s17, s29
    s_mov_b32 s18, {WS_END}
    s_mov_b32 s19, 0x00020000
    s_mov_b32 s92, s28
    s_mov_b32 s93, s29
    s_mov_b32 s94, {WS_PROF_END}
    s_mov_b32 s95, 0x00020000
    s_cmp_eq_u32 s39, 1
    s_cbranch_scc1 K2_kfill''')
    for j in range(KPW):
        A(f'''
    s_add_u32 m0, s37, {KL + j*1024}
    s_add_u32 s40, s35, {j*1024}
    buffer_load_dwordx4 v3, s[16:19], s40 offen lds''')
    A(f'''
    s_branch K2_kdone
K2_kfill:
    v_mov_b32 v5, 0
    v_mov_b32 v7, 0
    s_mul_i32 s40, s30, {KPW*64}
    v_add_u32 v8, s40, v0
    s_mov_b32 s41, 0x5555556''')
    for j in range(KPW):
        A(f'''
    v_mul_hi_u32 v9, v8, s41
    v_mul_u32_u24 v9, 48, v9
    v_sub_u32 v9, v8, v9
    v_cmp_le_u32 vcc, 40, v9
    v_mov_b32 v6, 0x3f80
    v_cndmask_b32 v6, 0, v6, vcc
    v_mov_b32 v4, v6
    v_lshlrev_b32 v9, 4, v8
    ds_write_b128 v9, v[4:7] offset:{KL}
    v_add_u32 v8, 64, v8''')
    A(f'''
K2_kdone:
    s_mul_i32 s36, s30, {NQT*16}
    s_add_u32 s36, s36, s33
    s_mul_i32 s35, s34, 98304
    s_mul_i32 s40, s36, 48
    s_add_u32 s35, s35, s40
    v_lshlrev_b32 v4, 3, v0
    v_lshlrev_b32 v5, 3, v1''')
    for t in range(NQT):
        A(f'    buffer_load_dwordx2 {vr(Q+4*t,2)}, v4, s[16:19], s35 offen offset:{WS_QK + t*768}')
        A(f'    buffer_load_dwordx2 {vr(Q+4*t+2,2)}, v5, s[16:19], s35 offen offset:{WS_QK + t*768 + 512}')
    A(f'''
    s_lshl_b32 s40, s36, 2
    s_add_u32 s40, s40, {WS_G}
    v_lshlrev_b32 v5, 2, v1''')
    for t in range(NQT):
        A(f'    buffer_load_dword v{G+t}, v5, s[16:19], s40 offen offset:{t*64}')
    A(f'''
    ; V gather: q = 64*(w+4j) + lane ; bg = q/21, d = q%21 ; blk = Q0/32 - 8 + bg/4 ; g = bg&3 ; n = 20*head + d
    s_lshl_b32 s40, s30, 6
    v_add_u32 v3, s40, v0
    s_mov_b32 s41, 0xc30c30d
    s_mul_i32 s43, s34, 20
    s_lshr_b32 s35, s33, 5
    s_sub_u32 s35, s35, 8
    v_mov_b32 v9, {WS_ONES}
    s_lshl_b32 s37, s30, 10''')
    for j in range(6):
        if j == 5: A('    s_cmp_eq_u32 s30, 0\n    s_cbranch_scc0 K2_vdone')
        A(f'''
    v_mul_hi_u32 v4, v3, s41
    v_mul_u32_u24 v5, 21, v4
    v_sub_u32 v5, v3, v5
    v_lshrrev_b32 v6, 2, v4
    v_add_u32 v6, s35, v6
    v_and_b32 v4, 3, v4
    v_add_u32 v7, s43, v5
    v_lshrrev_b32 v8, 4, v7
    v_lshl_add_u32 v6, v8, 6, v6
    v_lshl_add_u32 v6, v6, 2, v4
    v_and_b32 v7, 15, v7
    v_lshlrev_b32 v7, 4, v7
    v_lshl_add_u32 v6, v6, 8, v7
    v_add_u32 v6, {WS_VT}, v6
    v_cmp_eq_u32 vcc, 20, v5
    v_cndmask_b32 v6, v6, v9, vcc
    s_add_u32 m0, s37, {VL + j*4096}
    v_add_u32 v3, 256, v3
    buffer_load_dwordx4 v6, s[16:19], 0 offen lds''')
    A(f'''K2_vdone:
    s_barrier
    v_mov_b32 v3, {C1}
    v_mov_b32 v4, 1
    s_mov_b64 exec, 1
    ds_add_u32 v3, v4
    s_mov_b64 exec, -1
    s_mul_i32 s40, s30, {NQT*768}
    v_lshlrev_b32 v{VK}, 3, v0
    v_add_u32 v{VK}, s40, v{VK}
    v_add_u32 v{VK2}, 768, v{VK}
    s_mul_i32 s40, s30, {NQT*672}
    s_add_u32 s40, s40, {VL}
    v_mul_u32_u24 v6, 336, v2
    v_add_u32 v6, s40, v6
    v_lshl_add_u32 v{VV0}, v1, 4, v6
    v_add_u32 v7, 16, v1
    v_min_u32 v7, 20, v7
    v_lshl_add_u32 v{VV1}, v7, 4, v6
    s_mul_i32 s41, s34, 3
    v_lshrrev_b32 v6, 1, v2
    v_add_u32 v6, s41, v6
    v_lshrrev_b32 v7, 2, v6
    v_lshlrev_b32 v7, 12, v7
    v_and_b32 v8, 3, v6
    v_lshl_add_u32 v7, v8, 8, v7
    v_and_b32 v8, 1, v2
    v_lshl_add_u32 v7, v8, 10, v7
    v_lshl_add_u32 v{VO1}, v1, 4, v7
    s_add_u32 s41, s41, 2
    s_lshr_b32 s42, s41, 2
    s_lshl_b32 s42, s42, 12
    s_and_b32 s43, s41, 3
    s_lshl_b32 s43, s43, 8
    s_add_u32 s42, s42, s43
    v_lshl_add_u32 v7, v2, 10, s42
    v_lshl_add_u32 v{VO2}, v1, 4, v7
    v_mov_b32 v13, 0x80000000
    v_cmp_gt_u32 vcc, 2, v2
    v_cndmask_b32 v{VO2}, v13, v{VO2}, vcc
    s_lshr_b32 s42, s36, 6
    s_mul_i32 s42, s42, {24*4096}
    s_add_u32 s42, s42, {WS_OP}
    v_lshlrev_b32 v8, 2, v2
    v_sub_u32 v8, v1, v8''')
    for r in range(4):
        A(f'    v_cmp_gt_i32 s[{44+2*r}:{45+2*r}], {r}, v8')
    A(f'''
    v_mov_b32 v14, 0xff800000
    v_cmp_eq_u32 s[54:55], 1, v2
    v_cmp_lt_u32 s[52:53], 0, v2
    s_cmp_eq_u32 s30, 0
    s_cbranch_scc0 K2_nopad
    v_mov_b32 v8, 0
    v_lshlrev_b32 v9, 2, v0
    ds_write_b32 v9, v8 offset:24576
K2_nopad:''')
    stamp(A, opts, 3)
    A(f'''
    v_mov_b32 v9, 0xf149
    v_mov_b32 v3, {CK}
    v_mov_b32 v4, 1
    s_waitcnt vmcnt(0) lgkmcnt(0)
    s_mov_b64 exec, 1
    ds_add_u32 v3, v4
    s_mov_b64 exec, -1''')
    for t in range(NQT):
        q = Q + 4 * t
        A(f'''
    v_cndmask_b32 v{q+2}, v{q+2}, 0, s[52:53]
    v_cndmask_b32 v{q+3}, v{q+3}, 0, s[52:53]
    v_cndmask_b32 v{q+2}, v{q+2}, v9, s[54:55]''')
    A(f'''
K2_kwait:
    ds_read_b32 v4, v3
    s_waitcnt lgkmcnt(0)
    v_readfirstlane_b32 s58, v4
    s_cmp_lt_u32 s58, {NAW}
    s_cbranch_scc1 K2_kwait''')
    stamp(A, opts, 4)
    def sa(st, q, t): return SA + 16 * st + 8 * q + 4 * t
    def kb(st, t): return KB + 8 * st + 4 * t
    def vb(st, d): return VB + 8 * st + 4 * d
    def loads(st):
        return [f'    ds_read2st64_b64 {vr(kb(st,0),4)}, v{VK} offset0:0 offset1:1',
                f'    ds_read2st64_b64 {vr(kb(st,1),4)}, v{VK2} offset0:0 offset1:1',
                f'    ds_read_b128 {vr(vb(st,0),4)}, v{VV0}',
                f'    ds_read_b128 {vr(vb(st,1),4)}, v{VV1}']
    def adv(n=1):
        return [f'    v_add_u32 v{VK}, {1536*n & 0xffffffff}, v{VK}', f'    v_add_u32 v{VK2}, {1536*n & 0xffffffff}, v{VK2}',
                f'    v_add_u32 v{VV0}, {1344*n & 0xffffffff}, v{VV0}', f'    v_add_u32 v{VV1}, {1344*n & 0xffffffff}, v{VV1}']
    def skip(q, T): return (q == 0 and T == 17) or (q == 1 and T == 0)
    def smfma(st, bb):
        return [f'    v_mfma_f32_16x16x32_bf16 {vr(sa(st,q,t),4)}, {vr(kb(st,t),4)}, {vr(Q+4*q,4)}, 0'
                for q in range(2) for t in range(2) if not skip(q, 2 * bb + t)]
    def masks(q, T, v):
        L = []
        if (q == 0 and T == 0) or (q == 1 and T == 1):
            L += [f'    v_cndmask_b32 v{v+r}, v14, v{v+r}, s[{44+2*r}:{45+2*r}]' for r in range(4)]
        if (q == 0 and T == 16) or (q == 1 and T == 17):
            L += [f'    v_cndmask_b32 v{v+r}, v{v+r}, v14, s[{44+2*r}:{45+2*r}]' for r in range(4)]
        return L
    def packpv(st, bb, q):
        L = []
        p = sa(st, q, 0)
        for t in range(2):
            v = sa(st, q, t)
            if skip(q, 2 * bb + t):
                L += [f'    v_mov_b32 v{p+2*t}, 0', f'    v_mov_b32 v{p+2*t+1}, 0']
            else:
                L += [f'    v_cvt_pk_bf16_f32 v{p+2*t}, v{v}, v{v+1}', f'    v_cvt_pk_bf16_f32 v{p+2*t+1}, v{v+2}, v{v+3}']
        M = []
        for d in range(2):
            o = O + 8 * q + 4 * d
            M.append(f'    v_mfma_f32_16x16x32_bf16 {vr(o,4)}, {vr(vb(st,d),4)}, {vr(p,4)}, {vr(o,4)}')
        return L, M
    def body(st, bb, has_next):
        nx = st ^ 1
        if has_next:
            for l in adv(): A(l)
            for l in loads(nx): A(l)
        def valu(q):
            L = []
            for t in range(2):
                T = 2 * bb + t; v = sa(st, q, t)
                if skip(q, T): continue
                L += masks(q, T, v)
                L += [f'    v_exp_f32 v{v+r}, v{v+r}' for r in range(4)]
            return L
        for l in valu(0): A(l)
        P0, M0 = packpv(st, bb, 0)
        for l in P0: A(l)
        v1 = valu(1)
        ms = list(M0)
        if has_next:
            ms = ms + ['    s_waitcnt lgkmcnt(0)'] + smfma(nx, bb + 1)
        i = 0
        for l in v1:
            A(l)
            if i < len(ms):
                A(ms[i]); i += 1
                if i < len(ms) and ms[i - 1].strip().startswith('s_waitcnt'):
                    A(ms[i]); i += 1
        while i < len(ms):
            A(ms[i]); i += 1
        P1, M1 = packpv(st, bb, 1)
        for l in P1: A(l)
        for l in M1: A(l)
    A('    s_mov_b32 s60, 0')
    A('K2_pair:')
    for r in range(16): A(f'    v_mov_b32 v{O+r}, 0')
    for l in loads(0): A(l)
    A('    s_waitcnt lgkmcnt(0)')
    for l in smfma(0, 0): A(l)
    body(0, 0, True)
    A('    s_mov_b32 s58, 0')
    A('K2_floop:')
    body(1, 1, True)
    body(0, 2, True)
    A('''
    s_add_u32 s58, s58, 1
    s_cmp_lt_u32 s58, 3
    s_cbranch_scc1 K2_floop''')
    body(1, 7, True)
    body(0, 8, False)
    def lbcast():
        A(f'''
    v_mov_b32 v3, v{O+4}
    v_mov_b32 v4, v{O+4}
    v_permlane16_swap_b32 v4, v3
    v_mov_b32 v4, v3
    v_permlane32_swap_b32 v4, v3
    v_mov_b32 v5, v{O+12}
    v_mov_b32 v6, v{O+12}
    v_permlane16_swap_b32 v6, v5
    v_mov_b32 v6, v5
    v_permlane32_swap_b32 v6, v5''')
    lbcast()
    A(f'''
    v_min_f32 v7, v4, v6
    v_max_f32 v8, v4, v6
    s_mov_b32 s61, 0x17800000          ; 2^-80
    s_mov_b32 s62, 0x5d800000          ; 2^60
    v_cmp_nle_f32 vcc, s61, v7
    s_mov_b64 s[56:57], vcc
    v_cmp_nge_f32 vcc, s62, v8
    s_or_b64 s[56:57], s[56:57], vcc
    s_cmp_lg_u64 s[56:57], 0
    s_cbranch_scc1 K2_fallback
K2_fin:
    v_rcp_f32 v4, v4
    v_rcp_f32 v6, v6
    v_mul_f32 v4, v4, v{G}
    v_mul_f32 v6, v6, v{G+1}''')
    for q in range(2):
        o = O + 8 * q; sc = 4 if q == 0 else 6
        for r in range(8): A(f'    v_mul_f32 v{o+r}, v{o+r}, v{sc}')
    oa = O; ob = O + 8
    A(f'''
    v_cvt_pk_bf16_f32 v16, v{oa}, v{oa+1}
    v_cvt_pk_bf16_f32 v17, v{oa+2}, v{oa+3}
    v_cvt_pk_bf16_f32 v18, v{ob}, v{ob+1}
    v_cvt_pk_bf16_f32 v19, v{ob+2}, v{ob+3}
    v_cvt_pk_bf16_f32 v20, v{oa+4}, v{oa+5}
    v_cvt_pk_bf16_f32 v21, v{oa+6}, v{oa+7}
    v_cvt_pk_bf16_f32 v24, v{ob+4}, v{ob+5}
    v_cvt_pk_bf16_f32 v25, v{ob+6}, v{ob+7}
    v_mov_b32 v22, 0
    v_mov_b32 v23, 0
    v_permlane16_swap_b32 v16, v18
    v_permlane16_swap_b32 v17, v19
    v_permlane16_swap_b32 v20, v24
    v_permlane16_swap_b32 v21, v25
    buffer_store_dwordx4 v[16:19], v{VO1}, s[16:19], s42 offen sc1
    buffer_store_dwordx4 v[20:23], v{VO2}, s[16:19], s42 offen sc1
    s_add_u32 s42, s42, 2048
    s_add_u32 s60, s60, 1
    s_cmp_ge_u32 s60, 2
    s_cbranch_scc1 K2_attn_end''')
    for l in adv(-7): A(l)
    for r in range(8): A(f'    v_mov_b32 v{Q+r}, v{Q+8+r}')
    A(f'''
    v_mov_b32 v{G}, v{G+2}
    v_mov_b32 v{G+1}, v{G+3}
    s_branch K2_pair
K2_attn_end:''')
    stamp(A, opts, 5)
    A(f'''
    s_lshr_b32 s58, s36, 6
    s_lshl_b32 s58, s58, 5
    s_add_u32 s58, s58, s34
    s_lshl_b32 s58, s58, 2
    s_add_u32 s58, s58, {WS_FLAG2}
    v_mov_b32 v3, s58
    v_mov_b32 v4, 1
    s_waitcnt vmcnt(0)
    s_mov_b64 exec, 1
    buffer_store_dword v4, v3, s[16:19], 0 offen sc1
    s_mov_b64 exec, -1''')
    if opts.get('wo_attn', 0): gen_wo(A, opts)
    else:
        if opts.get('prof'):
            A('    s_waitcnt vmcnt(0)')
            stamp(A, opts, 7)
            stamp_flush(A, opts)
        A('    s_branch KF_done')
    def _fallback():
        A('K2_fallback:')
        for l in adv(-8): A(l)
        A('    v_mov_b32 v10, 0xff7fffff\n    v_mov_b32 v11, 0xff7fffff')
        for r in range(16): A(f'    v_mov_b32 v{O+r}, 0')
        for bb in range(9):
            for l in loads(0): A(l)
            if bb < 8:
                for l in adv(): A(l)
            A('    s_waitcnt lgkmcnt(0)')
            for l in smfma(0, bb): A(l)
            A('    s_nop 7')
            for q in range(2):
                vals = []
                for t in range(2):
                    T = 2 * bb + t; v = sa(0, q, t)
                    if skip(q, T): continue
                    for l in masks(q, T, v): A(l)
                    vals += [v + r for r in range(4)]
                m = 10 + q
                A(f'    v_mov_b32 v5, v{m}')
                for v in vals: A(f'    v_max_f32 v5, v5, v{v}')
                A(f'''
        v_mov_b32 v6, v5
        v_permlane16_swap_b32 v6, v5
        v_max_f32 v5, v5, v6
        v_mov_b32 v6, v5
        v_permlane32_swap_b32 v6, v5
        v_max_f32 v5, v5, v6
        v_sub_f32 v6, v{m}, v5
        v_exp_f32 v6, v6
        v_mov_b32 v{m}, v5''')
                o = O + 8 * q
                for r in range(8): A(f'    v_mul_f32 v{o+r}, v{o+r}, v6')
                for v in vals:
                    A(f'    v_sub_f32 v{v}, v{v}, v5')
                    A(f'    v_exp_f32 v{v}, v{v}')
                P, M = packpv(0, bb, q)
                for l in P + M: A(l)
                A('    s_nop 7')
        A('    s_nop 7')
        lbcast()
        A('    s_branch K2_fin')
    return _fallback

ACC = 16
RB = 96
VL16 = 240; VL16B = 241; GM = 12
CG = C1 + 12; CF = C1 + 16
def acc(u, mt): return ACC + (u * 4 + mt) * 4
def aslot(s, mt): return RB + 36 * s + 4 * mt
def wslot(s, u): return RB + 36 * s + 16 + 4 * u
def loadsA(slot, sc=''):
    L = [f'    buffer_load_dwordx4 {vr(aslot(slot,mt),4)}, v{VL16}, s[16:19], s41 offen offset:{mt*1024}{sc}' for mt in range(4)]
    L[-1] += '\n    s_add_u32 s41, s41, 4096'
    return L
def loadsW(slot):
    L = [f'    buffer_load_dwordx4 {vr(wslot(slot,u),4)}, v{VL16}, s[16:19], s42 offen offset:{u*1024}' for u in range(4)]
    L.append(f'    buffer_load_dwordx4 {vr(wslot(slot,4),4)}, v{VL16B}, s[16:19], s42 offen\n    s_add_u32 s42, s42, 40960')
    return L
def gstep(A, slot, loads, wait, first=False):
    A(f'    s_waitcnt vmcnt({wait})')
    li = 0; k = 0
    for u in range(5):
        for mt in range(4):
            d = vr(acc(u, mt), 4)
            c = '0' if first else d
            A(f'    v_mfma_f32_16x16x32_bf16 {d}, {vr(wslot(slot,u),4)}, {vr(aslot(slot,mt),4)}, {c}')
            k += 1
            if k % 2 == 0 and li < len(loads):
                A(loads[li]); li += 1
    while li < len(loads):
        A(loads[li]); li += 1
def gemm_ids(A, wsub, opts={}):
    if opts.get('gmap', 1) == 0:
        gm = '''s_and_b32 s34, s32, 3
    s_lshl_b32 s35, s31, 2
    s_add_u32 s34, s34, s35
    s_lshr_b32 s35, s32, 2'''
    else:
        gm = '''s_lshr_b32 s34, s31, 1
    s_lshl_b32 s34, s34, 3
    s_and_b32 s35, s32, 7
    s_add_u32 s34, s34, s35
    s_and_b32 s35, s31, 1
    s_lshl_b32 s35, s35, 2
    s_lshr_b32 s46, s32, 3
    s_add_u32 s35, s35, s46'''
    A(f'''
    s_sub_u32 s33, s30, {wsub}
    {gm}
    s_lshl_b32 s36, s34, 6             ; row0
    s_mul_i32 s43, s35, 5
    v_lshlrev_b32 v{VL16}, 4, v0
    v_add_u32 v{VL16B}, 4096, v{VL16}''')

def gen_gemm(A, opts):
    A('    s_barrier')
    gemm_ids(A, 4, opts)
    A(f'''
    s_mul_i32 s41, s34, 48
    s_mul_i32 s42, s33, 12
    s_add_u32 s41, s41, s42
    s_lshl_b32 s41, s41, 12
    s_add_u32 s41, s41, {WS_H}
    s_mul_i32 s42, s42, 40
    s_add_u32 s42, s42, s43
    s_lshl_b32 s42, s42, 10
    s_add_u32 s42, s42, {WS_W2F}
    s_lshl_b32 s40, s36, 2
    s_add_u32 s40, s40, {WS_G}
    v_lshlrev_b32 v3, 2, v1''')
    stamp(A, opts, 3)
    for mt in range(4):
        A(f'    buffer_load_dword v{GM+mt}, v3, s[16:19], s40 offen offset:{64*mt}')
    gd = opts.get('gdelay', 1)
    if gd:
        wait_lds(A, 'K2_gwait', CK if gd == 1 else C1, 4)
    for sl in range(3):
        for l in loadsW(sl) + loadsA(sl): A(l)
    stamp(A, opts, 4)
    gstep(A, 0, loadsA(3) + loadsW(3), 18, first=True)
    for sl in range(1, 4):
        gstep(A, sl, loadsA((sl + 3) % 4) + loadsW((sl + 3) % 4), 18)
    for sl in range(4):
        gstep(A, sl, loadsA((sl + 3) % 4) + loadsW((sl + 3) % 4), 18)
    gstep(A, 0, loadsA(3) + loadsW(3), 18)
    gstep(A, 1, [], 18)
    gstep(A, 2, [], 9)
    gstep(A, 3, [], 0)
    stamp(A, opts, 5)
    for mt in range(4):
        A(f'    v_sub_f32 v{GM+mt}, 1.0, v{GM+mt}')
    A(f'''
    s_mul_i32 s39, s33, 20480
    s_add_u32 s39, s39, {RED0}
    v_add_u32 v4, s39, v{VL16}
    s_nop 4''')
    for u in range(5):
        for mt in range(4):
            for r in range(4):
                a0 = acc(u, mt) + r
                A(f'    v_mul_f32 v{a0}, v{a0}, v{GM+mt}')
            A(f'    ds_write_b128 v4, {vr(acc(u,mt),4)} offset:{(mt*5+u)*1024}')
    A(f'''
    v_mov_b32 v3, {CG}
    v_mov_b32 v4, 1
    s_waitcnt lgkmcnt(0)
    s_mov_b64 exec, 1
    ds_add_u32 v3, v4
    s_mov_b64 exec, -1''')
    wait_lds(A, 'K2_cg', CG, 4, 1)
    A(f'''
    s_mul_i32 s45, s33, 5120
    s_add_u32 s45, s45, {RED0}
    v_add_u32 v4, s45, v{VL16}
    v_add_u32 v8, {2*20480}, v4''')
    T = RB
    for w in range(4):
        for u in range(5):
            A(f'    ds_read_b128 {vr(T+(w*5+u)*4,4)}, v{4 if w < 2 else 8} offset:{(w%2)*20480 + u*1024}')
    A('    s_waitcnt lgkmcnt(0)')
    for u in range(5):
        for r in range(4):
            t0 = T + u * 4 + r
            A(f'''
    v_add_f32 v{t0}, v{t0}, v{t0+20}
    v_add_f32 v{t0+40}, v{t0+40}, v{t0+60}
    v_add_f32 v{t0}, v{t0}, v{t0+40}''')
    A(f'''
    s_mul_i32 s45, s33, 5120
    s_add_u32 s45, s45, s39
    v_add_u32 v4, s45, v{VL16}''')
    for u in range(5):
        A(f'    ds_write_b128 v4, {vr(T+u*4,4)} offset:{u*1024}')
    A(f'''
    v_mov_b32 v3, {CF}
    v_mov_b32 v4, 1
    s_waitcnt lgkmcnt(0)
    s_mov_b64 exec, 1
    ds_add_u32 v3, v4
    s_waitcnt lgkmcnt(0)
    s_mov_b64 exec, -1''')
    if opts.get('prof'):
        stamp(A, opts, 7)
        stamp_flush(A, opts)

def final_reduce(A, opts):
    T = RB
    OSF = {0: '', 1: ' sc1', 2: ' nt'}[opts.get('osf', 0)]
    A(f'''
    s_mul_i32 s39, s33, 20480
    s_add_u32 s39, s39, {RED0}
    v_add_u32 v4, s39, v{VL16}
    s_nop 7''')
    for mt in range(4):
        A(f'    s_cmp_eq_u32 s33, {mt}\n    s_cbranch_scc1 K2_skipw{mt}')
        for u in range(5):
            A(f'    ds_write_b128 v4, {vr(acc(u,mt),4)} offset:{(mt*5+u)*1024}')
        A(f'    s_branch K2_donew{mt}')
        A(f'K2_skipw{mt}:')
        for u in range(5):
            for r in range(4):
                A(f'    v_mov_b32 v{T+60+u*4+r}, v{acc(u,mt)+r}')
        A(f'K2_donew{mt}:')
    A(f'''
    s_lshl_b32 s45, s33, 4
    s_add_u32 s45, s45, s36
    s_mul_i32 s45, s45, 1280
    s_mul_i32 s46, s35, 160
    s_add_u32 s45, s45, s46
    s_movk_i32 s37, 1280
    v_mul_lo_u32 v5, v1, s37
    v_and_b32 v6, 1, v2
    v_lshlrev_b32 v6, 5, v6
    v_lshrrev_b32 v7, 1, v2
    v_lshl_add_u32 v6, v7, 4, v6
    v_add_u32 v6, v6, v5
    v_lshl_add_u32 v7, v2, 3, v5
    s_mul_i32 s46, s33, 5120
    s_add_u32 s46, s46, {RED0}''')
    for k in range(1, 4):
        A(f'''
    s_add_u32 s47, s33, {k}
    s_and_b32 s47, s47, 3
    s_mul_i32 s47, s47, 20480
    s_add_u32 s47, s47, s46
    v_add_u32 v{8+k}, s47, v{VL16}''')
    A('    s_waitcnt lgkmcnt(0)\n    s_barrier')
    for k in range(1, 4):
        for u in range(5):
            A(f'    ds_read_b128 {vr(T+((k-1)*5+u)*4,4)}, v{8+k} offset:{u*1024}')
    for u in range(5):
        A(f'    s_waitcnt lgkmcnt({14 - (10 + u)})' if False else '')
    A('    s_waitcnt lgkmcnt(0)')
    for u in range(5):
        for r in range(4):
            t0 = T + u * 4 + r
            A(f'''
    v_add_f32 v{t0}, v{t0}, v{t0+20}
    v_add_f32 v{t0+40}, v{t0+40}, v{t0+60}
    v_add_f32 v{t0}, v{t0}, v{t0+40}''')
    P = 16
    for pp in range(2):
        t = P + 4 * pp; d0 = T + 8 * pp; d1 = T + 8 * pp + 4
        A(f'''
    v_cvt_pk_bf16_f32 v{t}, v{d0}, v{d0+1}
    v_cvt_pk_bf16_f32 v{t+1}, v{d0+2}, v{d0+3}
    v_cvt_pk_bf16_f32 v{t+2}, v{d1}, v{d1+1}
    v_cvt_pk_bf16_f32 v{t+3}, v{d1+2}, v{d1+3}
    v_permlane16_swap_b32 v{t}, v{t+2}
    v_permlane16_swap_b32 v{t+1}, v{t+3}
    buffer_store_dwordx4 {vr(t,4)}, v6, s[20:23], s45 offen offset:{64*pp}{OSF}''')
    d0 = T + 16
    A(f'''
    v_cvt_pk_bf16_f32 v24, v{d0}, v{d0+1}
    v_cvt_pk_bf16_f32 v25, v{d0+2}, v{d0+3}
    buffer_store_dwordx2 v[24:25], v7, s[20:23], s45 offen offset:128{OSF}''')
    if opts.get('prof'):
        A('    s_waitcnt vmcnt(0)')
        stamp(A, opts, 7)
        stamp_flush(A, opts)

def gen_gemm_full(A, opts):
    gemm_ids(A, 4, opts)
    A(f'''
    s_waitcnt lgkmcnt(0)
    s_mov_b32 s16, s28
    s_mov_b32 s17, s29
    s_mov_b32 s18, {WS_END}
    s_mov_b32 s19, 0x00020000
    s_mov_b32 s92, s28
    s_mov_b32 s93, s29
    s_mov_b32 s94, {WS_PROF_END}
    s_mov_b32 s95, 0x00020000
    s_barrier
    s_mov_b32 s20, s90
    s_mov_b32 s21, s91
    s_mov_b32 s22, 2621440
    s_mov_b32 s23, 0x00020000
    s_mul_i32 s41, s34, 48
    s_mul_i32 s42, s33, 12
    s_add_u32 s41, s41, s42
    s_lshl_b32 s41, s41, 12
    s_add_u32 s41, s41, {WS_H}
    s_mul_i32 s42, s42, 40
    s_add_u32 s42, s42, s43
    s_lshl_b32 s42, s42, 10
    s_add_u32 s42, s42, {WS_W2F}
    s_lshl_b32 s40, s36, 2
    s_add_u32 s40, s40, {WS_G}
    v_lshlrev_b32 v3, 2, v1''')
    rot = opts.get('rot2', 0)
    if rot:
        A(f'''
    s_and_b32 s46, s34, 3
    s_mul_i32 s46, s46, 3
    s_mul_hi_u32 s47, s35, 0x55555556
    s_mul_i32 s47, s47, 3
    s_sub_u32 s47, s35, s47
    s_add_u32 s48, s46, s47
    s_lshl_b32 s46, s48, 12
    s_add_u32 s41, s41, s46
    s_mul_i32 s46, s48, 40960
    s_add_u32 s42, s42, s46''')
    WRAP = f'''
    s_add_u32 s48, s48, 1
    s_cmp_eq_u32 s48, 12
    s_cselect_b32 s46, {12*4096}, 0
    s_cselect_b32 s47, {12*40960}, 0
    s_cselect_b32 s48, 0, s48
    s_sub_u32 s41, s41, s46
    s_sub_u32 s42, s42, s47''' if rot else ''
    def stage_loads(sl, wfirst=False):
        L = (loadsW(sl) + loadsA(sl)) if wfirst else (loadsA(sl) + loadsW(sl))
        L[-1] += WRAP
        return L
    stamp(A, opts, 3)
    for mt in range(4):
        A(f'    buffer_load_dword v{GM+mt}, v3, s[16:19], s40 offen offset:{64*mt}')
    gd = opts.get('gdelay', 1)
    if gd:
        wait_lds(A, 'K2_gwait', CK if gd == 1 else C1, 4)
    for sl in range(3):
        for l in stage_loads(sl, True): A(l)
    stamp(A, opts, 4)
    gstep(A, 0, stage_loads(3), 18, first=True)
    for sl in range(1, 4):
        gstep(A, sl, stage_loads((sl + 3) % 4), 18)
    for sl in range(4):
        gstep(A, sl, stage_loads((sl + 3) % 4), 18)
    gstep(A, 0, stage_loads(3), 18)
    A(f'''
    s_mul_i32 s42, s33, 240
    s_add_u32 s42, s42, s43
    s_lshl_b32 s42, s42, 10
    s_add_u32 s42, s42, {WS_WOF}''')
    gstep(A, 1, loadsW(0), 18)
    gstep(A, 2, loadsW(1), 9 + 5)
    gstep(A, 3, loadsW(2), 5 + 5)
    stamp(A, opts, 5)
    for l in loadsW(3): A(l)
    for mt in range(4):
        A(f'    v_sub_f32 v{GM+mt}, 1.0, v{GM+mt}')
    A(f'''
    s_lshl_b32 s45, s34, 5
    s_lshl_b32 s46, s33, 3
    s_add_u32 s45, s45, s46
    s_lshl_b32 s45, s45, 2
    s_add_u32 s45, s45, {WS_FLAG2}
    s_mul_i32 s41, s34, 24
    s_mul_i32 s44, s33, 6
    s_add_u32 s41, s41, s44
    s_lshl_b32 s41, s41, 12
    s_add_u32 s41, s41, {WS_OP}
    s_nop 2''')
    for u in range(5):
        for mt in range(4):
            for r in range(4):
                a0 = acc(u, mt) + r
                A(f'    v_mul_f32 v{a0}, v{a0}, v{GM+mt}')
    poll_all(A, 'K2_s2', 's45', 2, opts.get('psleep2', 1))
    stamp(A, opts, 6)
    for sl in range(4):
        for l in loadsA(sl, ' sc1'): A(l)
    gstep(A, 0, [], 12)
    gstep(A, 1, loadsA(0, ' sc1') + loadsW(0), 8)
    gstep(A, 2, loadsA(1, ' sc1') + loadsW(1), 4 + 9)
    gstep(A, 3, [], 18)
    gstep(A, 0, [], 9)
    gstep(A, 1, [], 0)
    final_reduce(A, opts)

def gen_wo(A, opts):
    gemm_ids(A, 0, opts)
    A(f'''
    s_mov_b32 s20, s90
    s_mov_b32 s21, s91
    s_mov_b32 s22, 2621440
    s_mov_b32 s23, 0x00020000
    s_mul_i32 s42, s33, 240
    s_add_u32 s42, s42, s43
    s_lshl_b32 s42, s42, 10
    s_add_u32 s42, s42, {WS_WOF}''')
    for sl in range(4):
        for l in loadsW(sl): A(l)
    A(f'''
    s_lshl_b32 s45, s34, 5
    s_lshl_b32 s46, s33, 3
    s_add_u32 s45, s45, s46
    s_lshl_b32 s45, s45, 2
    s_add_u32 s45, s45, {WS_FLAG2}
    s_mul_i32 s41, s34, 24
    s_mul_i32 s44, s33, 6
    s_add_u32 s41, s41, s44
    s_lshl_b32 s41, s41, 12
    s_add_u32 s41, s41, {WS_OP}''')
    poll_all(A, 'K2_s2', 's45', 2, opts.get('psleep2', 1))
    stamp(A, opts, 6)
    for sl in range(4):
        for l in loadsA(sl, ' sc1'): A(l)
    gstep(A, 0, [], 12, first=True)
    stamp(A, opts, 3)
    gstep(A, 1, loadsA(0, ' sc1') + loadsW(0), 8)
    gstep(A, 2, loadsA(1, ' sc1') + loadsW(1), 4 + 9)
    gstep(A, 3, [], 18)
    gstep(A, 0, [], 9)
    gstep(A, 1, [], 0)
    stamp(A, opts, 1)
    wait_lds(A, 'K2_cf', CF, 4, 1)
    A(f'''
    s_mul_i32 s39, s33, 20480
    s_add_u32 s39, s39, {RED0}
    v_add_u32 v4, s39, v{VL16}
    s_mul_i32 s45, s33, 5120
    s_add_u32 s45, s45, s39
    v_add_u32 v5, s45, v{VL16}''')
    T = RB
    for mt in range(4):
        A(f'    s_cmp_eq_u32 s33, {mt}\n    s_cbranch_scc1 K2_skipw{mt}')
        for u in range(5):
            A(f'    ds_write_b128 v4, {vr(acc(u,mt),4)} offset:{(mt*5+u)*1024}')
        A(f'    s_branch K2_donew{mt}')
        A(f'K2_skipw{mt}:')
        for u in range(5):
            for r in range(4):
                A(f'    v_mov_b32 v{T+100+u*4+r}, v{acc(u,mt)+r}')
        A(f'K2_donew{mt}:')
    A('    s_waitcnt lgkmcnt(0)\n    s_barrier')
    stamp(A, opts, 2)
    A(f'''
    s_mul_i32 s45, s33, 5120
    s_add_u32 s45, s45, {RED0}
    v_add_u32 v4, s45, v{VL16}
    v_add_u32 v8, {2*20480}, v4''')
    for w in range(4):
        for u in range(5):
            A(f'    ds_read_b128 {vr(T+(w*5+u)*4,4)}, v{4 if w < 2 else 8} offset:{(w%2)*20480 + u*1024}')
    A(f'''
    s_lshl_b32 s45, s33, 4
    s_add_u32 s45, s45, s36
    s_mul_i32 s45, s45, 1280
    s_mul_i32 s46, s35, 160
    s_add_u32 s45, s45, s46
    s_movk_i32 s37, 1280
    v_mul_lo_u32 v5, v1, s37
    v_and_b32 v6, 1, v2
    v_lshlrev_b32 v6, 5, v6
    v_lshrrev_b32 v7, 1, v2
    v_lshl_add_u32 v6, v7, 4, v6
    v_add_u32 v6, v6, v5
    v_lshl_add_u32 v7, v2, 3, v5
    s_waitcnt lgkmcnt(0)''')
    for u in range(5):
        for r in range(4):
            t0 = T + u * 4 + r
            A(f'''
    v_add_f32 v{t0}, v{t0}, v{t0+20}
    v_add_f32 v{t0+40}, v{t0+40}, v{t0+60}
    v_add_f32 v{t0}, v{t0}, v{t0+100}
    v_add_f32 v{t0}, v{t0}, v{t0+40}''')
    P = 16
    for pp in range(2):
        t = P + 4 * pp; d0 = T + 8 * pp; d1 = T + 8 * pp + 4
        A(f'''
    v_cvt_pk_bf16_f32 v{t}, v{d0}, v{d0+1}
    v_cvt_pk_bf16_f32 v{t+1}, v{d0+2}, v{d0+3}
    v_cvt_pk_bf16_f32 v{t+2}, v{d1}, v{d1+1}
    v_cvt_pk_bf16_f32 v{t+3}, v{d1+2}, v{d1+3}
    v_permlane16_swap_b32 v{t}, v{t+2}
    v_permlane16_swap_b32 v{t+1}, v{t+3}
    buffer_store_dwordx4 {vr(t,4)}, v6, s[20:23], s45 offen offset:{64*pp}''')
    d0 = T + 16
    A(f'''
    v_cvt_pk_bf16_f32 v24, v{d0}, v{d0+1}
    v_cvt_pk_bf16_f32 v25, v{d0+2}, v{d0+3}
    buffer_store_dwordx2 v[24:25], v7, s[20:23], s45 offen offset:128''')
    if opts.get('prof'):
        A('    s_waitcnt vmcnt(0)')
        stamp(A, opts, 7)
        stamp_flush(A, opts)
    A('    s_branch KF_done')

def desc(name, vg):
    return f'''
.amdhsa_kernel {name}
  .amdhsa_next_free_vgpr {vg}
  .amdhsa_next_free_sgpr 102
  .amdhsa_accum_offset {vg}
  .amdhsa_group_segment_fixed_size 0
  .amdhsa_kernarg_size 80
  .amdhsa_user_sgpr_count 2
  .amdhsa_user_sgpr_kernarg_segment_ptr 1
  .amdhsa_system_sgpr_workgroup_id_x 1
.end_amdhsa_kernel
'''

if __name__ == '__main__':
    import sys
    out = sys.argv[1]
    opts = {}
    for kv in sys.argv[2:]:
        k, v = kv.split('=')
        opts[k] = int(v)
    HEADER = open('gated_mix__sliding_block__dense_activation_relu__prompt.s.ref').read().split('; Override launch')[0]
    o1 = dict(opts); o2 = dict(opts)
    if opts.get('prof') == 2: o1.pop('prof')
    a1 = Asm(); gen_k1(a1, o1)
    a2 = Asm(); gen_k2(a2, o2)
    txt = HEADER + f'; @launch kernel=k1_kernel grid=(256,1,1) block=(512,1,1) lds={LDS_BYTES}\n'
    if not opts.get('k1only'): txt += f'; @launch kernel=k2_kernel grid=(256,1,1) block=(512,1,1) lds={K2_LDS}\n'
    txt += '.amdgcn_target "amdgcn-amd-amdhsa--gfx950"\n.text\n'
    txt += '.globl k1_kernel\n.p2align 8\n.type k1_kernel,@function\n' + a1.fix() + '\n'
    txt += '.globl k2_kernel\n.p2align 8\n.type k2_kernel,@function\n' + a2.fix() + '\n'
    txt += '.section .rodata,"a"\n.p2align 6' + desc('k1_kernel', 232) + '.p2align 6' + desc('k2_kernel', 248)
    open(out, 'w').write(txt)
```

```python
from asmlib import *

WS_QK   = 0x000000
WS_VT   = 0x600000
WS_H    = 0x900000
WS_OP   = 0xF00000
WS_W2F  = 0x1200000
WS_WOF  = 0x13E0000
WS_G    = 0x14D0000
WS_FLAG2 = 0x14D2000
WS_ONES = 0x14D3000
WS_END  = 0x14D3100
WS_PROF = 0x1500000
WS_PROF_END = 0x1600000
LDS_BYTES = 163840
PK = 147456
C1 = 46336; CK = C1 + 4; CA = C1 + 8
KL = 0; VL = 24832; RED0 = 46592; K2_LDS = RED0 + 4*20480
KNAME = 'gated_mix__sliding_block__dense_activation_relu__prompt_kernel'

def stamp(A, opts, idx):
    if not opts.get('prof'): return
    A(f'    s_memtime s[{70+2*idx}:{71+2*idx}]')
    if idx == 0 or idx == 7:
        A(f'    s_memrealtime s[{86+2*(idx != 0)}:{87+2*(idx != 0)}]')

def stamp_flush(A, opts):
    if not opts.get('prof'): return
    A(f'''
    s_waitcnt lgkmcnt(0)
    s_lshl_b32 s96, s2, 4
    s_add_u32 s96, s96, s30
    s_lshl_b32 s96, s96, 7
    s_add_u32 s96, s96, {WS_PROF}
    v_mov_b32 v100, s96
    s_mov_b64 exec, 1''')
    for i in range(20):
        A(f'    v_mov_b32 v101, s{70+i}\n    buffer_store_dword v101, v100, s[92:95], 0 offen offset:{4*i}')
    A('    s_mov_b64 exec, -1')

def gen_k1(a, opts):
    A = a
    SF = {0: '', 1: ' sc1'}[opts.get('sf', 1)]
    A('k1_kernel:')
    A('''
    s_cmp_ge_u32 s2, 256
    s_cbranch_scc1 K1_done
    s_getpc_b64 s[60:61]''')
    stamp(A, opts, 0)
    A(f'''
    s_load_dwordx2 s[4:5], s[0:1], 0
    s_load_dwordx4 s[64:67], s[0:1], 8
    s_load_dwordx4 s[24:27], s[0:1], 32
    s_load_dwordx2 s[68:69], s[0:1], 48
    s_load_dwordx2 s[28:29], s[0:1], 72
    v_lshrrev_b32 v1, 6, v0
    v_and_b32 v0, 63, v0
    v_readfirstlane_b32 s30, v1
    s_and_b32 s31, s2, 7
    s_lshr_b32 s32, s2, 3
    s_cmp_lt_u32 s32, {opts.get('cpf', 1)}
    s_cbranch_scc0 K1_nocpf
    s_cmp_lt_u32 s30, 3
    s_cbranch_scc0 K1_nocpf
    s_lshl_b32 s46, s30, 13
    v_lshlrev_b32 v10, 7, v0
    v_add_u32 v10, s46, v10
    global_load_dword v226, v10, s[60:61]
K1_nocpf:
    s_and_b32 s33, s31, 1
    s_lshl_b32 s33, s33, 3
    s_and_b32 s34, s32, 7
    s_add_u32 s33, s33, s34
    s_lshr_b32 s34, s31, 1
    s_lshl_b32 s34, s34, 2
    s_lshr_b32 s35, s32, 3
    s_add_u32 s34, s34, s35
    s_lshl_b32 s40, s33, 7
    s_cmp_lt_u32 s34, 6
    s_cbranch_scc1 K1_sec_qk
    s_cmp_lt_u32 s34, 9
    s_cbranch_scc1 K1_sec_v
    s_mov_b32 s36, 2
    s_sub_u32 s37, s34, 9
    s_mul_i32 s37, s37, 14
    s_mov_b32 s62, s37
    s_min_u32 s37, s37, 82
    s_lshl_b32 s38, s37, 5
    s_mov_b32 s39, 3072
    s_branch K1_sec_done
K1_sec_qk:
    s_mov_b32 s36, 0
    s_mul_i32 s37, s34, 14
    s_mov_b32 s62, s37
    s_min_u32 s37, s37, 66
    s_lshl_b32 s38, s37, 5
    s_mov_b32 s39, 3840
    s_branch K1_sec_done
K1_sec_v:
    s_mov_b32 s36, 1
    s_sub_u32 s37, s34, 6
    s_mul_i32 s37, s37, 14
    s_mov_b32 s62, s37
    s_min_u32 s37, s37, 26
    s_lshl_b32 s38, s37, 5
    s_add_u32 s38, s38, 2560
    s_mov_b32 s39, 3840
K1_sec_done:
    s_cmp_ge_u32 s30, 4
    s_cbranch_scc{'0 K1_compute' if opts.get('lfirst', 0) else '1 K1_loader'}
    ''')
    if opts.get('lfirst', 0):
        gen_p1_loader(A, opts, SF)
        A('    s_branch KF_p1done')
        A('K1_compute:')
        gen_p1_compute(A, opts, SF)
    else:
        gen_p1_compute(A, opts, SF)
        gen_p1_loader(A, opts, SF)
    A('KF_p1done:')
    if opts.get('prof') == 1:
        stamp(A, opts, 6)
        A('    s_waitcnt vmcnt(0)')
        stamp(A, opts, 7); stamp_flush(A, opts)
    A('K1_done:\n    s_endpgm')

def gen_k2(a, opts):
    A = a
    A('k2_kernel:')
    A('''
    s_cmp_ge_u32 s2, 256
    s_cbranch_scc1 KF_done''')
    stamp(A, opts, 0)
    A(f'''
    s_load_dwordx2 s[90:91], s[0:1], 56
    s_load_dwordx2 s[28:29], s[0:1], 72
    v_lshrrev_b32 v1, 6, v0
    v_and_b32 v0, 63, v0
    v_readfirstlane_b32 s30, v1
    s_and_b32 s31, s2, 7
    s_lshr_b32 s32, s2, 3
    v_and_b32 v1, 15, v0
    v_lshrrev_b32 v2, 4, v0
    s_mov_b32 s97, 1
    s_cmp_eq_u32 s30, 0
    s_cbranch_scc0 K2_noinit
    v_mov_b32 v8, 0
    v_mov_b32 v9, {C1}
    ds_write_b32 v9, v8 offset:0
    ds_write_b32 v9, v8 offset:4
    ds_write_b32 v9, v8 offset:8
    ds_write_b32 v9, v8 offset:12
    ds_write_b32 v9, v8 offset:16
    ds_write_b32 v9, v8 offset:20
    ds_write_b32 v9, v8 offset:24
K2_noinit:
    s_cmp_ge_u32 s30, 4
    s_cbranch_scc1 K2_gemm''')
    fbk = gen_attn(A, opts)
    A('K2_gemm:')
    if opts.get('wo_attn', 0): gen_gemm(A, opts)
    else: gen_gemm_full(A, opts)
    A('KF_done:\n    s_endpgm')
    fbk()

def wait_lds(A, label, addr, val, sleep=2):
    A(f'''
    v_mov_b32 v8, {addr}
{label}:
    ds_read_b32 v9, v8
    s_waitcnt lgkmcnt(0)
    v_readfirstlane_b32 s58, v9
    s_cmp_lt_u32 s58, {val}
    s_cbranch_scc0 {label}_ok
    s_sleep {sleep}
    s_branch {label}
{label}_ok:''')

def poll_all(A, label, base, n_lanes_x4, sleep=1):
    A(f'''
    v_lshlrev_b32 v3, 4, v0
    v_mov_b32 v8, 0x80000000
    v_cmp_gt_u32 vcc, {n_lanes_x4}, v0
    v_cndmask_b32 v3, v8, v3, vcc
    s_mov_b64 s[56:57], vcc
{label}:
    buffer_load_dwordx4 v[4:7], v3, s[16:19], {base} offen sc1
    s_waitcnt vmcnt(0)
    v_xor_b32 v4, s97, v4
    v_xor_b32 v5, s97, v5
    v_xor_b32 v6, s97, v6
    v_xor_b32 v7, s97, v7
    v_or3_b32 v4, v4, v5, v6
    v_or_b32 v4, v4, v7
    v_cmp_ne_u32 vcc, 0, v4
    s_and_b64 vcc, vcc, s[56:57]
    s_cbranch_vccz {label}_ok
    s_sleep {sleep}
    s_branch {label}
{label}_ok:''')

def k1_srds(A, tag):
    A(f'''
    s_waitcnt lgkmcnt(0)
    s_mov_b32 s8, s4
    s_mov_b32 s9, s5
    s_mov_b32 s10, 2621440
    s_mov_b32 s11, 0x00020000
    s_mov_b32 s15, 0x00020000
    s_cmp_eq_u32 s36, 2
    s_cbranch_scc1 K1_srd_h{tag}
    s_mov_b32 s12, s64
    s_mov_b32 s13, s65
    s_mov_b32 s14, 2457600
    s_branch K1_srd_d{tag}
K1_srd_h{tag}:
    s_mov_b32 s12, s24
    s_mov_b32 s13, s25
    s_mov_b32 s14, 1966080
K1_srd_d{tag}:
    s_mov_b32 s16, s28
    s_mov_b32 s17, s29
    s_mov_b32 s18, {WS_END}
    s_mov_b32 s19, 0x00020000
    s_mov_b32 s92, s28
    s_mov_b32 s93, s29
    s_mov_b32 s94, {WS_PROF_END}
    s_mov_b32 s95, 0x00020000''')

def gen_p1_compute(A, opts, SF):
    ACC = 16
    def acc(uu, mt): return ACC + (uu * 4 + mt) * 4
    XS = [128, 172]; WSs = [144, 188]
    VAX = [216, 217]; VW = 218
    T = 128
    A(f'''
    s_and_b32 s41, s30, 1
    s_lshr_b32 s42, s30, 1
    v_and_b32 v1, 15, v0
    v_lshrrev_b32 v2, 4, v0
    v_and_b32 v3, 7, v1
    v_xor_b32 v3, v2, v3
    v_lshlrev_b32 v3, 4, v3
    v_lshl_add_u32 v3, v1, 7, v3
    s_lshl_b32 s43, s41, 13
    v_add_u32 v{VAX[0]}, s43, v3
    v_xor_b32 v{VAX[1]}, 64, v{VAX[0]}
    v_lshrrev_b32 v4, 2, v1
    v_and_b32 v5, 3, v0
    v_and_b32 v6, 1, v2
    v_lshl_or_b32 v6, v6, 2, v4
    v_lshl_add_u32 v7, v2, 3, v4
    v_lshlrev_b32 v7, 9, v7
    v_lshl_add_u32 v7, v5, 3, v7
    v_add_u32 v7, 16384, v7
    s_lshl_b32 s44, s42, 3
    s_add_u32 s45, s42, 6
    ''')
    for uu in range(7):
        if uu < 6: A(f'    s_add_u32 s46, s44, {uu}\n    v_xor_b32 v8, s46, v6')
        else:      A(f'    v_xor_b32 v8, s45, v6')
        A(f'    v_lshl_add_u32 v{VW+uu}, v8, 5, v7')
    for r in range(ACC, ACC + 112):
        A(f'    v_mov_b32 v{r}, 0')
    def reads(st, ks):
        R = []
        for mt in range(4):
            R.append(f'    ds_read_b128 {vr(XS[st]+4*mt,4)}, v{VAX[ks]} offset:{mt*2048}')
        for uu in range(7):
            for t in range(2):
                R.append(f'    ds_read_b64_tr_b16 {vr(WSs[st]+4*uu+2*t,2)}, v{VW+uu} offset:{(32*ks+4*t)*512}')
        return R
    def phase(st, rd, swapped, extra=()):
        k = 0
        extra = list(extra)
        for uu in range(7):
            for mt in range(4):
                w = vr(WSs[st] + 4 * uu, 4); x = vr(XS[st] + 4 * mt, 4); d = vr(acc(uu, mt), 4)
                if swapped: A(f'    v_mfma_f32_16x16x32_bf16 {d}, {w}, {x}, {d}')
                else:       A(f'    v_mfma_f32_16x16x32_bf16 {d}, {x}, {w}, {d}')
                if k < len(rd): A(rd[k])
                elif extra: A(extra.pop(0))
                k += 1
        for e in extra: A(e)
    def mainloop(tag, swapped):
        A(f'''
    s_mov_b32 s46, 0
    s_mov_b32 s47, 0
    s_mov_b32 s50, 0xfffe8000
    s_mov_b32 s51, 49152
    s_barrier''')
        stamp(A, opts, 2)
        for l in reads(0, 0): A(l)
        A(f'K1_loop_{tag}:')
        A('''
    s_add_u32 s47, s47, 1
    s_cmp_eq_u32 s47, 3
    s_cselect_b32 s48, s50, s51
    s_cselect_b32 s47, 0, s47
    s_waitcnt lgkmcnt(0)''')
        upd = [f'    v_add_u32 v{r}, s48, v{r}' for r in VAX + [VW + i for i in range(7)]]
        phase(0, reads(1, 1), swapped, upd)
        A('''
    s_waitcnt lgkmcnt(0)
    s_barrier''')
        phase(1, reads(0, 0), swapped, ['    s_add_u32 s46, s46, 1', '    s_cmp_lt_u32 s46, 10'])
        A(f'''
    s_cbranch_scc1 K1_loop_{tag}
    s_waitcnt lgkmcnt(0)
    s_nop 7''')
        stamp(A, opts, 1)
    k1_srds(A, 'c')
    if opts.get('tpre', 0):
        S0 = opts.get('tpre0', 2)
        A(f'''
    v_and_b32 v9, 31, v0
    v_lshrrev_b32 v10, 5, v0
    s_lshl_b32 s46, s35, 5
    s_add_u32 s46, s46, s40
    v_add_u32 v11, s46, v9
    s_movk_i32 s47, 1280
    v_mul_lo_u32 v11, v11, s47
    s_lshl_b32 s46, s30, 1
    s_add_u32 s46, s46, {S0}
    v_add_u32 v12, s46, v10
    v_lshl_add_u32 v11, v12, 7, v11
    v_mov_b32 v13, 0x80000000
    v_cmp_gt_u32 vcc, 10, v12
    v_cndmask_b32 v11, v13, v11, vcc
    v_lshlrev_b32 v12, 6, v12
    s_and_b32 s46, s32, 7
    s_lshl_b32 s46, s46, 3
    v_bfe_u32 v13, v0, 2, 3
    v_add3_u32 v12, v12, s46, v13
    v_mul_lo_u32 v12, v12, s39
    v_and_b32 v13, 3, v0
    v_lshl_add_u32 v12, v13, 7, v12
    s_and_b32 s46, s38, 0xffffff80
    v_add_u32 v12, s46, v12
    {f's_sleep {opts.get("tsleep")}' if opts.get('tsleep') else ''}
    buffer_load_dword v227, v12, s[12:15], 0 offen
    buffer_load_dword v226, v11, s[8:11], 0 offen''')
    if opts.get('tlbw', 0):
        G = opts.get('tlbw')
        A(f'''
    s_cmp_eq_u32 s32, 0
    s_cbranch_scc0 K1_notlb
    s_cmp_eq_u32 s30, 3
    s_cbranch_scc0 K1_notlb
    v_lshlrev_b32 v10, {G}, v0
    buffer_load_dword v227, v10, s[16:19], 0 offen
    s_load_dwordx2 s[62:63], s[0:1], 56
    s_waitcnt lgkmcnt(0)
    s_mov_b32 s20, s62
    s_mov_b32 s21, s63
    s_mov_b32 s22, 2621440
    s_mov_b32 s23, 0x00020000
    buffer_load_dword v228, v10, s[20:23], 0 offen
K1_notlb:''')
    for r in range(9, 15): A(f'    v_mov_b32 v{r}, 0x80000000')
    A('''
    s_cmp_eq_u32 s36, 1
    s_cbranch_scc1 K1_main_v
    s_cmp_eq_u32 s36, 2
    s_cbranch_scc1 K1_pre_h''')
    A(f'''
    s_lshl_b32 s43, s41, 2
    s_lshr_b32 s46, s40, 4
    s_add_u32 s43, s43, s46
    s_mul_i32 s43, s43, 768
    v_lshlrev_b32 v3, 3, v1
    v_add_u32 v3, s43, v3
    s_mov_b32 s49, 52429
    s_mov_b32 s52, 98304
    s_mov_b32 s53, 0x3ea52b5c''')
    for uu in range(7):
        if uu < 6: A(f'    s_add_u32 s46, s44, {uu}')
        else:      A(f'    s_mov_b32 s46, s45')
        A(f'''
    s_add_u32 s46, s46, s37
    s_cmp_lt_u32 s46, s62
    s_cselect_b32 s47, 0x80000000, 0
    s_lshl_b32 s46, s46, 2
    v_add_u32 v4, s46, v2
    v_mul_lo_u32 v5, v4, s49
    v_lshrrev_b32 v5, 18, v5
    v_mul_u32_u24 v6, 5, v5
    v_sub_u32 v6, v4, v6
    v_mul_lo_u32 v5, v5, s52
    v_lshl_add_u32 v5, v6, 7, v5
    v_add3_u32 v{8+uu}, v5, v3, s47''')
    A('    s_branch K1_pre_done')
    A(f'''K1_pre_h:
    s_lshl_b32 s43, s33, 1
    s_add_u32 s43, s43, s41
    s_mul_i32 s43, s43, {48*4096}
    s_add_u32 s43, s43, {WS_H}
    s_add_u32 s56, s37, s44
    s_lshl_b32 s56, s56, 11
    s_add_u32 s56, s56, s43
    v_and_b32 v4, 1, v2
    v_lshlrev_b32 v4, 1, v4
    v_lshrrev_b32 v5, 1, v2
    v_add_u32 v4, v4, v5
    v_lshl_add_u32 v4, v4, 4, v1
    v_lshlrev_b32 v4, 4, v4
    s_add_u32 s57, s37, 6
    s_lshl_b32 s57, s57, 11
    s_add_u32 s57, s57, s43
    s_lshl_b32 s48, s42, 1
    v_add_u32 v5, s48, v5
    v_lshl_add_u32 v5, v5, 4, v1
    v_lshlrev_b32 v5, 4, v5
    v_and_b32 v6, 1, v2
    v_lshl_add_u32 v5, v6, 10, v5
K1_pre_done:''')
    mainloop('s', True)
    A('''
    s_cmp_eq_u32 s36, 2
    s_cbranch_scc1 K1_epi_h''')
    for uu in range(7):
        if uu < 6: A(f'    s_add_u32 s46, s44, {uu}')
        else:      A(f'    s_mov_b32 s46, s45')
        A(f'''
    s_add_u32 s46, s46, s37
    s_cmp_lt_u32 s46, 40
    s_cselect_b32 s54, s53, 1.0
    s_mov_b32 s55, s54''')
        for mt in range(4):
            d = acc(uu, mt); t = T + (uu * 4 + mt) * 2
            A(f'''
    v_pk_mul_f32 {vr(d,2)}, {vr(d,2)}, s[54:55]
    v_pk_mul_f32 {vr(d+2,2)}, {vr(d+2,2)}, s[54:55]
    v_cvt_pk_bf16_f32 v{t}, v{d}, v{d+1}
    v_cvt_pk_bf16_f32 v{t+1}, v{d+2}, v{d+3}
    buffer_store_dwordx2 {vr(t,2)}, v{8+uu}, s[16:19], 0 offen offset:{WS_QK + mt*768}{SF}''')
    A('    s_branch KF_p1done')
    A('K1_epi_h:')
    n = 0
    for pp in range(3):
        A(f'    s_add_u32 s49, s56, {pp*4096}\n    s_add_u32 s46, s37, s44\n    s_add_u32 s46, s46, {2*pp}\n    s_cmp_lt_u32 s46, s62\n    s_cselect_b32 s49, 0x7f000000, s49')
        for mt in range(4):
            t = T + n * 4; n += 1
            d0 = acc(2 * pp, mt); d1 = acc(2 * pp + 1, mt)
            A(f'''
    v_cvt_pk_bf16_f32 v{t}, v{d0}, v{d0+1}
    v_cvt_pk_bf16_f32 v{t+1}, v{d0+2}, v{d0+3}
    v_cvt_pk_bf16_f32 v{t+2}, v{d1}, v{d1+1}
    v_cvt_pk_bf16_f32 v{t+3}, v{d1+2}, v{d1+3}
    v_pk_max_i16 v{t}, v{t}, 0
    v_pk_max_i16 v{t+1}, v{t+1}, 0
    v_pk_max_i16 v{t+2}, v{t+2}, 0
    v_pk_max_i16 v{t+3}, v{t+3}, 0
    v_permlane16_swap_b32 v{t}, v{t+2}
    v_permlane16_swap_b32 v{t+1}, v{t+3}
    buffer_store_dwordx4 {vr(t,4)}, v4, s[16:19], s49 offen offset:{1024*mt}{SF}''')
    for pm in range(2):
        t = T + n * 4; n += 1
        d0 = acc(6, 2 * pm); d1 = acc(6, 2 * pm + 1)
        A(f'''
    v_cvt_pk_bf16_f32 v{t}, v{d0}, v{d0+1}
    v_cvt_pk_bf16_f32 v{t+1}, v{d0+2}, v{d0+3}
    v_cvt_pk_bf16_f32 v{t+2}, v{d1}, v{d1+1}
    v_cvt_pk_bf16_f32 v{t+3}, v{d1+2}, v{d1+3}
    v_pk_max_i16 v{t}, v{t}, 0
    v_pk_max_i16 v{t+1}, v{t+1}, 0
    v_pk_max_i16 v{t+2}, v{t+2}, 0
    v_pk_max_i16 v{t+3}, v{t+3}, 0
    v_permlane16_swap_b32 v{t}, v{t+2}
    v_permlane16_swap_b32 v{t+1}, v{t+3}
    buffer_store_dwordx4 {vr(t,4)}, v5, s[16:19], s57 offen offset:{2048*pm}{SF}''')
    A('    s_branch KF_p1done')
    A('K1_main_v:')
    A(f'''
    s_lshl_b32 s43, s41, 1
    s_lshr_b32 s46, s40, 5
    s_add_u32 s43, s43, s46
    s_lshl_b32 s43, s43, 10
    s_add_u32 s43, s43, {WS_VT}
    v_lshlrev_b32 v3, 4, v0
    v_add_u32 v3, s43, v3''')
    for uu in range(7):
        if uu < 6: A(f'    s_add_u32 s46, s44, {uu}')
        else:      A(f'    s_mov_b32 s46, s45')
        A(f'''
    s_add_u32 s46, s46, s37
    s_cmp_lt_u32 s46, s62
    s_cselect_b32 s47, 0x80000000, 0
    s_lshl_b32 s46, s46, 16
    s_or_b32 s46, s46, s47
    v_add_u32 v{8+uu}, s46, v3''')
    mainloop('n', False)
    for uu in range(7):
        for pa in range(2):
            t = T + (uu * 2 + pa) * 4
            d0 = acc(uu, 2 * pa); d1 = acc(uu, 2 * pa + 1)
            A(f'''
    v_cvt_pk_bf16_f32 v{t}, v{d0}, v{d0+1}
    v_cvt_pk_bf16_f32 v{t+1}, v{d0+2}, v{d0+3}
    v_cvt_pk_bf16_f32 v{t+2}, v{d1}, v{d1+1}
    v_cvt_pk_bf16_f32 v{t+3}, v{d1+2}, v{d1+3}
    buffer_store_dwordx4 {vr(t,4)}, v{8+uu}, s[16:19], 0 offen offset:{1024*pa}{SF}''')
    A('    s_branch KF_p1done')

def gen_p1_loader(A, opts, SF):
    rm = opts.get('rotmode', 0)
    if rm == 0:
        ROT = f'''s_add_u32 s46, s46, s47
    s_and_b32 s46, s46, {opts.get('rotng', 2) - 1}
    s_mul_i32 s90, s46, {opts.get('rotr', 3)}'''
    else:
        ROT = f'''s_mul_i32 s46, s46, {opts.get('rota', 1)}
    s_mul_i32 s47, s47, {opts.get('rotb', 3)}
    s_add_u32 s90, s46, s47
    s_mul_hi_u32 s46, s90, 0x1999999a
    s_mul_i32 s46, s46, 10
    s_sub_u32 s90, s90, s46'''
    A(f'''K1_loader:
    s_sub_u32 s41, s30, 4
    v_lshrrev_b32 v1, 3, v0
    v_and_b32 v2, 7, v0
    v_lshlrev_b32 v21, 4, v2
    v_xor_b32 v2, v2, v1
    v_lshlrev_b32 v2, 4, v2
    s_movk_i32 s43, 1280
    v_mul_lo_u32 v1, v1, s43
    v_add_u32 v2, v2, v1
    v_add_u32 v21, v21, v1
    v_lshrrev_b32 v4, 5, v0
    s_and_b32 s44, s41, 1
    s_lshr_b32 s45, s41, 1
    s_lshl_b32 s46, s44, 1
    s_lshl_b32 s47, s45, 2
    s_or_b32 s46, s46, s47
    v_or_b32 v5, s46, v4
    v_bfe_u32 v6, v0, 1, 4
    v_xor_b32 v6, v6, v5
    v_mul_lo_u32 v7, v4, s39
    v_lshl_add_u32 v7, v6, 5, v7
    v_and_b32 v8, 1, v0
    v_lshl_add_u32 v3, v8, 4, v7
    v_mov_b32 v9, 0x80000000
    v_cmp_le_u32 vcc, 14, v6
    v_cndmask_b32 v3, v3, v9, vcc
    s_lshl_b32 s50, s41, 5
    s_add_u32 s50, s50, s40
    s_mul_i32 s50, s50, 1280
    s_add_u32 s52, s44, s47
    s_lshl_b32 s53, s52, 1
    s_mul_i32 s51, s53, s39
    s_add_u32 s51, s51, s38
    s_lshl_b32 s54, s39, 2
    s_mul_i32 s55, s39, 12
    s_lshl_b32 s56, s39, 6
    s_lshl_b32 s57, s41, 12
    s_lshl_b32 s58, s52, 10
    s_add_u32 s58, s58, 16384
    s_mov_b32 s59, 0
    s_and_b32 s46, s32, 7
    s_lshr_b32 s47, s32, 3
    {ROT}
    s_lshl_b32 s46, s90, 7
    s_add_u32 s50, s50, s46
    s_mul_i32 s46, s90, s56
    s_add_u32 s51, s51, s46
    s_mul_i32 s91, s56, 10
    ''')
    def issue():
        A('    s_add_u32 s60, s59, s57\n    s_add_u32 s61, s59, s58')
        for jj in range(4):
            A(f'''
    s_add_u32 m0, s60, {jj*1024}
    s_add_u32 s62, s50, {jj*10240}
    buffer_load_dwordx4 v2, s[8:11], s62 offen lds''')
        A('    s_mov_b32 s62, s51')
        i = 0
        for b in range(4):
            for aa in range(2):
                A(f'    s_add_u32 m0, s61, {(2*aa+8*b)*1024}')
                if i > 0: A(f'    s_add_u32 s62, s62, {"s54" if aa == 1 else "s55"}')
                else: A('    s_nop 0')
                A('    buffer_load_dwordx4 v3, s[12:15], s62 offen lds')
                i += 1
        A(f'''
    s_add_u32 s50, s50, 128
    s_add_u32 s51, s51, s56
    s_add_u32 s90, s90, 1
    s_cmp_eq_u32 s90, 10
    s_cselect_b32 s46, 1280, 0
    s_cselect_b32 s47, s91, 0
    s_cselect_b32 s90, 0, s90
    s_sub_u32 s50, s50, s46
    s_sub_u32 s51, s51, s47
    s_add_u32 s59, s59, 49152
    s_cmp_eq_u32 s59, 147456
    s_cselect_b32 s59, 0, s59''')
    k1_srds(A, 'l')
    stamp(A, opts, 2)
    issue(); issue()
    stamp(A, opts, 3)
    A('    s_waitcnt vmcnt(12)\n    s_barrier')
    stamp(A, opts, 4)
    def pack_load():
        A(f'''
        s_lshl_b32 s63, s2, 2
        s_add_u32 s63, s63, s41
        s_mul_hi_u32 s46, s63, 0x1999999a
        s_mul_i32 s47, s46, 10
        s_sub_u32 s47, s63, s47
        s_cmp_lt_u32 s46, 48
        s_cbranch_scc0 K1_pk_wo
        s_mov_b32 s20, s26
        s_mov_b32 s21, s27
        s_mov_b32 s22, 1966080
        s_mul_i32 s34, s46, 40960
        s_add_u32 s35, s34, {WS_W2F}
        s_lshl_b32 s46, s47, 7
        s_add_u32 s34, s34, s46
        v_mov_b32 v50, v21
        v_add_u32 v51, 10240, v21
        v_add_u32 v52, 20480, v21
        v_add_u32 v53, 30720, v21
        s_branch K1_pk_go
    K1_pk_wo:
        s_mov_b32 s20, s66
        s_mov_b32 s21, s67
        s_mov_b32 s22, 819200
        s_sub_u32 s46, s46, 48
        s_mul_i32 s35, s46, 40960
        s_add_u32 s35, s35, {WS_WOF}
        s_lshl_b32 s34, s47, 7
        s_lshl_b32 s46, s46, 5
        v_lshrrev_b32 v54, 3, v0
        v_add_u32 v54, s46, v54
        s_mov_b32 s46, 0xaaaaaab
        v_and_b32 v55, 7, v0
        v_lshlrev_b32 v55, 4, v55
        v_mov_b32 v58, 0x80000000''')
        for jj in range(4):
            A(f'''
        v_mul_hi_u32 v56, v54, s46
        v_mul_u32_u24 v57, 24, v56
        v_sub_u32 v57, v54, v57
        v_mul_u32_u24 v56, 20, v56
        v_add_u32 v56, v56, v57
        v_mul_u32_u24 v56, 1280, v56
        v_add_u32 v56, v56, v55
        v_cmp_gt_u32 vcc, 20, v57
        v_cndmask_b32 v{50+jj}, v58, v56, vcc
        v_add_u32 v54, 8, v54''')
        A(f'''
    K1_pk_go:
        s_mov_b32 s23, 0x00020000
        s_lshl_b32 s46, s47, 12
        s_add_u32 s35, s35, s46
        s_cmp_ge_u32 s63, 720
        s_cselect_b32 s35, 0x7f000000, s35
        s_cselect_b32 s34, 0x7f000000, s34
        s_add_u32 s46, s57, {PK}''')
        for jj in range(4):
            A(f'''
        s_add_u32 m0, s46, {jj*1024}
        s_nop 0
        buffer_load_dwordx4 v{50+jj}, s[20:23], s34 offen lds''')
    def pack_tr():
        A(f'''
        v_lshrrev_b32 v10, 4, v0
        v_bfe_u32 v11, v0, 2, 2
        v_lshl_add_u32 v10, v10, 3, v11
        v_lshlrev_b32 v10, 7, v10
        v_and_b32 v11, 3, v0
        v_lshl_add_u32 v10, v11, 3, v10
        s_add_u32 s46, s57, {PK}
        v_add_u32 v10, s46, v10
        v_lshlrev_b32 v11, 4, v0''')
        for u in range(4):
            for t in range(2):
                A(f'    ds_read_b64_tr_b16 {vr(24+4*u+2*t,2)}, v10 offset:{t*512 + u*32}')
    def pack_st():
        A('    s_waitcnt lgkmcnt(0)')
        for u in range(4):
            A(f'    buffer_store_dwordx4 {vr(24+4*u,4)}, v11, s[16:19], s35 offen offset:{u*1024} sc1')
    PL = opts.get('pkat', 2)
    extra_after = {}
    for g in range(2, 10):
        if g == PL + 3: pack_tr()
        issue()
        ex = 0
        if g == PL: pack_load(); ex += 4
        if g == PL + 3: pack_st(); ex += 4
        extra_after[g] = ex
        if g < 9:
            n = extra_after.get(g - 1, 0) + 12 + ex
            A(f'    s_waitcnt vmcnt({n})\n    s_barrier')
    EX9 = extra_after[9]; EX8 = extra_after[8]
    A(f'''
    s_lshr_b32 s34, s31, 1
    s_lshl_b32 s34, s34, 2
    s_lshr_b32 s35, s32, 3
    s_add_u32 s34, s34, s35
    s_lshl_b32 s44, s34, 3
    s_add_u32 s44, s44, s40
    s_lshl_b32 s45, s41, 1
    s_add_u32 s44, s44, s45
    s_mul_i32 s45, s44, 1280
    s_mov_b32 s20, s68
    s_mov_b32 s21, s69
    s_mov_b32 s22, 1280
    s_mov_b32 s23, 0x00020000
    v_lshlrev_b32 v10, 2, v0''')
    for j in range(5):
        A(f'    buffer_load_dword v{16+j}, v10, s[20:23], 0 offen offset:{256*j}')
    for rr in range(2):
        for j in range(5):
            A(f'    buffer_load_dword v{24+8*rr+j}, v10, s[8:11], s45 offen offset:{256*j + 1280*rr}')
    A(f'''
    v_mov_b32 v15, 0x80000000
    s_lshl_b32 s46, s2, 2
    s_add_u32 s46, s46, s41
    s_lshl_b32 s46, s46, 2
    v_lshrrev_b32 v11, 4, v0
    v_add_u32 v11, s46, v11
    v_mul_u32_u24 v11, 768, v11
    v_and_b32 v12, 15, v0
    v_lshl_add_u32 v11, v12, 3, v11
    v_add_u32 v11, {WS_QK + 32*98304 + 640}, v11
    v_mov_b32 v12, 0
    v_mov_b32 v13, 0
    buffer_store_dwordx2 v[12:13], v11, s[16:19], 0 offen{SF}
    s_add_u32 s46, s2, s41
    s_cmp_eq_u32 s46, 0
    s_cselect_b32 s46, 8, 0
    v_lshlrev_b32 v11, 4, v0
    v_add_u32 v11, {WS_ONES}, v11
    v_cmp_gt_u32 vcc, s46, v0
    v_cndmask_b32 v11, v15, v11, vcc
    v_mov_b32 v44, 0x3f803f80
    v_mov_b32 v45, 0x3f803f80
    v_mov_b32 v46, 0x3f803f80
    v_mov_b32 v47, 0x3f803f80
    buffer_store_dwordx4 v[44:47], v11, s[16:19], 0 offen{SF}
    s_cmp_eq_u32 s41, 0
    s_cselect_b32 s46, 4, 0
    s_lshl_b32 s47, s2, 4
    s_add_u32 s47, s47, {WS_FLAG2}
    v_lshl_add_u32 v11, v0, 2, s47
    v_cmp_gt_u32 vcc, s46, v0
    v_cndmask_b32 v11, v15, v11, vcc
    buffer_store_dword v12, v11, s[16:19], 0 offen{SF}
    s_waitcnt vmcnt({30 + EX8 + EX9})
    s_barrier
    s_waitcnt vmcnt({18 + EX9})
    s_barrier
    s_barrier
    s_waitcnt vmcnt(3)''')
    for rr in range(2):
        acc_ = 40 + rr
        A(f'    v_mov_b32 v{acc_}, 0')
        for j in range(5):
            A(f'    v_dot2c_f32_bf16 v{acc_}, v{16+j}, v{24+8*rr+j}')
    for rr in range(2):
        r = 40 + rr
        A(f'''
    v_add_f32_dpp v{r}, v{r}, v{r} quad_perm:[1,0,3,2] row_mask:0xf bank_mask:0xf
    v_add_f32_dpp v{r}, v{r}, v{r} quad_perm:[2,3,0,1] row_mask:0xf bank_mask:0xf
    v_add_f32_dpp v{r}, v{r}, v{r} row_half_mirror row_mask:0xf bank_mask:0xf
    v_add_f32_dpp v{r}, v{r}, v{r} row_mirror row_mask:0xf bank_mask:0xf
    v_mov_b32 v43, v{r}
    v_permlane16_swap_b32 v43, v{r}
    v_add_f32 v{r}, v{r}, v43
    v_mov_b32 v43, v{r}
    v_permlane32_swap_b32 v43, v{r}
    v_add_f32 v{r}, v{r}, v43''')
    A(f'''
    v_cmp_eq_u32 vcc, 1, v0
    v_cndmask_b32 v40, v40, v41, vcc
    v_mul_f32 v40, 0xbfb8aa3b, v40
    v_exp_f32 v40, v40
    v_add_f32 v40, 1.0, v40
    v_rcp_f32 v40, v40
    s_lshl_b32 s46, s44, 2
    s_add_u32 s46, s46, {WS_G}
    v_lshl_add_u32 v14, v0, 2, s46
    v_cmp_gt_u32 vcc, 2, v0
    v_cndmask_b32 v14, v15, v14, vcc
    buffer_store_dword v40, v14, s[16:19], 0 offen{SF}''')
    npf = opts.get('w2pf', 0)
    if npf:
        A(f'''
    s_lshl_b32 s46, s32, 2
    s_add_u32 s46, s46, s41
    s_mul_i32 s46, s46, 192
    v_add_u32 v59, s46, v0
    v_lshlrev_b32 v60, 7, v59
    v_add_u32 v60, {WS_W2F}, v60''')
        for n in range(npf):
            A(f'''
    v_add_u32 v61, {64*n}, v59
    v_cmp_gt_u32 vcc, 23040, v61
    v_cndmask_b32 v{62+n}, v15, v60, vcc
    buffer_load_dword v{66+n}, v{62+n}, s[16:19], 0 offen
    v_add_u32 v60, 8192, v60''')
    stamp(A, opts, 1)

def gen_attn(A, opts):
    NAW = 4
    SA = 16; KB = 48; VB = 64; Q = 80; O = 96; G = 112
    VK = 116; VK2 = 117; VV0 = 118; VV1 = 119; VO1 = 120; VO2 = 121
    NQT = 4; KPW = 6
    A(f'''
    {'s_setprio 2' if opts.get('prio', 0) else ''}
    s_lshr_b32 s59, s32, 2              ; qb
    s_lshl_b32 s33, s59, 8              ; Q0
    s_and_b32 s34, s32, 3
    s_lshl_b32 s35, s31, 2
    s_add_u32 s34, s34, s35             ; head
    s_add_u32 s35, s34, 32
    s_mul_i32 s35, s35, 98304
    s_mul_i32 s40, s33, 48
    s_add_u32 s35, s35, s40
    s_sub_u32 s35, s35, {256*48 - WS_QK}
    v_lshlrev_b32 v3, 4, v0
    s_mul_i32 s37, s30, {KPW*1024}
    s_add_u32 s35, s35, s37
    s_cmp_eq_u32 s59, 0
    s_cselect_b32 s38, 1, 0
    s_cmp_lt_u32 s30, {NAW//2}
    s_cselect_b32 s39, s38, 0
    s_waitcnt lgkmcnt(0)
    s_mov_b32 s16, s28
    s_mov_b32 s17, s29
    s_mov_b32 s18, {WS_END}
    s_mov_b32 s19, 0x00020000
    s_mov_b32 s92, s28
    s_mov_b32 s93, s29
    s_mov_b32 s94, {WS_PROF_END}
    s_mov_b32 s95, 0x00020000
    s_cmp_eq_u32 s39, 1
    s_cbranch_scc1 K2_kfill''')
    for j in range(KPW):
        A(f'''
    s_add_u32 m0, s37, {KL + j*1024}
    s_add_u32 s40, s35, {j*1024}
    buffer_load_dwordx4 v3, s[16:19], s40 offen lds''')
    A(f'''
    s_branch K2_kdone
K2_kfill:
    v_mov_b32 v5, 0
    v_mov_b32 v7, 0
    s_mul_i32 s40, s30, {KPW*64}
    v_add_u32 v8, s40, v0
    s_mov_b32 s41, 0x5555556''')
    for j in range(KPW):
        A(f'''
    v_mul_hi_u32 v9, v8, s41
    v_mul_u32_u24 v9, 48, v9
    v_sub_u32 v9, v8, v9
    v_cmp_le_u32 vcc, 40, v9
    v_mov_b32 v6, 0x3f80
    v_cndmask_b32 v6, 0, v6, vcc
    v_mov_b32 v4, v6
    v_lshlrev_b32 v9, 4, v8
    ds_write_b128 v9, v[4:7] offset:{KL}
    v_add_u32 v8, 64, v8''')
    A(f'''
K2_kdone:
    s_mul_i32 s36, s30, {NQT*16}
    s_add_u32 s36, s36, s33
    s_mul_i32 s35, s34, 98304
    s_mul_i32 s40, s36, 48
    s_add_u32 s35, s35, s40
    v_lshlrev_b32 v4, 3, v0
    v_lshlrev_b32 v5, 3, v1''')
    for t in range(NQT):
        A(f'    buffer_load_dwordx2 {vr(Q+4*t,2)}, v4, s[16:19], s35 offen offset:{WS_QK + t*768}')
        A(f'    buffer_load_dwordx2 {vr(Q+4*t+2,2)}, v5, s[16:19], s35 offen offset:{WS_QK + t*768 + 512}')
    A(f'''
    s_lshl_b32 s40, s36, 2
    s_add_u32 s40, s40, {WS_G}
    v_lshlrev_b32 v5, 2, v1''')
    for t in range(NQT):
        A(f'    buffer_load_dword v{G+t}, v5, s[16:19], s40 offen offset:{t*64}')
    A(f'''
    ; V gather: q = 64*(w+4j) + lane ; bg = q/21, d = q%21 ; blk = Q0/32 - 8 + bg/4 ; g = bg&3 ; n = 20*head + d
    s_lshl_b32 s40, s30, 6
    v_add_u32 v3, s40, v0
    s_mov_b32 s41, 0xc30c30d
    s_mul_i32 s43, s34, 20
    s_lshr_b32 s35, s33, 5
    s_sub_u32 s35, s35, 8
    v_mov_b32 v9, {WS_ONES}
    s_lshl_b32 s37, s30, 10''')
    for j in range(6):
        if j == 5: A('    s_cmp_eq_u32 s30, 0\n    s_cbranch_scc0 K2_vdone')
        A(f'''
    v_mul_hi_u32 v4, v3, s41
    v_mul_u32_u24 v5, 21, v4
    v_sub_u32 v5, v3, v5
    v_lshrrev_b32 v6, 2, v4
    v_add_u32 v6, s35, v6
    v_and_b32 v4, 3, v4
    v_add_u32 v7, s43, v5
    v_lshrrev_b32 v8, 4, v7
    v_lshl_add_u32 v6, v8, 6, v6
    v_lshl_add_u32 v6, v6, 2, v4
    v_and_b32 v7, 15, v7
    v_lshlrev_b32 v7, 4, v7
    v_lshl_add_u32 v6, v6, 8, v7
    v_add_u32 v6, {WS_VT}, v6
    v_cmp_eq_u32 vcc, 20, v5
    v_cndmask_b32 v6, v6, v9, vcc
    s_add_u32 m0, s37, {VL + j*4096}
    v_add_u32 v3, 256, v3
    buffer_load_dwordx4 v6, s[16:19], 0 offen lds''')
    A(f'''K2_vdone:
    s_barrier
    v_mov_b32 v3, {C1}
    v_mov_b32 v4, 1
    s_mov_b64 exec, 1
    ds_add_u32 v3, v4
    s_mov_b64 exec, -1
    s_mul_i32 s40, s30, {NQT*768}
    v_lshlrev_b32 v{VK}, 3, v0
    v_add_u32 v{VK}, s40, v{VK}
    v_add_u32 v{VK2}, 768, v{VK}
    s_mul_i32 s40, s30, {NQT*672}
    s_add_u32 s40, s40, {VL}
    v_mul_u32_u24 v6, 336, v2
    v_add_u32 v6, s40, v6
    v_lshl_add_u32 v{VV0}, v1, 4, v6
    v_add_u32 v7, 16, v1
    v_min_u32 v7, 20, v7
    v_lshl_add_u32 v{VV1}, v7, 4, v6
    s_mul_i32 s41, s34, 3
    v_lshrrev_b32 v6, 1, v2
    v_add_u32 v6, s41, v6
    v_lshrrev_b32 v7, 2, v6
    v_lshlrev_b32 v7, 12, v7
    v_and_b32 v8, 3, v6
    v_lshl_add_u32 v7, v8, 8, v7
    v_and_b32 v8, 1, v2
    v_lshl_add_u32 v7, v8, 10, v7
    v_lshl_add_u32 v{VO1}, v1, 4, v7
    s_add_u32 s41, s41, 2
    s_lshr_b32 s42, s41, 2
    s_lshl_b32 s42, s42, 12
    s_and_b32 s43, s41, 3
    s_lshl_b32 s43, s43, 8
    s_add_u32 s42, s42, s43
    v_lshl_add_u32 v7, v2, 10, s42
    v_lshl_add_u32 v{VO2}, v1, 4, v7
    v_mov_b32 v13, 0x80000000
    v_cmp_gt_u32 vcc, 2, v2
    v_cndmask_b32 v{VO2}, v13, v{VO2}, vcc
    s_lshr_b32 s42, s36, 6
    s_mul_i32 s42, s42, {24*4096}
    s_add_u32 s42, s42, {WS_OP}
    v_lshlrev_b32 v8, 2, v2
    v_sub_u32 v8, v1, v8''')
    for r in range(4):
        A(f'    v_cmp_gt_i32 s[{44+2*r}:{45+2*r}], {r}, v8')
    A(f'''
    v_mov_b32 v14, 0xff800000
    v_cmp_eq_u32 s[54:55], 1, v2
    v_cmp_lt_u32 s[52:53], 0, v2
    s_cmp_eq_u32 s30, 0
    s_cbranch_scc0 K2_nopad
    v_mov_b32 v8, 0
    v_lshlrev_b32 v9, 2, v0
    ds_write_b32 v9, v8 offset:24576
K2_nopad:''')
    stamp(A, opts, 3)
    A(f'''
    v_mov_b32 v9, 0xf149
    v_mov_b32 v3, {CK}
    v_mov_b32 v4, 1
    s_waitcnt vmcnt(0) lgkmcnt(0)
    s_mov_b64 exec, 1
    ds_add_u32 v3, v4
    s_mov_b64 exec, -1''')
    for t in range(NQT):
        q = Q + 4 * t
        A(f'''
    v_cndmask_b32 v{q+2}, v{q+2}, 0, s[52:53]
    v_cndmask_b32 v{q+3}, v{q+3}, 0, s[52:53]
    v_cndmask_b32 v{q+2}, v{q+2}, v9, s[54:55]''')
    A(f'''
K2_kwait:
    ds_read_b32 v4, v3
    s_waitcnt lgkmcnt(0)
    v_readfirstlane_b32 s58, v4
    s_cmp_lt_u32 s58, {NAW}
    s_cbranch_scc1 K2_kwait''')
    stamp(A, opts, 4)
    def sa(st, q, t): return SA + 16 * st + 8 * q + 4 * t
    def kb(st, t): return KB + 8 * st + 4 * t
    def vb(st, d): return VB + 8 * st + 4 * d
    def loads(st):
        return [f'    ds_read2st64_b64 {vr(kb(st,0),4)}, v{VK} offset0:0 offset1:1',
                f'    ds_read2st64_b64 {vr(kb(st,1),4)}, v{VK2} offset0:0 offset1:1',
                f'    ds_read_b128 {vr(vb(st,0),4)}, v{VV0}',
                f'    ds_read_b128 {vr(vb(st,1),4)}, v{VV1}']
    def adv(n=1):
        return [f'    v_add_u32 v{VK}, {1536*n & 0xffffffff}, v{VK}', f'    v_add_u32 v{VK2}, {1536*n & 0xffffffff}, v{VK2}',
                f'    v_add_u32 v{VV0}, {1344*n & 0xffffffff}, v{VV0}', f'    v_add_u32 v{VV1}, {1344*n & 0xffffffff}, v{VV1}']
    def skip(q, T): return (q == 0 and T == 17) or (q == 1 and T == 0)
    def smfma(st, bb):
        return [f'    v_mfma_f32_16x16x32_bf16 {vr(sa(st,q,t),4)}, {vr(kb(st,t),4)}, {vr(Q+4*q,4)}, 0'
                for q in range(2) for t in range(2) if not skip(q, 2 * bb + t)]
    def masks(q, T, v):
        L = []
        if (q == 0 and T == 0) or (q == 1 and T == 1):
            L += [f'    v_cndmask_b32 v{v+r}, v14, v{v+r}, s[{44+2*r}:{45+2*r}]' for r in range(4)]
        if (q == 0 and T == 16) or (q == 1 and T == 17):
            L += [f'    v_cndmask_b32 v{v+r}, v{v+r}, v14, s[{44+2*r}:{45+2*r}]' for r in range(4)]
        return L
    def packpv(st, bb, q):
        L = []
        p = sa(st, q, 0)
        for t in range(2):
            v = sa(st, q, t)
            if skip(q, 2 * bb + t):
                L += [f'    v_mov_b32 v{p+2*t}, 0', f'    v_mov_b32 v{p+2*t+1}, 0']
            else:
                L += [f'    v_cvt_pk_bf16_f32 v{p+2*t}, v{v}, v{v+1}', f'    v_cvt_pk_bf16_f32 v{p+2*t+1}, v{v+2}, v{v+3}']
        M = []
        for d in range(2):
            o = O + 8 * q + 4 * d
            M.append(f'    v_mfma_f32_16x16x32_bf16 {vr(o,4)}, {vr(vb(st,d),4)}, {vr(p,4)}, {vr(o,4)}')
        return L, M
    def body(st, bb, has_next):
        nx = st ^ 1
        if has_next:
            for l in adv(): A(l)
            for l in loads(nx): A(l)
        def valu(q):
            L = []
            for t in range(2):
                T = 2 * bb + t; v = sa(st, q, t)
                if skip(q, T): continue
                L += masks(q, T, v)
                L += [f'    v_exp_f32 v{v+r}, v{v+r}' for r in range(4)]
            return L
        for l in valu(0): A(l)
        P0, M0 = packpv(st, bb, 0)
        for l in P0: A(l)
        v1 = valu(1)
        ms = list(M0)
        if has_next:
            ms = ms + ['    s_waitcnt lgkmcnt(0)'] + smfma(nx, bb + 1)
        i = 0
        for l in v1:
            A(l)
            if i < len(ms):
                A(ms[i]); i += 1
                if i < len(ms) and ms[i - 1].strip().startswith('s_waitcnt'):
                    A(ms[i]); i += 1
        while i < len(ms):
            A(ms[i]); i += 1
        P1, M1 = packpv(st, bb, 1)
        for l in P1: A(l)
        for l in M1: A(l)
    A('    s_mov_b32 s60, 0')
    A('K2_pair:')
    for r in range(16): A(f'    v_mov_b32 v{O+r}, 0')
    for l in loads(0): A(l)
    A('    s_waitcnt lgkmcnt(0)')
    for l in smfma(0, 0): A(l)
    body(0, 0, True)
    A('    s_mov_b32 s58, 0')
    A('K2_floop:')
    body(1, 1, True)
    body(0, 2, True)
    A('''
    s_add_u32 s58, s58, 1
    s_cmp_lt_u32 s58, 3
    s_cbranch_scc1 K2_floop''')
    body(1, 7, True)
    body(0, 8, False)
    def lbcast():
        A(f'''
    v_mov_b32 v3, v{O+4}
    v_mov_b32 v4, v{O+4}
    v_permlane16_swap_b32 v4, v3
    v_mov_b32 v4, v3
    v_permlane32_swap_b32 v4, v3
    v_mov_b32 v5, v{O+12}
    v_mov_b32 v6, v{O+12}
    v_permlane16_swap_b32 v6, v5
    v_mov_b32 v6, v5
    v_permlane32_swap_b32 v6, v5''')
    lbcast()
    A(f'''
    v_min_f32 v7, v4, v6
    v_max_f32 v8, v4, v6
    s_mov_b32 s61, 0x17800000          ; 2^-80
    s_mov_b32 s62, 0x5d800000          ; 2^60
    v_cmp_nle_f32 vcc, s61, v7
    s_mov_b64 s[56:57], vcc
    v_cmp_nge_f32 vcc, s62, v8
    s_or_b64 s[56:57], s[56:57], vcc
    s_cmp_lg_u64 s[56:57], 0
    s_cbranch_scc1 K2_fallback
K2_fin:
    v_rcp_f32 v4, v4
    v_rcp_f32 v6, v6
    v_mul_f32 v4, v4, v{G}
    v_mul_f32 v6, v6, v{G+1}''')
    for q in range(2):
        o = O + 8 * q; sc = 4 if q == 0 else 6
        for r in range(8): A(f'    v_mul_f32 v{o+r}, v{o+r}, v{sc}')
    oa = O; ob = O + 8
    A(f'''
    v_cvt_pk_bf16_f32 v16, v{oa}, v{oa+1}
    v_cvt_pk_bf16_f32 v17, v{oa+2}, v{oa+3}
    v_cvt_pk_bf16_f32 v18, v{ob}, v{ob+1}
    v_cvt_pk_bf16_f32 v19, v{ob+2}, v{ob+3}
    v_cvt_pk_bf16_f32 v20, v{oa+4}, v{oa+5}
    v_cvt_pk_bf16_f32 v21, v{oa+6}, v{oa+7}
    v_cvt_pk_bf16_f32 v24, v{ob+4}, v{ob+5}
    v_cvt_pk_bf16_f32 v25, v{ob+6}, v{ob+7}
    v_mov_b32 v22, 0
    v_mov_b32 v23, 0
    v_permlane16_swap_b32 v16, v18
    v_permlane16_swap_b32 v17, v19
    v_permlane16_swap_b32 v20, v24
    v_permlane16_swap_b32 v21, v25
    buffer_store_dwordx4 v[16:19], v{VO1}, s[16:19], s42 offen sc1
    buffer_store_dwordx4 v[20:23], v{VO2}, s[16:19], s42 offen sc1
    s_add_u32 s42, s42, 2048
    s_add_u32 s60, s60, 1
    s_cmp_ge_u32 s60, 2
    s_cbranch_scc1 K2_attn_end''')
    for l in adv(-7): A(l)
    for r in range(8): A(f'    v_mov_b32 v{Q+r}, v{Q+8+r}')
    A(f'''
    v_mov_b32 v{G}, v{G+2}
    v_mov_b32 v{G+1}, v{G+3}
    s_branch K2_pair
K2_attn_end:''')
    stamp(A, opts, 5)
    A(f'''
    s_lshr_b32 s58, s36, 6
    s_lshl_b32 s58, s58, 5
    s_add_u32 s58, s58, s34
    s_lshl_b32 s58, s58, 2
    s_add_u32 s58, s58, {WS_FLAG2}
    v_mov_b32 v3, s58
    v_mov_b32 v4, 1
    s_waitcnt vmcnt(0)
    s_mov_b64 exec, 1
    buffer_store_dword v4, v3, s[16:19], 0 offen sc1
    s_mov_b64 exec, -1''')
    if opts.get('wo_attn', 0): gen_wo(A, opts)
    else:
        if opts.get('prof'):
            A('    s_waitcnt vmcnt(0)')
            stamp(A, opts, 7)
            stamp_flush(A, opts)
        A('    s_branch KF_done')
    def _fallback():
        A('K2_fallback:')
        for l in adv(-8): A(l)
        A('    v_mov_b32 v10, 0xff7fffff\n    v_mov_b32 v11, 0xff7fffff')
        for r in range(16): A(f'    v_mov_b32 v{O+r}, 0')
        for bb in range(9):
            for l in loads(0): A(l)
            if bb < 8:
                for l in adv(): A(l)
            A('    s_waitcnt lgkmcnt(0)')
            for l in smfma(0, bb): A(l)
            A('    s_nop 7')
            for q in range(2):
                vals = []
                for t in range(2):
                    T = 2 * bb + t; v = sa(0, q, t)
                    if skip(q, T): continue
                    for l in masks(q, T, v): A(l)
                    vals += [v + r for r in range(4)]
                m = 10 + q
                A(f'    v_mov_b32 v5, v{m}')
                for v in vals: A(f'    v_max_f32 v5, v5, v{v}')
                A(f'''
        v_mov_b32 v6, v5
        v_permlane16_swap_b32 v6, v5
        v_max_f32 v5, v5, v6
        v_mov_b32 v6, v5
        v_permlane32_swap_b32 v6, v5
        v_max_f32 v5, v5, v6
        v_sub_f32 v6, v{m}, v5
        v_exp_f32 v6, v6
        v_mov_b32 v{m}, v5''')
                o = O + 8 * q
                for r in range(8): A(f'    v_mul_f32 v{o+r}, v{o+r}, v6')
                for v in vals:
                    A(f'    v_sub_f32 v{v}, v{v}, v5')
                    A(f'    v_exp_f32 v{v}, v{v}')
                P, M = packpv(0, bb, q)
                for l in P + M: A(l)
                A('    s_nop 7')
        A('    s_nop 7')
        lbcast()
        A('    s_branch K2_fin')
    return _fallback

ACC = 16
RB = 96
VL16 = 240; VL16B = 241; GM = 12
CG = C1 + 12; CF = C1 + 16
def acc(u, mt): return ACC + (u * 4 + mt) * 4
def aslot(s, mt): return RB + 36 * s + 4 * mt
def wslot(s, u): return RB + 36 * s + 16 + 4 * u
def loadsA(slot, sc=''):
    L = [f'    buffer_load_dwordx4 {vr(aslot(slot,mt),4)}, v{VL16}, s[16:19], s41 offen offset:{mt*1024}{sc}' for mt in range(4)]
    L[-1] += '\n    s_add_u32 s41, s41, 4096'
    return L
def loadsW(slot):
    L = [f'    buffer_load_dwordx4 {vr(wslot(slot,u),4)}, v{VL16}, s[16:19], s42 offen offset:{u*1024}' for u in range(4)]
    L.append(f'    buffer_load_dwordx4 {vr(wslot(slot,4),4)}, v{VL16B}, s[16:19], s42 offen\n    s_add_u32 s42, s42, 40960')
    return L
def gstep(A, slot, loads, wait, first=False):
    A(f'    s_waitcnt vmcnt({wait})')
    li = 0; k = 0
    for u in range(5):
        for mt in range(4):
            d = vr(acc(u, mt), 4)
            c = '0' if first else d
            A(f'    v_mfma_f32_16x16x32_bf16 {d}, {vr(wslot(slot,u),4)}, {vr(aslot(slot,mt),4)}, {c}')
            k += 1
            if k % 2 == 0 and li < len(loads):
                A(loads[li]); li += 1
    while li < len(loads):
        A(loads[li]); li += 1
def gemm_ids(A, wsub, opts={}):
    if opts.get('gmap', 1) == 0:
        gm = '''s_and_b32 s34, s32, 3
    s_lshl_b32 s35, s31, 2
    s_add_u32 s34, s34, s35
    s_lshr_b32 s35, s32, 2'''
    else:
        gm = '''s_lshr_b32 s34, s31, 1
    s_lshl_b32 s34, s34, 3
    s_and_b32 s35, s32, 7
    s_add_u32 s34, s34, s35
    s_and_b32 s35, s31, 1
    s_lshl_b32 s35, s35, 2
    s_lshr_b32 s46, s32, 3
    s_add_u32 s35, s35, s46'''
    A(f'''
    s_sub_u32 s33, s30, {wsub}
    {gm}
    s_lshl_b32 s36, s34, 6             ; row0
    s_mul_i32 s43, s35, 5
    v_lshlrev_b32 v{VL16}, 4, v0
    v_add_u32 v{VL16B}, 4096, v{VL16}''')

def gen_gemm(A, opts):
    A('    s_barrier')
    gemm_ids(A, 4, opts)
    A(f'''
    s_mul_i32 s41, s34, 48
    s_mul_i32 s42, s33, 12
    s_add_u32 s41, s41, s42
    s_lshl_b32 s41, s41, 12
    s_add_u32 s41, s41, {WS_H}
    s_mul_i32 s42, s42, 40
    s_add_u32 s42, s42, s43
    s_lshl_b32 s42, s42, 10
    s_add_u32 s42, s42, {WS_W2F}
    s_lshl_b32 s40, s36, 2
    s_add_u32 s40, s40, {WS_G}
    v_lshlrev_b32 v3, 2, v1''')
    stamp(A, opts, 3)
    for mt in range(4):
        A(f'    buffer_load_dword v{GM+mt}, v3, s[16:19], s40 offen offset:{64*mt}')
    gd = opts.get('gdelay', 1)
    if gd:
        wait_lds(A, 'K2_gwait', CK if gd == 1 else C1, 4)
    for sl in range(3):
        for l in loadsW(sl) + loadsA(sl): A(l)
    stamp(A, opts, 4)
    gstep(A, 0, loadsA(3) + loadsW(3), 18, first=True)
    for sl in range(1, 4):
        gstep(A, sl, loadsA((sl + 3) % 4) + loadsW((sl + 3) % 4), 18)
    for sl in range(4):
        gstep(A, sl, loadsA((sl + 3) % 4) + loadsW((sl + 3) % 4), 18)
    gstep(A, 0, loadsA(3) + loadsW(3), 18)
    gstep(A, 1, [], 18)
    gstep(A, 2, [], 9)
    gstep(A, 3, [], 0)
    stamp(A, opts, 5)
    for mt in range(4):
        A(f'    v_sub_f32 v{GM+mt}, 1.0, v{GM+mt}')
    A(f'''
    s_mul_i32 s39, s33, 20480
    s_add_u32 s39, s39, {RED0}
    v_add_u32 v4, s39, v{VL16}
    s_nop 4''')
    for u in range(5):
        for mt in range(4):
            for r in range(4):
                a0 = acc(u, mt) + r
                A(f'    v_mul_f32 v{a0}, v{a0}, v{GM+mt}')
            A(f'    ds_write_b128 v4, {vr(acc(u,mt),4)} offset:{(mt*5+u)*1024}')
    A(f'''
    v_mov_b32 v3, {CG}
    v_mov_b32 v4, 1
    s_waitcnt lgkmcnt(0)
    s_mov_b64 exec, 1
    ds_add_u32 v3, v4
    s_mov_b64 exec, -1''')
    wait_lds(A, 'K2_cg', CG, 4, 1)
    A(f'''
    s_mul_i32 s45, s33, 5120
    s_add_u32 s45, s45, {RED0}
    v_add_u32 v4, s45, v{VL16}
    v_add_u32 v8, {2*20480}, v4''')
    T = RB
    for w in range(4):
        for u in range(5):
            A(f'    ds_read_b128 {vr(T+(w*5+u)*4,4)}, v{4 if w < 2 else 8} offset:{(w%2)*20480 + u*1024}')
    A('    s_waitcnt lgkmcnt(0)')
    for u in range(5):
        for r in range(4):
            t0 = T + u * 4 + r
            A(f'''
    v_add_f32 v{t0}, v{t0}, v{t0+20}
    v_add_f32 v{t0+40}, v{t0+40}, v{t0+60}
    v_add_f32 v{t0}, v{t0}, v{t0+40}''')
    A(f'''
    s_mul_i32 s45, s33, 5120
    s_add_u32 s45, s45, s39
    v_add_u32 v4, s45, v{VL16}''')
    for u in range(5):
        A(f'    ds_write_b128 v4, {vr(T+u*4,4)} offset:{u*1024}')
    A(f'''
    v_mov_b32 v3, {CF}
    v_mov_b32 v4, 1
    s_waitcnt lgkmcnt(0)
    s_mov_b64 exec, 1
    ds_add_u32 v3, v4
    s_waitcnt lgkmcnt(0)
    s_mov_b64 exec, -1''')
    if opts.get('prof'):
        stamp(A, opts, 7)
        stamp_flush(A, opts)

def final_reduce(A, opts):
    T = RB
    OSF = {0: '', 1: ' sc1', 2: ' nt'}[opts.get('osf', 0)]
    A(f'''
    s_mul_i32 s39, s33, 20480
    s_add_u32 s39, s39, {RED0}
    v_add_u32 v4, s39, v{VL16}
    s_nop 7''')
    for mt in range(4):
        A(f'    s_cmp_eq_u32 s33, {mt}\n    s_cbranch_scc1 K2_skipw{mt}')
        for u in range(5):
            A(f'    ds_write_b128 v4, {vr(acc(u,mt),4)} offset:{(mt*5+u)*1024}')
        A(f'    s_branch K2_donew{mt}')
        A(f'K2_skipw{mt}:')
        for u in range(5):
            for r in range(4):
                A(f'    v_mov_b32 v{T+60+u*4+r}, v{acc(u,mt)+r}')
        A(f'K2_donew{mt}:')
    A(f'''
    s_lshl_b32 s45, s33, 4
    s_add_u32 s45, s45, s36
    s_mul_i32 s45, s45, 1280
    s_mul_i32 s46, s35, 160
    s_add_u32 s45, s45, s46
    s_movk_i32 s37, 1280
    v_mul_lo_u32 v5, v1, s37
    v_and_b32 v6, 1, v2
    v_lshlrev_b32 v6, 5, v6
    v_lshrrev_b32 v7, 1, v2
    v_lshl_add_u32 v6, v7, 4, v6
    v_add_u32 v6, v6, v5
    v_lshl_add_u32 v7, v2, 3, v5
    s_mul_i32 s46, s33, 5120
    s_add_u32 s46, s46, {RED0}''')
    for k in range(1, 4):
        A(f'''
    s_add_u32 s47, s33, {k}
    s_and_b32 s47, s47, 3
    s_mul_i32 s47, s47, 20480
    s_add_u32 s47, s47, s46
    v_add_u32 v{8+k}, s47, v{VL16}''')
    A('    s_waitcnt lgkmcnt(0)\n    s_barrier')
    for k in range(1, 4):
        for u in range(5):
            A(f'    ds_read_b128 {vr(T+((k-1)*5+u)*4,4)}, v{8+k} offset:{u*1024}')
    for u in range(5):
        A(f'    s_waitcnt lgkmcnt({14 - (10 + u)})' if False else '')
    A('    s_waitcnt lgkmcnt(0)')
    for u in range(5):
        for r in range(4):
            t0 = T + u * 4 + r
            A(f'''
    v_add_f32 v{t0}, v{t0}, v{t0+20}
    v_add_f32 v{t0+40}, v{t0+40}, v{t0+60}
    v_add_f32 v{t0}, v{t0}, v{t0+40}''')
    P = 16
    for pp in range(2):
        t = P + 4 * pp; d0 = T + 8 * pp; d1 = T + 8 * pp + 4
        A(f'''
    v_cvt_pk_bf16_f32 v{t}, v{d0}, v{d0+1}
    v_cvt_pk_bf16_f32 v{t+1}, v{d0+2}, v{d0+3}
    v_cvt_pk_bf16_f32 v{t+2}, v{d1}, v{d1+1}
    v_cvt_pk_bf16_f32 v{t+3}, v{d1+2}, v{d1+3}
    v_permlane16_swap_b32 v{t}, v{t+2}
    v_permlane16_swap_b32 v{t+1}, v{t+3}
    buffer_store_dwordx4 {vr(t,4)}, v6, s[20:23], s45 offen offset:{64*pp}{OSF}''')
    d0 = T + 16
    A(f'''
    v_cvt_pk_bf16_f32 v24, v{d0}, v{d0+1}
    v_cvt_pk_bf16_f32 v25, v{d0+2}, v{d0+3}
    buffer_store_dwordx2 v[24:25], v7, s[20:23], s45 offen offset:128{OSF}''')
    if opts.get('prof'):
        A('    s_waitcnt vmcnt(0)')
        stamp(A, opts, 7)
        stamp_flush(A, opts)

def gen_gemm_full(A, opts):
    gemm_ids(A, 4, opts)
    A(f'''
    s_waitcnt lgkmcnt(0)
    s_mov_b32 s16, s28
    s_mov_b32 s17, s29
    s_mov_b32 s18, {WS_END}
    s_mov_b32 s19, 0x00020000
    s_mov_b32 s92, s28
    s_mov_b32 s93, s29
    s_mov_b32 s94, {WS_PROF_END}
    s_mov_b32 s95, 0x00020000
    s_barrier
    s_mov_b32 s20, s90
    s_mov_b32 s21, s91
    s_mov_b32 s22, 2621440
    s_mov_b32 s23, 0x00020000
    s_mul_i32 s41, s34, 48
    s_mul_i32 s42, s33, 12
    s_add_u32 s41, s41, s42
    s_lshl_b32 s41, s41, 12
    s_add_u32 s41, s41, {WS_H}
    s_mul_i32 s42, s42, 40
    s_add_u32 s42, s42, s43
    s_lshl_b32 s42, s42, 10
    s_add_u32 s42, s42, {WS_W2F}
    s_lshl_b32 s40, s36, 2
    s_add_u32 s40, s40, {WS_G}
    v_lshlrev_b32 v3, 2, v1''')
    rot = opts.get('rot2', 0)
    if rot:
        A(f'''
    s_and_b32 s46, s34, 3
    s_mul_i32 s46, s46, 3
    s_mul_hi_u32 s47, s35, 0x55555556
    s_mul_i32 s47, s47, 3
    s_sub_u32 s47, s35, s47
    s_add_u32 s48, s46, s47
    s_lshl_b32 s46, s48, 12
    s_add_u32 s41, s41, s46
    s_mul_i32 s46, s48, 40960
    s_add_u32 s42, s42, s46''')
    WRAP = f'''
    s_add_u32 s48, s48, 1
    s_cmp_eq_u32 s48, 12
    s_cselect_b32 s46, {12*4096}, 0
    s_cselect_b32 s47, {12*40960}, 0
    s_cselect_b32 s48, 0, s48
    s_sub_u32 s41, s41, s46
    s_sub_u32 s42, s42, s47''' if rot else ''
    def stage_loads(sl, wfirst=False):
        L = (loadsW(sl) + loadsA(sl)) if wfirst else (loadsA(sl) + loadsW(sl))
        L[-1] += WRAP
        return L
    stamp(A, opts, 3)
    for mt in range(4):
        A(f'    buffer_load_dword v{GM+mt}, v3, s[16:19], s40 offen offset:{64*mt}')
    gd = opts.get('gdelay', 1)
    if gd:
        wait_lds(A, 'K2_gwait', CK if gd == 1 else C1, 4)
    for sl in range(3):
        for l in stage_loads(sl, True): A(l)
    stamp(A, opts, 4)
    gstep(A, 0, stage_loads(3), 18, first=True)
    for sl in range(1, 4):
        gstep(A, sl, stage_loads((sl + 3) % 4), 18)
    for sl in range(4):
        gstep(A, sl, stage_loads((sl + 3) % 4), 18)
    gstep(A, 0, stage_loads(3), 18)
    A(f'''
    s_mul_i32 s42, s33, 240
    s_add_u32 s42, s42, s43
    s_lshl_b32 s42, s42, 10
    s_add_u32 s42, s42, {WS_WOF}''')
    gstep(A, 1, loadsW(0), 18)
    gstep(A, 2, loadsW(1), 9 + 5)
    gstep(A, 3, loadsW(2), 5 + 5)
    stamp(A, opts, 5)
    for l in loadsW(3): A(l)
    for mt in range(4):
        A(f'    v_sub_f32 v{GM+mt}, 1.0, v{GM+mt}')
    A(f'''
    s_lshl_b32 s45, s34, 5
    s_lshl_b32 s46, s33, 3
    s_add_u32 s45, s45, s46
    s_lshl_b32 s45, s45, 2
    s_add_u32 s45, s45, {WS_FLAG2}
    s_mul_i32 s41, s34, 24
    s_mul_i32 s44, s33, 6
    s_add_u32 s41, s41, s44
    s_lshl_b32 s41, s41, 12
    s_add_u32 s41, s41, {WS_OP}
    s_nop 2''')
    for u in range(5):
        for mt in range(4):
            for r in range(4):
                a0 = acc(u, mt) + r
                A(f'    v_mul_f32 v{a0}, v{a0}, v{GM+mt}')
    poll_all(A, 'K2_s2', 's45', 2, opts.get('psleep2', 1))
    stamp(A, opts, 6)
    for sl in range(4):
        for l in loadsA(sl, ' sc1'): A(l)
    gstep(A, 0, [], 12)
    gstep(A, 1, loadsA(0, ' sc1') + loadsW(0), 8)
    gstep(A, 2, loadsA(1, ' sc1') + loadsW(1), 4 + 9)
    gstep(A, 3, [], 18)
    gstep(A, 0, [], 9)
    gstep(A, 1, [], 0)
    final_reduce(A, opts)

def gen_wo(A, opts):
    gemm_ids(A, 0, opts)
    A(f'''
    s_mov_b32 s20, s90
    s_mov_b32 s21, s91
    s_mov_b32 s22, 2621440
    s_mov_b32 s23, 0x00020000
    s_mul_i32 s42, s33, 240
    s_add_u32 s42, s42, s43
    s_lshl_b32 s42, s42, 10
    s_add_u32 s42, s42, {WS_WOF}''')
    for sl in range(4):
        for l in loadsW(sl): A(l)
    A(f'''
    s_lshl_b32 s45, s34, 5
    s_lshl_b32 s46, s33, 3
    s_add_u32 s45, s45, s46
    s_lshl_b32 s45, s45, 2
    s_add_u32 s45, s45, {WS_FLAG2}
    s_mul_i32 s41, s34, 24
    s_mul_i32 s44, s33, 6
    s_add_u32 s41, s41, s44
    s_lshl_b32 s41, s41, 12
    s_add_u32 s41, s41, {WS_OP}''')
    poll_all(A, 'K2_s2', 's45', 2, opts.get('psleep2', 1))
    stamp(A, opts, 6)
    for sl in range(4):
        for l in loadsA(sl, ' sc1'): A(l)
    gstep(A, 0, [], 12, first=True)
    stamp(A, opts, 3)
    gstep(A, 1, loadsA(0, ' sc1') + loadsW(0), 8)
    gstep(A, 2, loadsA(1, ' sc1') + loadsW(1), 4 + 9)
    gstep(A, 3, [], 18)
    gstep(A, 0, [], 9)
    gstep(A, 1, [], 0)
    stamp(A, opts, 1)
    wait_lds(A, 'K2_cf', CF, 4, 1)
    A(f'''
    s_mul_i32 s39, s33, 20480
    s_add_u32 s39, s39, {RED0}
    v_add_u32 v4, s39, v{VL16}
    s_mul_i32 s45, s33, 5120
    s_add_u32 s45, s45, s39
    v_add_u32 v5, s45, v{VL16}''')
    T = RB
    for mt in range(4):
        A(f'    s_cmp_eq_u32 s33, {mt}\n    s_cbranch_scc1 K2_skipw{mt}')
        for u in range(5):
            A(f'    ds_write_b128 v4, {vr(acc(u,mt),4)} offset:{(mt*5+u)*1024}')
        A(f'    s_branch K2_donew{mt}')
        A(f'K2_skipw{mt}:')
        for u in range(5):
            for r in range(4):
                A(f'    v_mov_b32 v{T+100+u*4+r}, v{acc(u,mt)+r}')
        A(f'K2_donew{mt}:')
    A('    s_waitcnt lgkmcnt(0)\n    s_barrier')
    stamp(A, opts, 2)
    A(f'''
    s_mul_i32 s45, s33, 5120
    s_add_u32 s45, s45, {RED0}
    v_add_u32 v4, s45, v{VL16}
    v_add_u32 v8, {2*20480}, v4''')
    for w in range(4):
        for u in range(5):
            A(f'    ds_read_b128 {vr(T+(w*5+u)*4,4)}, v{4 if w < 2 else 8} offset:{(w%2)*20480 + u*1024}')
    A(f'''
    s_lshl_b32 s45, s33, 4
    s_add_u32 s45, s45, s36
    s_mul_i32 s45, s45, 1280
    s_mul_i32 s46, s35, 160
    s_add_u32 s45, s45, s46
    s_movk_i32 s37, 1280
    v_mul_lo_u32 v5, v1, s37
    v_and_b32 v6, 1, v2
    v_lshlrev_b32 v6, 5, v6
    v_lshrrev_b32 v7, 1, v2
    v_lshl_add_u32 v6, v7, 4, v6
    v_add_u32 v6, v6, v5
    v_lshl_add_u32 v7, v2, 3, v5
    s_waitcnt lgkmcnt(0)''')
    for u in range(5):
        for r in range(4):
            t0 = T + u * 4 + r
            A(f'''
    v_add_f32 v{t0}, v{t0}, v{t0+20}
    v_add_f32 v{t0+40}, v{t0+40}, v{t0+60}
    v_add_f32 v{t0}, v{t0}, v{t0+100}
    v_add_f32 v{t0}, v{t0}, v{t0+40}''')
    P = 16
    for pp in range(2):
        t = P + 4 * pp; d0 = T + 8 * pp; d1 = T + 8 * pp + 4
        A(f'''
    v_cvt_pk_bf16_f32 v{t}, v{d0}, v{d0+1}
    v_cvt_pk_bf16_f32 v{t+1}, v{d0+2}, v{d0+3}
    v_cvt_pk_bf16_f32 v{t+2}, v{d1}, v{d1+1}
    v_cvt_pk_bf16_f32 v{t+3}, v{d1+2}, v{d1+3}
    v_permlane16_swap_b32 v{t}, v{t+2}
    v_permlane16_swap_b32 v{t+1}, v{t+3}
    buffer_store_dwordx4 {vr(t,4)}, v6, s[20:23], s45 offen offset:{64*pp}''')
    d0 = T + 16
    A(f'''
    v_cvt_pk_bf16_f32 v24, v{d0}, v{d0+1}
    v_cvt_pk_bf16_f32 v25, v{d0+2}, v{d0+3}
    buffer_store_dwordx2 v[24:25], v7, s[20:23], s45 offen offset:128''')
    if opts.get('prof'):
        A('    s_waitcnt vmcnt(0)')
        stamp(A, opts, 7)
        stamp_flush(A, opts)
    A('    s_branch KF_done')

def desc(name, vg):
    return f'''
.amdhsa_kernel {name}
  .amdhsa_next_free_vgpr {vg}
  .amdhsa_next_free_sgpr 102
  .amdhsa_accum_offset {vg}
  .amdhsa_group_segment_fixed_size 0
  .amdhsa_kernarg_size 80
  .amdhsa_user_sgpr_count 2
  .amdhsa_user_sgpr_kernarg_segment_ptr 1
  .amdhsa_system_sgpr_workgroup_id_x 1
.end_amdhsa_kernel
'''

if __name__ == '__main__':
    import sys
    out = sys.argv[1]
    opts = {}
    for kv in sys.argv[2:]:
        k, v = kv.split('=')
        opts[k] = int(v)
    HEADER = open('gated_mix__sliding_block__dense_activation_relu__prompt.s.ref').read().split('; Override launch')[0]
    o1 = dict(opts); o2 = dict(opts)
    if opts.get('prof') == 2: o1.pop('prof')
    a1 = Asm(); gen_k1(a1, o1)
    a2 = Asm(); gen_k2(a2, o2)
    txt = HEADER + f'; @launch kernel=k1_kernel grid=(256,1,1) block=(512,1,1) lds={LDS_BYTES}\n'
    if not opts.get('k1only'): txt += f'; @launch kernel=k2_kernel grid=(256,1,1) block=(512,1,1) lds={K2_LDS}\n'
    txt += '.amdgcn_target "amdgcn-amd-amdhsa--gfx950"\n.text\n'
    txt += '.globl k1_kernel\n.p2align 8\n.type k1_kernel,@function\n' + a1.fix() + '\n'
    txt += '.globl k2_kernel\n.p2align 8\n.type k2_kernel,@function\n' + a2.fix() + '\n'
    txt += '.section .rodata,"a"\n.p2align 6' + desc('k1_kernel', 232) + '.p2align 6' + desc('k2_kernel', 248)
    open(out, 'w').write(txt)
```

```python
from asmlib import *

WS_QK   = 0x000000
WS_VT   = 0x600000
WS_H    = 0x900000
WS_OP   = 0xF00000
WS_W2F  = 0x1200000
WS_WOF  = 0x13E0000
WS_G    = 0x14D0000
WS_FLAG2 = 0x14D2000
WS_ONES = 0x14D3000
WS_END  = 0x14D3100
WS_PROF = 0x1500000
WS_PROF_END = 0x1600000
LDS_BYTES = 163840
PK = 147456
C1 = 46336; CK = C1 + 4; CA = C1 + 8
KL = 0; VL = 24832; RED0 = 46592; K2_LDS = RED0 + 4*20480
KNAME = 'gated_mix__sliding_block__dense_activation_relu__prompt_kernel'

def stamp(A, opts, idx):
    if not opts.get('prof'): return
    A(f'    s_memtime s[{70+2*idx}:{71+2*idx}]')
    if idx == 0 or idx == 7:
        A(f'    s_memrealtime s[{86+2*(idx != 0)}:{87+2*(idx != 0)}]')

def stamp_flush(A, opts):
    if not opts.get('prof'): return
    A(f'''
    s_waitcnt lgkmcnt(0)
    s_lshl_b32 s96, s2, 4
    s_add_u32 s96, s96, s30
    s_lshl_b32 s96, s96, 7
    s_add_u32 s96, s96, {WS_PROF}
    v_mov_b32 v100, s96
    s_mov_b64 exec, 1''')
    for i in range(20):
        A(f'    v_mov_b32 v101, s{70+i}\n    buffer_store_dword v101, v100, s[92:95], 0 offen offset:{4*i}')
    A('    s_mov_b64 exec, -1')

def gen_k1(a, opts):
    A = a
    SF = {0: '', 1: ' sc1'}[opts.get('sf', 1)]
    A('k1_kernel:')
    A('''
    s_cmp_ge_u32 s2, 256
    s_cbranch_scc1 K1_done
    s_getpc_b64 s[60:61]''')
    stamp(A, opts, 0)
    A(f'''
    s_load_dwordx2 s[4:5], s[0:1], 0
    s_load_dwordx4 s[64:67], s[0:1], 8
    s_load_dwordx4 s[24:27], s[0:1], 32
    s_load_dwordx2 s[68:69], s[0:1], 48
    s_load_dwordx2 s[28:29], s[0:1], 72
    v_lshrrev_b32 v1, 6, v0
    v_and_b32 v0, 63, v0
    v_readfirstlane_b32 s30, v1
    s_and_b32 s31, s2, 7
    s_lshr_b32 s32, s2, 3
    s_cmp_lt_u32 s32, {opts.get('cpf', 1)}
    s_cbranch_scc0 K1_nocpf
    s_cmp_lt_u32 s30, 3
    s_cbranch_scc0 K1_nocpf
    s_lshl_b32 s46, s30, 13
    v_lshlrev_b32 v10, 7, v0
    v_add_u32 v10, s46, v10
    global_load_dword v226, v10, s[60:61]
K1_nocpf:
    s_and_b32 s33, s31, 1
    s_lshl_b32 s33, s33, 3
    s_and_b32 s34, s32, 7
    s_add_u32 s33, s33, s34
    s_lshr_b32 s34, s31, 1
    s_lshl_b32 s34, s34, 2
    s_lshr_b32 s35, s32, 3
    s_add_u32 s34, s34, s35
    s_lshl_b32 s40, s33, 7
    s_cmp_lt_u32 s34, 6
    s_cbranch_scc1 K1_sec_qk
    s_cmp_lt_u32 s34, 9
    s_cbranch_scc1 K1_sec_v
    s_mov_b32 s36, 2
    s_sub_u32 s37, s34, 9
    s_mul_i32 s37, s37, 14
    s_mov_b32 s62, s37
    s_min_u32 s37, s37, 82
    s_lshl_b32 s38, s37, 5
    s_mov_b32 s39, 3072
    s_branch K1_sec_done
K1_sec_qk:
    s_mov_b32 s36, 0
    s_mul_i32 s37, s34, 14
    s_mov_b32 s62, s37
    s_min_u32 s37, s37, 66
    s_lshl_b32 s38, s37, 5
    s_mov_b32 s39, 3840
    s_branch K1_sec_done
K1_sec_v:
    s_mov_b32 s36, 1
    s_sub_u32 s37, s34, 6
    s_mul_i32 s37, s37, 14
    s_mov_b32 s62, s37
    s_min_u32 s37, s37, 26
    s_lshl_b32 s38, s37, 5
    s_add_u32 s38, s38, 2560
    s_mov_b32 s39, 3840
K1_sec_done:
    s_cmp_ge_u32 s30, 4
    s_cbranch_scc{'0 K1_compute' if opts.get('lfirst', 0) else '1 K1_loader'}
    ''')
    if opts.get('lfirst', 0):
        gen_p1_loader(A, opts, SF)
        A('    s_branch KF_p1done')
        A('K1_compute:')
        gen_p1_compute(A, opts, SF)
    else:
        gen_p1_compute(A, opts, SF)
        gen_p1_loader(A, opts, SF)
    A('KF_p1done:')
    if opts.get('prof') == 1:
        stamp(A, opts, 6)
        A('    s_waitcnt vmcnt(0)')
        stamp(A, opts, 7); stamp_flush(A, opts)
    A('K1_done:\n    s_endpgm')

def gen_k2(a, opts):
    A = a
    A('k2_kernel:')
    A('''
    s_cmp_ge_u32 s2, 256
    s_cbranch_scc1 KF_done''')
    stamp(A, opts, 0)
    A(f'''
    s_load_dwordx2 s[90:91], s[0:1], 56
    s_load_dwordx2 s[28:29], s[0:1], 72
    v_lshrrev_b32 v1, 6, v0
    v_and_b32 v0, 63, v0
    v_readfirstlane_b32 s30, v1
    s_and_b32 s31, s2, 7
    s_lshr_b32 s32, s2, 3
    v_and_b32 v1, 15, v0
    v_lshrrev_b32 v2, 4, v0
    s_mov_b32 s97, 1
    s_cmp_eq_u32 s30, 0
    s_cbranch_scc0 K2_noinit
    v_mov_b32 v8, 0
    v_mov_b32 v9, {C1}
    ds_write_b32 v9, v8 offset:0
    ds_write_b32 v9, v8 offset:4
    ds_write_b32 v9, v8 offset:8
    ds_write_b32 v9, v8 offset:12
    ds_write_b32 v9, v8 offset:16
    ds_write_b32 v9, v8 offset:20
    ds_write_b32 v9, v8 offset:24
K2_noinit:
    s_cmp_ge_u32 s30, 4
    s_cbranch_scc1 K2_gemm''')
    fbk = gen_attn(A, opts)
    A('K2_gemm:')
    if opts.get('wo_attn', 0): gen_gemm(A, opts)
    else: gen_gemm_full(A, opts)
    A('KF_done:\n    s_endpgm')
    fbk()

def wait_lds(A, label, addr, val, sleep=2):
    A(f'''
    v_mov_b32 v8, {addr}
{label}:
    ds_read_b32 v9, v8
    s_waitcnt lgkmcnt(0)
    v_readfirstlane_b32 s58, v9
    s_cmp_lt_u32 s58, {val}
    s_cbranch_scc0 {label}_ok
    s_sleep {sleep}
    s_branch {label}
{label}_ok:''')

def poll_all(A, label, base, n_lanes_x4, sleep=1):
    A(f'''
    v_lshlrev_b32 v3, 4, v0
    v_mov_b32 v8, 0x80000000
    v_cmp_gt_u32 vcc, {n_lanes_x4}, v0
    v_cndmask_b32 v3, v8, v3, vcc
    s_mov_b64 s[56:57], vcc
{label}:
    buffer_load_dwordx4 v[4:7], v3, s[16:19], {base} offen sc1
    s_waitcnt vmcnt(0)
    v_xor_b32 v4, s97, v4
    v_xor_b32 v5, s97, v5
    v_xor_b32 v6, s97, v6
    v_xor_b32 v7, s97, v7
    v_or3_b32 v4, v4, v5, v6
    v_or_b32 v4, v4, v7
    v_cmp_ne_u32 vcc, 0, v4
    s_and_b64 vcc, vcc, s[56:57]
    s_cbranch_vccz {label}_ok
    s_sleep {sleep}
    s_branch {label}
{label}_ok:''')

def k1_srds(A, tag):
    A(f'''
    s_waitcnt lgkmcnt(0)
    s_mov_b32 s8, s4
    s_mov_b32 s9, s5
    s_mov_b32 s10, 2621440
    s_mov_b32 s11, 0x00020000
    s_mov_b32 s15, 0x00020000
    s_cmp_eq_u32 s36, 2
    s_cbranch_scc1 K1_srd_h{tag}
    s_mov_b32 s12, s64
    s_mov_b32 s13, s65
    s_mov_b32 s14, 2457600
    s_branch K1_srd_d{tag}
K1_srd_h{tag}:
    s_mov_b32 s12, s24
    s_mov_b32 s13, s25
    s_mov_b32 s14, 1966080
K1_srd_d{tag}:
    s_mov_b32 s16, s28
    s_mov_b32 s17, s29
    s_mov_b32 s18, {WS_END}
    s_mov_b32 s19, 0x00020000
    s_mov_b32 s92, s28
    s_mov_b32 s93, s29
    s_mov_b32 s94, {WS_PROF_END}
    s_mov_b32 s95, 0x00020000''')

def gen_p1_compute(A, opts, SF):
    ACC = 16
    def acc(uu, mt): return ACC + (uu * 4 + mt) * 4
    XS = [128, 172]; WSs = [144, 188]
    VAX = [216, 217]; VW = 218
    T = 128
    A(f'''
    s_and_b32 s41, s30, 1
    s_lshr_b32 s42, s30, 1
    v_and_b32 v1, 15, v0
    v_lshrrev_b32 v2, 4, v0
    v_and_b32 v3, 7, v1
    v_xor_b32 v3, v2, v3
    v_lshlrev_b32 v3, 4, v3
    v_lshl_add_u32 v3, v1, 7, v3
    s_lshl_b32 s43, s41, 13
    v_add_u32 v{VAX[0]}, s43, v3
    v_xor_b32 v{VAX[1]}, 64, v{VAX[0]}
    v_lshrrev_b32 v4, 2, v1
    v_and_b32 v5, 3, v0
    v_and_b32 v6, 1, v2
    v_lshl_or_b32 v6, v6, 2, v4
    v_lshl_add_u32 v7, v2, 3, v4
    v_lshlrev_b32 v7, 9, v7
    v_lshl_add_u32 v7, v5, 3, v7
    v_add_u32 v7, 16384, v7
    s_lshl_b32 s44, s42, 3
    s_add_u32 s45, s42, 6
    ''')
    for uu in range(7):
        if uu < 6: A(f'    s_add_u32 s46, s44, {uu}\n    v_xor_b32 v8, s46, v6')
        else:      A(f'    v_xor_b32 v8, s45, v6')
        A(f'    v_lshl_add_u32 v{VW+uu}, v8, 5, v7')
    for r in range(ACC, ACC + 112):
        A(f'    v_mov_b32 v{r}, 0')
    def reads(st, ks):
        R = []
        for mt in range(4):
            R.append(f'    ds_read_b128 {vr(XS[st]+4*mt,4)}, v{VAX[ks]} offset:{mt*2048}')
        for uu in range(7):
            for t in range(2):
                R.append(f'    ds_read_b64_tr_b16 {vr(WSs[st]+4*uu+2*t,2)}, v{VW+uu} offset:{(32*ks+4*t)*512}')
        return R
    def phase(st, rd, swapped, extra=()):
        k = 0
        extra = list(extra)
        for uu in range(7):
            for mt in range(4):
                w = vr(WSs[st] + 4 * uu, 4); x = vr(XS[st] + 4 * mt, 4); d = vr(acc(uu, mt), 4)
                if swapped: A(f'    v_mfma_f32_16x16x32_bf16 {d}, {w}, {x}, {d}')
                else:       A(f'    v_mfma_f32_16x16x32_bf16 {d}, {x}, {w}, {d}')
                if k < len(rd): A(rd[k])
                elif extra: A(extra.pop(0))
                k += 1
        for e in extra: A(e)
    def mainloop(tag, swapped):
        A(f'''
    s_mov_b32 s46, 0
    s_mov_b32 s47, 0
    s_mov_b32 s50, 0xfffe8000
    s_mov_b32 s51, 49152
    s_barrier''')
        stamp(A, opts, 2)
        for l in reads(0, 0): A(l)
        A(f'K1_loop_{tag}:')
        A('''
    s_add_u32 s47, s47, 1
    s_cmp_eq_u32 s47, 3
    s_cselect_b32 s48, s50, s51
    s_cselect_b32 s47, 0, s47
    s_waitcnt lgkmcnt(0)''')
        upd = [f'    v_add_u32 v{r}, s48, v{r}' for r in VAX + [VW + i for i in range(7)]]
        phase(0, reads(1, 1), swapped, upd)
        A('''
    s_waitcnt lgkmcnt(0)
    s_barrier''')
        phase(1, reads(0, 0), swapped, ['    s_add_u32 s46, s46, 1', '    s_cmp_lt_u32 s46, 10'])
        A(f'''
    s_cbranch_scc1 K1_loop_{tag}
    s_waitcnt lgkmcnt(0)
    s_nop 7''')
        stamp(A, opts, 1)
    k1_srds(A, 'c')
    if opts.get('tpre', 0):
        S0 = opts.get('tpre0', 2)
        A(f'''
    v_and_b32 v9, 31, v0
    v_lshrrev_b32 v10, 5, v0
    s_lshl_b32 s46, s35, 5
    s_add_u32 s46, s46, s40
    v_add_u32 v11, s46, v9
    s_movk_i32 s47, 1280
    v_mul_lo_u32 v11, v11, s47
    s_lshl_b32 s46, s30, 1
    s_add_u32 s46, s46, {S0}
    v_add_u32 v12, s46, v10
    v_lshl_add_u32 v11, v12, 7, v11
    v_mov_b32 v13, 0x80000000
    v_cmp_gt_u32 vcc, 10, v12
    v_cndmask_b32 v11, v13, v11, vcc
    v_lshlrev_b32 v12, 6, v12
    s_and_b32 s46, s32, 7
    s_lshl_b32 s46, s46, 3
    v_bfe_u32 v13, v0, 2, 3
    v_add3_u32 v12, v12, s46, v13
    v_mul_lo_u32 v12, v12, s39
    v_and_b32 v13, 3, v0
    v_lshl_add_u32 v12, v13, 7, v12
    s_and_b32 s46, s38, 0xffffff80
    v_add_u32 v12, s46, v12
    {f's_sleep {opts.get("tsleep")}' if opts.get('tsleep') else ''}
    buffer_load_dword v227, v12, s[12:15], 0 offen
    buffer_load_dword v226, v11, s[8:11], 0 offen''')
    if opts.get('tlbw', 0):
        G = opts.get('tlbw')
        A(f'''
    s_cmp_eq_u32 s32, 0
    s_cbranch_scc0 K1_notlb
    s_cmp_eq_u32 s30, 3
    s_cbranch_scc0 K1_notlb
    v_lshlrev_b32 v10, {G}, v0
    buffer_load_dword v227, v10, s[16:19], 0 offen
    s_load_dwordx2 s[62:63], s[0:1], 56
    s_waitcnt lgkmcnt(0)
    s_mov_b32 s20, s62
    s_mov_b32 s21, s63
    s_mov_b32 s22, 2621440
    s_mov_b32 s23, 0x00020000
    buffer_load_dword v228, v10, s[20:23], 0 offen
K1_notlb:''')
    for r in range(9, 15): A(f'    v_mov_b32 v{r}, 0x80000000')
    A('''
    s_cmp_eq_u32 s36, 1
    s_cbranch_scc1 K1_main_v
    s_cmp_eq_u32 s36, 2
    s_cbranch_scc1 K1_pre_h''')
    A(f'''
    s_lshl_b32 s43, s41, 2
    s_lshr_b32 s46, s40, 4
    s_add_u32 s43, s43, s46
    s_mul_i32 s43, s43, 768
    v_lshlrev_b32 v3, 3, v1
    v_add_u32 v3, s43, v3
    s_mov_b32 s49, 52429
    s_mov_b32 s52, 98304
    s_mov_b32 s53, 0x3ea52b5c''')
    for uu in range(7):
        if uu < 6: A(f'    s_add_u32 s46, s44, {uu}')
        else:      A(f'    s_mov_b32 s46, s45')
        A(f'''
    s_add_u32 s46, s46, s37
    s_cmp_lt_u32 s46, s62
    s_cselect_b32 s47, 0x80000000, 0
    s_lshl_b32 s46, s46, 2
    v_add_u32 v4, s46, v2
    v_mul_lo_u32 v5, v4, s49
    v_lshrrev_b32 v5, 18, v5
    v_mul_u32_u24 v6, 5, v5
    v_sub_u32 v6, v4, v6
    v_mul_lo_u32 v5, v5, s52
    v_lshl_add_u32 v5, v6, 7, v5
    v_add3_u32 v{8+uu}, v5, v3, s47''')
    A('    s_branch K1_pre_done')
    A(f'''K1_pre_h:
    s_lshl_b32 s43, s33, 1
    s_add_u32 s43, s43, s41
    s_mul_i32 s43, s43, {48*4096}
    s_add_u32 s43, s43, {WS_H}
    s_add_u32 s56, s37, s44
    s_lshl_b32 s56, s56, 11
    s_add_u32 s56, s56, s43
    v_and_b32 v4, 1, v2
    v_lshlrev_b32 v4, 1, v4
    v_lshrrev_b32 v5, 1, v2
    v_add_u32 v4, v4, v5
    v_lshl_add_u32 v4, v4, 4, v1
    v_lshlrev_b32 v4, 4, v4
    s_add_u32 s57, s37, 6
    s_lshl_b32 s57, s57, 11
    s_add_u32 s57, s57, s43
    s_lshl_b32 s48, s42, 1
    v_add_u32 v5, s48, v5
    v_lshl_add_u32 v5, v5, 4, v1
    v_lshlrev_b32 v5, 4, v5
    v_and_b32 v6, 1, v2
    v_lshl_add_u32 v5, v6, 10, v5
K1_pre_done:''')
    mainloop('s', True)
    A('''
    s_cmp_eq_u32 s36, 2
    s_cbranch_scc1 K1_epi_h''')
    for uu in range(7):
        if uu < 6: A(f'    s_add_u32 s46, s44, {uu}')
        else:      A(f'    s_mov_b32 s46, s45')
        A(f'''
    s_add_u32 s46, s46, s37
    s_cmp_lt_u32 s46, 40
    s_cselect_b32 s54, s53, 1.0
    s_mov_b32 s55, s54''')
        for mt in range(4):
            d = acc(uu, mt); t = T + (uu * 4 + mt) * 2
            A(f'''
    v_pk_mul_f32 {vr(d,2)}, {vr(d,2)}, s[54:55]
    v_pk_mul_f32 {vr(d+2,2)}, {vr(d+2,2)}, s[54:55]
    v_cvt_pk_bf16_f32 v{t}, v{d}, v{d+1}
    v_cvt_pk_bf16_f32 v{t+1}, v{d+2}, v{d+3}
    buffer_store_dwordx2 {vr(t,2)}, v{8+uu}, s[16:19], 0 offen offset:{WS_QK + mt*768}{SF}''')
    A('    s_branch KF_p1done')
    A('K1_epi_h:')
    n = 0
    for pp in range(3):
        A(f'    s_add_u32 s49, s56, {pp*4096}\n    s_add_u32 s46, s37, s44\n    s_add_u32 s46, s46, {2*pp}\n    s_cmp_lt_u32 s46, s62\n    s_cselect_b32 s49, 0x7f000000, s49')
        for mt in range(4):
            t = T + n * 4; n += 1
            d0 = acc(2 * pp, mt); d1 = acc(2 * pp + 1, mt)
            A(f'''
    v_cvt_pk_bf16_f32 v{t}, v{d0}, v{d0+1}
    v_cvt_pk_bf16_f32 v{t+1}, v{d0+2}, v{d0+3}
    v_cvt_pk_bf16_f32 v{t+2}, v{d1}, v{d1+1}
    v_cvt_pk_bf16_f32 v{t+3}, v{d1+2}, v{d1+3}
    v_pk_max_i16 v{t}, v{t}, 0
    v_pk_max_i16 v{t+1}, v{t+1}, 0
    v_pk_max_i16 v{t+2}, v{t+2}, 0
    v_pk_max_i16 v{t+3}, v{t+3}, 0
    v_permlane16_swap_b32 v{t}, v{t+2}
    v_permlane16_swap_b32 v{t+1}, v{t+3}
    buffer_store_dwordx4 {vr(t,4)}, v4, s[16:19], s49 offen offset:{1024*mt}{SF}''')
    for pm in range(2):
        t = T + n * 4; n += 1
        d0 = acc(6, 2 * pm); d1 = acc(6, 2 * pm + 1)
        A(f'''
    v_cvt_pk_bf16_f32 v{t}, v{d0}, v{d0+1}
    v_cvt_pk_bf16_f32 v{t+1}, v{d0+2}, v{d0+3}
    v_cvt_pk_bf16_f32 v{t+2}, v{d1}, v{d1+1}
    v_cvt_pk_bf16_f32 v{t+3}, v{d1+2}, v{d1+3}
    v_pk_max_i16 v{t}, v{t}, 0
    v_pk_max_i16 v{t+1}, v{t+1}, 0
    v_pk_max_i16 v{t+2}, v{t+2}, 0
    v_pk_max_i16 v{t+3}, v{t+3}, 0
    v_permlane16_swap_b32 v{t}, v{t+2}
    v_permlane16_swap_b32 v{t+1}, v{t+3}
    buffer_store_dwordx4 {vr(t,4)}, v5, s[16:19], s57 offen offset:{2048*pm}{SF}''')
    A('    s_branch KF_p1done')
    A('K1_main_v:')
    A(f'''
    s_lshl_b32 s43, s41, 1
    s_lshr_b32 s46, s40, 5
    s_add_u32 s43, s43, s46
    s_lshl_b32 s43, s43, 10
    s_add_u32 s43, s43, {WS_VT}
    v_lshlrev_b32 v3, 4, v0
    v_add_u32 v3, s43, v3''')
    for uu in range(7):
        if uu < 6: A(f'    s_add_u32 s46, s44, {uu}')
        else:      A(f'    s_mov_b32 s46, s45')
        A(f'''
    s_add_u32 s46, s46, s37
    s_cmp_lt_u32 s46, s62
    s_cselect_b32 s47, 0x80000000, 0
    s_lshl_b32 s46, s46, 16
    s_or_b32 s46, s46, s47
    v_add_u32 v{8+uu}, s46, v3''')
    mainloop('n', False)
    for uu in range(7):
        for pa in range(2):
            t = T + (uu * 2 + pa) * 4
            d0 = acc(uu, 2 * pa); d1 = acc(uu, 2 * pa + 1)
            A(f'''
    v_cvt_pk_bf16_f32 v{t}, v{d0}, v{d0+1}
    v_cvt_pk_bf16_f32 v{t+1}, v{d0+2}, v{d0+3}
    v_cvt_pk_bf16_f32 v{t+2}, v{d1}, v{d1+1}
    v_cvt_pk_bf16_f32 v{t+3}, v{d1+2}, v{d1+3}
    buffer_store_dwordx4 {vr(t,4)}, v{8+uu}, s[16:19], 0 offen offset:{1024*pa}{SF}''')
    A('    s_branch KF_p1done')

def gen_p1_loader(A, opts, SF):
    rm = opts.get('rotmode', 0)
    if rm == 0:
        ROT = f'''s_add_u32 s46, s46, s47
    s_and_b32 s46, s46, {opts.get('rotng', 2) - 1}
    s_mul_i32 s90, s46, {opts.get('rotr', 3)}'''
    else:
        ROT = f'''s_mul_i32 s46, s46, {opts.get('rota', 1)}
    s_mul_i32 s47, s47, {opts.get('rotb', 3)}
    s_add_u32 s90, s46, s47
    s_mul_hi_u32 s46, s90, 0x1999999a
    s_mul_i32 s46, s46, 10
    s_sub_u32 s90, s90, s46'''
    A(f'''K1_loader:
    s_sub_u32 s41, s30, 4
    v_lshrrev_b32 v1, 3, v0
    v_and_b32 v2, 7, v0
    v_lshlrev_b32 v21, 4, v2
    v_xor_b32 v2, v2, v1
    v_lshlrev_b32 v2, 4, v2
    s_movk_i32 s43, 1280
    v_mul_lo_u32 v1, v1, s43
    v_add_u32 v2, v2, v1
    v_add_u32 v21, v21, v1
    v_lshrrev_b32 v4, 5, v0
    s_and_b32 s44, s41, 1
    s_lshr_b32 s45, s41, 1
    s_lshl_b32 s46, s44, 1
    s_lshl_b32 s47, s45, 2
    s_or_b32 s46, s46, s47
    v_or_b32 v5, s46, v4
    v_bfe_u32 v6, v0, 1, 4
    v_xor_b32 v6, v6, v5
    v_mul_lo_u32 v7, v4, s39
    v_lshl_add_u32 v7, v6, 5, v7
    v_and_b32 v8, 1, v0
    v_lshl_add_u32 v3, v8, 4, v7
    v_mov_b32 v9, 0x80000000
    v_cmp_le_u32 vcc, 14, v6
    v_cndmask_b32 v3, v3, v9, vcc
    s_lshl_b32 s50, s41, 5
    s_add_u32 s50, s50, s40
    s_mul_i32 s50, s50, 1280
    s_add_u32 s52, s44, s47
    s_lshl_b32 s53, s52, 1
    s_mul_i32 s51, s53, s39
    s_add_u32 s51, s51, s38
    s_lshl_b32 s54, s39, 2
    s_mul_i32 s55, s39, 12
    s_lshl_b32 s56, s39, 6
    s_lshl_b32 s57, s41, 12
    s_lshl_b32 s58, s52, 10
    s_add_u32 s58, s58, 16384
    s_mov_b32 s59, 0
    s_and_b32 s46, s32, 7
    s_lshr_b32 s47, s32, 3
    {ROT}
    s_lshl_b32 s46, s90, 7
    s_add_u32 s50, s50, s46
    s_mul_i32 s46, s90, s56
    s_add_u32 s51, s51, s46
    s_mul_i32 s91, s56, 10
    ''')
    def issue():
        A('    s_add_u32 s60, s59, s57\n    s_add_u32 s61, s59, s58')
        for jj in range(4):
            A(f'''
    s_add_u32 m0, s60, {jj*1024}
    s_add_u32 s62, s50, {jj*10240}
    buffer_load_dwordx4 v2, s[8:11], s62 offen lds''')
        A('    s_mov_b32 s62, s51')
        i = 0
        for b in range(4):
            for aa in range(2):
                A(f'    s_add_u32 m0, s61, {(2*aa+8*b)*1024}')
                if i > 0: A(f'    s_add_u32 s62, s62, {"s54" if aa == 1 else "s55"}')
                else: A('    s_nop 0')
                A('    buffer_load_dwordx4 v3, s[12:15], s62 offen lds')
                i += 1
        A(f'''
    s_add_u32 s50, s50, 128
    s_add_u32 s51, s51, s56
    s_add_u32 s90, s90, 1
    s_cmp_eq_u32 s90, 10
    s_cselect_b32 s46, 1280, 0
    s_cselect_b32 s47, s91, 0
    s_cselect_b32 s90, 0, s90
    s_sub_u32 s50, s50, s46
    s_sub_u32 s51, s51, s47
    s_add_u32 s59, s59, 49152
    s_cmp_eq_u32 s59, 147456
    s_cselect_b32 s59, 0, s59''')
    k1_srds(A, 'l')
    stamp(A, opts, 2)
    issue(); issue()
    stamp(A, opts, 3)
    A('    s_waitcnt vmcnt(12)\n    s_barrier')
    stamp(A, opts, 4)
    def pack_load():
        A(f'''
        s_lshl_b32 s63, s2, 2
        s_add_u32 s63, s63, s41
        s_mul_hi_u32 s46, s63, 0x1999999a
        s_mul_i32 s47, s46, 10
        s_sub_u32 s47, s63, s47
        s_cmp_lt_u32 s46, 48
        s_cbranch_scc0 K1_pk_wo
        s_mov_b32 s20, s26
        s_mov_b32 s21, s27
        s_mov_b32 s22, 1966080
        s_mul_i32 s34, s46, 40960
        s_add_u32 s35, s34, {WS_W2F}
        s_lshl_b32 s46, s47, 7
        s_add_u32 s34, s34, s46
        v_mov_b32 v50, v21
        v_add_u32 v51, 10240, v21
        v_add_u32 v52, 20480, v21
        v_add_u32 v53, 30720, v21
        s_branch K1_pk_go
    K1_pk_wo:
        s_mov_b32 s20, s66
        s_mov_b32 s21, s67
        s_mov_b32 s22, 819200
        s_sub_u32 s46, s46, 48
        s_mul_i32 s35, s46, 40960
        s_add_u32 s35, s35, {WS_WOF}
        s_lshl_b32 s34, s47, 7
        s_lshl_b32 s46, s46, 5
        v_lshrrev_b32 v54, 3, v0
        v_add_u32 v54, s46, v54
        s_mov_b32 s46, 0xaaaaaab
        v_and_b32 v55, 7, v0
        v_lshlrev_b32 v55, 4, v55
        v_mov_b32 v58, 0x80000000''')
        for jj in range(4):
            A(f'''
        v_mul_hi_u32 v56, v54, s46
        v_mul_u32_u24 v57, 24, v56
        v_sub_u32 v57, v54, v57
        v_mul_u32_u24 v56, 20, v56
        v_add_u32 v56, v56, v57
        v_mul_u32_u24 v56, 1280, v56
        v_add_u32 v56, v56, v55
        v_cmp_gt_u32 vcc, 20, v57
        v_cndmask_b32 v{50+jj}, v58, v56, vcc
        v_add_u32 v54, 8, v54''')
        A(f'''
    K1_pk_go:
        s_mov_b32 s23, 0x00020000
        s_lshl_b32 s46, s47, 12
        s_add_u32 s35, s35, s46
        s_cmp_ge_u32 s63, 720
        s_cselect_b32 s35, 0x7f000000, s35
        s_cselect_b32 s34, 0x7f000000, s34
        s_add_u32 s46, s57, {PK}''')
        for jj in range(4):
            A(f'''
        s_add_u32 m0, s46, {jj*1024}
        s_nop 0
        buffer_load_dwordx4 v{50+jj}, s[20:23], s34 offen lds''')
    def pack_tr():
        A(f'''
        v_lshrrev_b32 v10, 4, v0
        v_bfe_u32 v11, v0, 2, 2
        v_lshl_add_u32 v10, v10, 3, v11
        v_lshlrev_b32 v10, 7, v10
        v_and_b32 v11, 3, v0
        v_lshl_add_u32 v10, v11, 3, v10
        s_add_u32 s46, s57, {PK}
        v_add_u32 v10, s46, v10
        v_lshlrev_b32 v11, 4, v0''')
        for u in range(4):
            for t in range(2):
                A(f'    ds_read_b64_tr_b16 {vr(24+4*u+2*t,2)}, v10 offset:{t*512 + u*32}')
    def pack_st():
        A('    s_waitcnt lgkmcnt(0)')
        for u in range(4):
            A(f'    buffer_store_dwordx4 {vr(24+4*u,4)}, v11, s[16:19], s35 offen offset:{u*1024} sc1')
    PL = opts.get('pkat', 2)
    extra_after = {}
    for g in range(2, 10):
        if g == PL + 3: pack_tr()
        issue()
        ex = 0
        if g == PL: pack_load(); ex += 4
        if g == PL + 3: pack_st(); ex += 4
        extra_after[g] = ex
        if g < 9:
            n = extra_after.get(g - 1, 0) + 12 + ex
            A(f'    s_waitcnt vmcnt({n})\n    s_barrier')
    EX9 = extra_after[9]; EX8 = extra_after[8]
    A(f'''
    s_lshr_b32 s34, s31, 1
    s_lshl_b32 s34, s34, 2
    s_lshr_b32 s35, s32, 3
    s_add_u32 s34, s34, s35
    s_lshl_b32 s44, s34, 3
    s_add_u32 s44, s44, s40
    s_lshl_b32 s45, s41, 1
    s_add_u32 s44, s44, s45
    s_mul_i32 s45, s44, 1280
    s_mov_b32 s20, s68
    s_mov_b32 s21, s69
    s_mov_b32 s22, 1280
    s_mov_b32 s23, 0x00020000
    v_lshlrev_b32 v10, 2, v0''')
    for j in range(5):
        A(f'    buffer_load_dword v{16+j}, v10, s[20:23], 0 offen offset:{256*j}')
    for rr in range(2):
        for j in range(5):
            A(f'    buffer_load_dword v{24+8*rr+j}, v10, s[8:11], s45 offen offset:{256*j + 1280*rr}')
    A(f'''
    v_mov_b32 v15, 0x80000000
    s_lshl_b32 s46, s2, 2
    s_add_u32 s46, s46, s41
    s_lshl_b32 s46, s46, 2
    v_lshrrev_b32 v11, 4, v0
    v_add_u32 v11, s46, v11
    v_mul_u32_u24 v11, 768, v11
    v_and_b32 v12, 15, v0
    v_lshl_add_u32 v11, v12, 3, v11
    v_add_u32 v11, {WS_QK + 32*98304 + 640}, v11
    v_mov_b32 v12, 0
    v_mov_b32 v13, 0
    buffer_store_dwordx2 v[12:13], v11, s[16:19], 0 offen{SF}
    s_add_u32 s46, s2, s41
    s_cmp_eq_u32 s46, 0
    s_cselect_b32 s46, 8, 0
    v_lshlrev_b32 v11, 4, v0
    v_add_u32 v11, {WS_ONES}, v11
    v_cmp_gt_u32 vcc, s46, v0
    v_cndmask_b32 v11, v15, v11, vcc
    v_mov_b32 v44, 0x3f803f80
    v_mov_b32 v45, 0x3f803f80
    v_mov_b32 v46, 0x3f803f80
    v_mov_b32 v47, 0x3f803f80
    buffer_store_dwordx4 v[44:47], v11, s[16:19], 0 offen{SF}
    s_cmp_eq_u32 s41, 0
    s_cselect_b32 s46, 4, 0
    s_lshl_b32 s47, s2, 4
    s_add_u32 s47, s47, {WS_FLAG2}
    v_lshl_add_u32 v11, v0, 2, s47
    v_cmp_gt_u32 vcc, s46, v0
    v_cndmask_b32 v11, v15, v11, vcc
    buffer_store_dword v12, v11, s[16:19], 0 offen{SF}
    s_waitcnt vmcnt({30 + EX8 + EX9})
    s_barrier
    s_waitcnt vmcnt({18 + EX9})
    s_barrier
    s_barrier
    s_waitcnt vmcnt(3)''')
    for rr in range(2):
        acc_ = 40 + rr
        A(f'    v_mov_b32 v{acc_}, 0')
        for j in range(5):
            A(f'    v_dot2c_f32_bf16 v{acc_}, v{16+j}, v{24+8*rr+j}')
    for rr in range(2):
        r = 40 + rr
        A(f'''
    v_add_f32_dpp v{r}, v{r}, v{r} quad_perm:[1,0,3,2] row_mask:0xf bank_mask:0xf
    v_add_f32_dpp v{r}, v{r}, v{r} quad_perm:[2,3,0,1] row_mask:0xf bank_mask:0xf
    v_add_f32_dpp v{r}, v{r}, v{r} row_half_mirror row_mask:0xf bank_mask:0xf
    v_add_f32_dpp v{r}, v{r}, v{r} row_mirror row_mask:0xf bank_mask:0xf
    v_mov_b32 v43, v{r}
    v_permlane16_swap_b32 v43, v{r}
    v_add_f32 v{r}, v{r}, v43
    v_mov_b32 v43, v{r}
    v_permlane32_swap_b32 v43, v{r}
    v_add_f32 v{r}, v{r}, v43''')
    A(f'''
    v_cmp_eq_u32 vcc, 1, v0
    v_cndmask_b32 v40, v40, v41, vcc
    v_mul_f32 v40, 0xbfb8aa3b, v40
    v_exp_f32 v40, v40
    v_add_f32 v40, 1.0, v40
    v_rcp_f32 v40, v40
    s_lshl_b32 s46, s44, 2
    s_add_u32 s46, s46, {WS_G}
    v_lshl_add_u32 v14, v0, 2, s46
    v_cmp_gt_u32 vcc, 2, v0
    v_cndmask_b32 v14, v15, v14, vcc
    buffer_store_dword v40, v14, s[16:19], 0 offen{SF}''')
    npf = opts.get('w2pf', 0)
    if npf:
        A(f'''
    s_lshl_b32 s46, s32, 2
    s_add_u32 s46, s46, s41
    s_mul_i32 s46, s46, 192
    v_add_u32 v59, s46, v0
    v_lshlrev_b32 v60, 7, v59
    v_add_u32 v60, {WS_W2F}, v60''')
        for n in range(npf):
            A(f'''
    v_add_u32 v61, {64*n}, v59
    v_cmp_gt_u32 vcc, 23040, v61
    v_cndmask_b32 v{62+n}, v15, v60, vcc
    buffer_load_dword v{66+n}, v{62+n}, s[16:19], 0 offen
    v_add_u32 v60, 8192, v60''')
    stamp(A, opts, 1)

def gen_attn(A, opts):
    NAW = 4
    SA = 16; KB = 48; VB = 64; Q = 80; O = 96; G = 112
    VK = 116; VK2 = 117; VV0 = 118; VV1 = 119; VO1 = 120; VO2 = 121
    NQT = 4; KPW = 6
    A(f'''
    {'s_setprio 2' if opts.get('prio', 0) else ''}
    s_lshr_b32 s59, s32, 2              ; qb
    s_lshl_b32 s33, s59, 8              ; Q0
    s_and_b32 s34, s32, 3
    s_lshl_b32 s35, s31, 2
    s_add_u32 s34, s34, s35             ; head
    s_add_u32 s35, s34, 32
    s_mul_i32 s35, s35, 98304
    s_mul_i32 s40, s33, 48
    s_add_u32 s35, s35, s40
    s_sub_u32 s35, s35, {256*48 - WS_QK}
    v_lshlrev_b32 v3, 4, v0
    s_mul_i32 s37, s30, {KPW*1024}
    s_add_u32 s35, s35, s37
    s_cmp_eq_u32 s59, 0
    s_cselect_b32 s38, 1, 0
    s_cmp_lt_u32 s30, {NAW//2}
    s_cselect_b32 s39, s38, 0
    s_waitcnt lgkmcnt(0)
    s_mov_b32 s16, s28
    s_mov_b32 s17, s29
    s_mov_b32 s18, {WS_END}
    s_mov_b32 s19, 0x00020000
    s_mov_b32 s92, s28
    s_mov_b32 s93, s29
    s_mov_b32 s94, {WS_PROF_END}
    s_mov_b32 s95, 0x00020000
    s_cmp_eq_u32 s39, 1
    s_cbranch_scc1 K2_kfill''')
    for j in range(KPW):
        A(f'''
    s_add_u32 m0, s37, {KL + j*1024}
    s_add_u32 s40, s35, {j*1024}
    buffer_load_dwordx4 v3, s[16:19], s40 offen lds''')
    A(f'''
    s_branch K2_kdone
K2_kfill:
    v_mov_b32 v5, 0
    v_mov_b32 v7, 0
    s_mul_i32 s40, s30, {KPW*64}
    v_add_u32 v8, s40, v0
    s_mov_b32 s41, 0x5555556''')
    for j in range(KPW):
        A(f'''
    v_mul_hi_u32 v9, v8, s41
    v_mul_u32_u24 v9, 48, v9
    v_sub_u32 v9, v8, v9
    v_cmp_le_u32 vcc, 40, v9
    v_mov_b32 v6, 0x3f80
    v_cndmask_b32 v6, 0, v6, vcc
    v_mov_b32 v4, v6
    v_lshlrev_b32 v9, 4, v8
    ds_write_b128 v9, v[4:7] offset:{KL}
    v_add_u32 v8, 64, v8''')
    A(f'''
K2_kdone:
    s_mul_i32 s36, s30, {NQT*16}
    s_add_u32 s36, s36, s33
    s_mul_i32 s35, s34, 98304
    s_mul_i32 s40, s36, 48
    s_add_u32 s35, s35, s40
    v_lshlrev_b32 v4, 3, v0
    v_lshlrev_b32 v5, 3, v1''')
    for t in range(NQT):
        A(f'    buffer_load_dwordx2 {vr(Q+4*t,2)}, v4, s[16:19], s35 offen offset:{WS_QK + t*768}')
        A(f'    buffer_load_dwordx2 {vr(Q+4*t+2,2)}, v5, s[16:19], s35 offen offset:{WS_QK + t*768 + 512}')
    A(f'''
    s_lshl_b32 s40, s36, 2
    s_add_u32 s40, s40, {WS_G}
    v_lshlrev_b32 v5, 2, v1''')
    for t in range(NQT):
        A(f'    buffer_load_dword v{G+t}, v5, s[16:19], s40 offen offset:{t*64}')
    A(f'''
    ; V gather: q = 64*(w+4j) + lane ; bg = q/21, d = q%21 ; blk = Q0/32 - 8 + bg/4 ; g = bg&3 ; n = 20*head + d
    s_lshl_b32 s40, s30, 6
    v_add_u32 v3, s40, v0
    s_mov_b32 s41, 0xc30c30d
    s_mul_i32 s43, s34, 20
    s_lshr_b32 s35, s33, 5
    s_sub_u32 s35, s35, 8
    v_mov_b32 v9, {WS_ONES}
    s_lshl_b32 s37, s30, 10''')
    for j in range(6):
        if j == 5: A('    s_cmp_eq_u32 s30, 0\n    s_cbranch_scc0 K2_vdone')
        A(f'''
    v_mul_hi_u32 v4, v3, s41
    v_mul_u32_u24 v5, 21, v4
    v_sub_u32 v5, v3, v5
    v_lshrrev_b32 v6, 2, v4
    v_add_u32 v6, s35, v6
    v_and_b32 v4, 3, v4
    v_add_u32 v7, s43, v5
    v_lshrrev_b32 v8, 4, v7
    v_lshl_add_u32 v6, v8, 6, v6
    v_lshl_add_u32 v6, v6, 2, v4
    v_and_b32 v7, 15, v7
    v_lshlrev_b32 v7, 4, v7
    v_lshl_add_u32 v6, v6, 8, v7
    v_add_u32 v6, {WS_VT}, v6
    v_cmp_eq_u32 vcc, 20, v5
    v_cndmask_b32 v6, v6, v9, vcc
    s_add_u32 m0, s37, {VL + j*4096}
    v_add_u32 v3, 256, v3
    buffer_load_dwordx4 v6, s[16:19], 0 offen lds''')
    A(f'''K2_vdone:
    s_barrier
    v_mov_b32 v3, {C1}
    v_mov_b32 v4, 1
    s_mov_b64 exec, 1
    ds_add_u32 v3, v4
    s_mov_b64 exec, -1
    s_mul_i32 s40, s30, {NQT*768}
    v_lshlrev_b32 v{VK}, 3, v0
    v_add_u32 v{VK}, s40, v{VK}
    v_add_u32 v{VK2}, 768, v{VK}
    s_mul_i32 s40, s30, {NQT*672}
    s_add_u32 s40, s40, {VL}
    v_mul_u32_u24 v6, 336, v2
    v_add_u32 v6, s40, v6
    v_lshl_add_u32 v{VV0}, v1, 4, v6
    v_add_u32 v7, 16, v1
    v_min_u32 v7, 20, v7
    v_lshl_add_u32 v{VV1}, v7, 4, v6
    s_mul_i32 s41, s34, 3
    v_lshrrev_b32 v6, 1, v2
    v_add_u32 v6, s41, v6
    v_lshrrev_b32 v7, 2, v6
    v_lshlrev_b32 v7, 12, v7
    v_and_b32 v8, 3, v6
    v_lshl_add_u32 v7, v8, 8, v7
    v_and_b32 v8, 1, v2
    v_lshl_add_u32 v7, v8, 10, v7
    v_lshl_add_u32 v{VO1}, v1, 4, v7
    s_add_u32 s41, s41, 2
    s_lshr_b32 s42, s41, 2
    s_lshl_b32 s42, s42, 12
    s_and_b32 s43, s41, 3
    s_lshl_b32 s43, s43, 8
    s_add_u32 s42, s42, s43
    v_lshl_add_u32 v7, v2, 10, s42
    v_lshl_add_u32 v{VO2}, v1, 4, v7
    v_mov_b32 v13, 0x80000000
    v_cmp_gt_u32 vcc, 2, v2
    v_cndmask_b32 v{VO2}, v13, v{VO2}, vcc
    s_lshr_b32 s42, s36, 6
    s_mul_i32 s42, s42, {24*4096}
    s_add_u32 s42, s42, {WS_OP}
    v_lshlrev_b32 v8, 2, v2
    v_sub_u32 v8, v1, v8''')
    for r in range(4):
        A(f'    v_cmp_gt_i32 s[{44+2*r}:{45+2*r}], {r}, v8')
    A(f'''
    v_mov_b32 v14, 0xff800000
    v_cmp_eq_u32 s[54:55], 1, v2
    v_cmp_lt_u32 s[52:53], 0, v2
    s_cmp_eq_u32 s30, 0
    s_cbranch_scc0 K2_nopad
    v_mov_b32 v8, 0
    v_lshlrev_b32 v9, 2, v0
    ds_write_b32 v9, v8 offset:24576
K2_nopad:''')
    stamp(A, opts, 3)
    A(f'''
    v_mov_b32 v9, 0xf149
    v_mov_b32 v3, {CK}
    v_mov_b32 v4, 1
    s_waitcnt vmcnt(0) lgkmcnt(0)
    s_mov_b64 exec, 1
    ds_add_u32 v3, v4
    s_mov_b64 exec, -1''')
    for t in range(NQT):
        q = Q + 4 * t
        A(f'''
    v_cndmask_b32 v{q+2}, v{q+2}, 0, s[52:53]
    v_cndmask_b32 v{q+3}, v{q+3}, 0, s[52:53]
    v_cndmask_b32 v{q+2}, v{q+2}, v9, s[54:55]''')
    A(f'''
K2_kwait:
    ds_read_b32 v4, v3
    s_waitcnt lgkmcnt(0)
    v_readfirstlane_b32 s58, v4
    s_cmp_lt_u32 s58, {NAW}
    s_cbranch_scc1 K2_kwait''')
    stamp(A, opts, 4)
    def sa(st, q, t): return SA + 16 * st + 8 * q + 4 * t
    def kb(st, t): return KB + 8 * st + 4 * t
    def vb(st, d): return VB + 8 * st + 4 * d
    def loads(st):
        return [f'    ds_read2st64_b64 {vr(kb(st,0),4)}, v{VK} offset0:0 offset1:1',
                f'    ds_read2st64_b64 {vr(kb(st,1),4)}, v{VK2} offset0:0 offset1:1',
                f'    ds_read_b128 {vr(vb(st,0),4)}, v{VV0}',
                f'    ds_read_b128 {vr(vb(st,1),4)}, v{VV1}']
    def adv(n=1):
        return [f'    v_add_u32 v{VK}, {1536*n & 0xffffffff}, v{VK}', f'    v_add_u32 v{VK2}, {1536*n & 0xffffffff}, v{VK2}',
                f'    v_add_u32 v{VV0}, {1344*n & 0xffffffff}, v{VV0}', f'    v_add_u32 v{VV1}, {1344*n & 0xffffffff}, v{VV1}']
    def skip(q, T): return (q == 0 and T == 17) or (q == 1 and T == 0)
    def smfma(st, bb):
        return [f'    v_mfma_f32_16x16x32_bf16 {vr(sa(st,q,t),4)}, {vr(kb(st,t),4)}, {vr(Q+4*q,4)}, 0'
                for q in range(2) for t in range(2) if not skip(q, 2 * bb + t)]
    def masks(q, T, v):
        L = []
        if (q == 0 and T == 0) or (q == 1 and T == 1):
            L += [f'    v_cndmask_b32 v{v+r}, v14, v{v+r}, s[{44+2*r}:{45+2*r}]' for r in range(4)]
        if (q == 0 and T == 16) or (q == 1 and T == 17):
            L += [f'    v_cndmask_b32 v{v+r}, v{v+r}, v14, s[{44+2*r}:{45+2*r}]' for r in range(4)]
        return L
    def packpv(st, bb, q):
        L = []
        p = sa(st, q, 0)
        for t in range(2):
            v = sa(st, q, t)
            if skip(q, 2 * bb + t):
                L += [f'    v_mov_b32 v{p+2*t}, 0', f'    v_mov_b32 v{p+2*t+1}, 0']
            else:
                L += [f'    v_cvt_pk_bf16_f32 v{p+2*t}, v{v}, v{v+1}', f'    v_cvt_pk_bf16_f32 v{p+2*t+1}, v{v+2}, v{v+3}']
        M = []
        for d in range(2):
            o = O + 8 * q + 4 * d
            M.append(f'    v_mfma_f32_16x16x32_bf16 {vr(o,4)}, {vr(vb(st,d),4)}, {vr(p,4)}, {vr(o,4)}')
        return L, M
    def body(st, bb, has_next):
        nx = st ^ 1
        if has_next:
            for l in adv(): A(l)
            for l in loads(nx): A(l)
        def valu(q):
            L = []
            for t in range(2):
                T = 2 * bb + t; v = sa(st, q, t)
                if skip(q, T): continue
                L += masks(q, T, v)
                L += [f'    v_exp_f32 v{v+r}, v{v+r}' for r in range(4)]
            return L
        for l in valu(0): A(l)
        P0, M0 = packpv(st, bb, 0)
        for l in P0: A(l)
        v1 = valu(1)
        ms = list(M0)
        if has_next:
            ms = ms + ['    s_waitcnt lgkmcnt(0)'] + smfma(nx, bb + 1)
        i = 0
        for l in v1:
            A(l)
            if i < len(ms):
                A(ms[i]); i += 1
                if i < len(ms) and ms[i - 1].strip().startswith('s_waitcnt'):
                    A(ms[i]); i += 1
        while i < len(ms):
            A(ms[i]); i += 1
        P1, M1 = packpv(st, bb, 1)
        for l in P1: A(l)
        for l in M1: A(l)
    A('    s_mov_b32 s60, 0')
    A('K2_pair:')
    for r in range(16): A(f'    v_mov_b32 v{O+r}, 0')
    for l in loads(0): A(l)
    A('    s_waitcnt lgkmcnt(0)')
    for l in smfma(0, 0): A(l)
    body(0, 0, True)
    A('    s_mov_b32 s58, 0')
    A('K2_floop:')
    body(1, 1, True)
    body(0, 2, True)
    A('''
    s_add_u32 s58, s58, 1
    s_cmp_lt_u32 s58, 3
    s_cbranch_scc1 K2_floop''')
    body(1, 7, True)
    body(0, 8, False)
    def lbcast():
        A(f'''
    v_mov_b32 v3, v{O+4}
    v_mov_b32 v4, v{O+4}
    v_permlane16_swap_b32 v4, v3
    v_mov_b32 v4, v3
    v_permlane32_swap_b32 v4, v3
    v_mov_b32 v5, v{O+12}
    v_mov_b32 v6, v{O+12}
    v_permlane16_swap_b32 v6, v5
    v_mov_b32 v6, v5
    v_permlane32_swap_b32 v6, v5''')
    lbcast()
    A(f'''
    v_min_f32 v7, v4, v6
    v_max_f32 v8, v4, v6
    s_mov_b32 s61, 0x17800000          ; 2^-80
    s_mov_b32 s62, 0x5d800000          ; 2^60
    v_cmp_nle_f32 vcc, s61, v7
    s_mov_b64 s[56:57], vcc
    v_cmp_nge_f32 vcc, s62, v8
    s_or_b64 s[56:57], s[56:57], vcc
    s_cmp_lg_u64 s[56:57], 0
    s_cbranch_scc1 K2_fallback
K2_fin:
    v_rcp_f32 v4, v4
    v_rcp_f32 v6, v6
    v_mul_f32 v4, v4, v{G}
    v_mul_f32 v6, v6, v{G+1}''')
    for q in range(2):
        o = O + 8 * q; sc = 4 if q == 0 else 6
        for r in range(8): A(f'    v_mul_f32 v{o+r}, v{o+r}, v{sc}')
    oa = O; ob = O + 8
    A(f'''
    v_cvt_pk_bf16_f32 v16, v{oa}, v{oa+1}
    v_cvt_pk_bf16_f32 v17, v{oa+2}, v{oa+3}
    v_cvt_pk_bf16_f32 v18, v{ob}, v{ob+1}
    v_cvt_pk_bf16_f32 v19, v{ob+2}, v{ob+3}
    v_cvt_pk_bf16_f32 v20, v{oa+4}, v{oa+5}
    v_cvt_pk_bf16_f32 v21, v{oa+6}, v{oa+7}
    v_cvt_pk_bf16_f32 v24, v{ob+4}, v{ob+5}
    v_cvt_pk_bf16_f32 v25, v{ob+6}, v{ob+7}
    v_mov_b32 v22, 0
    v_mov_b32 v23, 0
    v_permlane16_swap_b32 v16, v18
    v_permlane16_swap_b32 v17, v19
    v_permlane16_swap_b32 v20, v24
    v_permlane16_swap_b32 v21, v25
    buffer_store_dwordx4 v[16:19], v{VO1}, s[16:19], s42 offen sc1
    buffer_store_dwordx4 v[20:23], v{VO2}, s[16:19], s42 offen sc1
    s_add_u32 s42, s42, 2048
    s_add_u32 s60, s60, 1
    s_cmp_ge_u32 s60, 2
    s_cbranch_scc1 K2_attn_end''')
    for l in adv(-7): A(l)
    for r in range(8): A(f'    v_mov_b32 v{Q+r}, v{Q+8+r}')
    A(f'''
    v_mov_b32 v{G}, v{G+2}
    v_mov_b32 v{G+1}, v{G+3}
    s_branch K2_pair
K2_attn_end:''')
    stamp(A, opts, 5)
    A(f'''
    s_lshr_b32 s58, s36, 6
    s_lshl_b32 s58, s58, 5
    s_add_u32 s58, s58, s34
    s_lshl_b32 s58, s58, 2
    s_add_u32 s58, s58, {WS_FLAG2}
    v_mov_b32 v3, s58
    v_mov_b32 v4, 1
    s_waitcnt vmcnt(0)
    s_mov_b64 exec, 1
    buffer_store_dword v4, v3, s[16:19], 0 offen sc1
    s_mov_b64 exec, -1''')
    if opts.get('wo_attn', 0): gen_wo(A, opts)
    else:
        if opts.get('prof'):
            A('    s_waitcnt vmcnt(0)')
            stamp(A, opts, 7)
            stamp_flush(A, opts)
        A('    s_branch KF_done')
    def _fallback():
        A('K2_fallback:')
        for l in adv(-8): A(l)
        A('    v_mov_b32 v10, 0xff7fffff\n    v_mov_b32 v11, 0xff7fffff')
        for r in range(16): A(f'    v_mov_b32 v{O+r}, 0')
        for bb in range(9):
            for l in loads(0): A(l)
            if bb < 8:
                for l in adv(): A(l)
            A('    s_waitcnt lgkmcnt(0)')
            for l in smfma(0, bb): A(l)
            A('    s_nop 7')
            for q in range(2):
                vals = []
                for t in range(2):
                    T = 2 * bb + t; v = sa(0, q, t)
                    if skip(q, T): continue
                    for l in masks(q, T, v): A(l)
                    vals += [v + r for r in range(4)]
                m = 10 + q
                A(f'    v_mov_b32 v5, v{m}')
                for v in vals: A(f'    v_max_f32 v5, v5, v{v}')
                A(f'''
        v_mov_b32 v6, v5
        v_permlane16_swap_b32 v6, v5
        v_max_f32 v5, v5, v6
        v_mov_b32 v6, v5
        v_permlane32_swap_b32 v6, v5
        v_max_f32 v5, v5, v6
        v_sub_f32 v6, v{m}, v5
        v_exp_f32 v6, v6
        v_mov_b32 v{m}, v5''')
                o = O + 8 * q
                for r in range(8): A(f'    v_mul_f32 v{o+r}, v{o+r}, v6')
                for v in vals:
                    A(f'    v_sub_f32 v{v}, v{v}, v5')
                    A(f'    v_exp_f32 v{v}, v{v}')
                P, M = packpv(0, bb, q)
                for l in P + M: A(l)
                A('    s_nop 7')
        A('    s_nop 7')
        lbcast()
        A('    s_branch K2_fin')
    return _fallback

ACC = 16
RB = 96
VL16 = 240; VL16B = 241; GM = 12
CG = C1 + 12; CF = C1 + 16
def acc(u, mt): return ACC + (u * 4 + mt) * 4
def aslot(s, mt): return RB + 36 * s + 4 * mt
def wslot(s, u): return RB + 36 * s + 16 + 4 * u
def loadsA(slot, sc=''):
    L = [f'    buffer_load_dwordx4 {vr(aslot(slot,mt),4)}, v{VL16}, s[16:19], s41 offen offset:{mt*1024}{sc}' for mt in range(4)]
    L[-1] += '\n    s_add_u32 s41, s41, 4096'
    return L
def loadsW(slot):
    L = [f'    buffer_load_dwordx4 {vr(wslot(slot,u),4)}, v{VL16}, s[16:19], s42 offen offset:{u*1024}' for u in range(4)]
    L.append(f'    buffer_load_dwordx4 {vr(wslot(slot,4),4)}, v{VL16B}, s[16:19], s42 offen\n    s_add_u32 s42, s42, 40960')
    return L
def gstep(A, slot, loads, wait, first=False):
    A(f'    s_waitcnt vmcnt({wait})')
    li = 0; k = 0
    for u in range(5):
        for mt in range(4):
            d = vr(acc(u, mt), 4)
            c = '0' if first else d
            A(f'    v_mfma_f32_16x16x32_bf16 {d}, {vr(wslot(slot,u),4)}, {vr(aslot(slot,mt),4)}, {c}')
            k += 1
            if k % 2 == 0 and li < len(loads):
                A(loads[li]); li += 1
    while li < len(loads):
        A(loads[li]); li += 1
def gemm_ids(A, wsub, opts={}):
    if opts.get('gmap', 1) == 0:
        gm = '''s_and_b32 s34, s32, 3
    s_lshl_b32 s35, s31, 2
    s_add_u32 s34, s34, s35
    s_lshr_b32 s35, s32, 2'''
    else:
        gm = '''s_lshr_b32 s34, s31, 1
    s_lshl_b32 s34, s34, 3
    s_and_b32 s35, s32, 7
    s_add_u32 s34, s34, s35
    s_and_b32 s35, s31, 1
    s_lshl_b32 s35, s35, 2
    s_lshr_b32 s46, s32, 3
    s_add_u32 s35, s35, s46'''
    A(f'''
    s_sub_u32 s33, s30, {wsub}
    {gm}
    s_lshl_b32 s36, s34, 6             ; row0
    s_mul_i32 s43, s35, 5
    v_lshlrev_b32 v{VL16}, 4, v0
    v_add_u32 v{VL16B}, 4096, v{VL16}''')

def gen_gemm(A, opts):
    gemm_ids(A, 4, opts)
    A(f'''
    s_waitcnt lgkmcnt(0)
    s_mov_b32 s16, s28
    s_mov_b32 s17, s29
    s_mov_b32 s18, {WS_END}
    s_mov_b32 s19, 0x00020000
    s_mov_b32 s92, s28
    s_mov_b32 s93, s29
    s_mov_b32 s94, {WS_PROF_END}
    s_mov_b32 s95, 0x00020000
    s_barrier
    s_mul_i32 s41, s34, 48
    s_mul_i32 s42, s33, 12
    s_add_u32 s41, s41, s42
    s_lshl_b32 s41, s41, 12
    s_add_u32 s41, s41, {WS_H}
    s_mul_i32 s42, s42, 40
    s_add_u32 s42, s42, s43
    s_lshl_b32 s42, s42, 10
    s_add_u32 s42, s42, {WS_W2F}
    s_lshl_b32 s40, s36, 2
    s_add_u32 s40, s40, {WS_G}
    v_lshlrev_b32 v3, 2, v1''')
    stamp(A, opts, 3)
    for mt in range(4):
        A(f'    buffer_load_dword v{GM+mt}, v3, s[16:19], s40 offen offset:{64*mt}')
    gd = opts.get('gdelay', 1)
    if gd:
        wait_lds(A, 'K2_gwait', CK if gd == 1 else C1, 4)
    for sl in range(3):
        for l in loadsW(sl) + loadsA(sl): A(l)
    stamp(A, opts, 4)
    gstep(A, 0, loadsA(3) + loadsW(3), 18, first=True)
    for sl in range(1, 4):
        gstep(A, sl, loadsA((sl + 3) % 4) + loadsW((sl + 3) % 4), 18)
    for sl in range(4):
        gstep(A, sl, loadsA((sl + 3) % 4) + loadsW((sl + 3) % 4), 18)
    gstep(A, 0, loadsA(3) + loadsW(3), 18)
    gstep(A, 1, [], 18)
    gstep(A, 2, [], 9)
    gstep(A, 3, [], 0)
    stamp(A, opts, 5)
    for mt in range(4):
        A(f'    v_sub_f32 v{GM+mt}, 1.0, v{GM+mt}')
    A(f'''
    s_mul_i32 s39, s33, 20480
    s_add_u32 s39, s39, {RED0}
    v_add_u32 v4, s39, v{VL16}
    s_nop 4''')
    for u in range(5):
        for mt in range(4):
            for r in range(4):
                a0 = acc(u, mt) + r
                A(f'    v_mul_f32 v{a0}, v{a0}, v{GM+mt}')
            A(f'    ds_write_b128 v4, {vr(acc(u,mt),4)} offset:{(mt*5+u)*1024}')
    A(f'''
    v_mov_b32 v3, {CG}
    v_mov_b32 v4, 1
    s_waitcnt lgkmcnt(0)
    s_mov_b64 exec, 1
    ds_add_u32 v3, v4
    s_mov_b64 exec, -1''')
    wait_lds(A, 'K2_cg', CG, 4, 1)
    A(f'''
    s_mul_i32 s45, s33, 5120
    s_add_u32 s45, s45, {RED0}
    v_add_u32 v4, s45, v{VL16}
    v_add_u32 v8, {2*20480}, v4''')
    T = RB
    for w in range(4):
        for u in range(5):
            A(f'    ds_read_b128 {vr(T+(w*5+u)*4,4)}, v{4 if w < 2 else 8} offset:{(w%2)*20480 + u*1024}')
    A('    s_waitcnt lgkmcnt(0)')
    for u in range(5):
        for r in range(4):
            t0 = T + u * 4 + r
            A(f'''
    v_add_f32 v{t0}, v{t0}, v{t0+20}
    v_add_f32 v{t0+40}, v{t0+40}, v{t0+60}
    v_add_f32 v{t0}, v{t0}, v{t0+40}''')
    A(f'''
    s_mul_i32 s45, s33, 5120
    s_add_u32 s45, s45, s39
    v_add_u32 v4, s45, v{VL16}''')
    for u in range(5):
        A(f'    ds_write_b128 v4, {vr(T+u*4,4)} offset:{u*1024}')
    A(f'''
    v_mov_b32 v3, {CF}
    v_mov_b32 v4, 1
    s_waitcnt lgkmcnt(0)
    s_mov_b64 exec, 1
    ds_add_u32 v3, v4
    s_waitcnt lgkmcnt(0)
    s_mov_b64 exec, -1''')
    if opts.get('prof'):
        stamp(A, opts, 7)
        stamp_flush(A, opts)

def final_reduce(A, opts):
    T = RB
    OSF = {0: '', 1: ' sc1', 2: ' nt'}[opts.get('osf', 0)]
    A(f'''
    s_mul_i32 s39, s33, 20480
    s_add_u32 s39, s39, {RED0}
    v_add_u32 v4, s39, v{VL16}
    s_nop 7''')
    for mt in range(4):
        A(f'    s_cmp_eq_u32 s33, {mt}\n    s_cbranch_scc1 K2_skipw{mt}')
        for u in range(5):
            A(f'    ds_write_b128 v4, {vr(acc(u,mt),4)} offset:{(mt*5+u)*1024}')
        A(f'    s_branch K2_donew{mt}')
        A(f'K2_skipw{mt}:')
        for u in range(5):
            for r in range(4):
                A(f'    v_mov_b32 v{T+60+u*4+r}, v{acc(u,mt)+r}')
        A(f'K2_donew{mt}:')
    A(f'''
    s_lshl_b32 s45, s33, 4
    s_add_u32 s45, s45, s36
    s_mul_i32 s45, s45, 1280
    s_mul_i32 s46, s35, 160
    s_add_u32 s45, s45, s46
    s_movk_i32 s37, 1280
    v_mul_lo_u32 v5, v1, s37
    v_and_b32 v6, 1, v2
    v_lshlrev_b32 v6, 5, v6
    v_lshrrev_b32 v7, 1, v2
    v_lshl_add_u32 v6, v7, 4, v6
    v_add_u32 v6, v6, v5
    v_lshl_add_u32 v7, v2, 3, v5
    s_mul_i32 s46, s33, 5120
    s_add_u32 s46, s46, {RED0}''')
    for k in range(1, 4):
        A(f'''
    s_add_u32 s47, s33, {k}
    s_and_b32 s47, s47, 3
    s_mul_i32 s47, s47, 20480
    s_add_u32 s47, s47, s46
    v_add_u32 v{8+k}, s47, v{VL16}''')
    A('    s_waitcnt lgkmcnt(0)\n    s_barrier')
    for k in range(1, 4):
        for u in range(5):
            A(f'    ds_read_b128 {vr(T+((k-1)*5+u)*4,4)}, v{8+k} offset:{u*1024}')
    for u in range(5):
        A(f'    s_waitcnt lgkmcnt({14 - (10 + u)})' if False else '')
    A('    s_waitcnt lgkmcnt(0)')
    for u in range(5):
        for r in range(4):
            t0 = T + u * 4 + r
            A(f'''
    v_add_f32 v{t0}, v{t0}, v{t0+20}
    v_add_f32 v{t0+40}, v{t0+40}, v{t0+60}
    v_add_f32 v{t0}, v{t0}, v{t0+40}''')
    P = 16
    for pp in range(2):
        t = P + 4 * pp; d0 = T + 8 * pp; d1 = T + 8 * pp + 4
        A(f'''
    v_cvt_pk_bf16_f32 v{t}, v{d0}, v{d0+1}
    v_cvt_pk_bf16_f32 v{t+1}, v{d0+2}, v{d0+3}
    v_cvt_pk_bf16_f32 v{t+2}, v{d1}, v{d1+1}
    v_cvt_pk_bf16_f32 v{t+3}, v{d1+2}, v{d1+3}
    v_permlane16_swap_b32 v{t}, v{t+2}
    v_permlane16_swap_b32 v{t+1}, v{t+3}
    buffer_store_dwordx4 {vr(t,4)}, v6, s[20:23], s45 offen offset:{64*pp}{OSF}''')
    d0 = T + 16
    A(f'''
    v_cvt_pk_bf16_f32 v24, v{d0}, v{d0+1}
    v_cvt_pk_bf16_f32 v25, v{d0+2}, v{d0+3}
    buffer_store_dwordx2 v[24:25], v7, s[20:23], s45 offen offset:128{OSF}''')
    if opts.get('prof'):
        A('    s_waitcnt vmcnt(0)')
        stamp(A, opts, 7)
        stamp_flush(A, opts)

def gen_gemm_full(A, opts):
    gemm_ids(A, 4, opts)
    A(f'''
    s_waitcnt lgkmcnt(0)
    s_mov_b32 s16, s28
    s_mov_b32 s17, s29
    s_mov_b32 s18, {WS_END}
    s_mov_b32 s19, 0x00020000
    s_mov_b32 s92, s28
    s_mov_b32 s93, s29
    s_mov_b32 s94, {WS_PROF_END}
    s_mov_b32 s95, 0x00020000
    s_barrier
    s_mov_b32 s20, s90
    s_mov_b32 s21, s91
    s_mov_b32 s22, 2621440
    s_mov_b32 s23, 0x00020000
    s_mul_i32 s41, s34, 48
    s_mul_i32 s42, s33, 12
    s_add_u32 s41, s41, s42
    s_lshl_b32 s41, s41, 12
    s_add_u32 s41, s41, {WS_H}
    s_mul_i32 s42, s42, 40
    s_add_u32 s42, s42, s43
    s_lshl_b32 s42, s42, 10
    s_add_u32 s42, s42, {WS_W2F}
    s_lshl_b32 s40, s36, 2
    s_add_u32 s40, s40, {WS_G}
    v_lshlrev_b32 v3, 2, v1''')
    rot = opts.get('rot2', 0)
    if rot:
        A(f'''
    s_and_b32 s46, s34, 3
    s_mul_i32 s46, s46, 3
    s_mul_hi_u32 s47, s35, 0x55555556
    s_mul_i32 s47, s47, 3
    s_sub_u32 s47, s35, s47
    s_add_u32 s48, s46, s47
    s_lshl_b32 s46, s48, 12
    s_add_u32 s41, s41, s46
    s_mul_i32 s46, s48, 40960
    s_add_u32 s42, s42, s46''')
    WRAP = f'''
    s_add_u32 s48, s48, 1
    s_cmp_eq_u32 s48, 12
    s_cselect_b32 s46, {12*4096}, 0
    s_cselect_b32 s47, {12*40960}, 0
    s_cselect_b32 s48, 0, s48
    s_sub_u32 s41, s41, s46
    s_sub_u32 s42, s42, s47''' if rot else ''
    def stage_loads(sl, wfirst=False):
        L = (loadsW(sl) + loadsA(sl)) if wfirst else (loadsA(sl) + loadsW(sl))
        L[-1] += WRAP
        return L
    stamp(A, opts, 3)
    for mt in range(4):
        A(f'    buffer_load_dword v{GM+mt}, v3, s[16:19], s40 offen offset:{64*mt}')
    gd = opts.get('gdelay', 1)
    if gd:
        wait_lds(A, 'K2_gwait', CK if gd == 1 else C1, 4)
    for sl in range(3):
        for l in stage_loads(sl, True): A(l)
    stamp(A, opts, 4)
    gstep(A, 0, stage_loads(3), 18, first=True)
    for sl in range(1, 4):
        gstep(A, sl, stage_loads((sl + 3) % 4), 18)
    for sl in range(4):
        gstep(A, sl, stage_loads((sl + 3) % 4), 18)
    gstep(A, 0, stage_loads(3), 18)
    A(f'''
    s_mul_i32 s42, s33, 240
    s_add_u32 s42, s42, s43
    s_lshl_b32 s42, s42, 10
    s_add_u32 s42, s42, {WS_WOF}''')
    gstep(A, 1, loadsW(0), 18)
    gstep(A, 2, loadsW(1), 9 + 5)
    gstep(A, 3, loadsW(2), 5 + 5)
    stamp(A, opts, 5)
    for l in loadsW(3): A(l)
    for mt in range(4):
        A(f'    v_sub_f32 v{GM+mt}, 1.0, v{GM+mt}')
    A(f'''
    s_lshl_b32 s45, s34, 5
    s_lshl_b32 s46, s33, 3
    s_add_u32 s45, s45, s46
    s_lshl_b32 s45, s45, 2
    s_add_u32 s45, s45, {WS_FLAG2}
    s_mul_i32 s41, s34, 24
    s_mul_i32 s44, s33, 6
    s_add_u32 s41, s41, s44
    s_lshl_b32 s41, s41, 12
    s_add_u32 s41, s41, {WS_OP}
    s_nop 2''')
    for u in range(5):
        for mt in range(4):
            for r in range(4):
                a0 = acc(u, mt) + r
                A(f'    v_mul_f32 v{a0}, v{a0}, v{GM+mt}')
    poll_all(A, 'K2_s2', 's45', 2, opts.get('psleep2', 1))
    stamp(A, opts, 6)
    for sl in range(4):
        for l in loadsA(sl, ' sc1'): A(l)
    gstep(A, 0, [], 12)
    gstep(A, 1, loadsA(0, ' sc1') + loadsW(0), 8)
    gstep(A, 2, loadsA(1, ' sc1') + loadsW(1), 4 + 9)
    gstep(A, 3, [], 18)
    gstep(A, 0, [], 9)
    gstep(A, 1, [], 0)
    final_reduce(A, opts)

def gen_wo(A, opts):
    gemm_ids(A, 0, opts)
    A(f'''
    s_mov_b32 s20, s90
    s_mov_b32 s21, s91
    s_mov_b32 s22, 2621440
    s_mov_b32 s23, 0x00020000
    s_mul_i32 s42, s33, 240
    s_add_u32 s42, s42, s43
    s_lshl_b32 s42, s42, 10
    s_add_u32 s42, s42, {WS_WOF}''')
    for sl in range(4):
        for l in loadsW(sl): A(l)
    A(f'''
    s_lshl_b32 s45, s34, 5
    s_lshl_b32 s46, s33, 3
    s_add_u32 s45, s45, s46
    s_lshl_b32 s45, s45, 2
    s_add_u32 s45, s45, {WS_FLAG2}
    s_mul_i32 s41, s34, 24
    s_mul_i32 s44, s33, 6
    s_add_u32 s41, s41, s44
    s_lshl_b32 s41, s41, 12
    s_add_u32 s41, s41, {WS_OP}''')
    poll_all(A, 'K2_s2', 's45', 2, opts.get('psleep2', 1))
    stamp(A, opts, 6)
    for sl in range(4):
        for l in loadsA(sl, ' sc1'): A(l)
    gstep(A, 0, [], 12, first=True)
    stamp(A, opts, 3)
    gstep(A, 1, loadsA(0, ' sc1') + loadsW(0), 8)
    gstep(A, 2, loadsA(1, ' sc1') + loadsW(1), 4 + 9)
    gstep(A, 3, [], 18)
    gstep(A, 0, [], 9)
    gstep(A, 1, [], 0)
    stamp(A, opts, 1)
    wait_lds(A, 'K2_cf', CF, 4, 1)
    A(f'''
    s_mul_i32 s39, s33, 20480
    s_add_u32 s39, s39, {RED0}
    v_add_u32 v4, s39, v{VL16}
    s_mul_i32 s45, s33, 5120
    s_add_u32 s45, s45, s39
    v_add_u32 v5, s45, v{VL16}''')
    T = RB
    for mt in range(4):
        A(f'    s_cmp_eq_u32 s33, {mt}\n    s_cbranch_scc1 K2_skipw{mt}')
        for u in range(5):
            A(f'    ds_write_b128 v4, {vr(acc(u,mt),4)} offset:{(mt*5+u)*1024}')
        A(f'    s_branch K2_donew{mt}')
        A(f'K2_skipw{mt}:')
        for u in range(5):
            for r in range(4):
                A(f'    v_mov_b32 v{T+100+u*4+r}, v{acc(u,mt)+r}')
        A(f'K2_donew{mt}:')
    A('    s_waitcnt lgkmcnt(0)\n    s_barrier')
    stamp(A, opts, 2)
    A(f'''
    s_mul_i32 s45, s33, 5120
    s_add_u32 s45, s45, {RED0}
    v_add_u32 v4, s45, v{VL16}
    v_add_u32 v8, {2*20480}, v4''')
    for w in range(4):
        for u in range(5):
            A(f'    ds_read_b128 {vr(T+(w*5+u)*4,4)}, v{4 if w < 2 else 8} offset:{(w%2)*20480 + u*1024}')
    A(f'''
    s_lshl_b32 s45, s33, 4
    s_add_u32 s45, s45, s36
    s_mul_i32 s45, s45, 1280
    s_mul_i32 s46, s35, 160
    s_add_u32 s45, s45, s46
    s_movk_i32 s37, 1280
    v_mul_lo_u32 v5, v1, s37
    v_and_b32 v6, 1, v2
    v_lshlrev_b32 v6, 5, v6
    v_lshrrev_b32 v7, 1, v2
    v_lshl_add_u32 v6, v7, 4, v6
    v_add_u32 v6, v6, v5
    v_lshl_add_u32 v7, v2, 3, v5
    s_waitcnt lgkmcnt(0)''')
    for u in range(5):
        for r in range(4):
            t0 = T + u * 4 + r
            A(f'''
    v_add_f32 v{t0}, v{t0}, v{t0+20}
    v_add_f32 v{t0+40}, v{t0+40}, v{t0+60}
    v_add_f32 v{t0}, v{t0}, v{t0+100}
    v_add_f32 v{t0}, v{t0}, v{t0+40}''')
    P = 16
    for pp in range(2):
        t = P + 4 * pp; d0 = T + 8 * pp; d1 = T + 8 * pp + 4
        A(f'''
    v_cvt_pk_bf16_f32 v{t}, v{d0}, v{d0+1}
    v_cvt_pk_bf16_f32 v{t+1}, v{d0+2}, v{d0+3}
    v_cvt_pk_bf16_f32 v{t+2}, v{d1}, v{d1+1}
    v_cvt_pk_bf16_f32 v{t+3}, v{d1+2}, v{d1+3}
    v_permlane16_swap_b32 v{t}, v{t+2}
    v_permlane16_swap_b32 v{t+1}, v{t+3}
    buffer_store_dwordx4 {vr(t,4)}, v6, s[20:23], s45 offen offset:{64*pp}''')
    d0 = T + 16
    A(f'''
    v_cvt_pk_bf16_f32 v24, v{d0}, v{d0+1}
    v_cvt_pk_bf16_f32 v25, v{d0+2}, v{d0+3}
    buffer_store_dwordx2 v[24:25], v7, s[20:23], s45 offen offset:128''')
    if opts.get('prof'):
        A('    s_waitcnt vmcnt(0)')
        stamp(A, opts, 7)
        stamp_flush(A, opts)
    A('    s_branch KF_done')

def desc(name, vg):
    return f'''
.amdhsa_kernel {name}
  .amdhsa_next_free_vgpr {vg}
  .amdhsa_next_free_sgpr 102
  .amdhsa_accum_offset {vg}
  .amdhsa_group_segment_fixed_size 0
  .amdhsa_kernarg_size 80
  .amdhsa_user_sgpr_count 2
  .amdhsa_user_sgpr_kernarg_segment_ptr 1
  .amdhsa_system_sgpr_workgroup_id_x 1
.end_amdhsa_kernel
'''

if __name__ == '__main__':
    import sys
    out = sys.argv[1]
    opts = {}
    for kv in sys.argv[2:]:
        k, v = kv.split('=')
        opts[k] = int(v)
    HEADER = open('gated_mix__sliding_block__dense_activation_relu__prompt.s.ref').read().split('; Override launch')[0]
    o1 = dict(opts); o2 = dict(opts)
    if opts.get('prof') == 2: o1.pop('prof')
    a1 = Asm(); gen_k1(a1, o1)
    a2 = Asm(); gen_k2(a2, o2)
    txt = HEADER + f'; @launch kernel=k1_kernel grid=(256,1,1) block=(512,1,1) lds={LDS_BYTES}\n'
    if not opts.get('k1only'): txt += f'; @launch kernel=k2_kernel grid=(256,1,1) block=(512,1,1) lds={K2_LDS}\n'
    txt += '.amdgcn_target "amdgcn-amd-amdhsa--gfx950"\n.text\n'
    txt += '.globl k1_kernel\n.p2align 8\n.type k1_kernel,@function\n' + a1.fix() + '\n'
    txt += '.globl k2_kernel\n.p2align 8\n.type k2_kernel,@function\n' + a2.fix() + '\n'
    txt += '.section .rodata,"a"\n.p2align 6' + desc('k1_kernel', 232) + '.p2align 6' + desc('k2_kernel', 248)
    open(out, 'w').write(txt)
```

```python
from asmlib import *

WS_QK   = 0x000000
WS_VT   = 0x600000
WS_H    = 0x900000
WS_OP   = 0xF00000
WS_W2F  = 0x1200000
WS_WOF  = 0x13E0000
WS_G    = 0x14D0000
WS_FLAG2 = 0x14D2000
WS_ONES = 0x14D3000
WS_END  = 0x14D3100
WS_PROF = 0x1500000
WS_PROF_END = 0x1600000
LDS_BYTES = 163840
PK = 147456
C1 = 46336; CK = C1 + 4; CA = C1 + 8
KL = 0; VL = 24832; RED0 = 46592; K2_LDS = RED0 + 4*20480
KNAME = 'gated_mix__sliding_block__dense_activation_relu__prompt_kernel'

def stamp(A, opts, idx):
    if not opts.get('prof'): return
    A(f'    s_memtime s[{70+2*idx}:{71+2*idx}]')
    if idx == 0 or idx == 7:
        A(f'    s_memrealtime s[{86+2*(idx != 0)}:{87+2*(idx != 0)}]')

def stamp_flush(A, opts):
    if not opts.get('prof'): return
    A(f'''
    s_waitcnt lgkmcnt(0)
    s_lshl_b32 s96, s2, 4
    s_add_u32 s96, s96, s30
    s_lshl_b32 s96, s96, 7
    s_add_u32 s96, s96, {WS_PROF}
    v_mov_b32 v100, s96
    s_mov_b64 exec, 1''')
    for i in range(20):
        A(f'    v_mov_b32 v101, s{70+i}\n    buffer_store_dword v101, v100, s[92:95], 0 offen offset:{4*i}')
    A('    s_mov_b64 exec, -1')

def gen_k1(a, opts):
    A = a
    SF = {0: '', 1: ' sc1'}[opts.get('sf', 1)]
    A('k1_kernel:')
    A('''
    s_cmp_ge_u32 s2, 256
    s_cbranch_scc1 K1_done
    s_getpc_b64 s[60:61]''')
    stamp(A, opts, 0)
    A(f'''
    s_load_dwordx2 s[4:5], s[0:1], 0
    s_load_dwordx4 s[64:67], s[0:1], 8
    s_load_dwordx4 s[24:27], s[0:1], 32
    s_load_dwordx2 s[68:69], s[0:1], 48
    s_load_dwordx2 s[28:29], s[0:1], 72
    v_lshrrev_b32 v1, 6, v0
    v_and_b32 v0, 63, v0
    v_readfirstlane_b32 s30, v1
    s_and_b32 s31, s2, 7
    s_lshr_b32 s32, s2, 3
    s_cmp_lt_u32 s32, {opts.get('cpf', 1)}
    s_cbranch_scc0 K1_nocpf
    s_cmp_lt_u32 s30, 3
    s_cbranch_scc0 K1_nocpf
    s_lshl_b32 s46, s30, 13
    v_lshlrev_b32 v10, 7, v0
    v_add_u32 v10, s46, v10
    global_load_dword v226, v10, s[60:61]
K1_nocpf:
    s_and_b32 s33, s31, 1
    s_lshl_b32 s33, s33, 3
    s_and_b32 s34, s32, 7
    s_add_u32 s33, s33, s34
    s_lshr_b32 s34, s31, 1
    s_lshl_b32 s34, s34, 2
    s_lshr_b32 s35, s32, 3
    s_add_u32 s34, s34, s35
    s_lshl_b32 s40, s33, 7
    s_cmp_lt_u32 s34, 6
    s_cbranch_scc1 K1_sec_qk
    s_cmp_lt_u32 s34, 9
    s_cbranch_scc1 K1_sec_v
    s_mov_b32 s36, 2
    s_sub_u32 s37, s34, 9
    s_mul_i32 s37, s37, 14
    s_mov_b32 s62, s37
    s_min_u32 s37, s37, 82
    s_lshl_b32 s38, s37, 5
    s_mov_b32 s39, 3072
    s_branch K1_sec_done
K1_sec_qk:
    s_mov_b32 s36, 0
    s_mul_i32 s37, s34, 14
    s_mov_b32 s62, s37
    s_min_u32 s37, s37, 66
    s_lshl_b32 s38, s37, 5
    s_mov_b32 s39, 3840
    s_branch K1_sec_done
K1_sec_v:
    s_mov_b32 s36, 1
    s_sub_u32 s37, s34, 6
    s_mul_i32 s37, s37, 14
    s_mov_b32 s62, s37
    s_min_u32 s37, s37, 26
    s_lshl_b32 s38, s37, 5
    s_add_u32 s38, s38, 2560
    s_mov_b32 s39, 3840
K1_sec_done:
    s_cmp_ge_u32 s30, 4
    s_cbranch_scc{'0 K1_compute' if opts.get('lfirst', 0) else '1 K1_loader'}
    ''')
    if opts.get('lfirst', 0):
        gen_p1_loader(A, opts, SF)
        A('    s_branch KF_p1done')
        A('K1_compute:')
        gen_p1_compute(A, opts, SF)
    else:
        gen_p1_compute(A, opts, SF)
        gen_p1_loader(A, opts, SF)
    A('KF_p1done:')
    if opts.get('prof') == 1:
        stamp(A, opts, 6)
        A('    s_waitcnt vmcnt(0)')
        stamp(A, opts, 7); stamp_flush(A, opts)
    A('K1_done:\n    s_endpgm')

def gen_k2(a, opts):
    A = a
    A('k2_kernel:')
    A('''
    s_cmp_ge_u32 s2, 256
    s_cbranch_scc1 KF_done''')
    stamp(A, opts, 0)
    A(f'''
    s_load_dwordx2 s[90:91], s[0:1], 56
    s_load_dwordx2 s[28:29], s[0:1], 72
    v_lshrrev_b32 v1, 6, v0
    v_and_b32 v0, 63, v0
    v_readfirstlane_b32 s30, v1
    s_and_b32 s31, s2, 7
    s_lshr_b32 s32, s2, 3
    v_and_b32 v1, 15, v0
    v_lshrrev_b32 v2, 4, v0
    s_mov_b32 s97, 1
    s_cmp_eq_u32 s30, 0
    s_cbranch_scc0 K2_noinit
    v_mov_b32 v8, 0
    v_mov_b32 v9, {C1}
    ds_write_b32 v9, v8 offset:0
    ds_write_b32 v9, v8 offset:4
    ds_write_b32 v9, v8 offset:8
    ds_write_b32 v9, v8 offset:12
    ds_write_b32 v9, v8 offset:16
    ds_write_b32 v9, v8 offset:20
    ds_write_b32 v9, v8 offset:24
K2_noinit:
    s_cmp_ge_u32 s30, 4
    s_cbranch_scc1 K2_gemm''')
    fbk = gen_attn(A, opts)
    A('K2_gemm:')
    if opts.get('wo_attn', 0): gen_gemm(A, opts)
    else: gen_gemm_full(A, opts)
    A('KF_done:\n    s_endpgm')
    fbk()

def wait_lds(A, label, addr, val, sleep=2):
    A(f'''
    v_mov_b32 v8, {addr}
{label}:
    ds_read_b32 v9, v8
    s_waitcnt lgkmcnt(0)
    v_readfirstlane_b32 s58, v9
    s_cmp_lt_u32 s58, {val}
    s_cbranch_scc0 {label}_ok
    s_sleep {sleep}
    s_branch {label}
{label}_ok:''')

def poll_all(A, label, base, n_lanes_x4, sleep=1):
    A(f'''
    v_lshlrev_b32 v3, 4, v0
    v_mov_b32 v8, 0x80000000
    v_cmp_gt_u32 vcc, {n_lanes_x4}, v0
    v_cndmask_b32 v3, v8, v3, vcc
    s_mov_b64 s[56:57], vcc
{label}:
    buffer_load_dwordx4 v[4:7], v3, s[16:19], {base} offen sc1
    s_waitcnt vmcnt(0)
    v_xor_b32 v4, s97, v4
    v_xor_b32 v5, s97, v5
    v_xor_b32 v6, s97, v6
    v_xor_b32 v7, s97, v7
    v_or3_b32 v4, v4, v5, v6
    v_or_b32 v4, v4, v7
    v_cmp_ne_u32 vcc, 0, v4
    s_and_b64 vcc, vcc, s[56:57]
    s_cbranch_vccz {label}_ok
    s_sleep {sleep}
    s_branch {label}
{label}_ok:''')

def k1_srds(A, tag):
    A(f'''
    s_waitcnt lgkmcnt(0)
    s_mov_b32 s8, s4
    s_mov_b32 s9, s5
    s_mov_b32 s10, 2621440
    s_mov_b32 s11, 0x00020000
    s_mov_b32 s15, 0x00020000
    s_cmp_eq_u32 s36, 2
    s_cbranch_scc1 K1_srd_h{tag}
    s_mov_b32 s12, s64
    s_mov_b32 s13, s65
    s_mov_b32 s14, 2457600
    s_branch K1_srd_d{tag}
K1_srd_h{tag}:
    s_mov_b32 s12, s24
    s_mov_b32 s13, s25
    s_mov_b32 s14, 1966080
K1_srd_d{tag}:
    s_mov_b32 s16, s28
    s_mov_b32 s17, s29
    s_mov_b32 s18, {WS_END}
    s_mov_b32 s19, 0x00020000
    s_mov_b32 s92, s28
    s_mov_b32 s93, s29
    s_mov_b32 s94, {WS_PROF_END}
    s_mov_b32 s95, 0x00020000''')

def gen_p1_compute(A, opts, SF):
    ACC = 16
    def acc(uu, mt): return ACC + (uu * 4 + mt) * 4
    XS = [128, 172]; WSs = [144, 188]
    VAX = [216, 217]; VW = 218
    T = 128
    A(f'''
    s_and_b32 s41, s30, 1
    s_lshr_b32 s42, s30, 1
    v_and_b32 v1, 15, v0
    v_lshrrev_b32 v2, 4, v0
    v_and_b32 v3, 7, v1
    v_xor_b32 v3, v2, v3
    v_lshlrev_b32 v3, 4, v3
    v_lshl_add_u32 v3, v1, 7, v3
    s_lshl_b32 s43, s41, 13
    v_add_u32 v{VAX[0]}, s43, v3
    v_xor_b32 v{VAX[1]}, 64, v{VAX[0]}
    v_lshrrev_b32 v4, 2, v1
    v_and_b32 v5, 3, v0
    v_and_b32 v6, 1, v2
    v_lshl_or_b32 v6, v6, 2, v4
    v_lshl_add_u32 v7, v2, 3, v4
    v_lshlrev_b32 v7, 9, v7
    v_lshl_add_u32 v7, v5, 3, v7
    v_add_u32 v7, 16384, v7
    s_lshl_b32 s44, s42, 3
    s_add_u32 s45, s42, 6
    ''')
    for uu in range(7):
        if uu < 6: A(f'    s_add_u32 s46, s44, {uu}\n    v_xor_b32 v8, s46, v6')
        else:      A(f'    v_xor_b32 v8, s45, v6')
        A(f'    v_lshl_add_u32 v{VW+uu}, v8, 5, v7')
    for r in range(ACC, ACC + 112):
        A(f'    v_mov_b32 v{r}, 0')
    def reads(st, ks):
        R = []
        for mt in range(4):
            R.append(f'    ds_read_b128 {vr(XS[st]+4*mt,4)}, v{VAX[ks]} offset:{mt*2048}')
        for uu in range(7):
            for t in range(2):
                R.append(f'    ds_read_b64_tr_b16 {vr(WSs[st]+4*uu+2*t,2)}, v{VW+uu} offset:{(32*ks+4*t)*512}')
        return R
    def phase(st, rd, swapped, extra=()):
        k = 0
        extra = list(extra)
        for uu in range(7):
            for mt in range(4):
                w = vr(WSs[st] + 4 * uu, 4); x = vr(XS[st] + 4 * mt, 4); d = vr(acc(uu, mt), 4)
                if swapped: A(f'    v_mfma_f32_16x16x32_bf16 {d}, {w}, {x}, {d}')
                else:       A(f'    v_mfma_f32_16x16x32_bf16 {d}, {x}, {w}, {d}')
                if k < len(rd): A(rd[k])
                elif extra: A(extra.pop(0))
                k += 1
        for e in extra: A(e)
    def mainloop(tag, swapped):
        A(f'''
    s_mov_b32 s46, 0
    s_mov_b32 s47, 0
    s_mov_b32 s50, 0xfffe8000
    s_mov_b32 s51, 49152
    s_barrier''')
        stamp(A, opts, 2)
        for l in reads(0, 0): A(l)
        A(f'K1_loop_{tag}:')
        A('''
    s_add_u32 s47, s47, 1
    s_cmp_eq_u32 s47, 3
    s_cselect_b32 s48, s50, s51
    s_cselect_b32 s47, 0, s47
    s_waitcnt lgkmcnt(0)''')
        upd = [f'    v_add_u32 v{r}, s48, v{r}' for r in VAX + [VW + i for i in range(7)]]
        phase(0, reads(1, 1), swapped, upd)
        A('''
    s_waitcnt lgkmcnt(0)
    s_barrier''')
        phase(1, reads(0, 0), swapped, ['    s_add_u32 s46, s46, 1', '    s_cmp_lt_u32 s46, 10'])
        A(f'''
    s_cbranch_scc1 K1_loop_{tag}
    s_waitcnt lgkmcnt(0)
    s_nop 7''')
        stamp(A, opts, 1)
    k1_srds(A, 'c')
    if opts.get('tpre', 0):
        S0 = opts.get('tpre0', 2)
        A(f'''
    v_and_b32 v9, 31, v0
    v_lshrrev_b32 v10, 5, v0
    s_lshl_b32 s46, s35, 5
    s_add_u32 s46, s46, s40
    v_add_u32 v11, s46, v9
    s_movk_i32 s47, 1280
    v_mul_lo_u32 v11, v11, s47
    s_lshl_b32 s46, s30, 1
    s_add_u32 s46, s46, {S0}
    v_add_u32 v12, s46, v10
    v_lshl_add_u32 v11, v12, 7, v11
    v_mov_b32 v13, 0x80000000
    v_cmp_gt_u32 vcc, 10, v12
    v_cndmask_b32 v11, v13, v11, vcc
    v_lshlrev_b32 v12, 6, v12
    s_and_b32 s46, s32, 7
    s_lshl_b32 s46, s46, 3
    v_bfe_u32 v13, v0, 2, 3
    v_add3_u32 v12, v12, s46, v13
    v_mul_lo_u32 v12, v12, s39
    v_and_b32 v13, 3, v0
    v_lshl_add_u32 v12, v13, 7, v12
    s_and_b32 s46, s38, 0xffffff80
    v_add_u32 v12, s46, v12
    {f's_sleep {opts.get("tsleep")}' if opts.get('tsleep') else ''}
    buffer_load_dword v227, v12, s[12:15], 0 offen
    buffer_load_dword v226, v11, s[8:11], 0 offen''')
    if opts.get('tlbw', 0):
        G = opts.get('tlbw')
        A(f'''
    s_cmp_eq_u32 s32, 0
    s_cbranch_scc0 K1_notlb
    s_cmp_eq_u32 s30, 3
    s_cbranch_scc0 K1_notlb
    v_lshlrev_b32 v10, {G}, v0
    buffer_load_dword v227, v10, s[16:19], 0 offen
    s_load_dwordx2 s[62:63], s[0:1], 56
    s_waitcnt lgkmcnt(0)
    s_mov_b32 s20, s62
    s_mov_b32 s21, s63
    s_mov_b32 s22, 2621440
    s_mov_b32 s23, 0x00020000
    buffer_load_dword v228, v10, s[20:23], 0 offen
K1_notlb:''')
    for r in range(9, 15): A(f'    v_mov_b32 v{r}, 0x80000000')
    A('''
    s_cmp_eq_u32 s36, 1
    s_cbranch_scc1 K1_main_v
    s_cmp_eq_u32 s36, 2
    s_cbranch_scc1 K1_pre_h''')
    A(f'''
    s_lshl_b32 s43, s41, 2
    s_lshr_b32 s46, s40, 4
    s_add_u32 s43, s43, s46
    s_mul_i32 s43, s43, 768
    v_lshlrev_b32 v3, 3, v1
    v_add_u32 v3, s43, v3
    s_mov_b32 s49, 52429
    s_mov_b32 s52, 98304
    s_mov_b32 s53, 0x3ea52b5c''')
    for uu in range(7):
        if uu < 6: A(f'    s_add_u32 s46, s44, {uu}')
        else:      A(f'    s_mov_b32 s46, s45')
        A(f'''
    s_add_u32 s46, s46, s37
    s_cmp_lt_u32 s46, s62
    s_cselect_b32 s47, 0x80000000, 0
    s_lshl_b32 s46, s46, 2
    v_add_u32 v4, s46, v2
    v_mul_lo_u32 v5, v4, s49
    v_lshrrev_b32 v5, 18, v5
    v_mul_u32_u24 v6, 5, v5
    v_sub_u32 v6, v4, v6
    v_mul_lo_u32 v5, v5, s52
    v_lshl_add_u32 v5, v6, 7, v5
    v_add3_u32 v{8+uu}, v5, v3, s47''')
    A('    s_branch K1_pre_done')
    A(f'''K1_pre_h:
    s_lshl_b32 s43, s33, 1
    s_add_u32 s43, s43, s41
    s_mul_i32 s43, s43, {48*4096}
    s_add_u32 s43, s43, {WS_H}
    s_add_u32 s56, s37, s44
    s_lshl_b32 s56, s56, 11
    s_add_u32 s56, s56, s43
    v_and_b32 v4, 1, v2
    v_lshlrev_b32 v4, 1, v4
    v_lshrrev_b32 v5, 1, v2
    v_add_u32 v4, v4, v5
    v_lshl_add_u32 v4, v4, 4, v1
    v_lshlrev_b32 v4, 4, v4
    s_add_u32 s57, s37, 6
    s_lshl_b32 s57, s57, 11
    s_add_u32 s57, s57, s43
    s_lshl_b32 s48, s42, 1
    v_add_u32 v5, s48, v5
    v_lshl_add_u32 v5, v5, 4, v1
    v_lshlrev_b32 v5, 4, v5
    v_and_b32 v6, 1, v2
    v_lshl_add_u32 v5, v6, 10, v5
K1_pre_done:''')
    mainloop('s', True)
    A('''
    s_cmp_eq_u32 s36, 2
    s_cbranch_scc1 K1_epi_h''')
    for uu in range(7):
        if uu < 6: A(f'    s_add_u32 s46, s44, {uu}')
        else:      A(f'    s_mov_b32 s46, s45')
        A(f'''
    s_add_u32 s46, s46, s37
    s_cmp_lt_u32 s46, 40
    s_cselect_b32 s54, s53, 1.0
    s_mov_b32 s55, s54''')
        for mt in range(4):
            d = acc(uu, mt); t = T + (uu * 4 + mt) * 2
            A(f'''
    v_pk_mul_f32 {vr(d,2)}, {vr(d,2)}, s[54:55]
    v_pk_mul_f32 {vr(d+2,2)}, {vr(d+2,2)}, s[54:55]
    v_cvt_pk_bf16_f32 v{t}, v{d}, v{d+1}
    v_cvt_pk_bf16_f32 v{t+1}, v{d+2}, v{d+3}
    buffer_store_dwordx2 {vr(t,2)}, v{8+uu}, s[16:19], 0 offen offset:{WS_QK + mt*768}{SF}''')
    A('    s_branch KF_p1done')
    A('K1_epi_h:')
    n = 0
    for pp in range(3):
        A(f'    s_add_u32 s49, s56, {pp*4096}\n    s_add_u32 s46, s37, s44\n    s_add_u32 s46, s46, {2*pp}\n    s_cmp_lt_u32 s46, s62\n    s_cselect_b32 s49, 0x7f000000, s49')
        for mt in range(4):
            t = T + n * 4; n += 1
            d0 = acc(2 * pp, mt); d1 = acc(2 * pp + 1, mt)
            A(f'''
    v_cvt_pk_bf16_f32 v{t}, v{d0}, v{d0+1}
    v_cvt_pk_bf16_f32 v{t+1}, v{d0+2}, v{d0+3}
    v_cvt_pk_bf16_f32 v{t+2}, v{d1}, v{d1+1}
    v_cvt_pk_bf16_f32 v{t+3}, v{d1+2}, v{d1+3}
    v_pk_max_i16 v{t}, v{t}, 0
    v_pk_max_i16 v{t+1}, v{t+1}, 0
    v_pk_max_i16 v{t+2}, v{t+2}, 0
    v_pk_max_i16 v{t+3}, v{t+3}, 0
    v_permlane16_swap_b32 v{t}, v{t+2}
    v_permlane16_swap_b32 v{t+1}, v{t+3}
    buffer_store_dwordx4 {vr(t,4)}, v4, s[16:19], s49 offen offset:{1024*mt}{SF}''')
    for pm in range(2):
        t = T + n * 4; n += 1
        d0 = acc(6, 2 * pm); d1 = acc(6, 2 * pm + 1)
        A(f'''
    v_cvt_pk_bf16_f32 v{t}, v{d0}, v{d0+1}
    v_cvt_pk_bf16_f32 v{t+1}, v{d0+2}, v{d0+3}
    v_cvt_pk_bf16_f32 v{t+2}, v{d1}, v{d1+1}
    v_cvt_pk_bf16_f32 v{t+3}, v{d1+2}, v{d1+3}
    v_pk_max_i16 v{t}, v{t}, 0
    v_pk_max_i16 v{t+1}, v{t+1}, 0
    v_pk_max_i16 v{t+2}, v{t+2}, 0
    v_pk_max_i16 v{t+3}, v{t+3}, 0
    v_permlane16_swap_b32 v{t}, v{t+2}
    v_permlane16_swap_b32 v{t+1}, v{t+3}
    buffer_store_dwordx4 {vr(t,4)}, v5, s[16:19], s57 offen offset:{2048*pm}{SF}''')
    A('    s_branch KF_p1done')
    A('K1_main_v:')
    A(f'''
    s_lshl_b32 s43, s41, 1
    s_lshr_b32 s46, s40, 5
    s_add_u32 s43, s43, s46
    s_lshl_b32 s43, s43, 10
    s_add_u32 s43, s43, {WS_VT}
    v_lshlrev_b32 v3, 4, v0
    v_add_u32 v3, s43, v3''')
    for uu in range(7):
        if uu < 6: A(f'    s_add_u32 s46, s44, {uu}')
        else:      A(f'    s_mov_b32 s46, s45')
        A(f'''
    s_add_u32 s46, s46, s37
    s_cmp_lt_u32 s46, s62
    s_cselect_b32 s47, 0x80000000, 0
    s_lshl_b32 s46, s46, 16
    s_or_b32 s46, s46, s47
    v_add_u32 v{8+uu}, s46, v3''')
    mainloop('n', False)
    for uu in range(7):
        for pa in range(2):
            t = T + (uu * 2 + pa) * 4
            d0 = acc(uu, 2 * pa); d1 = acc(uu, 2 * pa + 1)
            A(f'''
    v_cvt_pk_bf16_f32 v{t}, v{d0}, v{d0+1}
    v_cvt_pk_bf16_f32 v{t+1}, v{d0+2}, v{d0+3}
    v_cvt_pk_bf16_f32 v{t+2}, v{d1}, v{d1+1}
    v_cvt_pk_bf16_f32 v{t+3}, v{d1+2}, v{d1+3}
    buffer_store_dwordx4 {vr(t,4)}, v{8+uu}, s[16:19], 0 offen offset:{1024*pa}{SF}''')
    A('    s_branch KF_p1done')

def gen_p1_loader(A, opts, SF):
    rm = opts.get('rotmode', 0)
    if rm == 0:
        ROT = f'''s_add_u32 s46, s46, s47
    s_and_b32 s46, s46, {opts.get('rotng', 2) - 1}
    s_mul_i32 s90, s46, {opts.get('rotr', 3)}'''
    else:
        ROT = f'''s_mul_i32 s46, s46, {opts.get('rota', 1)}
    s_mul_i32 s47, s47, {opts.get('rotb', 3)}
    s_add_u32 s90, s46, s47
    s_mul_hi_u32 s46, s90, 0x1999999a
    s_mul_i32 s46, s46, 10
    s_sub_u32 s90, s90, s46'''
    A(f'''K1_loader:
    s_sub_u32 s41, s30, 4
    v_lshrrev_b32 v1, 3, v0
    v_and_b32 v2, 7, v0
    v_lshlrev_b32 v21, 4, v2
    v_xor_b32 v2, v2, v1
    v_lshlrev_b32 v2, 4, v2
    s_movk_i32 s43, 1280
    v_mul_lo_u32 v1, v1, s43
    v_add_u32 v2, v2, v1
    v_add_u32 v21, v21, v1
    v_lshrrev_b32 v4, 5, v0
    s_and_b32 s44, s41, 1
    s_lshr_b32 s45, s41, 1
    s_lshl_b32 s46, s44, 1
    s_lshl_b32 s47, s45, 2
    s_or_b32 s46, s46, s47
    v_or_b32 v5, s46, v4
    v_bfe_u32 v6, v0, 1, 4
    v_xor_b32 v6, v6, v5
    v_mul_lo_u32 v7, v4, s39
    v_lshl_add_u32 v7, v6, 5, v7
    v_and_b32 v8, 1, v0
    v_lshl_add_u32 v3, v8, 4, v7
    v_mov_b32 v9, 0x80000000
    v_cmp_le_u32 vcc, 14, v6
    v_cndmask_b32 v3, v3, v9, vcc
    s_lshl_b32 s50, s41, 5
    s_add_u32 s50, s50, s40
    s_mul_i32 s50, s50, 1280
    s_add_u32 s52, s44, s47
    s_lshl_b32 s53, s52, 1
    s_mul_i32 s51, s53, s39
    s_add_u32 s51, s51, s38
    s_lshl_b32 s54, s39, 2
    s_mul_i32 s55, s39, 12
    s_lshl_b32 s56, s39, 6
    s_lshl_b32 s57, s41, 12
    s_lshl_b32 s58, s52, 10
    s_add_u32 s58, s58, 16384
    s_mov_b32 s59, 0
    s_and_b32 s46, s32, 7
    s_lshr_b32 s47, s32, 3
    {ROT}
    s_lshl_b32 s46, s90, 7
    s_add_u32 s50, s50, s46
    s_mul_i32 s46, s90, s56
    s_add_u32 s51, s51, s46
    s_mul_i32 s91, s56, 10
    ''')
    def issue():
        A('    s_add_u32 s60, s59, s57\n    s_add_u32 s61, s59, s58')
        for jj in range(4):
            A(f'''
    s_add_u32 m0, s60, {jj*1024}
    s_add_u32 s62, s50, {jj*10240}
    buffer_load_dwordx4 v2, s[8:11], s62 offen lds''')
        A('    s_mov_b32 s62, s51')
        i = 0
        for b in range(4):
            for aa in range(2):
                A(f'    s_add_u32 m0, s61, {(2*aa+8*b)*1024}')
                if i > 0: A(f'    s_add_u32 s62, s62, {"s54" if aa == 1 else "s55"}')
                else: A('    s_nop 0')
                A('    buffer_load_dwordx4 v3, s[12:15], s62 offen lds')
                i += 1
        A(f'''
    s_add_u32 s50, s50, 128
    s_add_u32 s51, s51, s56
    s_add_u32 s90, s90, 1
    s_cmp_eq_u32 s90, 10
    s_cselect_b32 s46, 1280, 0
    s_cselect_b32 s47, s91, 0
    s_cselect_b32 s90, 0, s90
    s_sub_u32 s50, s50, s46
    s_sub_u32 s51, s51, s47
    s_add_u32 s59, s59, 49152
    s_cmp_eq_u32 s59, 147456
    s_cselect_b32 s59, 0, s59''')
    k1_srds(A, 'l')
    stamp(A, opts, 2)
    issue(); issue()
    stamp(A, opts, 3)
    A('    s_waitcnt vmcnt(12)\n    s_barrier')
    stamp(A, opts, 4)
    def pack_load():
        A(f'''
        s_lshl_b32 s63, s2, 2
        s_add_u32 s63, s63, s41
        s_mul_hi_u32 s46, s63, 0x1999999a
        s_mul_i32 s47, s46, 10
        s_sub_u32 s47, s63, s47
        s_cmp_lt_u32 s46, 48
        s_cbranch_scc0 K1_pk_wo
        s_mov_b32 s20, s26
        s_mov_b32 s21, s27
        s_mov_b32 s22, 1966080
        s_mul_i32 s34, s46, 40960
        s_add_u32 s35, s34, {WS_W2F}
        s_lshl_b32 s46, s47, 7
        s_add_u32 s34, s34, s46
        v_mov_b32 v50, v21
        v_add_u32 v51, 10240, v21
        v_add_u32 v52, 20480, v21
        v_add_u32 v53, 30720, v21
        s_branch K1_pk_go
    K1_pk_wo:
        s_mov_b32 s20, s66
        s_mov_b32 s21, s67
        s_mov_b32 s22, 819200
        s_sub_u32 s46, s46, 48
        s_mul_i32 s35, s46, 40960
        s_add_u32 s35, s35, {WS_WOF}
        s_lshl_b32 s34, s47, 7
        s_lshl_b32 s46, s46, 5
        v_lshrrev_b32 v54, 3, v0
        v_add_u32 v54, s46, v54
        s_mov_b32 s46, 0xaaaaaab
        v_and_b32 v55, 7, v0
        v_lshlrev_b32 v55, 4, v55
        v_mov_b32 v58, 0x80000000''')
        for jj in range(4):
            A(f'''
        v_mul_hi_u32 v56, v54, s46
        v_mul_u32_u24 v57, 24, v56
        v_sub_u32 v57, v54, v57
        v_mul_u32_u24 v56, 20, v56
        v_add_u32 v56, v56, v57
        v_mul_u32_u24 v56, 1280, v56
        v_add_u32 v56, v56, v55
        v_cmp_gt_u32 vcc, 20, v57
        v_cndmask_b32 v{50+jj}, v58, v56, vcc
        v_add_u32 v54, 8, v54''')
        A(f'''
    K1_pk_go:
        s_mov_b32 s23, 0x00020000
        s_lshl_b32 s46, s47, 12
        s_add_u32 s35, s35, s46
        s_cmp_ge_u32 s63, 720
        s_cselect_b32 s35, 0x7f000000, s35
        s_cselect_b32 s34, 0x7f000000, s34
        s_add_u32 s46, s57, {PK}''')
        for jj in range(4):
            A(f'''
        s_add_u32 m0, s46, {jj*1024}
        s_nop 0
        buffer_load_dwordx4 v{50+jj}, s[20:23], s34 offen lds''')
    def pack_tr():
        A(f'''
        v_lshrrev_b32 v10, 4, v0
        v_bfe_u32 v11, v0, 2, 2
        v_lshl_add_u32 v10, v10, 3, v11
        v_lshlrev_b32 v10, 7, v10
        v_and_b32 v11, 3, v0
        v_lshl_add_u32 v10, v11, 3, v10
        s_add_u32 s46, s57, {PK}
        v_add_u32 v10, s46, v10
        v_lshlrev_b32 v11, 4, v0''')
        for u in range(4):
            for t in range(2):
                A(f'    ds_read_b64_tr_b16 {vr(24+4*u+2*t,2)}, v10 offset:{t*512 + u*32}')
    def pack_st():
        A('    s_waitcnt lgkmcnt(0)')
        for u in range(4):
            A(f'    buffer_store_dwordx4 {vr(24+4*u,4)}, v11, s[16:19], s35 offen offset:{u*1024} sc1')
    PL = opts.get('pkat', 2)
    extra_after = {}
    for g in range(2, 10):
        if g == PL + 3: pack_tr()
        issue()
        ex = 0
        if g == PL: pack_load(); ex += 4
        if g == PL + 3: pack_st(); ex += 4
        extra_after[g] = ex
        if g < 9:
            n = extra_after.get(g - 1, 0) + 12 + ex
            A(f'    s_waitcnt vmcnt({n})\n    s_barrier')
    EX9 = extra_after[9]; EX8 = extra_after[8]
    A(f'''
    s_lshr_b32 s34, s31, 1
    s_lshl_b32 s34, s34, 2
    s_lshr_b32 s35, s32, 3
    s_add_u32 s34, s34, s35
    s_lshl_b32 s44, s34, 3
    s_add_u32 s44, s44, s40
    s_lshl_b32 s45, s41, 1
    s_add_u32 s44, s44, s45
    s_mul_i32 s45, s44, 1280
    s_mov_b32 s20, s68
    s_mov_b32 s21, s69
    s_mov_b32 s22, 1280
    s_mov_b32 s23, 0x00020000
    v_lshlrev_b32 v10, 2, v0''')
    for j in range(5):
        A(f'    buffer_load_dword v{16+j}, v10, s[20:23], 0 offen offset:{256*j}')
    for rr in range(2):
        for j in range(5):
            A(f'    buffer_load_dword v{24+8*rr+j}, v10, s[8:11], s45 offen offset:{256*j + 1280*rr}')
    A(f'''
    v_mov_b32 v15, 0x80000000
    s_lshl_b32 s46, s2, 2
    s_add_u32 s46, s46, s41
    s_lshl_b32 s46, s46, 2
    v_lshrrev_b32 v11, 4, v0
    v_add_u32 v11, s46, v11
    v_mul_u32_u24 v11, 768, v11
    v_and_b32 v12, 15, v0
    v_lshl_add_u32 v11, v12, 3, v11
    v_add_u32 v11, {WS_QK + 32*98304 + 640}, v11
    v_mov_b32 v12, 0
    v_mov_b32 v13, 0
    buffer_store_dwordx2 v[12:13], v11, s[16:19], 0 offen{SF}
    s_add_u32 s46, s2, s41
    s_cmp_eq_u32 s46, 0
    s_cselect_b32 s46, 8, 0
    v_lshlrev_b32 v11, 4, v0
    v_add_u32 v11, {WS_ONES}, v11
    v_cmp_gt_u32 vcc, s46, v0
    v_cndmask_b32 v11, v15, v11, vcc
    v_mov_b32 v44, 0x3f803f80
    v_mov_b32 v45, 0x3f803f80
    v_mov_b32 v46, 0x3f803f80
    v_mov_b32 v47, 0x3f803f80
    buffer_store_dwordx4 v[44:47], v11, s[16:19], 0 offen{SF}
    s_cmp_eq_u32 s41, 0
    s_cselect_b32 s46, 4, 0
    s_lshl_b32 s47, s2, 4
    s_add_u32 s47, s47, {WS_FLAG2}
    v_lshl_add_u32 v11, v0, 2, s47
    v_cmp_gt_u32 vcc, s46, v0
    v_cndmask_b32 v11, v15, v11, vcc
    buffer_store_dword v12, v11, s[16:19], 0 offen{SF}
    s_waitcnt vmcnt({30 + EX8 + EX9})
    s_barrier
    s_waitcnt vmcnt({18 + EX9})
    s_barrier
    s_barrier
    s_waitcnt vmcnt(3)''')
    for rr in range(2):
        acc_ = 40 + rr
        A(f'    v_mov_b32 v{acc_}, 0')
        for j in range(5):
            A(f'    v_dot2c_f32_bf16 v{acc_}, v{16+j}, v{24+8*rr+j}')
    for rr in range(2):
        r = 40 + rr
        A(f'''
    v_add_f32_dpp v{r}, v{r}, v{r} quad_perm:[1,0,3,2] row_mask:0xf bank_mask:0xf
    v_add_f32_dpp v{r}, v{r}, v{r} quad_perm:[2,3,0,1] row_mask:0xf bank_mask:0xf
    v_add_f32_dpp v{r}, v{r}, v{r} row_half_mirror row_mask:0xf bank_mask:0xf
    v_add_f32_dpp v{r}, v{r}, v{r} row_mirror row_mask:0xf bank_mask:0xf
    v_mov_b32 v43, v{r}
    v_permlane16_swap_b32 v43, v{r}
    v_add_f32 v{r}, v{r}, v43
    v_mov_b32 v43, v{r}
    v_permlane32_swap_b32 v43, v{r}
    v_add_f32 v{r}, v{r}, v43''')
    A(f'''
    v_cmp_eq_u32 vcc, 1, v0
    v_cndmask_b32 v40, v40, v41, vcc
    v_mul_f32 v40, 0xbfb8aa3b, v40
    v_exp_f32 v40, v40
    v_add_f32 v40, 1.0, v40
    v_rcp_f32 v40, v40
    s_lshl_b32 s46, s44, 2
    s_add_u32 s46, s46, {WS_G}
    v_lshl_add_u32 v14, v0, 2, s46
    v_cmp_gt_u32 vcc, 2, v0
    v_cndmask_b32 v14, v15, v14, vcc
    buffer_store_dword v40, v14, s[16:19], 0 offen{SF}''')
    npf = opts.get('w2pf', 0)
    if npf:
        A(f'''
    s_lshl_b32 s46, s32, 2
    s_add_u32 s46, s46, s41
    s_mul_i32 s46, s46, 192
    v_add_u32 v59, s46, v0
    v_lshlrev_b32 v60, 7, v59
    v_add_u32 v60, {WS_W2F}, v60''')
        for n in range(npf):
            A(f'''
    v_add_u32 v61, {64*n}, v59
    v_cmp_gt_u32 vcc, 23040, v61
    v_cndmask_b32 v{62+n}, v15, v60, vcc
    buffer_load_dword v{66+n}, v{62+n}, s[16:19], 0 offen
    v_add_u32 v60, 8192, v60''')
    stamp(A, opts, 1)

def gen_attn(A, opts):
    NAW = 4
    SA = 16; KB = 48; VB = 64; Q = 80; O = 96; G = 112
    VK = 116; VK2 = 117; VV0 = 118; VV1 = 119; VO1 = 120; VO2 = 121
    NQT = 4; KPW = 6
    A(f'''
    {'s_setprio 2' if opts.get('prio', 0) else ''}
    s_lshr_b32 s59, s32, 2              ; qb
    s_lshl_b32 s33, s59, 8              ; Q0
    s_and_b32 s34, s32, 3
    s_lshl_b32 s35, s31, 2
    s_add_u32 s34, s34, s35             ; head
    s_add_u32 s35, s34, 32
    s_mul_i32 s35, s35, 98304
    s_mul_i32 s40, s33, 48
    s_add_u32 s35, s35, s40
    s_sub_u32 s35, s35, {256*48 - WS_QK}
    v_lshlrev_b32 v3, 4, v0
    s_mul_i32 s37, s30, {KPW*1024}
    s_add_u32 s35, s35, s37
    s_cmp_eq_u32 s59, 0
    s_cselect_b32 s38, 1, 0
    s_cmp_lt_u32 s30, {NAW//2}
    s_cselect_b32 s39, s38, 0
    s_waitcnt lgkmcnt(0)
    s_mov_b32 s16, s28
    s_mov_b32 s17, s29
    s_mov_b32 s18, {WS_END}
    s_mov_b32 s19, 0x00020000
    s_mov_b32 s92, s28
    s_mov_b32 s93, s29
    s_mov_b32 s94, {WS_PROF_END}
    s_mov_b32 s95, 0x00020000
    s_cmp_eq_u32 s39, 1
    s_cbranch_scc1 K2_kfill''')
    for j in range(KPW):
        A(f'''
    s_add_u32 m0, s37, {KL + j*1024}
    s_add_u32 s40, s35, {j*1024}
    buffer_load_dwordx4 v3, s[16:19], s40 offen lds''')
    A(f'''
    s_branch K2_kdone
K2_kfill:
    v_mov_b32 v5, 0
    v_mov_b32 v7, 0
    s_mul_i32 s40, s30, {KPW*64}
    v_add_u32 v8, s40, v0
    s_mov_b32 s41, 0x5555556''')
    for j in range(KPW):
        A(f'''
    v_mul_hi_u32 v9, v8, s41
    v_mul_u32_u24 v9, 48, v9
    v_sub_u32 v9, v8, v9
    v_cmp_le_u32 vcc, 40, v9
    v_mov_b32 v6, 0x3f80
    v_cndmask_b32 v6, 0, v6, vcc
    v_mov_b32 v4, v6
    v_lshlrev_b32 v9, 4, v8
    ds_write_b128 v9, v[4:7] offset:{KL}
    v_add_u32 v8, 64, v8''')
    A(f'''
K2_kdone:
    s_mul_i32 s36, s30, {NQT*16}
    s_add_u32 s36, s36, s33
    s_mul_i32 s35, s34, 98304
    s_mul_i32 s40, s36, 48
    s_add_u32 s35, s35, s40
    v_lshlrev_b32 v4, 3, v0
    v_lshlrev_b32 v5, 3, v1''')
    for t in range(NQT):
        A(f'    buffer_load_dwordx2 {vr(Q+4*t,2)}, v4, s[16:19], s35 offen offset:{WS_QK + t*768}')
        A(f'    buffer_load_dwordx2 {vr(Q+4*t+2,2)}, v5, s[16:19], s35 offen offset:{WS_QK + t*768 + 512}')
    A(f'''
    s_lshl_b32 s40, s36, 2
    s_add_u32 s40, s40, {WS_G}
    v_lshlrev_b32 v5, 2, v1''')
    for t in range(NQT):
        A(f'    buffer_load_dword v{G+t}, v5, s[16:19], s40 offen offset:{t*64}')
    A(f'''
    ; V gather: q = 64*(w+4j) + lane ; bg = q/21, d = q%21 ; blk = Q0/32 - 8 + bg/4 ; g = bg&3 ; n = 20*head + d
    s_lshl_b32 s40, s30, 6
    v_add_u32 v3, s40, v0
    s_mov_b32 s41, 0xc30c30d
    s_mul_i32 s43, s34, 20
    s_lshr_b32 s35, s33, 5
    s_sub_u32 s35, s35, 8
    v_mov_b32 v9, {WS_ONES}
    s_lshl_b32 s37, s30, 10''')
    for j in range(6):
        if j == 5: A('    s_cmp_eq_u32 s30, 0\n    s_cbranch_scc0 K2_vdone')
        A(f'''
    v_mul_hi_u32 v4, v3, s41
    v_mul_u32_u24 v5, 21, v4
    v_sub_u32 v5, v3, v5
    v_lshrrev_b32 v6, 2, v4
    v_add_u32 v6, s35, v6
    v_and_b32 v4, 3, v4
    v_add_u32 v7, s43, v5
    v_lshrrev_b32 v8, 4, v7
    v_lshl_add_u32 v6, v8, 6, v6
    v_lshl_add_u32 v6, v6, 2, v4
    v_and_b32 v7, 15, v7
    v_lshlrev_b32 v7, 4, v7
    v_lshl_add_u32 v6, v6, 8, v7
    v_add_u32 v6, {WS_VT}, v6
    v_cmp_eq_u32 vcc, 20, v5
    v_cndmask_b32 v6, v6, v9, vcc
    s_add_u32 m0, s37, {VL + j*4096}
    v_add_u32 v3, 256, v3
    buffer_load_dwordx4 v6, s[16:19], 0 offen lds''')
    A(f'''K2_vdone:
    s_barrier
    v_mov_b32 v3, {C1}
    v_mov_b32 v4, 1
    s_mov_b64 exec, 1
    ds_add_u32 v3, v4
    s_mov_b64 exec, -1
    s_mul_i32 s40, s30, {NQT*768}
    v_lshlrev_b32 v{VK}, 3, v0
    v_add_u32 v{VK}, s40, v{VK}
    v_add_u32 v{VK2}, 768, v{VK}
    s_mul_i32 s40, s30, {NQT*672}
    s_add_u32 s40, s40, {VL}
    v_mul_u32_u24 v6, 336, v2
    v_add_u32 v6, s40, v6
    v_lshl_add_u32 v{VV0}, v1, 4, v6
    v_add_u32 v7, 16, v1
    v_min_u32 v7, 20, v7
    v_lshl_add_u32 v{VV1}, v7, 4, v6
    s_mul_i32 s41, s34, 3
    v_lshrrev_b32 v6, 1, v2
    v_add_u32 v6, s41, v6
    v_lshrrev_b32 v7, 2, v6
    v_lshlrev_b32 v7, 12, v7
    v_and_b32 v8, 3, v6
    v_lshl_add_u32 v7, v8, 8, v7
    v_and_b32 v8, 1, v2
    v_lshl_add_u32 v7, v8, 10, v7
    v_lshl_add_u32 v{VO1}, v1, 4, v7
    s_add_u32 s41, s41, 2
    s_lshr_b32 s42, s41, 2
    s_lshl_b32 s42, s42, 12
    s_and_b32 s43, s41, 3
    s_lshl_b32 s43, s43, 8
    s_add_u32 s42, s42, s43
    v_lshl_add_u32 v7, v2, 10, s42
    v_lshl_add_u32 v{VO2}, v1, 4, v7
    v_mov_b32 v13, 0x80000000
    v_cmp_gt_u32 vcc, 2, v2
    v_cndmask_b32 v{VO2}, v13, v{VO2}, vcc
    s_lshr_b32 s42, s36, 6
    s_mul_i32 s42, s42, {24*4096}
    s_add_u32 s42, s42, {WS_OP}
    v_lshlrev_b32 v8, 2, v2
    v_sub_u32 v8, v1, v8''')
    for r in range(4):
        A(f'    v_cmp_gt_i32 s[{44+2*r}:{45+2*r}], {r}, v8')
    A(f'''
    v_mov_b32 v14, 0xff800000
    v_cmp_eq_u32 s[54:55], 1, v2
    v_cmp_lt_u32 s[52:53], 0, v2
    s_cmp_eq_u32 s30, 0
    s_cbranch_scc0 K2_nopad
    v_mov_b32 v8, 0
    v_lshlrev_b32 v9, 2, v0
    ds_write_b32 v9, v8 offset:24576
K2_nopad:''')
    stamp(A, opts, 3)
    A(f'''
    v_mov_b32 v9, 0xf149
    v_mov_b32 v3, {CK}
    v_mov_b32 v4, 1
    s_waitcnt vmcnt(0) lgkmcnt(0)
    s_mov_b64 exec, 1
    ds_add_u32 v3, v4
    s_mov_b64 exec, -1''')
    for t in range(NQT):
        q = Q + 4 * t
        A(f'''
    v_cndmask_b32 v{q+2}, v{q+2}, 0, s[52:53]
    v_cndmask_b32 v{q+3}, v{q+3}, 0, s[52:53]
    v_cndmask_b32 v{q+2}, v{q+2}, v9, s[54:55]''')
    A(f'''
K2_kwait:
    ds_read_b32 v4, v3
    s_waitcnt lgkmcnt(0)
    v_readfirstlane_b32 s58, v4
    s_cmp_lt_u32 s58, {NAW}
    s_cbranch_scc1 K2_kwait''')
    stamp(A, opts, 4)
    def sa(st, q, t): return SA + 16 * st + 8 * q + 4 * t
    def kb(st, t): return KB + 8 * st + 4 * t
    def vb(st, d): return VB + 8 * st + 4 * d
    def loads(st):
        return [f'    ds_read2st64_b64 {vr(kb(st,0),4)}, v{VK} offset0:0 offset1:1',
                f'    ds_read2st64_b64 {vr(kb(st,1),4)}, v{VK2} offset0:0 offset1:1',
                f'    ds_read_b128 {vr(vb(st,0),4)}, v{VV0}',
                f'    ds_read_b128 {vr(vb(st,1),4)}, v{VV1}']
    def adv(n=1):
        return [f'    v_add_u32 v{VK}, {1536*n & 0xffffffff}, v{VK}', f'    v_add_u32 v{VK2}, {1536*n & 0xffffffff}, v{VK2}',
                f'    v_add_u32 v{VV0}, {1344*n & 0xffffffff}, v{VV0}', f'    v_add_u32 v{VV1}, {1344*n & 0xffffffff}, v{VV1}']
    def skip(q, T): return (q == 0 and T == 17) or (q == 1 and T == 0)
    def smfma(st, bb):
        return [f'    v_mfma_f32_16x16x32_bf16 {vr(sa(st,q,t),4)}, {vr(kb(st,t),4)}, {vr(Q+4*q,4)}, 0'
                for q in range(2) for t in range(2) if not skip(q, 2 * bb + t)]
    def masks(q, T, v):
        L = []
        if (q == 0 and T == 0) or (q == 1 and T == 1):
            L += [f'    v_cndmask_b32 v{v+r}, v14, v{v+r}, s[{44+2*r}:{45+2*r}]' for r in range(4)]
        if (q == 0 and T == 16) or (q == 1 and T == 17):
            L += [f'    v_cndmask_b32 v{v+r}, v{v+r}, v14, s[{44+2*r}:{45+2*r}]' for r in range(4)]
        return L
    def packpv(st, bb, q):
        L = []
        p = sa(st, q, 0)
        for t in range(2):
            v = sa(st, q, t)
            if skip(q, 2 * bb + t):
                L += [f'    v_mov_b32 v{p+2*t}, 0', f'    v_mov_b32 v{p+2*t+1}, 0']
            else:
                L += [f'    v_cvt_pk_bf16_f32 v{p+2*t}, v{v}, v{v+1}', f'    v_cvt_pk_bf16_f32 v{p+2*t+1}, v{v+2}, v{v+3}']
        M = []
        for d in range(2):
            o = O + 8 * q + 4 * d
            M.append(f'    v_mfma_f32_16x16x32_bf16 {vr(o,4)}, {vr(vb(st,d),4)}, {vr(p,4)}, {vr(o,4)}')
        return L, M
    def body(st, bb, has_next):
        nx = st ^ 1
        if has_next:
            for l in adv(): A(l)
            for l in loads(nx): A(l)
        def valu(q):
            L = []
            for t in range(2):
                T = 2 * bb + t; v = sa(st, q, t)
                if skip(q, T): continue
                L += masks(q, T, v)
                L += [f'    v_exp_f32 v{v+r}, v{v+r}' for r in range(4)]
            return L
        for l in valu(0): A(l)
        P0, M0 = packpv(st, bb, 0)
        for l in P0: A(l)
        v1 = valu(1)
        ms = list(M0)
        if has_next:
            ms = ms + ['    s_waitcnt lgkmcnt(0)'] + smfma(nx, bb + 1)
        i = 0
        for l in v1:
            A(l)
            if i < len(ms):
                A(ms[i]); i += 1
                if i < len(ms) and ms[i - 1].strip().startswith('s_waitcnt'):
                    A(ms[i]); i += 1
        while i < len(ms):
            A(ms[i]); i += 1
        P1, M1 = packpv(st, bb, 1)
        for l in P1: A(l)
        for l in M1: A(l)
    A('    s_mov_b32 s60, 0')
    A('K2_pair:')
    for r in range(16): A(f'    v_mov_b32 v{O+r}, 0')
    for l in loads(0): A(l)
    A('    s_waitcnt lgkmcnt(0)')
    for l in smfma(0, 0): A(l)
    body(0, 0, True)
    A('    s_mov_b32 s58, 0')
    A('K2_floop:')
    body(1, 1, True)
    body(0, 2, True)
    A('''
    s_add_u32 s58, s58, 1
    s_cmp_lt_u32 s58, 3
    s_cbranch_scc1 K2_floop''')
    body(1, 7, True)
    body(0, 8, False)
    def lbcast():
        A(f'''
    v_mov_b32 v3, v{O+4}
    v_mov_b32 v4, v{O+4}
    v_permlane16_swap_b32 v4, v3
    v_mov_b32 v4, v3
    v_permlane32_swap_b32 v4, v3
    v_mov_b32 v5, v{O+12}
    v_mov_b32 v6, v{O+12}
    v_permlane16_swap_b32 v6, v5
    v_mov_b32 v6, v5
    v_permlane32_swap_b32 v6, v5''')
    lbcast()
    A(f'''
    v_min_f32 v7, v4, v6
    v_max_f32 v8, v4, v6
    s_mov_b32 s61, 0x17800000          ; 2^-80
    s_mov_b32 s62, 0x5d800000          ; 2^60
    v_cmp_nle_f32 vcc, s61, v7
    s_mov_b64 s[56:57], vcc
    v_cmp_nge_f32 vcc, s62, v8
    s_or_b64 s[56:57], s[56:57], vcc
    s_cmp_lg_u64 s[56:57], 0
    s_cbranch_scc1 K2_fallback
K2_fin:
    v_rcp_f32 v4, v4
    v_rcp_f32 v6, v6
    v_mul_f32 v4, v4, v{G}
    v_mul_f32 v6, v6, v{G+1}''')
    for q in range(2):
        o = O + 8 * q; sc = 4 if q == 0 else 6
        for r in range(8): A(f'    v_mul_f32 v{o+r}, v{o+r}, v{sc}')
    oa = O; ob = O + 8
    A(f'''
    v_cvt_pk_bf16_f32 v16, v{oa}, v{oa+1}
    v_cvt_pk_bf16_f32 v17, v{oa+2}, v{oa+3}
    v_cvt_pk_bf16_f32 v18, v{ob}, v{ob+1}
    v_cvt_pk_bf16_f32 v19, v{ob+2}, v{ob+3}
    v_cvt_pk_bf16_f32 v20, v{oa+4}, v{oa+5}
    v_cvt_pk_bf16_f32 v21, v{oa+6}, v{oa+7}
    v_cvt_pk_bf16_f32 v24, v{ob+4}, v{ob+5}
    v_cvt_pk_bf16_f32 v25, v{ob+6}, v{ob+7}
    v_mov_b32 v22, 0
    v_mov_b32 v23, 0
    v_permlane16_swap_b32 v16, v18
    v_permlane16_swap_b32 v17, v19
    v_permlane16_swap_b32 v20, v24
    v_permlane16_swap_b32 v21, v25
    buffer_store_dwordx4 v[16:19], v{VO1}, s[16:19], s42 offen sc1
    buffer_store_dwordx4 v[20:23], v{VO2}, s[16:19], s42 offen sc1
    s_add_u32 s42, s42, 2048
    s_add_u32 s60, s60, 1
    s_cmp_ge_u32 s60, 2
    s_cbranch_scc1 K2_attn_end''')
    for l in adv(-7): A(l)
    for r in range(8): A(f'    v_mov_b32 v{Q+r}, v{Q+8+r}')
    A(f'''
    v_mov_b32 v{G}, v{G+2}
    v_mov_b32 v{G+1}, v{G+3}
    s_branch K2_pair
K2_attn_end:''')
    stamp(A, opts, 5)
    A(f'''
    s_lshr_b32 s58, s36, 6
    s_lshl_b32 s58, s58, 5
    s_add_u32 s58, s58, s34
    s_lshl_b32 s58, s58, 2
    s_add_u32 s58, s58, {WS_FLAG2}
    v_mov_b32 v3, s58
    v_mov_b32 v4, 1
    s_waitcnt vmcnt(0)
    s_mov_b64 exec, 1
    buffer_store_dword v4, v3, s[16:19], 0 offen sc1
    s_mov_b64 exec, -1''')
    if opts.get('wo_attn', 0): gen_wo(A, opts)
    else:
        if opts.get('prof'):
            A('    s_waitcnt vmcnt(0)')
            stamp(A, opts, 7)
            stamp_flush(A, opts)
        A('    s_branch KF_done')
    def _fallback():
        A('K2_fallback:')
        for l in adv(-8): A(l)
        A('    v_mov_b32 v10, 0xff7fffff\n    v_mov_b32 v11, 0xff7fffff')
        for r in range(16): A(f'    v_mov_b32 v{O+r}, 0')
        for bb in range(9):
            for l in loads(0): A(l)
            if bb < 8:
                for l in adv(): A(l)
            A('    s_waitcnt lgkmcnt(0)')
            for l in smfma(0, bb): A(l)
            A('    s_nop 7')
            for q in range(2):
                vals = []
                for t in range(2):
                    T = 2 * bb + t; v = sa(0, q, t)
                    if skip(q, T): continue
                    for l in masks(q, T, v): A(l)
                    vals += [v + r for r in range(4)]
                m = 10 + q
                A(f'    v_mov_b32 v5, v{m}')
                for v in vals: A(f'    v_max_f32 v5, v5, v{v}')
                A(f'''
        v_mov_b32 v6, v5
        v_permlane16_swap_b32 v6, v5
        v_max_f32 v5, v5, v6
        v_mov_b32 v6, v5
        v_permlane32_swap_b32 v6, v5
        v_max_f32 v5, v5, v6
        v_sub_f32 v6, v{m}, v5
        v_exp_f32 v6, v6
        v_mov_b32 v{m}, v5''')
                o = O + 8 * q
                for r in range(8): A(f'    v_mul_f32 v{o+r}, v{o+r}, v6')
                for v in vals:
                    A(f'    v_sub_f32 v{v}, v{v}, v5')
                    A(f'    v_exp_f32 v{v}, v{v}')
                P, M = packpv(0, bb, q)
                for l in P + M: A(l)
                A('    s_nop 7')
        A('    s_nop 7')
        lbcast()
        A('    s_branch K2_fin')
    return _fallback

ACC = 16
RB = 96
VL16 = 240; VL16B = 241; GM = 12
CG = C1 + 12; CF = C1 + 16
def acc(u, mt): return ACC + (u * 4 + mt) * 4
def aslot(s, mt): return RB + 36 * s + 4 * mt
def wslot(s, u): return RB + 36 * s + 16 + 4 * u
def loadsA(slot, sc=''):
    L = [f'    buffer_load_dwordx4 {vr(aslot(slot,mt),4)}, v{VL16}, s[16:19], s41 offen offset:{mt*1024}{sc}' for mt in range(4)]
    L[-1] += '\n    s_add_u32 s41, s41, 4096'
    return L
def loadsW(slot):
    L = [f'    buffer_load_dwordx4 {vr(wslot(slot,u),4)}, v{VL16}, s[16:19], s42 offen offset:{u*1024}' for u in range(4)]
    L.append(f'    buffer_load_dwordx4 {vr(wslot(slot,4),4)}, v{VL16B}, s[16:19], s42 offen\n    s_add_u32 s42, s42, 40960')
    return L
def gstep(A, slot, loads, wait, first=False):
    A(f'    s_waitcnt vmcnt({wait})')
    li = 0; k = 0
    for u in range(5):
        for mt in range(4):
            d = vr(acc(u, mt), 4)
            c = '0' if first else d
            A(f'    v_mfma_f32_16x16x32_bf16 {d}, {vr(wslot(slot,u),4)}, {vr(aslot(slot,mt),4)}, {c}')
            k += 1
            if k % 2 == 0 and li < len(loads):
                A(loads[li]); li += 1
    while li < len(loads):
        A(loads[li]); li += 1
def gemm_ids(A, wsub, opts={}):
    if opts.get('gmap', 1) == 0:
        gm = '''s_and_b32 s34, s32, 3
    s_lshl_b32 s35, s31, 2
    s_add_u32 s34, s34, s35
    s_lshr_b32 s35, s32, 2'''
    else:
        gm = '''s_lshr_b32 s34, s31, 1
    s_lshl_b32 s34, s34, 3
    s_and_b32 s35, s32, 7
    s_add_u32 s34, s34, s35
    s_and_b32 s35, s31, 1
    s_lshl_b32 s35, s35, 2
    s_lshr_b32 s46, s32, 3
    s_add_u32 s35, s35, s46'''
    A(f'''
    s_sub_u32 s33, s30, {wsub}
    {gm}
    s_lshl_b32 s36, s34, 6             ; row0
    s_mul_i32 s43, s35, 5
    v_lshlrev_b32 v{VL16}, 4, v0
    v_add_u32 v{VL16B}, 4096, v{VL16}''')

def gen_gemm(A, opts):
    gemm_ids(A, 4, opts)
    A(f'''
    s_waitcnt lgkmcnt(0)
    s_mov_b32 s16, s28
    s_mov_b32 s17, s29
    s_mov_b32 s18, {WS_END}
    s_mov_b32 s19, 0x00020000
    s_mov_b32 s92, s28
    s_mov_b32 s93, s29
    s_mov_b32 s94, {WS_PROF_END}
    s_mov_b32 s95, 0x00020000
    s_barrier
    s_mul_i32 s41, s34, 48
    s_mul_i32 s42, s33, 12
    s_add_u32 s41, s41, s42
    s_lshl_b32 s41, s41, 12
    s_add_u32 s41, s41, {WS_H}
    s_mul_i32 s42, s42, 40
    s_add_u32 s42, s42, s43
    s_lshl_b32 s42, s42, 10
    s_add_u32 s42, s42, {WS_W2F}
    s_lshl_b32 s40, s36, 2
    s_add_u32 s40, s40, {WS_G}
    v_lshlrev_b32 v3, 2, v1''')
    stamp(A, opts, 3)
    for mt in range(4):
        A(f'    buffer_load_dword v{GM+mt}, v3, s[16:19], s40 offen offset:{64*mt}')
    gd = opts.get('gdelay', 1)
    if gd:
        wait_lds(A, 'K2_gwait', CK if gd == 1 else C1, 4)
    for sl in range(3):
        for l in loadsW(sl) + loadsA(sl): A(l)
    stamp(A, opts, 4)
    gstep(A, 0, loadsA(3) + loadsW(3), 18, first=True)
    for sl in range(1, 4):
        gstep(A, sl, loadsA((sl + 3) % 4) + loadsW((sl + 3) % 4), 18)
    for sl in range(4):
        gstep(A, sl, loadsA((sl + 3) % 4) + loadsW((sl + 3) % 4), 18)
    gstep(A, 0, loadsA(3) + loadsW(3), 18)
    gstep(A, 1, [], 18)
    gstep(A, 2, [], 9)
    gstep(A, 3, [], 0)
    stamp(A, opts, 5)
    for mt in range(4):
        A(f'    v_sub_f32 v{GM+mt}, 1.0, v{GM+mt}')
    A(f'''
    s_mul_i32 s39, s33, 20480
    s_add_u32 s39, s39, {RED0}
    v_add_u32 v4, s39, v{VL16}
    s_nop 4''')
    for u in range(5):
        for mt in range(4):
            for r in range(4):
                a0 = acc(u, mt) + r
                A(f'    v_mul_f32 v{a0}, v{a0}, v{GM+mt}')
            A(f'    ds_write_b128 v4, {vr(acc(u,mt),4)} offset:{(mt*5+u)*1024}')
    A(f'''
    v_mov_b32 v3, {CG}
    v_mov_b32 v4, 1
    s_waitcnt lgkmcnt(0)
    s_mov_b64 exec, 1
    ds_add_u32 v3, v4
    s_mov_b64 exec, -1''')
    wait_lds(A, 'K2_cg', CG, 4, 1)
    A(f'''
    s_mul_i32 s45, s33, 5120
    s_add_u32 s45, s45, {RED0}
    v_add_u32 v4, s45, v{VL16}
    v_add_u32 v8, {2*20480}, v4''')
    T = RB
    for w in range(4):
        for u in range(5):
            A(f'    ds_read_b128 {vr(T+(w*5+u)*4,4)}, v{4 if w < 2 else 8} offset:{(w%2)*20480 + u*1024}')
    A('    s_waitcnt lgkmcnt(0)')
    for u in range(5):
        for r in range(4):
            t0 = T + u * 4 + r
            A(f'''
    v_add_f32 v{t0}, v{t0}, v{t0+20}
    v_add_f32 v{t0+40}, v{t0+40}, v{t0+60}
    v_add_f32 v{t0}, v{t0}, v{t0+40}''')
    A(f'''
    s_mul_i32 s45, s33, 5120
    s_add_u32 s45, s45, s39
    v_add_u32 v4, s45, v{VL16}''')
    for u in range(5):
        A(f'    ds_write_b128 v4, {vr(T+u*4,4)} offset:{u*1024}')
    A(f'''
    v_mov_b32 v3, {CF}
    v_mov_b32 v4, 1
    s_waitcnt lgkmcnt(0)
    s_mov_b64 exec, 1
    ds_add_u32 v3, v4
    s_waitcnt lgkmcnt(0)
    s_mov_b64 exec, -1''')
    if opts.get('prof'):
        stamp(A, opts, 7)
        stamp_flush(A, opts)

def final_reduce(A, opts):
    T = RB
    OSF = {0: '', 1: ' sc1', 2: ' nt'}[opts.get('osf', 0)]
    A(f'''
    s_mul_i32 s39, s33, 20480
    s_add_u32 s39, s39, {RED0}
    v_add_u32 v4, s39, v{VL16}
    s_nop 7''')
    for mt in range(4):
        A(f'    s_cmp_eq_u32 s33, {mt}\n    s_cbranch_scc1 K2_skipw{mt}')
        for u in range(5):
            A(f'    ds_write_b128 v4, {vr(acc(u,mt),4)} offset:{(mt*5+u)*1024}')
        A(f'    s_branch K2_donew{mt}')
        A(f'K2_skipw{mt}:')
        for u in range(5):
            for r in range(4):
                A(f'    v_mov_b32 v{T+60+u*4+r}, v{acc(u,mt)+r}')
        A(f'K2_donew{mt}:')
    A(f'''
    s_lshl_b32 s45, s33, 4
    s_add_u32 s45, s45, s36
    s_mul_i32 s45, s45, 1280
    s_mul_i32 s46, s35, 160
    s_add_u32 s45, s45, s46
    s_movk_i32 s37, 1280
    v_mul_lo_u32 v5, v1, s37
    v_and_b32 v6, 1, v2
    v_lshlrev_b32 v6, 5, v6
    v_lshrrev_b32 v7, 1, v2
    v_lshl_add_u32 v6, v7, 4, v6
    v_add_u32 v6, v6, v5
    v_lshl_add_u32 v7, v2, 3, v5
    s_mul_i32 s46, s33, 5120
    s_add_u32 s46, s46, {RED0}''')
    for k in range(1, 4):
        A(f'''
    s_add_u32 s47, s33, {k}
    s_and_b32 s47, s47, 3
    s_mul_i32 s47, s47, 20480
    s_add_u32 s47, s47, s46
    v_add_u32 v{8+k}, s47, v{VL16}''')
    A('    s_waitcnt lgkmcnt(0)\n    s_barrier')
    for k in range(1, 4):
        for u in range(5):
            A(f'    ds_read_b128 {vr(T+((k-1)*5+u)*4,4)}, v{8+k} offset:{u*1024}')
    for u in range(5):
        A(f'    s_waitcnt lgkmcnt({14 - (10 + u)})' if False else '')
    A('    s_waitcnt lgkmcnt(0)')
    for u in range(5):
        for r in range(4):
            t0 = T + u * 4 + r
            A(f'''
    v_add_f32 v{t0}, v{t0}, v{t0+20}
    v_add_f32 v{t0+40}, v{t0+40}, v{t0+60}
    v_add_f32 v{t0}, v{t0}, v{t0+40}''')
    P = 16
    for pp in range(2):
        t = P + 4 * pp; d0 = T + 8 * pp; d1 = T + 8 * pp + 4
        A(f'''
    v_cvt_pk_bf16_f32 v{t}, v{d0}, v{d0+1}
    v_cvt_pk_bf16_f32 v{t+1}, v{d0+2}, v{d0+3}
    v_cvt_pk_bf16_f32 v{t+2}, v{d1}, v{d1+1}
    v_cvt_pk_bf16_f32 v{t+3}, v{d1+2}, v{d1+3}
    v_permlane16_swap_b32 v{t}, v{t+2}
    v_permlane16_swap_b32 v{t+1}, v{t+3}
    buffer_store_dwordx4 {vr(t,4)}, v6, s[20:23], s45 offen offset:{64*pp}{OSF}''')
    d0 = T + 16
    A(f'''
    v_cvt_pk_bf16_f32 v24, v{d0}, v{d0+1}
    v_cvt_pk_bf16_f32 v25, v{d0+2}, v{d0+3}
    buffer_store_dwordx2 v[24:25], v7, s[20:23], s45 offen offset:128{OSF}''')
    if opts.get('prof'):
        A('    s_waitcnt vmcnt(0)')
        stamp(A, opts, 7)
        stamp_flush(A, opts)

def gen_gemm_full(A, opts):
    OSC = {0: '', 1: ' sc1', 2: ' sc0'}[opts.get('osc', 1)]
    gemm_ids(A, 4, opts)
    A(f'''
    s_waitcnt lgkmcnt(0)
    s_mov_b32 s16, s28
    s_mov_b32 s17, s29
    s_mov_b32 s18, {WS_END}
    s_mov_b32 s19, 0x00020000
    s_mov_b32 s92, s28
    s_mov_b32 s93, s29
    s_mov_b32 s94, {WS_PROF_END}
    s_mov_b32 s95, 0x00020000
    s_barrier
    s_mov_b32 s20, s90
    s_mov_b32 s21, s91
    s_mov_b32 s22, 2621440
    s_mov_b32 s23, 0x00020000
    s_mul_i32 s41, s34, 48
    s_mul_i32 s42, s33, 12
    s_add_u32 s41, s41, s42
    s_lshl_b32 s41, s41, 12
    s_add_u32 s41, s41, {WS_H}
    s_mul_i32 s42, s42, 40
    s_add_u32 s42, s42, s43
    s_lshl_b32 s42, s42, 10
    s_add_u32 s42, s42, {WS_W2F}
    s_lshl_b32 s40, s36, 2
    s_add_u32 s40, s40, {WS_G}
    v_lshlrev_b32 v3, 2, v1''')
    rot = opts.get('rot2', 0)
    if rot:
        A(f'''
    s_and_b32 s46, s34, 3
    s_mul_i32 s46, s46, 3
    s_mul_hi_u32 s47, s35, 0x55555556
    s_mul_i32 s47, s47, 3
    s_sub_u32 s47, s35, s47
    s_add_u32 s48, s46, s47
    s_lshl_b32 s46, s48, 12
    s_add_u32 s41, s41, s46
    s_mul_i32 s46, s48, 40960
    s_add_u32 s42, s42, s46''')
    WRAP = f'''
    s_add_u32 s48, s48, 1
    s_cmp_eq_u32 s48, 12
    s_cselect_b32 s46, {12*4096}, 0
    s_cselect_b32 s47, {12*40960}, 0
    s_cselect_b32 s48, 0, s48
    s_sub_u32 s41, s41, s46
    s_sub_u32 s42, s42, s47''' if rot else ''
    def stage_loads(sl, wfirst=False):
        L = (loadsW(sl) + loadsA(sl)) if wfirst else (loadsA(sl) + loadsW(sl))
        L[-1] += WRAP
        return L
    stamp(A, opts, 3)
    for mt in range(4):
        A(f'    buffer_load_dword v{GM+mt}, v3, s[16:19], s40 offen offset:{64*mt}')
    gd = opts.get('gdelay', 1)
    if gd:
        wait_lds(A, 'K2_gwait', CK if gd == 1 else C1, 4)
    for sl in range(3):
        for l in stage_loads(sl, True): A(l)
    stamp(A, opts, 4)
    gstep(A, 0, stage_loads(3), 18, first=True)
    for sl in range(1, 4):
        gstep(A, sl, stage_loads((sl + 3) % 4), 18)
    for sl in range(4):
        gstep(A, sl, stage_loads((sl + 3) % 4), 18)
    gstep(A, 0, stage_loads(3), 18)
    A(f'''
    s_mul_i32 s42, s33, 240
    s_add_u32 s42, s42, s43
    s_lshl_b32 s42, s42, 10
    s_add_u32 s42, s42, {WS_WOF}''')
    gstep(A, 1, loadsW(0), 18)
    gstep(A, 2, loadsW(1), 9 + 5)
    gstep(A, 3, loadsW(2), 5 + 5)
    stamp(A, opts, 5)
    for l in loadsW(3): A(l)
    for mt in range(4):
        A(f'    v_sub_f32 v{GM+mt}, 1.0, v{GM+mt}')
    A(f'''
    s_lshl_b32 s45, s34, 5
    s_lshl_b32 s46, s33, 3
    s_add_u32 s45, s45, s46
    s_lshl_b32 s45, s45, 2
    s_add_u32 s45, s45, {WS_FLAG2}
    s_mul_i32 s41, s34, 24
    s_mul_i32 s44, s33, 6
    s_add_u32 s41, s41, s44
    s_lshl_b32 s41, s41, 12
    s_add_u32 s41, s41, {WS_OP}
    s_nop 2''')
    for u in range(5):
        for mt in range(4):
            for r in range(4):
                a0 = acc(u, mt) + r
                A(f'    v_mul_f32 v{a0}, v{a0}, v{GM+mt}')
    poll_all(A, 'K2_s2', 's45', 2, opts.get('psleep2', 1))
    stamp(A, opts, 6)
    for sl in range(4):
        for l in loadsA(sl, OSC): A(l)
    gstep(A, 0, [], 12)
    gstep(A, 1, loadsA(0, OSC) + loadsW(0), 8)
    gstep(A, 2, loadsA(1, OSC) + loadsW(1), 4 + 9)
    gstep(A, 3, [], 18)
    gstep(A, 0, [], 9)
    gstep(A, 1, [], 0)
    final_reduce(A, opts)

def gen_wo(A, opts):
    gemm_ids(A, 0, opts)
    A(f'''
    s_mov_b32 s20, s90
    s_mov_b32 s21, s91
    s_mov_b32 s22, 2621440
    s_mov_b32 s23, 0x00020000
    s_mul_i32 s42, s33, 240
    s_add_u32 s42, s42, s43
    s_lshl_b32 s42, s42, 10
    s_add_u32 s42, s42, {WS_WOF}''')
    for sl in range(4):
        for l in loadsW(sl): A(l)
    A(f'''
    s_lshl_b32 s45, s34, 5
    s_lshl_b32 s46, s33, 3
    s_add_u32 s45, s45, s46
    s_lshl_b32 s45, s45, 2
    s_add_u32 s45, s45, {WS_FLAG2}
    s_mul_i32 s41, s34, 24
    s_mul_i32 s44, s33, 6
    s_add_u32 s41, s41, s44
    s_lshl_b32 s41, s41, 12
    s_add_u32 s41, s41, {WS_OP}''')
    poll_all(A, 'K2_s2', 's45', 2, opts.get('psleep2', 1))
    stamp(A, opts, 6)
    for sl in range(4):
        for l in loadsA(sl, ' sc1'): A(l)
    gstep(A, 0, [], 12, first=True)
    stamp(A, opts, 3)
    gstep(A, 1, loadsA(0, ' sc1') + loadsW(0), 8)
    gstep(A, 2, loadsA(1, ' sc1') + loadsW(1), 4 + 9)
    gstep(A, 3, [], 18)
    gstep(A, 0, [], 9)
    gstep(A, 1, [], 0)
    stamp(A, opts, 1)
    wait_lds(A, 'K2_cf', CF, 4, 1)
    A(f'''
    s_mul_i32 s39, s33, 20480
    s_add_u32 s39, s39, {RED0}
    v_add_u32 v4, s39, v{VL16}
    s_mul_i32 s45, s33, 5120
    s_add_u32 s45, s45, s39
    v_add_u32 v5, s45, v{VL16}''')
    T = RB
    for mt in range(4):
        A(f'    s_cmp_eq_u32 s33, {mt}\n    s_cbranch_scc1 K2_skipw{mt}')
        for u in range(5):
            A(f'    ds_write_b128 v4, {vr(acc(u,mt),4)} offset:{(mt*5+u)*1024}')
        A(f'    s_branch K2_donew{mt}')
        A(f'K2_skipw{mt}:')
        for u in range(5):
            for r in range(4):
                A(f'    v_mov_b32 v{T+100+u*4+r}, v{acc(u,mt)+r}')
        A(f'K2_donew{mt}:')
    A('    s_waitcnt lgkmcnt(0)\n    s_barrier')
    stamp(A, opts, 2)
    A(f'''
    s_mul_i32 s45, s33, 5120
    s_add_u32 s45, s45, {RED0}
    v_add_u32 v4, s45, v{VL16}
    v_add_u32 v8, {2*20480}, v4''')
    for w in range(4):
        for u in range(5):
            A(f'    ds_read_b128 {vr(T+(w*5+u)*4,4)}, v{4 if w < 2 else 8} offset:{(w%2)*20480 + u*1024}')
    A(f'''
    s_lshl_b32 s45, s33, 4
    s_add_u32 s45, s45, s36
    s_mul_i32 s45, s45, 1280
    s_mul_i32 s46, s35, 160
    s_add_u32 s45, s45, s46
    s_movk_i32 s37, 1280
    v_mul_lo_u32 v5, v1, s37
    v_and_b32 v6, 1, v2
    v_lshlrev_b32 v6, 5, v6
    v_lshrrev_b32 v7, 1, v2
    v_lshl_add_u32 v6, v7, 4, v6
    v_add_u32 v6, v6, v5
    v_lshl_add_u32 v7, v2, 3, v5
    s_waitcnt lgkmcnt(0)''')
    for u in range(5):
        for r in range(4):
            t0 = T + u * 4 + r
            A(f'''
    v_add_f32 v{t0}, v{t0}, v{t0+20}
    v_add_f32 v{t0+40}, v{t0+40}, v{t0+60}
    v_add_f32 v{t0}, v{t0}, v{t0+100}
    v_add_f32 v{t0}, v{t0}, v{t0+40}''')
    P = 16
    for pp in range(2):
        t = P + 4 * pp; d0 = T + 8 * pp; d1 = T + 8 * pp + 4
        A(f'''
    v_cvt_pk_bf16_f32 v{t}, v{d0}, v{d0+1}
    v_cvt_pk_bf16_f32 v{t+1}, v{d0+2}, v{d0+3}
    v_cvt_pk_bf16_f32 v{t+2}, v{d1}, v{d1+1}
    v_cvt_pk_bf16_f32 v{t+3}, v{d1+2}, v{d1+3}
    v_permlane16_swap_b32 v{t}, v{t+2}
    v_permlane16_swap_b32 v{t+1}, v{t+3}
    buffer_store_dwordx4 {vr(t,4)}, v6, s[20:23], s45 offen offset:{64*pp}''')
    d0 = T + 16
    A(f'''
    v_cvt_pk_bf16_f32 v24, v{d0}, v{d0+1}
    v_cvt_pk_bf16_f32 v25, v{d0+2}, v{d0+3}
    buffer_store_dwordx2 v[24:25], v7, s[20:23], s45 offen offset:128''')
    if opts.get('prof'):
        A('    s_waitcnt vmcnt(0)')
        stamp(A, opts, 7)
        stamp_flush(A, opts)
    A('    s_branch KF_done')

def desc(name, vg):
    return f'''
.amdhsa_kernel {name}
  .amdhsa_next_free_vgpr {vg}
  .amdhsa_next_free_sgpr 102
  .amdhsa_accum_offset {vg}
  .amdhsa_group_segment_fixed_size 0
  .amdhsa_kernarg_size 80
  .amdhsa_user_sgpr_count 2
  .amdhsa_user_sgpr_kernarg_segment_ptr 1
  .amdhsa_system_sgpr_workgroup_id_x 1
.end_amdhsa_kernel
'''

if __name__ == '__main__':
    import sys
    out = sys.argv[1]
    opts = {}
    for kv in sys.argv[2:]:
        k, v = kv.split('=')
        opts[k] = int(v)
    HEADER = open('gated_mix__sliding_block__dense_activation_relu__prompt.s.ref').read().split('; Override launch')[0]
    o1 = dict(opts); o2 = dict(opts)
    if opts.get('prof') == 2: o1.pop('prof')
    a1 = Asm(); gen_k1(a1, o1)
    a2 = Asm(); gen_k2(a2, o2)
    txt = HEADER + f'; @launch kernel=k1_kernel grid=(256,1,1) block=(512,1,1) lds={LDS_BYTES}\n'
    if not opts.get('k1only'): txt += f'; @launch kernel=k2_kernel grid=(256,1,1) block=(512,1,1) lds={K2_LDS}\n'
    txt += '.amdgcn_target "amdgcn-amd-amdhsa--gfx950"\n.text\n'
    txt += '.globl k1_kernel\n.p2align 8\n.type k1_kernel,@function\n' + a1.fix() + '\n'
    txt += '.globl k2_kernel\n.p2align 8\n.type k2_kernel,@function\n' + a2.fix() + '\n'
    txt += '.section .rodata,"a"\n.p2align 6' + desc('k1_kernel', 232) + '.p2align 6' + desc('k2_kernel', 248)
    open(out, 'w').write(txt)
```
